```python
import torch

def _softmax(x, axis=-1):
    return torch.softmax(x, dim=axis)
def _gelu(x):
    return torch.nn.functional.gelu(x, approximate="tanh")
def _silu(x):
    return torch.nn.functional.silu(x)
def _sigmoid(x):
    return torch.sigmoid(x)
def _layernorm(x, axis=-1, eps=1e-5):
    m = x.mean(dim=axis, keepdim=True)
    v = x.var(dim=axis, keepdim=True, unbiased=False)
    return (x - m) / torch.sqrt(v + eps)
def _scatter_add(tgt, idx, src, axis=0):
    return tgt.clone().index_add_(axis, idx, src)
def _segment_sum(src, seg, n):
    out = torch.zeros((n,) + src.shape[1:], dtype=src.dtype)
    return out.index_add_(0, seg, src)
def _pad(x, pw):
    flat = tuple(v for pair in reversed(pw) for v in pair)
    return torch.nn.functional.pad(x, flat)

kernel_name = 'gated_mix__mha_block_cached__glu_gated_bilinear__decode'

def setup_inputs():

    _w = (lambda a: (lambda t: t.to(torch.bfloat16) if t.is_floating_point() else t)(torch.as_tensor(a)))
    def _A_setup():
        B, Sq, D = 4, 1, 640
        H, Sk, Dh = 32, 4096, 128
        return {
            "x": _w((lambda *s: torch.randn(*s, dtype=torch.bfloat16) * 0.05)(B, Sq, D)),
            "k_cache": _w((lambda *s: torch.randn(*s, dtype=torch.bfloat16) * 6.4)(B, H, Sk, Dh)),
            "v_cache": _w((lambda *s: torch.randn(*s, dtype=torch.bfloat16) * 0.05)(B, H, Sk, Dh)),
            "wq": _w((lambda *s: torch.randn(*s, dtype=torch.bfloat16) * 6.4)(D, H * Dh) * (D ** -0.5)),
            "wo": _w((lambda *s: torch.randn(*s, dtype=torch.bfloat16) * 0.05)(H * Dh, D) * ((H * Dh) ** -0.5)),
        }
    _A_in = _A_setup()

    def _B_setup():
        B, S, D, F = 4, 1, 640, 1728
        return {
            "x": _w((lambda *s: torch.randn(*s, dtype=torch.bfloat16) * 0.05)(B, S, D)),
            "w_gate": _w((lambda *s: torch.randn(*s, dtype=torch.bfloat16) * 0.4)(D, F) * (D ** -0.5)),
            "w_up": _w((lambda *s: torch.randn(*s, dtype=torch.bfloat16) * 0.4)(D, F) * (D ** -0.5)),
            "w_down": _w((lambda *s: torch.randn(*s, dtype=torch.bfloat16) * 0.4)(F, D) * (F ** -0.5)),
        }
    _B_in = _B_setup()

    return {
        "A_x": _A_in["x"],
        "A_k_cache": _A_in["k_cache"],
        "A_v_cache": _A_in["v_cache"],
        "A_wq": _A_in["wq"],
        "A_wo": _A_in["wo"],
        "B_x": _B_in["x"],
        "B_w_gate": _B_in["w_gate"],
        "B_w_up": _B_in["w_up"],
        "B_w_down": _B_in["w_down"],
        "gate_w": _w((lambda *s: torch.randn(*s, dtype=torch.bfloat16) * 0.05)(640) * 16.0),
    }

def reference(A_x, A_k_cache, A_v_cache, A_wq, A_wo, B_x, B_w_gate, B_w_up, B_w_down, gate_w):
    def _A_ref(x, k_cache, v_cache, wq, wo):
        B, Sq, D = x.shape
        H, Dh = 32, 128
        q = (lambda x, *d: x.permute(*d))((x @ wq).reshape(B, Sq, H, Dh), 0, 2, 1, 3)
        scores = torch.einsum("bhqd,bhkd->bhqk", q, k_cache) * (Dh ** -0.5)
        p = _softmax(scores, axis=-1)
        o = torch.einsum("bhqk,bhkd->bhqd", p, v_cache)
        return (lambda x, *d: x.permute(*d))(o, 0, 2, 1, 3).reshape(B, Sq, H * Dh) @ wo

    def _B_ref(x, w_gate, w_up, w_down):
        g = torch.einsum("bsd,df->bsf", x, w_gate)
        u = torch.einsum("bsd,df->bsf", x, w_up)
        h = g * u
        return torch.einsum("bsf,fd->bsd", h, w_down)

    x = A_x
    g = _sigmoid((x * gate_w).sum(-1, keepdims=True))
    a = _A_ref(x, A_k_cache, A_v_cache, A_wq, A_wo)
    b = _B_ref(x, B_w_gate, B_w_up, B_w_down)
    return g * a + (1 - g) * b
```

```python
import sys

NAME = "gated_mix__mha_block_cached__glu_gated_bilinear__decode"
KNAME = NAME + "_kernel"
DEBUG = "--debug" in sys.argv
OUT = [a for a in sys.argv[1:] if not a.startswith("--")]
OUT = OUT[0] if OUT else "cdna_kernels/%s.s" % NAME

NATT, NAUX, NFFN = 256, 80, 27
REG = 12288
REC_OFF = 11776
WS_USED = NAUX * REG
DBG_WS = 1 << 20
WS_REC = (WS_USED if not DEBUG else (64 << 20))

P_ROW, P_WAVE = 528, 2112
L_QP = 8448
L_OP = 12544
L_YP = 16384
L_X = 0
L_H = 8192
L_R = 8704
L_GU = 10240
L_YF = 10240
LDS_BYTES = 51200

L = []
def e(s): L.append("    " + s)
def lab(s): L.append(s + ":")
def cmt(s): L.append("    ; " + s)
def vr(a, n=4): return "v[%d:%d]" % (a, a + n - 1)

S_W, S_H, S_B, S_HALF, S_BH = "s3", "s6", "s7", "s8", "s9"
S_OFF, S_IT, S_T0, S_T1, S_REC = "s10", "s11", "s12", "s13", "s14"
SRD_S, SRD_W, SRD_WS, SRD_DBG, SRD_X = 44, 48, 52, 56, 60
def srd(n): return "s[%d:%d]" % (n, n + 3)
def mk_srd(n, lo, hi, nrec):
    e("s_mov_b32 s%d, %s" % (n, lo))
    e("s_mov_b32 s%d, %s" % (n + 1, hi))
    e("s_mov_b32 s%d, 0x%x" % (n + 2, nrec))
    e("s_mov_b32 s%d, 0x00020000" % (n + 3))

BUF = 32
WREG = 96
def B(i): return BUF + 4 * i
def W(i): return WREG + 4 * i

LOG2E = "0x3fb8aa3b"
SCALE = "0x3db504f3"
MFMA = "v_mfma_f32_16x16x32_bf16"

class VM:
    def __init__(self): self.q = []
    def issue(self, tag): self.q.append(tag); assert len(self.q) <= 63
    def wait(self, tag):
        idx = [i for i, t in enumerate(self.q) if t == tag]
        if not idx: return
        idx = max(idx)
        e("s_waitcnt vmcnt(%d)" % (len(self.q) - 1 - idx))
        self.q = self.q[idx + 1:]

def sel_build(dst, kind, t):
    pa = {"E": 0x0100, "PV": 0x0100, "KP": 0x0100, "KO": 0x0302, "TE": 0x0100, "TO": 0x0302}[kind]
    pb = {"E": 0x0100, "PV": 0x0302, "KP": 0x0100, "KO": 0x0302, "TE": 0x0504, "TO": 0x0706}[kind]
    a, b, c = t, t + 1, t + 2
    e("v_mov_b32 v%d, 0x%x" % (a, pa))
    e("v_mov_b32 v%d, 0x%x" % (b, pb))
    e("v_and_b32 v%d, 8, v0" % c)
    e("v_cmp_ne_u32 vcc, 0, v%d" % c)
    e("s_nop 1")
    e("v_cndmask_b32 v%d, v%d, v%d, vcc" % (a, a, b))
    e("v_or_b32 v%d, 0x0c0c0000, v%d" % (b, a))
    e("v_lshlrev_b32 v%d, 16, v%d" % (a, a))
    e("v_or_b32 v%d, 0x0c0c, v%d" % (a, a))
    e("v_and_b32 v%d, 1, v0" % c)
    e("v_cmp_ne_u32 vcc, 0, v%d" % c)
    e("s_nop 1")
    e("v_cndmask_b32 v%d, v%d, v%d, vcc" % (a, b, a))
    e("v_mov_b32 v%d, 0x0c0c0c0c" % b)
    e("v_bfe_u32 v%d, v0, 1, %d" % (c, 3 if kind == "E" else 2))
    for i in range(4):
        e("v_cmp_eq_u32 vcc, %d, v%d" % (i, c))
        e("s_nop 1")
        e("v_cndmask_b32 v%d, v%d, v%d, vcc" % (dst + i, b, a))

def allreduce64(op, v, t):
    for r in (8, 4, 2, 1):
        e("s_nop 1")
        e("v_%s_f32_dpp v%d, v%d, v%d row_ror:%d row_mask:0xf bank_mask:0xf" % (op, v, v, v, r))
    for sw in ("16", "32"):
        e("v_mov_b32 v%d, v%d" % (t, v))
        e("s_nop 1")
        e("v_permlane%s_swap_b32 v%d, v%d" % (sw, v, t))
        e("s_nop 1")
        e("v_%s_f32 v%d, v%d, v%d" % (op, v, v, t))

def allreduce8(op, v):
    for m in ("row_half_mirror", "quad_perm:[1,0,3,2]", "quad_perm:[2,3,0,1]"):
        e("s_nop 1")
        e("v_%s_f32_dpp v%d, v%d, v%d %s row_mask:0xf bank_mask:0xf" % (op, v, v, v, m))

def bf16r(v):
    e("v_cvt_pk_bf16_f32 v%d, v%d, v%d" % (v, v, v))
    e("v_lshlrev_b32 v%d, 16, v%d" % (v, v))

def hilo_pack(a, b, t):
    e("v_cvt_pk_bf16_f32 v%d, v%d, v%d" % (t, a, b))
    e("v_lshlrev_b32 v%d, 16, v%d" % (t + 1, t))
    e("v_and_b32 v%d, 0xffff0000, v%d" % (t + 2, t))
    e("v_sub_f32 v%d, v%d, v%d" % (t + 1, a, t + 1))
    e("v_sub_f32 v%d, v%d, v%d" % (t + 2, b, t + 2))
    e("v_cvt_pk_bf16_f32 v%d, v%d, v%d" % (t + 1, t + 1, t + 2))
    e("v_perm_b32 v%d, v%d, v%d, %s" % (a, t + 1, t, S_T0))
    e("v_perm_b32 v%d, v%d, v%d, %s" % (b, t + 1, t, S_T1))

def stream_load(t):
    e("buffer_load_dwordx4 %s, v1, %s, %s offen nt" % (vr(B(t)), srd(SRD_S), S_OFF))
    e("s_add_u32 %s, %s, 0x1000" % (S_OFF, S_OFF))

def dbg_dump(vdata, n, voff, slot):
    if not DEBUG: return
    e("s_lshl_b32 s15, s2, 12")
    e("s_add_u32 s15, s15, 0x%x" % (DBG_WS + slot * (2 << 20)))
    op = {1: "dword", 2: "dwordx2", 4: "dwordx4"}[n]
    e("buffer_store_%s %s, v%d, %s, s15 offen" % (op, vr(vdata, n) if n > 1 else "v%d" % vdata, voff, srd(SRD_WS)))
    e("s_waitcnt vmcnt(0)")

def k_body(waitn):
    P = [8, 9, 10, 11]; Y0, Y1, Z, T, S, TMP = 12, 13, 14, 15, 16, 17
    for G in range(4):
        e("s_waitcnt vmcnt(%d)" % waitn)
        for k in range(4):
            for u in range(4):
                c = "0" if k == 0 else "v%d" % P[u]
                e("v_dot2_f32_bf16 v%d, v%d, v%d, %s" % (P[u], B(4 * G + u) + k, 4 + k, c))
        e("v_add_f32_dpp v%d, v%d, v%d row_ror:8 row_mask:0xf bank_mask:0x3" % (Y0, P[0], P[0]))
        e("v_add_f32_dpp v%d, v%d, v%d row_ror:8 row_mask:0xf bank_mask:0xc" % (Y0, P[1], P[1]))
        e("v_add_f32_dpp v%d, v%d, v%d row_ror:8 row_mask:0xf bank_mask:0x3" % (Y1, P[2], P[2]))
        e("v_add_f32_dpp v%d, v%d, v%d row_ror:8 row_mask:0xf bank_mask:0xc" % (Y1, P[3], P[3]))
        stream_load(4 * G + 0)
        e("v_add_f32_dpp v%d, v%d, v%d row_half_mirror row_mask:0xf bank_mask:0x5" % (Z, Y0, Y0))
        e("v_add_f32_dpp v%d, v%d, v%d row_half_mirror row_mask:0xf bank_mask:0xa" % (Z, Y1, Y1))
        stream_load(4 * G + 1)
        e("v_add_f32_dpp v%d, v%d, v%d quad_perm:[1,0,3,2] row_mask:0xf bank_mask:0xf" % (Z, Z, Z))
        stream_load(4 * G + 2)
        d = S if G == 0 else T
        e("v_add_f32_dpp v%d, v%d, v%d quad_perm:[2,3,0,1] row_mask:0xf bank_mask:0xf" % (d, Z, Z))
        stream_load(4 * G + 3)
        if G:
            e("v_cndmask_b32 v%d, v%d, v%d, s[%d:%d]" % (S, S, T, 62 + 2 * G, 63 + 2 * G))
    e("v_cvt_pk_bf16_f32 v%d, v%d, v%d" % (TMP, S, S))
    e("v_lshlrev_b32 v%d, 16, v%d" % (TMP, TMP))
    e("v_mul_f32 v%d, %s, v%d" % (TMP, SCALE, TMP))
    bf16r(TMP)
    e("v_max_f32 v3, v3, v%d" % TMP)
    e("ds_write_b32 v2, v%d" % TMP)
    e("v_add_u32 v2, 64, v2")

def v_body(loads):
    A, ACC = 8, 20
    PB = [12, 16]
    for G in range(4):
        e("s_waitcnt lgkmcnt(0)")
        e("ds_read_b128 %s, v2 offset:%d" % (vr(PB[(G + 1) & 1]), (G + 1) * 16))
        for u in range(4):
            t = 4 * G + u
            p = PB[G & 1] + u
            for i in range(4):
                e("v_perm_b32 v%d, v%d, v%d, v%d" % (A + i, p, p, 4 + i))
            e("s_waitcnt vmcnt(%d)" % (15 if loads else 15 - t))
            e("s_nop 0")
            e("%s %s, %s, %s, %s" % (MFMA, vr(ACC), vr(A), vr(B(t)), vr(ACC)))
            if loads:
                stream_load(t)
    e("v_add_u32 v2, 64, v2")

SPIN_MAX = 400000
def spin_guard(exit_lbl):
    e("s_add_u32 s72, s72, 1")
    e("s_cmp_gt_u32 s72, %d" % SPIN_MAX)
    e("s_cbranch_scc1 %s" % exit_lbl)

def poll_cleared(lbl, v, exit_lbl):
    lab(lbl)
    spin_guard(exit_lbl)
    e("s_sleep 4")
    e("buffer_load_dword v%d, off, %s, 0 sc1" % (v, srd(SRD_DBG)))
    e("s_waitcnt vmcnt(0)")
    e("v_readfirstlane_b32 %s, v%d" % (S_T0, v))
    e("s_cmp_lg_u32 %s, %d" % (S_T0, NAUX))
    e("s_cbranch_scc1 %s" % lbl)

def attention():
    vm = VM()
    e("s_and_b32 s4, s2, 7")
    e("s_lshr_b32 s5, s2, 3")
    e("s_and_b32 %s, s5, 3" % S_H)
    e("s_lshl_b32 %s, %s, 3" % (S_H, S_H))
    e("s_add_u32 %s, %s, s4" % (S_H, S_H))
    e("s_lshr_b32 %s, s5, 2" % S_B)
    e("s_and_b32 %s, %s, 3" % (S_B, S_B))
    e("s_lshr_b32 %s, s5, 4" % S_HALF)
    e("s_lshl_b32 %s, %s, 5" % (S_BH, S_B))
    e("s_add_u32 %s, %s, %s" % (S_BH, S_BH, S_H))
    e("v_lshrrev_b32 v24, 4, v0")
    e("v_and_b32 v25, 15, v0")
    e("v_lshlrev_b32 v25, 4, v25")
    e("s_mul_i32 %s, %s, 1280" % (S_T0, S_B))
    e("s_mul_i32 %s, %s, 320" % (S_T1, S_W))
    e("s_add_u32 %s, %s, %s" % (S_T0, S_T0, S_T1))
    e("v_mul_u32_u24 v26, 80, v24")
    e("v_add_u32 v26, %s, v26" % S_T0)
    e("s_mul_i32 %s, %s, %d" % (S_T0, S_W, 160 * 8192))
    e("s_lshl_b32 %s, %s, 8" % (S_T1, S_H))
    e("s_add_u32 %s, %s, %s" % (S_T0, S_T0, S_T1))
    e("v_mul_u32_u24 v27, 0x%x, v24" % (40 * 8192))
    e("v_add3_u32 v27, v27, v25, %s" % S_T0)
    e("s_lshl_b32 %s, %s, 10" % (S_T0, S_W))
    e("v_lshlrev_b32 v1, 4, v0")
    e("v_add_u32 v1, %s, v1" % S_T0)
    e("s_lshl_b32 %s, %s, 20" % (S_T0, S_BH))
    e("s_lshl_b32 %s, %s, 19" % (S_T1, S_HALF))
    e("s_add_u32 %s, %s, %s" % (S_T0, S_T0, S_T1))
    e("s_waitcnt lgkmcnt(0)")
    mk_srd(SRD_X, "s16", "s17", 5120)
    mk_srd(SRD_W, "s22", "s23", 640 * 8192)
    e("s_add_u32 s%d, s18, %s" % (SRD_S, S_T0))
    e("s_addc_u32 s%d, s19, 0" % (SRD_S + 1))
    e("s_mov_b32 s%d, 0x80000" % (SRD_S + 2))
    e("s_mov_b32 s%d, 0x00020000" % (SRD_S + 3))
    e("s_add_u32 s42, s20, %s" % S_T0)
    e("s_addc_u32 s43, s21, 0")
    XR = [8, 12, 16, 20, B(14)]
    for i in range(5):
        e("buffer_load_dwordx4 %s, v26, %s, 0 offen offset:%d" % (vr(XR[i]), srd(SRD_X), 16 * i)); vm.issue("x")
    e("s_mov_b32 %s, 0" % S_T1)
    for t in range(40):
        e("buffer_load_dwordx4 %s, v27, %s, %s offen" % (vr(W(t)), srd(SRD_W), S_T1)); vm.issue("wq%d" % t)
        if t < 39: e("s_add_u32 %s, %s, 0x2000" % (S_T1, S_T1))
    e("s_mov_b32 %s, 0" % S_OFF)
    for t in range(14):
        stream_load(t); vm.issue("k")
    mk_srd(SRD_WS, "s40", "s41", WS_REC)
    mk_srd(SRD_DBG, "s38", "s39", 256)
    for i, m in enumerate((0x22222222, 0x44444444, 0x88888888)):
        e("s_mov_b32 s%d, 0x%x" % (64 + 2 * i, m)); e("s_mov_b32 s%d, 0x%x" % (65 + 2 * i, m))
    e("s_lshr_b32 %s, %s, 1" % (S_REC, S_BH))
    e("s_mul_i32 %s, %s, %d" % (S_REC, S_REC, REG))
    e("s_and_b32 %s, %s, 1" % (S_T0, S_BH))
    e("s_lshl_b32 %s, %s, 7" % (S_T0, S_T0))
    e("s_add_u32 %s, %s, %s" % (S_REC, S_REC, S_T0))
    e("s_add_u32 %s, %s, %d" % (S_REC, S_REC, REC_OFF))
    sel_build(4, "E", 28)
    e("s_lshl_b32 %s, %s, 7" % (S_T0, S_H))
    e("s_lshl_b32 %s, %s, 5" % (S_T1, S_W))
    e("s_add_u32 %s, %s, %s" % (S_T0, S_T0, S_T1))
    e("s_mul_i32 %s, %s, 1280" % (S_T0, S_T0))
    e("v_mul_u32_u24 v27, 0x%x, v24" % (8 * 1280))
    e("v_add3_u32 v27, v27, v25, %s" % S_T0)
    A, ACC = 28, B(15)
    for t in range(40):
        xr = XR[t // 8] + (t % 8) // 2
        vm.wait("x")
        if t & 1:
            e("v_lshrrev_b32 v3, 16, v%d" % xr); src = 3
        else:
            src = xr
        for i in range(4):
            e("v_perm_b32 v%d, v%d, v%d, v%d" % (A + i, src, src, 4 + i))
        vm.wait("wq%d" % t)
        e("s_nop 0")
        e("%s %s, %s, %s, %s" % (MFMA, vr(ACC), vr(A), vr(W(t)), "0" if t == 0 else vr(ACC)))
    e("v_add_u32 v26, 0x%x, v1" % L_QP)
    mk_srd(SRD_W, "s24", "s25", 4096 * 1280)
    e("s_nop 3")
    e("ds_write_b128 v26, %s" % vr(ACC))
    e("v_add_u32 v26, 0x%x, v25" % L_QP)
    e("s_mov_b32 %s, 0" % S_T1)
    e("s_waitcnt lgkmcnt(0)")
    for t in (14, 15):
        stream_load(t); vm.issue("k")
    e("s_barrier")
    QD = [(8, 12), (16, 20), (4, 28)]
    for w in range(3):
        e("ds_read_b128 %s, v26 offset:%d" % (vr(QD[w][0]), w * 1024))
        e("ds_read_b128 %s, v26 offset:%d" % (vr(QD[w][1]), w * 1024 + 256))
    for g in range(8):
        for cb in range(5):
            e("buffer_load_dwordx4 %s, v27, %s, %s offen offset:%d" % (vr(W(g * 5 + cb)), srd(SRD_W), S_T1, cb * 256)); vm.issue("wo")
        if g < 7: e("s_add_u32 %s, %s, 1280" % (S_T1, S_T1))
        if g == 3:
            e("s_waitcnt lgkmcnt(0)")
            for i in range(8):
                e("v_add_f32 v%d, v%d, v%d" % (8 + i, 8 + i, 16 + i))
            e("ds_read_b128 %s, v26 offset:%d" % (vr(16), 3 * 1024))
            e("ds_read_b128 %s, v26 offset:%d" % (vr(20), 3 * 1024 + 256))
            for i in range(4):
                e("v_add_f32 v%d, v%d, v%d" % (8 + i, 8 + i, 4 + i))
                e("v_add_f32 v%d, v%d, v%d" % (12 + i, 12 + i, 28 + i))
    e("s_waitcnt lgkmcnt(0)")
    for i in range(8):
        e("v_add_f32 v%d, v%d, v%d" % (8 + i, 8 + i, 16 + i))
    for i in range(4):
        e("v_cvt_pk_bf16_f32 v%d, v%d, v%d" % (4 + i, 8 + 2 * i, 9 + 2 * i))
    dbg_dump(4, 4, 1, 0)
    e("v_mul_u32_u24 v2, %d, v24" % P_ROW)
    e("s_mul_i32 %s, %s, %d" % (S_T0, S_W, P_WAVE))
    e("v_add_u32 v2, %s, v2" % S_T0)
    e("v_and_b32 v26, 3, v0")
    e("v_lshlrev_b32 v26, 4, v26")
    e("v_bfe_u32 v27, v0, 2, 1")
    e("v_lshl_add_u32 v26, v27, 3, v26")
    e("v_bfe_u32 v27, v0, 3, 1")
    e("v_lshl_add_u32 v26, v27, 2, v26")
    e("v_add_u32 v2, v2, v26")
    e("v_mov_b32 v3, 0xff800000")
    k_body(12 if DEBUG else 52)
    e("s_mov_b32 %s, 1" % S_IT)
    lab("L_kloop")
    k_body(12)
    e("s_add_u32 %s, %s, 1" % (S_IT, S_IT))
    e("s_cmp_lt_u32 %s, 7" % S_IT)
    e("s_cbranch_scc1 L_kloop")
    e("s_cmp_eq_u32 %s, 8" % S_IT)
    e("s_cbranch_scc1 L_kdone")
    e("s_mov_b32 s%d, s42" % SRD_S)
    e("s_mov_b32 s%d, s43" % (SRD_S + 1))
    e("s_mov_b32 %s, 0" % S_OFF)
    e("s_branch L_kloop")
    lab("L_kdone")
    e("buffer_load_dword v27, off, %s, 0 sc1" % srd(SRD_DBG))
    e("v_subrev_u32 v2, 512, v2")
    for k in range(8):
        e("ds_read_b32 v%d, v2 offset:%d" % (8 + k, 64 * k))
    allreduce64("max", 3, 16)
    e("s_mov_b32 %s, 0x05040100" % S_T0)
    e("s_mov_b32 %s, 0x07060302" % S_T1)
    e("s_waitcnt lgkmcnt(0)")
    for k in range(8):
        e("v_sub_f32 v%d, v%d, v3" % (8 + k, 8 + k))
    for k in range(8):
        e("v_mul_f32 v%d, %s, v%d" % (8 + k, LOG2E, 8 + k))
    for k in range(8):
        e("v_exp_f32 v%d, v%d" % (8 + k, 8 + k))
    e("s_nop 0")
    e("v_add_f32 v24, v8, v9")
    for k in range(2, 8):
        e("v_add_f32 v24, v24, v%d" % (8 + k))
    for k in range(4):
        hilo_pack(8 + 2 * k, 9 + 2 * k, 16)
    for k in range(8):
        e("ds_write_b32 v2, v%d offset:%d" % (8 + k, 64 * k))
    e("v_lshrrev_b32 v2, 4, v0")
    e("v_mul_u32_u24 v2, %d, v2" % P_ROW)
    e("s_mul_i32 %s, %s, %d" % (S_T0, S_W, P_WAVE))
    e("v_add_u32 v2, %s, v2" % S_T0)
    e("ds_read_b128 %s, v2" % vr(12))
    allreduce64("add", 24, 20)
    sel_build(4, "PV", 28)
    for i in range(4):
        e("v_mov_b32 v%d, 0" % (20 + i))
    e("s_mov_b32 %s, 0" % S_IT)
    lab("L_vloop")
    v_body(True)
    e("s_add_u32 %s, %s, 1" % (S_IT, S_IT))
    e("s_cmp_eq_u32 %s, 1" % S_IT)
    e("s_cbranch_scc1 L_act1")
    e("s_cmp_eq_u32 %s, 4" % S_IT)
    e("s_cbranch_scc1 L_act4")
    e("s_cmp_eq_u32 %s, 5" % S_IT)
    e("s_cbranch_scc1 L_act5")
    lab("L_vcont")
    e("s_cmp_lt_u32 %s, 7" % S_IT)
    e("s_cbranch_scc1 L_vloop")
    v_body(False)
    ACC = 20
    e("v_and_b32 v26, 31, v0")
    e("v_and_b32 v27, 15, v26")
    e("v_lshlrev_b32 v27, 5, v27")
    e("v_lshrrev_b32 v26, 4, v26")
    e("v_lshl_add_u32 v27, v26, 4, v27")
    e("v_lshrrev_b32 v26, 5, v0")
    e("s_lshl_b32 %s, %s, 9" % (S_T0, S_W))
    e("s_add_u32 %s, %s, %d" % (S_T0, S_T0, L_OP))
    e("v_lshl_add_u32 v28, v26, 2, v27")
    e("v_add_u32 v28, %s, v28" % S_T0)
    for i in range(4):
        e("v_mul_f32 v%d, v25, v%d" % (ACC + i, ACC + i))
    e("s_mul_i32 %s, %s, 5120" % (S_T0, S_W))
    e("s_add_u32 %s, %s, %d" % (S_T0, S_T0, L_YP))
    e("v_permlane32_swap_b32 v%d, v%d" % (ACC, ACC + 1))
    e("v_permlane32_swap_b32 v%d, v%d" % (ACC + 2, ACC + 3))
    e("v_mul_u32_u24 v29, 2560, v26")
    e("v_add3_u32 v29, v29, v27, %s" % S_T0)
    e("v_add_f32 v%d, v%d, v%d" % (ACC, ACC, ACC + 1))
    e("v_add_f32 v%d, v%d, v%d" % (ACC + 2, ACC + 2, ACC + 3))
    e("ds_write_b32 v28, v%d" % ACC)
    e("ds_write_b32 v28, v%d offset:8" % (ACC + 2))
    e("v_lshrrev_b32 v30, 4, v0")
    e("v_lshlrev_b32 v30, 5, v30")
    e("s_lshl_b32 %s, %s, 7" % (S_T0, S_W))
    e("s_add_u32 %s, %s, %d" % (S_T0, S_T0, L_OP))
    e("v_add_u32 v30, %s, v30" % S_T0)
    e("s_mov_b32 %s, 0x05040100" % S_T0)
    e("s_mov_b32 %s, 0x07060302" % S_T1)
    e("s_waitcnt lgkmcnt(0)")
    e("s_barrier")
    O = 32
    for w in range(4):
        e("ds_read_b128 %s, v30 offset:%d" % (vr(O + 8 * w), w * 512))
        e("ds_read_b128 %s, v30 offset:%d" % (vr(O + 8 * w + 4), w * 512 + 16))
    e("s_waitcnt lgkmcnt(4)")
    for i in range(8):
        e("v_add_f32 v%d, v%d, v%d" % (O + i, O + i, O + 8 + i))
    e("s_waitcnt lgkmcnt(0)")
    for i in range(8):
        e("v_add_f32 v%d, v%d, v%d" % (O + 16 + i, O + 16 + i, O + 24 + i))
    for i in range(8):
        e("v_add_f32 v%d, v%d, v%d" % (O + i, O + i, O + 16 + i))
    if DEBUG:
        e("v_lshlrev_b32 v31, 5, v0")
        e("v_lshl_add_u32 v31, %s, 11, v31" % S_W)
        e("s_lshl_b32 s15, s2, 13")
        e("s_add_u32 s15, s15, 0x%x" % (DBG_WS + 1 * (4 << 20)))
        e("buffer_store_dwordx4 %s, v31, %s, s15 offen" % (vr(O), srd(SRD_WS)))
        e("buffer_store_dwordx4 %s, v31, %s, s15 offen offset:16" % (vr(O + 4), srd(SRD_WS)))
        e("s_waitcnt vmcnt(0)")
    for k in range(4):
        hilo_pack(O + 2 * k, O + 2 * k + 1, O + 8 + 3 * k)
    AB = [64, 68]; YA = 72
    def perms(g):
        for i in range(4):
            e("v_perm_b32 v%d, v%d, v%d, v%d" % (AB[g & 1] + i, O + g, O + g, 4 + i))
    perms(0)
    e("s_nop 1")
    for g in range(8):
        for cb in range(5):
            e("%s %s, %s, %s, %s" % (MFMA, vr(YA + 4 * cb), vr(AB[g & 1]), vr(W(g * 5 + cb)), "0" if g == 0 else vr(YA + 4 * cb)))
            if cb == 0 and g < 7: perms(g + 1)
    e("s_lshl_b32 %s, %s, 6" % (S_T0, S_W))
    e("v_add_u32 v26, %s, v0" % S_T0)
    e("v_lshrrev_b32 v27, 3, v26")
    e("v_mul_u32_u24 v27, 0x%x, v27" % (4 * REG))
    e("v_and_b32 v28, 7, v26")
    e("v_lshl_add_u32 v27, v28, 4, v27")
    e("s_mul_i32 %s, %s, %d" % (S_T0, S_B, REG))
    e("s_lshl_b32 %s, %s, 8" % (S_T1, S_H))
    e("s_add_u32 %s, %s, %s" % (S_T0, S_T0, S_T1))
    e("s_lshl_b32 %s, %s, 7" % (S_T1, S_HALF))
    e("s_add_u32 %s, %s, %s" % (S_T0, S_T0, S_T1))
    e("v_lshlrev_b32 v28, 4, v26")
    e("v_add_u32 v28, 0x%x, v28" % L_YP)
    for cb in range(5):
        e("ds_write_b128 v29, %s offset:%d" % (vr(YA + 4 * cb), cb * 512))
    e("v_cmp_gt_u32 vcc, 160, v26")
    e("s_waitcnt lgkmcnt(0)")
    e("s_barrier")
    e("s_and_saveexec_b64 s[70:71], vcc")
    e("s_cbranch_execz L_end")
    for p in range(8):
        e("ds_read_b128 %s, v28 offset:%d" % (vr(O + 4 * p), p * 2560))
    for p in (1, 3, 5, 7):
        e("s_waitcnt lgkmcnt(%d)" % (7 - p))
        for i in range(4):
            e("v_add_f32 v%d, v%d, v%d" % (O + 4 * (p - 1) + i, O + 4 * (p - 1) + i, O + 4 * p + i))
    for i in range(4):
        e("v_add_f32 v%d, v%d, v%d" % (O + i, O + i, O + 8 + i))
        e("v_add_f32 v%d, v%d, v%d" % (O + 16 + i, O + 16 + i, O + 24 + i))
    for i in range(4):
        e("v_add_f32 v%d, v%d, v%d" % (O + i, O + i, O + 16 + i))
    e("buffer_store_dwordx4 %s, v27, %s, %s offen sc1" % (vr(O), srd(SRD_WS), S_T0))
    e("s_cmp_lg_u32 %s, 0" % S_W)
    e("s_cbranch_scc1 L_end")
    e("s_mov_b64 exec, 1")
    e("v_mov_b32 v26, 1")
    e("buffer_atomic_add v26, off, %s, 0 offset:128 sc1" % srd(SRD_DBG))
    e("s_endpgm")
    lab("L_act1")
    e("v_readfirstlane_b32 %s, v27" % S_T0)
    e("s_cmp_eq_u32 %s, %d" % (S_T0, NAUX))
    e("s_cbranch_scc1 L_act1b")
    poll_cleared("L_act1p", 27, "L_act1b")
    lab("L_act1b")
    e("v_mov_b32 v28, v3")
    e("v_mov_b32 v29, v24")
    e("v_mov_b32 v30, 1")
    e("v_mov_b32 v31, 0")
    e("s_lshl_b32 %s, %s, 2" % (S_T0, S_HALF))
    e("s_add_u32 %s, %s, %s" % (S_T0, S_T0, S_W))
    e("s_lshl_b32 %s, %s, 4" % (S_T0, S_T0))
    e("s_add_u32 %s, %s, %s" % (S_T0, S_T0, S_REC))
    e("s_mov_b64 exec, 1")
    e("buffer_store_dwordx4 v[28:31], off, %s, %s sc1" % (srd(SRD_WS), S_T0))
    e("s_mov_b64 exec, -1")
    e("v_and_b32 v26, 7, v0")
    e("v_lshlrev_b32 v26, 4, v26")
    e("s_branch L_vcont")
    lab("L_act4")
    e("buffer_load_dwordx4 v[28:31], v26, %s, %s offen sc1" % (srd(SRD_WS), S_REC))
    e("s_branch L_vcont")
    lab("L_act5")
    e("v_cmp_ne_u32 vcc, 1, v30")
    e("s_cbranch_vccz L_act5b")
    spin_guard("L_act5b")
    e("s_sleep 2")
    e("buffer_load_dwordx4 v[28:31], v26, %s, %s offen sc1" % (srd(SRD_WS), S_REC))
    e("s_waitcnt vmcnt(0)")
    e("s_branch L_act5")
    lab("L_act5b")
    e("v_mov_b32 v27, v28")
    allreduce8("max", 27)
    e("v_sub_f32 v28, v28, v27")
    e("v_sub_f32 v25, v3, v27")
    e("v_mul_f32 v28, %s, v28" % LOG2E)
    e("v_mul_f32 v25, %s, v25" % LOG2E)
    e("v_exp_f32 v28, v28")
    e("v_exp_f32 v25, v25")
    e("s_nop 0")
    e("v_mul_f32 v28, v28, v29")
    allreduce8("add", 28)
    e("v_rcp_f32 v28, v28")
    e("s_nop 0")
    e("v_mul_f32 v25, v25, v28")
    e("s_branch L_vcont")

def aux():
    S_J, S_CC = "s4", "s4"
    lab("L_aux")
    e("s_sub_u32 s4, s2, %d" % NATT)
    e("s_and_b32 %s, s4, 3" % S_B)
    e("s_lshr_b32 s5, s4, 2")
    e("s_lshl_b32 %s, %s, 6" % (S_T0, S_W))
    e("v_add_u32 v1, %s, v0" % S_T0)
    e("v_lshlrev_b32 v2, 4, v1")
    e("s_mul_i32 %s, s4, %d" % (S_REC, REG))
    for i in range(4):
        e("v_mov_b32 v%d, -1" % (4 + i))
    e("s_waitcnt lgkmcnt(0)")
    mk_srd(SRD_WS, "s40", "s41", WS_REC)
    mk_srd(SRD_DBG, "s38", "s39", 256)
    mk_srd(SRD_X, "s16", "s17", 5120)
    e("s_add_u32 %s, %s, 0x1000" % (S_T0, S_REC))
    e("s_add_u32 %s, %s, 0x2000" % (S_T1, S_REC))
    e("buffer_store_dwordx4 v[4:7], v2, %s, %s offen sc1" % (srd(SRD_WS), S_REC))
    e("buffer_store_dwordx4 v[4:7], v2, %s, %s offen sc1" % (srd(SRD_WS), S_T0))
    e("buffer_store_dwordx4 v[4:7], v2, %s, %s offen sc1" % (srd(SRD_WS), S_T1))
    mk_srd(SRD_W, "s34", "s35", 1280)
    e("v_lshlrev_b32 v3, 2, v0")
    e("s_mul_i32 %s, %s, 1280" % (S_T0, S_B))
    for k in range(5):
        e("buffer_load_dword v%d, v3, %s, %s offen offset:%d" % (8 + k, srd(SRD_X), S_T0, 256 * k))
        e("buffer_load_dword v%d, v3, %s, 0 offen offset:%d" % (16 + k, srd(SRD_W), 256 * k))
    e("s_waitcnt vmcnt(10)")
    e("s_barrier")
    e("s_cmp_lg_u32 %s, 0" % S_W)
    e("s_cbranch_scc1 L_aux1")
    e("s_mov_b64 exec, 1")
    e("v_mov_b32 v4, 1")
    e("buffer_atomic_add v4, off, %s, 0 sc1" % srd(SRD_DBG))
    e("s_mov_b64 exec, -1")
    lab("L_aux1")
    e("s_waitcnt vmcnt(0)")
    e("v_mov_b32 v31, 0")
    for k in range(5):
        e("v_lshlrev_b32 v24, 16, v%d" % (8 + k))
        e("v_and_b32 v25, 0xffff0000, v%d" % (8 + k))
        e("v_lshlrev_b32 v26, 16, v%d" % (16 + k))
        e("v_and_b32 v27, 0xffff0000, v%d" % (16 + k))
        e("v_mul_f32 v24, v24, v26")
        e("v_mul_f32 v25, v25, v27")
        e("v_cvt_pk_bf16_f32 v24, v24, v25")
        e("v_lshlrev_b32 v25, 16, v24")
        e("v_and_b32 v24, 0xffff0000, v24")
        e("v_add_f32 v31, v31, v25")
        e("v_add_f32 v31, v31, v24")
    allreduce64("add", 31, 24)
    bf16r(31)
    e("v_mul_f32 v31, 0xbfb8aa3b, v31")
    e("v_exp_f32 v31, v31")
    e("s_nop 0")
    e("v_add_f32 v31, 1.0, v31")
    e("v_rcp_f32 v31, v31")
    e("s_nop 0")
    bf16r(31)
    e("s_cmp_ge_u32 s4, %d" % NFFN)
    e("s_cbranch_scc1 L_consume")
    vm = VM()
    e("buffer_load_dwordx4 v[8:11], v2, %s, 0 offen" % srd(SRD_X)); vm.issue("x")
    e("s_mov_b32 %s, 0x1000" % S_T0)
    e("buffer_load_dwordx4 v[12:15], v2, %s, %s offen" % (srd(SRD_X), S_T0)); vm.issue("x")
    e("v_lshrrev_b32 v24, 3, v0")
    e("v_mul_u32_u24 v3, 0x%x, v24" % (20 * 3456))
    e("v_and_b32 v25, 7, v0")
    e("v_lshl_add_u32 v3, v25, 4, v3")
    e("s_mul_i32 %s, %s, %d" % (S_T0, S_W, 160 * 3456))
    e("s_lshl_b32 %s, s4, 7" % S_T1)
    e("s_add_u32 %s, %s, %s" % (S_T0, S_T0, S_T1))
    e("v_add_u32 v3, %s, v3" % S_T0)
    mk_srd(SRD_W, "s28", "s29", 640 * 3456)
    mk_srd(SRD_S, "s30", "s31", 640 * 3456)
    e("s_mov_b32 %s, 0" % S_T1)
    for t in range(20):
        e("buffer_load_dwordx4 %s, v3, %s, %s offen nt" % (vr(W(2 * t)), srd(SRD_W), S_T1)); vm.issue("w%d" % t)
        e("buffer_load_dwordx4 %s, v3, %s, %s offen nt" % (vr(W(2 * t + 1)), srd(SRD_S), S_T1)); vm.issue("w%d" % t)
        if t < 19: e("s_add_u32 %s, %s, 3456" % (S_T1, S_T1))
    SE, SO = 16, 20
    sel_build(SE, "KP", 28)
    sel_build(SO, "KO", 28)
    e("v_mul_u32_u24 v4, 40, v24")
    e("s_mul_i32 %s, %s, 320" % (S_T0, S_W))
    e("v_add_u32 v4, %s, v4" % S_T0)
    vm.wait("x")
    e("ds_write_b128 v2, v[8:11] offset:%d" % L_X)
    e("ds_write_b128 v2, v[12:15] offset:%d" % (L_X + 4096))
    e("s_waitcnt lgkmcnt(0)")
    e("s_barrier")
    XB = 32
    AF = [48, 52]
    GA = 56
    def xread(q):
        for b in range(4):
            e("ds_read_b64 %s, v4 offset:%d" % (vr(XB + 8 * (q & 1) + 2 * b, 2), L_X + b * 1280 + q * 8))
    xread(0)
    na = 0
    for q in range(5):
        e("s_waitcnt lgkmcnt(0)")
        if q < 4: xread(q + 1)
        for tt in range(4):
            t = 4 * q + tt
            for b in range(4):
                src = XB + 8 * (q & 1) + 2 * b + (tt >> 1)
                sel = SO if tt & 1 else SE
                a = AF[na & 1]; na += 1
                for i in range(4):
                    e("v_perm_b32 v%d, v%d, v%d, v%d" % (a + i, src, src, sel + i))
                vm.wait("w%d" % t)
                e("s_nop 1")
                for mat in range(2):
                    acc = GA + (b * 2 + mat) * 4
                    e("%s %s, %s, %s, %s" % (MFMA, vr(acc), vr(a), vr(W(2 * t + mat)), "0" if t == 0 else vr(acc)))
    e("v_lshrrev_b32 v24, 4, v0")
    e("v_and_b32 v25, 15, v0")
    e("v_lshlrev_b32 v25, 4, v25")
    e("v_mul_u32_u24 v3, 0x%x, v24" % (4 * 1280))
    e("s_lshl_b32 %s, s4, 6" % S_T0)
    e("s_lshl_b32 %s, %s, 4" % (S_T1, S_W))
    e("s_add_u32 %s, %s, %s" % (S_T0, S_T0, S_T1))
    e("s_mul_i32 %s, %s, 1280" % (S_T0, S_T0))
    e("v_add3_u32 v3, v3, v25, %s" % S_T0)
    mk_srd(SRD_W, "s32", "s33", 1728 * 1280)
    e("s_mov_b32 %s, 0" % S_T1)
    for g in range(4):
        for cb in range(5):
            e("buffer_load_dwordx4 %s, v3, %s, %s offen offset:%d nt" % (vr(W(g * 5 + cb)), srd(SRD_W), S_T1, cb * 256)); vm.issue("d%d" % g)
        if g < 3: e("s_add_u32 %s, %s, 1280" % (S_T1, S_T1))
    e("v_lshrrev_b32 v26, 5, v0")
    e("v_bfe_u32 v27, v0, 3, 1")
    e("v_cmp_eq_u32 vcc, v26, v27")
    e("v_and_b32 v28, 7, v0")
    e("v_lshlrev_b32 v28, 5, v28")
    e("v_bfe_u32 v29, v0, 4, 1")
    e("v_lshl_add_u32 v28, v29, 4, v28")
    e("v_lshl_add_u32 v28, v26, 11, v28")
    e("s_lshl_b32 %s, %s, 12" % (S_T0, S_W))
    e("s_add_u32 %s, %s, %d" % (S_T0, S_T0, L_GU))
    e("v_add_u32 v28, %s, v28" % S_T0)
    e("s_and_saveexec_b64 s[70:71], vcc")
    for b in range(4):
        for mat in range(2):
            e("ds_write_b128 v28, %s offset:%d" % (vr(GA + (b * 2 + mat) * 4), mat * 1024 + b * 256))
    e("s_mov_b64 exec, s[70:71]")
    e("v_lshlrev_b32 v28, 2, v1")
    e("s_waitcnt lgkmcnt(0)")
    e("s_barrier")
    for p in range(8):
        e("ds_read_b32 v%d, v28 offset:%d" % (32 + p, L_GU + p * 2048))
        e("ds_read_b32 v%d, v28 offset:%d" % (40 + p, L_GU + p * 2048 + 1024))
    sel_build(SE, "TE", 8)
    sel_build(SO, "TO", 8)
    e("s_waitcnt lgkmcnt(0)")
    for p in range(1, 8):
        e("v_add_f32 v32, v32, v%d" % (32 + p))
        e("v_add_f32 v40, v40, v%d" % (40 + p))
    bf16r(32); bf16r(40)
    e("v_mul_f32 v32, v32, v40")
    e("v_cvt_pk_bf16_f32 v32, v32, v32")
    e("v_lshlrev_b32 v28, 1, v1")
    e("ds_write_b16 v28, v32 offset:%d" % L_H)
    e("v_lshlrev_b32 v4, 3, v24")
    e("s_lshl_b32 %s, %s, 5" % (S_T0, S_W))
    e("v_add_u32 v4, %s, v4" % S_T0)
    e("s_waitcnt lgkmcnt(0)")
    e("s_barrier")
    HB = 32
    for b in range(4):
        e("ds_read_b64 %s, v4 offset:%d" % (vr(HB + 2 * b, 2), L_H + b * 128))
    e("s_waitcnt lgkmcnt(0)")
    YA = 48
    AF = [40, 44]
    na = 0
    for g in range(4):
        for bp in range(2):
            a = AF[na & 1]; na += 1
            sel = SO if g & 1 else SE
            for i in range(4):
                e("v_perm_b32 v%d, v%d, v%d, v%d" % (a + i, HB + 2 * (2 * bp + 1) + (g >> 1), HB + 2 * (2 * bp) + (g >> 1), sel + i))
            vm.wait("d%d" % g)
            e("s_nop 1")
            for cb in range(5):
                acc = YA + (bp * 5 + cb) * 4
                e("%s %s, %s, %s, %s" % (MFMA, vr(acc), vr(a), vr(W(g * 5 + cb)), "0" if g == 0 else vr(acc)))
    e("v_lshlrev_b32 v28, 1, v25")
    e("v_bfe_u32 v29, v0, 4, 1")
    e("v_lshl_add_u32 v28, v29, 4, v28")
    e("v_mul_u32_u24 v29, 2560, v26")
    e("s_mul_i32 %s, %s, 10240" % (S_T0, S_W))
    e("s_add_u32 %s, %s, %d" % (S_T0, S_T0, L_YF))
    e("v_add3_u32 v28, v28, v29, %s" % S_T0)
    e("buffer_load_dword v30, off, %s, 0 sc1" % srd(SRD_DBG))
    e("s_nop 7")
    for bp in range(2):
        for cb in range(5):
            e("ds_write_b128 v28, %s offset:%d" % (vr(YA + (bp * 5 + cb) * 4), bp * 5120 + cb * 512))
    e("v_lshlrev_b32 v28, 4, v0")
    e("s_mul_i32 %s, %s, 2560" % (S_T0, S_W))
    e("s_add_u32 %s, %s, %d" % (S_T0, S_T0, L_YF))
    e("v_add_u32 v28, %s, v28" % S_T0)
    e("v_lshrrev_b32 v29, 3, v0")
    e("v_mul_u32_u24 v29, 0x%x, v29" % (4 * REG))
    e("v_and_b32 v27, 7, v0")
    e("v_lshl_add_u32 v29, v27, 4, v29")
    e("s_mul_i32 %s, %s, %d" % (S_OFF, S_W, REG))
    e("s_lshl_b32 %s, s4, 7" % S_T1)
    e("s_add_u32 %s, %s, %s" % (S_OFF, S_OFF, S_T1))
    e("s_add_u32 %s, %s, 8192" % (S_OFF, S_OFF))
    e("s_waitcnt vmcnt(0) lgkmcnt(0)")
    e("s_barrier")
    e("v_readfirstlane_b32 %s, v30" % S_T0)
    e("s_cmp_eq_u32 %s, %d" % (S_T0, NAUX))
    e("s_cbranch_scc1 L_ffn2")
    poll_cleared("L_ffnp", 30, "L_ffn2")
    lab("L_ffn2")
    for k in range(3):
        if k == 2:
            e("s_mov_b32 exec_hi, 0")
        for p in range(4):
            e("ds_read_b128 %s, v28 offset:%d" % (vr(32 + 4 * p), p * 10240 + k * 1024))
        e("s_waitcnt lgkmcnt(0)")
        for i in range(4):
            e("v_add_f32 v%d, v%d, v%d" % (32 + i, 32 + i, 36 + i))
            e("v_add_f32 v%d, v%d, v%d" % (40 + i, 40 + i, 44 + i))
        for i in range(4):
            e("v_add_f32 v%d, v%d, v%d" % (48 + 4 * k + i, 32 + i, 40 + i))
        e("buffer_store_dwordx4 %s, v29, %s, %s offen sc1" % (vr(48 + 4 * k), srd(SRD_WS), S_OFF))
        if k < 2: e("s_add_u32 %s, %s, 0x%x" % (S_OFF, S_OFF, 8 * 4 * REG))
    e("s_mov_b64 exec, -1")
    lab("L_consume")
    e("v_add_u32 v3, 8192, v2")
    e("v_mov_b32 v4, 0x7f000000")
    e("v_cmp_gt_u32 vcc, %d, v1" % (NFFN * 8))
    e("s_add_u32 %s, %s, 0x1000" % (S_T1, S_REC))
    e("s_nop 0")
    e("v_cndmask_b32 v3, v4, v3, vcc")
    e("s_cmp_lg_u32 %s, 0" % S_W)
    e("s_cbranch_scc1 L_cons1")
    lab("L_slow")
    e("buffer_load_dword v4, off, %s, 0 offset:128 sc1" % srd(SRD_DBG))
    e("s_waitcnt vmcnt(0)")
    e("v_readfirstlane_b32 %s, v4" % S_T0)
    e("s_cmp_lg_u32 %s, 0" % S_T0)
    e("s_cbranch_scc1 L_cons1")
    spin_guard("L_cons1")
    e("s_sleep 8")
    e("s_branch L_slow")
    lab("L_cons1")
    e("s_barrier")
    lab("L_full")
    spin_guard("L_fulld")
    e("buffer_load_dwordx4 v[8:11], v2, %s, %s offen sc1" % (srd(SRD_WS), S_REC))
    e("buffer_load_dwordx4 v[12:15], v2, %s, %s offen sc1" % (srd(SRD_WS), S_T1))
    e("buffer_load_dwordx4 v[16:19], v3, %s, %s offen sc1" % (srd(SRD_WS), S_REC))
    e("s_waitcnt vmcnt(0)")
    e("v_max3_u32 v20, v8, v9, v10")
    e("v_max3_u32 v21, v11, v12, v13")
    e("v_max3_u32 v22, v14, v15, v16")
    e("v_max3_u32 v23, v17, v18, v19")
    e("v_max3_u32 v20, v20, v21, v22")
    e("v_max_u32 v20, v20, v23")
    e("v_cmp_eq_u32 vcc, -1, v20")
    e("s_mov_b64 exec, vcc")
    e("s_cbranch_vccnz L_full")
    lab("L_fulld")
    e("s_mov_b64 exec, -1")
    for i in range(4):
        e("v_add_f32 v%d, v%d, v%d" % (8 + i, 8 + i, 12 + i))
    e("s_nop 1")
    for i in range(4):
        e("v_permlane32_swap_b32 v%d, v%d" % (8 + i, 16 + i))
    e("s_nop 1")
    for i in range(4):
        e("v_add_f32 v%d, v%d, v%d" % (8 + i, 8 + i, 16 + i))
    e("s_nop 1")
    e("v_permlane16_swap_b32 v8, v9")
    e("v_permlane16_swap_b32 v10, v11")
    e("s_nop 1")
    e("v_add_f32 v8, v8, v9")
    e("v_add_f32 v10, v10, v11")
    e("v_and_b32 v12, 7, v0")
    e("v_lshlrev_b32 v12, 4, v12")
    e("v_add_f32_dpp v8, v8, v8 row_ror:8 row_mask:0xf bank_mask:0xf")
    e("v_add_f32_dpp v10, v10, v10 row_ror:8 row_mask:0xf bank_mask:0xf")
    e("v_bfe_u32 v13, v0, 4, 1")
    e("v_lshl_add_u32 v12, v13, 2, v12")
    e("v_lshrrev_b32 v13, 5, v0")
    e("v_lshl_add_u32 v12, v13, 7, v12")
    e("s_lshl_b32 %s, %s, 8" % (S_T0, S_W))
    e("v_add_u32 v12, %s, v12" % S_T0)
    e("ds_write_b32 v12, v8 offset:%d" % L_R)
    e("ds_write_b32 v12, v10 offset:%d" % (L_R + 8))
    e("v_lshlrev_b32 v12, 2, v0")
    e("s_waitcnt lgkmcnt(0)")
    e("s_barrier")
    e("s_cmp_lg_u32 %s, 0" % S_W)
    e("s_cbranch_scc1 L_end")
    e("s_mov_b32 exec_hi, 0")
    for w in range(4):
        e("ds_read_b32 v%d, v12 offset:%d" % (8 + w, L_R + w * 256))
        e("ds_read_b32 v%d, v12 offset:%d" % (16 + w, L_R + w * 256 + 128))
    mk_srd(SRD_X, "s36", "s37", 5120)
    e("s_mul_i32 %s, %s, 1280" % (S_T0, S_B))
    e("s_lshl_b32 %s, s5, 6" % S_T1)
    e("s_add_u32 %s, %s, %s" % (S_T0, S_T0, S_T1))
    e("v_lshlrev_b32 v12, 1, v0")
    e("v_sub_f32 v30, 1.0, v31")
    bf16r(30)
    e("s_waitcnt lgkmcnt(0)")
    e("v_add_f32 v8, v8, v9"); e("v_add_f32 v10, v10, v11")
    e("v_add_f32 v16, v16, v17"); e("v_add_f32 v18, v18, v19")
    e("v_add_f32 v8, v8, v10"); e("v_add_f32 v16, v16, v18")
    bf16r(8); bf16r(16)
    e("v_mul_f32 v8, v31, v8"); e("v_mul_f32 v16, v30, v16")
    bf16r(8); bf16r(16)
    e("v_add_f32 v8, v8, v16")
    e("v_cvt_pk_bf16_f32 v8, v8, v8")
    e("buffer_store_short v8, v12, %s, %s offen" % (srd(SRD_X), S_T0))

def main():
    ref = open("cdna_kernels/%s.s.ref" % NAME).read().split("\n")
    head = []
    for ln in ref:
        if ln.startswith("; @launch"):
            break
        head.append(ln)
    out = head + ["; @launch grid=(%d,1,1) block=(256,1,1) lds=%d" % (NATT + NAUX, LDS_BYTES)]
    out += ['.amdgcn_target "amdgcn-amd-amdhsa--gfx950"', ".text", ".globl " + KNAME, ".p2align 8",
            ".type %s,@function" % KNAME, KNAME + ":"]
    e("s_cmp_ge_u32 s2, %d" % (NATT + NAUX))
    e("s_cbranch_scc1 L_end")
    e("s_load_dwordx16 s[16:31], s[0:1], 0")
    e("s_load_dwordx8 s[32:39], s[0:1], 64")
    e("s_load_dwordx2 s[40:41], s[0:1], 96")
    e("v_lshrrev_b32 v1, 6, v0")
    e("v_and_b32 v0, 63, v0")
    e("s_mov_b32 s72, 0")
    e("v_readfirstlane_b32 %s, v1" % S_W)
    e("s_cmp_ge_u32 s2, %d" % NATT)
    e("s_cbranch_scc1 L_aux")
    attention()
    aux()
    lab("L_end")
    e("s_endpgm")
    out += L
    out += ['.section .rodata,"a"', ".p2align 6", ".amdhsa_kernel " + KNAME,
            "  .amdhsa_next_free_vgpr 256", "  .amdhsa_next_free_sgpr 80", "  .amdhsa_accum_offset 256",
            "  .amdhsa_group_segment_fixed_size 0", "  .amdhsa_kernarg_size 104",
            "  .amdhsa_user_sgpr_count 2", "  .amdhsa_user_sgpr_kernarg_segment_ptr 1",
            "  .amdhsa_system_sgpr_workgroup_id_x 1", "  .amdhsa_float_denorm_mode_32 3",
            ".end_amdhsa_kernel", ""]
    open(OUT, "w").write("\n".join(out))

main()
```

```python
import sys

NAME = "gated_mix__mha_block_cached__glu_gated_bilinear__decode"
KNAME = NAME + "_kernel"
DEBUG = "--debug" in sys.argv
TS = "--ts" in sys.argv
OUT = [a for a in sys.argv[1:] if not a.startswith("--")]
OUT = OUT[0] if OUT else "cdna_kernels/%s.s" % NAME

NATT, NAUX, NFFN = 256, 80, 27
REG = 12288
REC_OFF = 11776
WS_USED = NAUX * REG
DBG_WS = 1 << 20
WS_REC = (WS_USED if not (DEBUG or TS) else (64 << 20))

P_ROW, P_WAVE = 528, 2112
L_QP = 8448
L_OP = 12544
L_YP = 16384
L_X = 0
L_H = 8192
L_R = 8704
L_GU = 10240
L_YF = 10240
LDS_BYTES = 51200

L = []
def e(s): L.append("    " + s)
def lab(s): L.append(s + ":")
def cmt(s): L.append("    ; " + s)
def vr(a, n=4): return "v[%d:%d]" % (a, a + n - 1)

S_W, S_H, S_B, S_HALF, S_BH = "s3", "s6", "s7", "s8", "s9"
S_OFF, S_IT, S_T0, S_T1, S_REC = "s10", "s11", "s12", "s13", "s14"
SRD_S, SRD_W, SRD_WS, SRD_DBG, SRD_X = 44, 48, 52, 56, 60
def srd(n): return "s[%d:%d]" % (n, n + 3)
def mk_srd(n, lo, hi, nrec):
    e("s_mov_b32 s%d, %s" % (n, lo))
    e("s_mov_b32 s%d, %s" % (n + 1, hi))
    e("s_mov_b32 s%d, 0x%x" % (n + 2, nrec))
    e("s_mov_b32 s%d, 0x00020000" % (n + 3))

BUF = 32
WREG = 96
def B(i): return BUF + 4 * i
def W(i): return WREG + 4 * i

LOG2E = "0x3fb8aa3b"
SCALE = "0x3db504f3"
MFMA = "v_mfma_f32_16x16x32_bf16"

class VM:
    def __init__(self): self.q = []
    def issue(self, tag): self.q.append(tag); assert len(self.q) <= 63
    def wait(self, tag):
        idx = [i for i, t in enumerate(self.q) if t == tag]
        if not idx: return
        idx = max(idx)
        e("s_waitcnt vmcnt(%d)" % (len(self.q) - 1 - idx))
        self.q = self.q[idx + 1:]

def sel_build(dst, kind, t):
    pa = {"E": 0x0100, "PV": 0x0100, "KP": 0x0100, "KO": 0x0302, "TE": 0x0100, "TO": 0x0302}[kind]
    pb = {"E": 0x0100, "PV": 0x0302, "KP": 0x0100, "KO": 0x0302, "TE": 0x0504, "TO": 0x0706}[kind]
    a, b, c = t, t + 1, t + 2
    e("v_mov_b32 v%d, 0x%x" % (a, pa))
    e("v_mov_b32 v%d, 0x%x" % (b, pb))
    e("v_and_b32 v%d, 8, v0" % c)
    e("v_cmp_ne_u32 vcc, 0, v%d" % c)
    e("s_nop 1")
    e("v_cndmask_b32 v%d, v%d, v%d, vcc" % (a, a, b))
    e("v_or_b32 v%d, 0x0c0c0000, v%d" % (b, a))
    e("v_lshlrev_b32 v%d, 16, v%d" % (a, a))
    e("v_or_b32 v%d, 0x0c0c, v%d" % (a, a))
    e("v_and_b32 v%d, 1, v0" % c)
    e("v_cmp_ne_u32 vcc, 0, v%d" % c)
    e("s_nop 1")
    e("v_cndmask_b32 v%d, v%d, v%d, vcc" % (a, b, a))
    e("v_mov_b32 v%d, 0x0c0c0c0c" % b)
    e("v_bfe_u32 v%d, v0, 1, %d" % (c, 3 if kind == "E" else 2))
    for i in range(4):
        e("v_cmp_eq_u32 vcc, %d, v%d" % (i, c))
        e("s_nop 1")
        e("v_cndmask_b32 v%d, v%d, v%d, vcc" % (dst + i, b, a))

def allreduce64(op, v, t):
    for r in (8, 4, 2, 1):
        e("s_nop 1")
        e("v_%s_f32_dpp v%d, v%d, v%d row_ror:%d row_mask:0xf bank_mask:0xf" % (op, v, v, v, r))
    for sw in ("16", "32"):
        e("v_mov_b32 v%d, v%d" % (t, v))
        e("s_nop 1")
        e("v_permlane%s_swap_b32 v%d, v%d" % (sw, v, t))
        e("s_nop 1")
        e("v_%s_f32 v%d, v%d, v%d" % (op, v, v, t))

def allreduce8(op, v):
    for m in ("row_half_mirror", "quad_perm:[1,0,3,2]", "quad_perm:[2,3,0,1]"):
        e("s_nop 1")
        e("v_%s_f32_dpp v%d, v%d, v%d %s row_mask:0xf bank_mask:0xf" % (op, v, v, v, m))

def bf16r(v):
    e("v_cvt_pk_bf16_f32 v%d, v%d, v%d" % (v, v, v))
    e("v_lshlrev_b32 v%d, 16, v%d" % (v, v))

def hilo_pack(a, b, t):
    e("v_cvt_pk_bf16_f32 v%d, v%d, v%d" % (t, a, b))
    e("v_lshlrev_b32 v%d, 16, v%d" % (t + 1, t))
    e("v_and_b32 v%d, 0xffff0000, v%d" % (t + 2, t))
    e("v_sub_f32 v%d, v%d, v%d" % (t + 1, a, t + 1))
    e("v_sub_f32 v%d, v%d, v%d" % (t + 2, b, t + 2))
    e("v_cvt_pk_bf16_f32 v%d, v%d, v%d" % (t + 1, t + 1, t + 2))
    e("v_perm_b32 v%d, v%d, v%d, %s" % (a, t + 1, t, S_T0))
    e("v_perm_b32 v%d, v%d, v%d, %s" % (b, t + 1, t, S_T1))

def stream_load(t):
    e("buffer_load_dwordx4 %s, v1, %s, %s offen nt" % (vr(B(t)), srd(SRD_S), S_OFF))
    e("s_add_u32 %s, %s, 0x1000" % (S_OFF, S_OFF))

def dbg_dump(vdata, n, voff, slot):
    if not DEBUG: return
    e("s_lshl_b32 s15, s2, 12")
    e("s_add_u32 s15, s15, 0x%x" % (DBG_WS + slot * (2 << 20)))
    op = {1: "dword", 2: "dwordx2", 4: "dwordx4"}[n]
    e("buffer_store_%s %s, v%d, %s, s15 offen" % (op, vr(vdata, n) if n > 1 else "v%d" % vdata, voff, srd(SRD_WS)))
    e("s_waitcnt vmcnt(0)")

def stamp(i):
    if not TS: return
    e("s_memrealtime s[%d:%d]" % (74 + 2 * i, 75 + 2 * i))
    e("s_waitcnt lgkmcnt(0)")

def stamps_out(n):
    if not TS: return
    e("s_mov_b64 exec, 1")
    e("s_lshl_b32 s15, s2, 2")
    e("s_add_u32 s15, s15, %s" % S_W)
    e("s_lshl_b32 s15, s15, 6")
    e("s_add_u32 s15, s15, 0x%x" % DBG_WS)
    for i in range(n):
        e("v_mov_b32 v5, s%d" % (74 + 2 * i))
        e("buffer_store_dword v5, off, %s, s15 offset:%d" % (srd(SRD_WS), 4 * i))
    e("s_getreg_b32 s73, hwreg(HW_REG_XCC_ID)")
    e("v_mov_b32 v5, s73")
    e("buffer_store_dword v5, off, %s, s15 offset:56" % srd(SRD_WS))
    e("s_getreg_b32 s73, hwreg(HW_REG_HW_ID)")
    e("v_mov_b32 v5, s73")
    e("buffer_store_dword v5, off, %s, s15 offset:60" % srd(SRD_WS))

def k_body(waitn):
    P = [8, 9, 10, 11]; Y0, Y1, Z, T, S, TMP = 12, 13, 14, 15, 16, 17
    for G in range(4):
        e("s_waitcnt vmcnt(%d)" % waitn)
        for k in range(4):
            for u in range(4):
                c = "0" if k == 0 else "v%d" % P[u]
                e("v_dot2_f32_bf16 v%d, v%d, v%d, %s" % (P[u], B(4 * G + u) + k, 4 + k, c))
        e("v_add_f32_dpp v%d, v%d, v%d row_ror:8 row_mask:0xf bank_mask:0x3" % (Y0, P[0], P[0]))
        e("v_add_f32_dpp v%d, v%d, v%d row_ror:8 row_mask:0xf bank_mask:0xc" % (Y0, P[1], P[1]))
        e("v_add_f32_dpp v%d, v%d, v%d row_ror:8 row_mask:0xf bank_mask:0x3" % (Y1, P[2], P[2]))
        e("v_add_f32_dpp v%d, v%d, v%d row_ror:8 row_mask:0xf bank_mask:0xc" % (Y1, P[3], P[3]))
        stream_load(4 * G + 0)
        e("v_add_f32_dpp v%d, v%d, v%d row_half_mirror row_mask:0xf bank_mask:0x5" % (Z, Y0, Y0))
        e("v_add_f32_dpp v%d, v%d, v%d row_half_mirror row_mask:0xf bank_mask:0xa" % (Z, Y1, Y1))
        stream_load(4 * G + 1)
        e("v_add_f32_dpp v%d, v%d, v%d quad_perm:[1,0,3,2] row_mask:0xf bank_mask:0xf" % (Z, Z, Z))
        stream_load(4 * G + 2)
        d = S if G == 0 else T
        e("v_add_f32_dpp v%d, v%d, v%d quad_perm:[2,3,0,1] row_mask:0xf bank_mask:0xf" % (d, Z, Z))
        stream_load(4 * G + 3)
        if G:
            e("v_cndmask_b32 v%d, v%d, v%d, s[%d:%d]" % (S, S, T, 62 + 2 * G, 63 + 2 * G))
    e("v_cvt_pk_bf16_f32 v%d, v%d, v%d" % (TMP, S, S))
    e("v_lshlrev_b32 v%d, 16, v%d" % (TMP, TMP))
    e("v_mul_f32 v%d, %s, v%d" % (TMP, SCALE, TMP))
    bf16r(TMP)
    e("v_max_f32 v3, v3, v%d" % TMP)
    e("ds_write_b32 v2, v%d" % TMP)
    e("v_add_u32 v2, 64, v2")

def v_body(loads):
    A, ACC = 8, 20
    PB = [12, 16]
    for G in range(4):
        e("s_waitcnt lgkmcnt(0)")
        e("ds_read_b128 %s, v2 offset:%d" % (vr(PB[(G + 1) & 1]), (G + 1) * 16))
        for u in range(4):
            t = 4 * G + u
            p = PB[G & 1] + u
            for i in range(4):
                e("v_perm_b32 v%d, v%d, v%d, v%d" % (A + i, p, p, 4 + i))
            e("s_waitcnt vmcnt(%d)" % (15 if loads else 15 - t))
            e("s_nop 0")
            e("%s %s, %s, %s, %s" % (MFMA, vr(ACC), vr(A), vr(B(t)), vr(ACC)))
            if loads:
                stream_load(t)
    e("v_add_u32 v2, 64, v2")

SPIN_MAX = 400000
def spin_guard(exit_lbl):
    e("s_add_u32 s72, s72, 1")
    e("s_cmp_gt_u32 s72, %d" % SPIN_MAX)
    e("s_cbranch_scc1 %s" % exit_lbl)

def poll_cleared(lbl, v, exit_lbl):
    lab(lbl)
    spin_guard(exit_lbl)
    e("s_sleep 4")
    e("buffer_load_dword v%d, off, %s, 0 sc1" % (v, srd(SRD_DBG)))
    e("s_waitcnt vmcnt(0)")
    e("v_readfirstlane_b32 %s, v%d" % (S_T0, v))
    e("s_cmp_lt_u32 %s, %d" % (S_T0, NAUX))
    e("s_cbranch_scc1 %s" % lbl)

def attention():
    vm = VM()
    e("s_and_b32 s4, s2, 7")
    e("s_lshr_b32 s5, s2, 3")
    e("s_and_b32 %s, s5, 3" % S_H)
    e("s_lshl_b32 %s, %s, 3" % (S_H, S_H))
    e("s_add_u32 %s, %s, s4" % (S_H, S_H))
    e("s_lshr_b32 %s, s5, 2" % S_B)
    e("s_and_b32 %s, %s, 3" % (S_B, S_B))
    e("s_lshr_b32 %s, s5, 4" % S_HALF)
    e("s_lshl_b32 %s, %s, 5" % (S_BH, S_B))
    e("s_add_u32 %s, %s, %s" % (S_BH, S_BH, S_H))
    e("v_lshrrev_b32 v24, 4, v0")
    e("v_and_b32 v25, 15, v0")
    e("v_lshlrev_b32 v25, 4, v25")
    e("s_mul_i32 %s, %s, 1280" % (S_T0, S_B))
    e("s_mul_i32 %s, %s, 320" % (S_T1, S_W))
    e("s_add_u32 %s, %s, %s" % (S_T0, S_T0, S_T1))
    e("v_mul_u32_u24 v26, 80, v24")
    e("v_add_u32 v26, %s, v26" % S_T0)
    e("s_mul_i32 %s, %s, %d" % (S_T0, S_W, 160 * 8192))
    e("s_lshl_b32 %s, %s, 8" % (S_T1, S_H))
    e("s_add_u32 %s, %s, %s" % (S_T0, S_T0, S_T1))
    e("v_mul_u32_u24 v27, 0x%x, v24" % (40 * 8192))
    e("v_add3_u32 v27, v27, v25, %s" % S_T0)
    e("s_lshl_b32 %s, %s, 10" % (S_T0, S_W))
    e("v_lshlrev_b32 v1, 4, v0")
    e("v_add_u32 v1, %s, v1" % S_T0)
    e("s_lshl_b32 %s, %s, 20" % (S_T0, S_BH))
    e("s_lshl_b32 %s, %s, 19" % (S_T1, S_HALF))
    e("s_add_u32 %s, %s, %s" % (S_T0, S_T0, S_T1))
    e("s_waitcnt lgkmcnt(0)")
    stamp(0)
    mk_srd(SRD_X, "s16", "s17", 5120)
    mk_srd(SRD_W, "s22", "s23", 640 * 8192)
    e("s_add_u32 s%d, s18, %s" % (SRD_S, S_T0))
    e("s_addc_u32 s%d, s19, 0" % (SRD_S + 1))
    e("s_mov_b32 s%d, 0x80000" % (SRD_S + 2))
    e("s_mov_b32 s%d, 0x00020000" % (SRD_S + 3))
    e("s_add_u32 s42, s20, %s" % S_T0)
    e("s_addc_u32 s43, s21, 0")
    XR = [8, 12, 16, 20, B(14)]
    for i in range(5):
        e("buffer_load_dwordx4 %s, v26, %s, 0 offen offset:%d" % (vr(XR[i]), srd(SRD_X), 16 * i)); vm.issue("x")
    e("s_mov_b32 %s, 0" % S_T1)
    for t in range(40):
        e("buffer_load_dwordx4 %s, v27, %s, %s offen" % (vr(W(t)), srd(SRD_W), S_T1)); vm.issue("wq%d" % t)
        if t < 39: e("s_add_u32 %s, %s, 0x2000" % (S_T1, S_T1))
    e("s_mov_b32 %s, 0" % S_OFF)
    for t in range(14):
        stream_load(t); vm.issue("k")
    mk_srd(SRD_WS, "s40", "s41", WS_REC)
    mk_srd(SRD_DBG, "s38", "s39", 256)
    for i, m in enumerate((0x22222222, 0x44444444, 0x88888888)):
        e("s_mov_b32 s%d, 0x%x" % (64 + 2 * i, m)); e("s_mov_b32 s%d, 0x%x" % (65 + 2 * i, m))
    e("s_lshr_b32 %s, %s, 1" % (S_REC, S_BH))
    e("s_mul_i32 %s, %s, %d" % (S_REC, S_REC, REG))
    e("s_and_b32 %s, %s, 1" % (S_T0, S_BH))
    e("s_lshl_b32 %s, %s, 7" % (S_T0, S_T0))
    e("s_add_u32 %s, %s, %s" % (S_REC, S_REC, S_T0))
    e("s_add_u32 %s, %s, %d" % (S_REC, S_REC, REC_OFF))
    sel_build(4, "E", 28)
    e("s_lshl_b32 %s, %s, 7" % (S_T0, S_H))
    e("s_lshl_b32 %s, %s, 5" % (S_T1, S_W))
    e("s_add_u32 %s, %s, %s" % (S_T0, S_T0, S_T1))
    e("s_mul_i32 %s, %s, 1280" % (S_T0, S_T0))
    e("v_mul_u32_u24 v27, 0x%x, v24" % (8 * 1280))
    e("v_add3_u32 v27, v27, v25, %s" % S_T0)
    A, ACC = 28, B(15)
    for t in range(40):
        xr = XR[t // 8] + (t % 8) // 2
        vm.wait("x")
        if t & 1:
            e("v_lshrrev_b32 v3, 16, v%d" % xr); src = 3
        else:
            src = xr
        for i in range(4):
            e("v_perm_b32 v%d, v%d, v%d, v%d" % (A + i, src, src, 4 + i))
        vm.wait("wq%d" % t)
        e("s_nop 0")
        e("%s %s, %s, %s, %s" % (MFMA, vr(ACC), vr(A), vr(W(t)), "0" if t == 0 else vr(ACC)))
    e("v_add_u32 v26, 0x%x, v1" % L_QP)
    mk_srd(SRD_W, "s24", "s25", 4096 * 1280)
    e("s_nop 3")
    e("ds_write_b128 v26, %s" % vr(ACC))
    e("v_add_u32 v26, 0x%x, v25" % L_QP)
    e("s_mov_b32 %s, 0" % S_T1)
    e("s_waitcnt lgkmcnt(0)")
    for t in (14, 15):
        stream_load(t); vm.issue("k")
    e("s_barrier")
    QD = [(8, 12), (16, 20), (4, 28)]
    for w in range(3):
        e("ds_read_b128 %s, v26 offset:%d" % (vr(QD[w][0]), w * 1024))
        e("ds_read_b128 %s, v26 offset:%d" % (vr(QD[w][1]), w * 1024 + 256))
    for g in range(8):
        for cb in range(5):
            e("buffer_load_dwordx4 %s, v27, %s, %s offen offset:%d" % (vr(W(g * 5 + cb)), srd(SRD_W), S_T1, cb * 256)); vm.issue("wo")
        if g < 7: e("s_add_u32 %s, %s, 1280" % (S_T1, S_T1))
        if g == 3:
            e("s_waitcnt lgkmcnt(0)")
            for i in range(8):
                e("v_add_f32 v%d, v%d, v%d" % (8 + i, 8 + i, 16 + i))
            e("ds_read_b128 %s, v26 offset:%d" % (vr(16), 3 * 1024))
            e("ds_read_b128 %s, v26 offset:%d" % (vr(20), 3 * 1024 + 256))
            for i in range(4):
                e("v_add_f32 v%d, v%d, v%d" % (8 + i, 8 + i, 4 + i))
                e("v_add_f32 v%d, v%d, v%d" % (12 + i, 12 + i, 28 + i))
    e("s_waitcnt lgkmcnt(0)")
    for i in range(8):
        e("v_add_f32 v%d, v%d, v%d" % (8 + i, 8 + i, 16 + i))
    for i in range(4):
        e("v_cvt_pk_bf16_f32 v%d, v%d, v%d" % (4 + i, 8 + 2 * i, 9 + 2 * i))
    dbg_dump(4, 4, 1, 0)
    e("v_mul_u32_u24 v2, %d, v24" % P_ROW)
    e("s_mul_i32 %s, %s, %d" % (S_T0, S_W, P_WAVE))
    e("v_add_u32 v2, %s, v2" % S_T0)
    e("v_and_b32 v26, 3, v0")
    e("v_lshlrev_b32 v26, 4, v26")
    e("v_bfe_u32 v27, v0, 2, 1")
    e("v_lshl_add_u32 v26, v27, 3, v26")
    e("v_bfe_u32 v27, v0, 3, 1")
    e("v_lshl_add_u32 v26, v27, 2, v26")
    e("v_add_u32 v2, v2, v26")
    e("v_mov_b32 v3, 0xff800000")
    stamp(1)
    k_body(12 if DEBUG else 52)
    e("s_mov_b32 %s, 1" % S_IT)
    lab("L_kloop")
    k_body(12)
    e("s_add_u32 %s, %s, 1" % (S_IT, S_IT))
    e("s_cmp_lt_u32 %s, 7" % S_IT)
    e("s_cbranch_scc1 L_kloop")
    e("s_cmp_eq_u32 %s, 8" % S_IT)
    e("s_cbranch_scc1 L_kdone")
    e("s_mov_b32 s%d, s42" % SRD_S)
    e("s_mov_b32 s%d, s43" % (SRD_S + 1))
    e("s_mov_b32 %s, 0" % S_OFF)
    e("s_branch L_kloop")
    lab("L_kdone")
    stamp(2)
    e("buffer_load_dword v27, off, %s, 0 sc1" % srd(SRD_DBG))
    e("v_subrev_u32 v2, 512, v2")
    for k in range(8):
        e("ds_read_b32 v%d, v2 offset:%d" % (8 + k, 64 * k))
    allreduce64("max", 3, 16)
    e("s_mov_b32 %s, 0x05040100" % S_T0)
    e("s_mov_b32 %s, 0x07060302" % S_T1)
    e("s_waitcnt lgkmcnt(0)")
    for k in range(8):
        e("v_sub_f32 v%d, v%d, v3" % (8 + k, 8 + k))
    for k in range(8):
        e("v_mul_f32 v%d, %s, v%d" % (8 + k, LOG2E, 8 + k))
    for k in range(8):
        e("v_exp_f32 v%d, v%d" % (8 + k, 8 + k))
    e("s_nop 0")
    e("v_add_f32 v24, v8, v9")
    for k in range(2, 8):
        e("v_add_f32 v24, v24, v%d" % (8 + k))
    for k in range(4):
        hilo_pack(8 + 2 * k, 9 + 2 * k, 16)
    for k in range(8):
        e("ds_write_b32 v2, v%d offset:%d" % (8 + k, 64 * k))
    e("v_lshrrev_b32 v2, 4, v0")
    e("v_mul_u32_u24 v2, %d, v2" % P_ROW)
    e("s_mul_i32 %s, %s, %d" % (S_T0, S_W, P_WAVE))
    e("v_add_u32 v2, %s, v2" % S_T0)
    e("ds_read_b128 %s, v2" % vr(12))
    allreduce64("add", 24, 20)
    sel_build(4, "PV", 28)
    for i in range(4):
        e("v_mov_b32 v%d, 0" % (20 + i))
    e("s_mov_b32 %s, 0" % S_IT)
    stamp(3)
    lab("L_vloop")
    v_body(True)
    e("s_add_u32 %s, %s, 1" % (S_IT, S_IT))
    e("s_cmp_eq_u32 %s, 1" % S_IT)
    e("s_cbranch_scc1 L_act1")
    e("s_cmp_eq_u32 %s, 4" % S_IT)
    e("s_cbranch_scc1 L_act4")
    e("s_cmp_eq_u32 %s, 5" % S_IT)
    e("s_cbranch_scc1 L_act5")
    lab("L_vcont")
    e("s_cmp_lt_u32 %s, 7" % S_IT)
    e("s_cbranch_scc1 L_vloop")
    v_body(False)
    stamp(4)
    ACC = 20
    e("v_and_b32 v26, 31, v0")
    e("v_and_b32 v27, 15, v26")
    e("v_lshlrev_b32 v27, 5, v27")
    e("v_lshrrev_b32 v26, 4, v26")
    e("v_lshl_add_u32 v27, v26, 4, v27")
    e("v_lshrrev_b32 v26, 5, v0")
    e("s_lshl_b32 %s, %s, 9" % (S_T0, S_W))
    e("s_add_u32 %s, %s, %d" % (S_T0, S_T0, L_OP))
    e("v_lshl_add_u32 v28, v26, 2, v27")
    e("v_add_u32 v28, %s, v28" % S_T0)
    for i in range(4):
        e("v_mul_f32 v%d, v25, v%d" % (ACC + i, ACC + i))
    e("s_mul_i32 %s, %s, 5120" % (S_T0, S_W))
    e("s_add_u32 %s, %s, %d" % (S_T0, S_T0, L_YP))
    e("v_permlane32_swap_b32 v%d, v%d" % (ACC, ACC + 1))
    e("v_permlane32_swap_b32 v%d, v%d" % (ACC + 2, ACC + 3))
    e("v_mul_u32_u24 v29, 2560, v26")
    e("v_add3_u32 v29, v29, v27, %s" % S_T0)
    e("v_add_f32 v%d, v%d, v%d" % (ACC, ACC, ACC + 1))
    e("v_add_f32 v%d, v%d, v%d" % (ACC + 2, ACC + 2, ACC + 3))
    e("ds_write_b32 v28, v%d" % ACC)
    e("ds_write_b32 v28, v%d offset:8" % (ACC + 2))
    e("v_lshrrev_b32 v30, 4, v0")
    e("v_lshlrev_b32 v30, 5, v30")
    e("s_lshl_b32 %s, %s, 7" % (S_T0, S_W))
    e("s_add_u32 %s, %s, %d" % (S_T0, S_T0, L_OP))
    e("v_add_u32 v30, %s, v30" % S_T0)
    e("s_mov_b32 %s, 0x05040100" % S_T0)
    e("s_mov_b32 %s, 0x07060302" % S_T1)
    e("s_waitcnt lgkmcnt(0)")
    e("s_barrier")
    O = 32
    for w in range(4):
        e("ds_read_b128 %s, v30 offset:%d" % (vr(O + 8 * w), w * 512))
        e("ds_read_b128 %s, v30 offset:%d" % (vr(O + 8 * w + 4), w * 512 + 16))
    e("s_waitcnt lgkmcnt(4)")
    for i in range(8):
        e("v_add_f32 v%d, v%d, v%d" % (O + i, O + i, O + 8 + i))
    e("s_waitcnt lgkmcnt(0)")
    for i in range(8):
        e("v_add_f32 v%d, v%d, v%d" % (O + 16 + i, O + 16 + i, O + 24 + i))
    for i in range(8):
        e("v_add_f32 v%d, v%d, v%d" % (O + i, O + i, O + 16 + i))
    if DEBUG:
        e("v_lshlrev_b32 v31, 5, v0")
        e("v_lshl_add_u32 v31, %s, 11, v31" % S_W)
        e("s_lshl_b32 s15, s2, 13")
        e("s_add_u32 s15, s15, 0x%x" % (DBG_WS + 1 * (4 << 20)))
        e("buffer_store_dwordx4 %s, v31, %s, s15 offen" % (vr(O), srd(SRD_WS)))
        e("buffer_store_dwordx4 %s, v31, %s, s15 offen offset:16" % (vr(O + 4), srd(SRD_WS)))
        e("s_waitcnt vmcnt(0)")
    for k in range(4):
        hilo_pack(O + 2 * k, O + 2 * k + 1, O + 8 + 3 * k)
    AB = [64, 68]; YA = 72
    def perms(g):
        for i in range(4):
            e("v_perm_b32 v%d, v%d, v%d, v%d" % (AB[g & 1] + i, O + g, O + g, 4 + i))
    perms(0)
    e("s_nop 1")
    for g in range(8):
        for cb in range(5):
            e("%s %s, %s, %s, %s" % (MFMA, vr(YA + 4 * cb), vr(AB[g & 1]), vr(W(g * 5 + cb)), "0" if g == 0 else vr(YA + 4 * cb)))
            if cb == 0 and g < 7: perms(g + 1)
    e("s_lshl_b32 %s, %s, 6" % (S_T0, S_W))
    e("v_add_u32 v26, %s, v0" % S_T0)
    e("v_lshrrev_b32 v27, 3, v26")
    e("v_mul_u32_u24 v27, 0x%x, v27" % (4 * REG))
    e("v_and_b32 v28, 7, v26")
    e("v_lshl_add_u32 v27, v28, 4, v27")
    e("s_mul_i32 %s, %s, %d" % (S_T0, S_B, REG))
    e("s_lshl_b32 %s, %s, 8" % (S_T1, S_H))
    e("s_add_u32 %s, %s, %s" % (S_T0, S_T0, S_T1))
    e("s_lshl_b32 %s, %s, 7" % (S_T1, S_HALF))
    e("s_add_u32 %s, %s, %s" % (S_T0, S_T0, S_T1))
    e("v_lshlrev_b32 v28, 4, v26")
    e("v_add_u32 v28, 0x%x, v28" % L_YP)
    for cb in range(5):
        e("ds_write_b128 v29, %s offset:%d" % (vr(YA + 4 * cb), cb * 512))
    e("v_cmp_gt_u32 vcc, 160, v26")
    e("s_waitcnt lgkmcnt(0)")
    e("s_barrier")
    e("s_and_saveexec_b64 s[70:71], vcc")
    e("s_cbranch_execz %s" % ("L_tsout" if TS else "L_end"))
    for p in range(8):
        e("ds_read_b128 %s, v28 offset:%d" % (vr(O + 4 * p), p * 2560))
    for p in (1, 3, 5, 7):
        e("s_waitcnt lgkmcnt(%d)" % (7 - p))
        for i in range(4):
            e("v_add_f32 v%d, v%d, v%d" % (O + 4 * (p - 1) + i, O + 4 * (p - 1) + i, O + 4 * p + i))
    for i in range(4):
        e("v_add_f32 v%d, v%d, v%d" % (O + i, O + i, O + 8 + i))
        e("v_add_f32 v%d, v%d, v%d" % (O + 16 + i, O + 16 + i, O + 24 + i))
    for i in range(4):
        e("v_add_f32 v%d, v%d, v%d" % (O + i, O + i, O + 16 + i))
    e("buffer_store_dwordx4 %s, v27, %s, %s offen sc1" % (vr(O), srd(SRD_WS), S_T0))
    e("s_cmp_lg_u32 %s, 0" % S_W)
    e("s_cbranch_scc1 %s" % ("L_tsout" if TS else "L_end"))
    e("s_mov_b64 exec, 1")
    e("v_mov_b32 v26, 1")
    e("buffer_atomic_add v26, off, %s, 0 offset:128 sc1" % srd(SRD_DBG))
    if TS:
        lab("L_tsout")
        stamp(5)
        stamps_out(6)
    e("s_endpgm")
    lab("L_act1")
    e("v_readfirstlane_b32 %s, v27" % S_T0)
    e("s_cmp_ge_u32 %s, %d" % (S_T0, NAUX))
    e("s_cbranch_scc1 L_act1b")
    poll_cleared("L_act1p", 27, "L_act1b")
    lab("L_act1b")
    e("v_mov_b32 v28, v3")
    e("v_mov_b32 v29, v24")
    e("v_mov_b32 v30, 1")
    e("v_mov_b32 v31, 0")
    e("s_lshl_b32 %s, %s, 2" % (S_T0, S_HALF))
    e("s_add_u32 %s, %s, %s" % (S_T0, S_T0, S_W))
    e("s_lshl_b32 %s, %s, 4" % (S_T0, S_T0))
    e("s_add_u32 %s, %s, %s" % (S_T0, S_T0, S_REC))
    e("s_mov_b64 exec, 1")
    e("buffer_store_dwordx4 v[28:31], off, %s, %s sc1" % (srd(SRD_WS), S_T0))
    e("s_mov_b64 exec, -1")
    e("v_and_b32 v26, 7, v0")
    e("v_lshlrev_b32 v26, 4, v26")
    e("s_branch L_vcont")
    lab("L_act4")
    e("buffer_load_dwordx4 v[28:31], v26, %s, %s offen sc1" % (srd(SRD_WS), S_REC))
    e("s_branch L_vcont")
    lab("L_act5")
    e("v_cmp_ne_u32 vcc, 1, v30")
    e("s_cbranch_vccz L_act5b")
    spin_guard("L_act5b")
    e("s_sleep 2")
    e("buffer_load_dwordx4 v[28:31], v26, %s, %s offen sc1" % (srd(SRD_WS), S_REC))
    e("s_waitcnt vmcnt(0)")
    e("s_branch L_act5")
    lab("L_act5b")
    e("v_mov_b32 v27, v28")
    allreduce8("max", 27)
    e("v_sub_f32 v28, v28, v27")
    e("v_sub_f32 v25, v3, v27")
    e("v_mul_f32 v28, %s, v28" % LOG2E)
    e("v_mul_f32 v25, %s, v25" % LOG2E)
    e("v_exp_f32 v28, v28")
    e("v_exp_f32 v25, v25")
    e("s_nop 0")
    e("v_mul_f32 v28, v28, v29")
    allreduce8("add", 28)
    e("v_rcp_f32 v28, v28")
    e("s_nop 0")
    e("v_mul_f32 v25, v25, v28")
    e("s_branch L_vcont")

def aux():
    S_J, S_CC = "s4", "s4"
    lab("L_aux")
    e("s_sub_u32 s4, s2, %d" % NATT)
    e("s_and_b32 %s, s4, 3" % S_B)
    e("s_lshr_b32 s5, s4, 2")
    e("s_lshl_b32 %s, %s, 6" % (S_T0, S_W))
    e("v_add_u32 v1, %s, v0" % S_T0)
    e("v_lshlrev_b32 v2, 4, v1")
    e("s_mul_i32 %s, s4, %d" % (S_REC, REG))
    for i in range(4):
        e("v_mov_b32 v%d, -1" % (4 + i))
    e("s_waitcnt lgkmcnt(0)")
    stamp(0)
    mk_srd(SRD_WS, "s40", "s41", WS_REC)
    mk_srd(SRD_DBG, "s38", "s39", 256)
    mk_srd(SRD_X, "s16", "s17", 5120)
    e("s_add_u32 %s, %s, 0x1000" % (S_T0, S_REC))
    e("s_add_u32 %s, %s, 0x2000" % (S_T1, S_REC))
    e("buffer_store_dwordx4 v[4:7], v2, %s, %s offen sc1" % (srd(SRD_WS), S_REC))
    e("buffer_store_dwordx4 v[4:7], v2, %s, %s offen sc1" % (srd(SRD_WS), S_T0))
    e("buffer_store_dwordx4 v[4:7], v2, %s, %s offen sc1" % (srd(SRD_WS), S_T1))
    mk_srd(SRD_W, "s34", "s35", 1280)
    e("v_lshlrev_b32 v3, 2, v0")
    e("s_mul_i32 %s, %s, 1280" % (S_T0, S_B))
    for k in range(5):
        e("buffer_load_dword v%d, v3, %s, %s offen offset:%d" % (8 + k, srd(SRD_X), S_T0, 256 * k))
        e("buffer_load_dword v%d, v3, %s, 0 offen offset:%d" % (16 + k, srd(SRD_W), 256 * k))
    e("s_waitcnt vmcnt(10)")
    e("s_barrier")
    e("s_cmp_lg_u32 %s, 0" % S_W)
    e("s_cbranch_scc1 L_aux1")
    e("s_mov_b64 exec, 1")
    e("v_mov_b32 v4, 1")
    e("buffer_atomic_add v4, off, %s, 0 sc1" % srd(SRD_DBG))
    e("s_mov_b64 exec, -1")
    lab("L_aux1")
    e("s_waitcnt vmcnt(0)")
    stamp(1)
    e("v_mov_b32 v31, 0")
    for k in range(5):
        e("v_lshlrev_b32 v24, 16, v%d" % (8 + k))
        e("v_and_b32 v25, 0xffff0000, v%d" % (8 + k))
        e("v_lshlrev_b32 v26, 16, v%d" % (16 + k))
        e("v_and_b32 v27, 0xffff0000, v%d" % (16 + k))
        e("v_mul_f32 v24, v24, v26")
        e("v_mul_f32 v25, v25, v27")
        e("v_cvt_pk_bf16_f32 v24, v24, v25")
        e("v_lshlrev_b32 v25, 16, v24")
        e("v_and_b32 v24, 0xffff0000, v24")
        e("v_add_f32 v31, v31, v25")
        e("v_add_f32 v31, v31, v24")
    allreduce64("add", 31, 24)
    bf16r(31)
    e("v_mul_f32 v31, 0xbfb8aa3b, v31")
    e("v_exp_f32 v31, v31")
    e("s_nop 0")
    e("v_add_f32 v31, 1.0, v31")
    e("v_rcp_f32 v31, v31")
    e("s_nop 0")
    bf16r(31)
    e("s_cmp_ge_u32 s4, %d" % NFFN)
    e("s_cbranch_scc1 L_consume")
    vm = VM()
    e("buffer_load_dwordx4 v[8:11], v2, %s, 0 offen" % srd(SRD_X)); vm.issue("x")
    e("s_mov_b32 %s, 0x1000" % S_T0)
    e("buffer_load_dwordx4 v[12:15], v2, %s, %s offen" % (srd(SRD_X), S_T0)); vm.issue("x")
    e("v_lshrrev_b32 v24, 3, v0")
    e("v_mul_u32_u24 v3, 0x%x, v24" % (20 * 3456))
    e("v_and_b32 v25, 7, v0")
    e("v_lshl_add_u32 v3, v25, 4, v3")
    e("s_mul_i32 %s, %s, %d" % (S_T0, S_W, 160 * 3456))
    e("s_lshl_b32 %s, s4, 7" % S_T1)
    e("s_add_u32 %s, %s, %s" % (S_T0, S_T0, S_T1))
    e("v_add_u32 v3, %s, v3" % S_T0)
    mk_srd(SRD_W, "s28", "s29", 640 * 3456)
    mk_srd(SRD_S, "s30", "s31", 640 * 3456)
    e("s_mov_b32 %s, 0" % S_T1)
    for t in range(20):
        e("buffer_load_dwordx4 %s, v3, %s, %s offen nt" % (vr(W(2 * t)), srd(SRD_W), S_T1)); vm.issue("w%d" % t)
        e("buffer_load_dwordx4 %s, v3, %s, %s offen nt" % (vr(W(2 * t + 1)), srd(SRD_S), S_T1)); vm.issue("w%d" % t)
        if t < 19: e("s_add_u32 %s, %s, 3456" % (S_T1, S_T1))
    SE, SO = 16, 20
    sel_build(SE, "KP", 28)
    sel_build(SO, "KO", 28)
    e("v_mul_u32_u24 v4, 40, v24")
    e("s_mul_i32 %s, %s, 320" % (S_T0, S_W))
    e("v_add_u32 v4, %s, v4" % S_T0)
    vm.wait("x")
    e("ds_write_b128 v2, v[8:11] offset:%d" % L_X)
    e("ds_write_b128 v2, v[12:15] offset:%d" % (L_X + 4096))
    e("s_waitcnt lgkmcnt(0)")
    e("s_barrier")
    XB = 32
    AF = [48, 52]
    GA = 56
    def xread(q):
        for b in range(4):
            e("ds_read_b64 %s, v4 offset:%d" % (vr(XB + 8 * (q & 1) + 2 * b, 2), L_X + b * 1280 + q * 8))
    xread(0)
    na = 0
    for q in range(5):
        e("s_waitcnt lgkmcnt(0)")
        if q < 4: xread(q + 1)
        for tt in range(4):
            t = 4 * q + tt
            for b in range(4):
                src = XB + 8 * (q & 1) + 2 * b + (tt >> 1)
                sel = SO if tt & 1 else SE
                a = AF[na & 1]; na += 1
                for i in range(4):
                    e("v_perm_b32 v%d, v%d, v%d, v%d" % (a + i, src, src, sel + i))
                vm.wait("w%d" % t)
                e("s_nop 1")
                for mat in range(2):
                    acc = GA + (b * 2 + mat) * 4
                    e("%s %s, %s, %s, %s" % (MFMA, vr(acc), vr(a), vr(W(2 * t + mat)), "0" if t == 0 else vr(acc)))
    e("v_lshrrev_b32 v24, 4, v0")
    e("v_and_b32 v25, 15, v0")
    e("v_lshlrev_b32 v25, 4, v25")
    e("v_mul_u32_u24 v3, 0x%x, v24" % (4 * 1280))
    e("s_lshl_b32 %s, s4, 6" % S_T0)
    e("s_lshl_b32 %s, %s, 4" % (S_T1, S_W))
    e("s_add_u32 %s, %s, %s" % (S_T0, S_T0, S_T1))
    e("s_mul_i32 %s, %s, 1280" % (S_T0, S_T0))
    e("v_add3_u32 v3, v3, v25, %s" % S_T0)
    mk_srd(SRD_W, "s32", "s33", 1728 * 1280)
    e("s_mov_b32 %s, 0" % S_T1)
    for g in range(4):
        for cb in range(5):
            e("buffer_load_dwordx4 %s, v3, %s, %s offen offset:%d nt" % (vr(W(g * 5 + cb)), srd(SRD_W), S_T1, cb * 256)); vm.issue("d%d" % g)
        if g < 3: e("s_add_u32 %s, %s, 1280" % (S_T1, S_T1))
    e("v_lshrrev_b32 v26, 5, v0")
    e("v_bfe_u32 v27, v0, 3, 1")
    e("v_cmp_eq_u32 vcc, v26, v27")
    e("v_and_b32 v28, 7, v0")
    e("v_lshlrev_b32 v28, 5, v28")
    e("v_bfe_u32 v29, v0, 4, 1")
    e("v_lshl_add_u32 v28, v29, 4, v28")
    e("v_lshl_add_u32 v28, v26, 11, v28")
    e("s_lshl_b32 %s, %s, 12" % (S_T0, S_W))
    e("s_add_u32 %s, %s, %d" % (S_T0, S_T0, L_GU))
    e("v_add_u32 v28, %s, v28" % S_T0)
    e("s_and_saveexec_b64 s[70:71], vcc")
    for b in range(4):
        for mat in range(2):
            e("ds_write_b128 v28, %s offset:%d" % (vr(GA + (b * 2 + mat) * 4), mat * 1024 + b * 256))
    e("s_mov_b64 exec, s[70:71]")
    e("v_lshlrev_b32 v28, 2, v1")
    e("s_waitcnt lgkmcnt(0)")
    e("s_barrier")
    for p in range(8):
        e("ds_read_b32 v%d, v28 offset:%d" % (32 + p, L_GU + p * 2048))
        e("ds_read_b32 v%d, v28 offset:%d" % (40 + p, L_GU + p * 2048 + 1024))
    sel_build(SE, "TE", 8)
    sel_build(SO, "TO", 8)
    e("s_waitcnt lgkmcnt(0)")
    for p in range(1, 8):
        e("v_add_f32 v32, v32, v%d" % (32 + p))
        e("v_add_f32 v40, v40, v%d" % (40 + p))
    bf16r(32); bf16r(40)
    e("v_mul_f32 v32, v32, v40")
    e("v_cvt_pk_bf16_f32 v32, v32, v32")
    e("v_lshlrev_b32 v28, 1, v1")
    e("ds_write_b16 v28, v32 offset:%d" % L_H)
    e("v_lshlrev_b32 v4, 3, v24")
    e("s_lshl_b32 %s, %s, 5" % (S_T0, S_W))
    e("v_add_u32 v4, %s, v4" % S_T0)
    e("s_waitcnt lgkmcnt(0)")
    e("s_barrier")
    HB = 32
    for b in range(4):
        e("ds_read_b64 %s, v4 offset:%d" % (vr(HB + 2 * b, 2), L_H + b * 128))
    e("s_waitcnt lgkmcnt(0)")
    YA = 48
    AF = [40, 44]
    na = 0
    for g in range(4):
        for bp in range(2):
            a = AF[na & 1]; na += 1
            sel = SO if g & 1 else SE
            for i in range(4):
                e("v_perm_b32 v%d, v%d, v%d, v%d" % (a + i, HB + 2 * (2 * bp + 1) + (g >> 1), HB + 2 * (2 * bp) + (g >> 1), sel + i))
            vm.wait("d%d" % g)
            e("s_nop 1")
            for cb in range(5):
                acc = YA + (bp * 5 + cb) * 4
                e("%s %s, %s, %s, %s" % (MFMA, vr(acc), vr(a), vr(W(g * 5 + cb)), "0" if g == 0 else vr(acc)))
    e("v_lshlrev_b32 v28, 1, v25")
    e("v_bfe_u32 v29, v0, 4, 1")
    e("v_lshl_add_u32 v28, v29, 4, v28")
    e("v_mul_u32_u24 v29, 2560, v26")
    e("s_mul_i32 %s, %s, 10240" % (S_T0, S_W))
    e("s_add_u32 %s, %s, %d" % (S_T0, S_T0, L_YF))
    e("v_add3_u32 v28, v28, v29, %s" % S_T0)
    e("buffer_load_dword v30, off, %s, 0 sc1" % srd(SRD_DBG))
    e("s_nop 7")
    for bp in range(2):
        for cb in range(5):
            e("ds_write_b128 v28, %s offset:%d" % (vr(YA + (bp * 5 + cb) * 4), bp * 5120 + cb * 512))
    e("v_lshlrev_b32 v28, 4, v0")
    e("s_mul_i32 %s, %s, 2560" % (S_T0, S_W))
    e("s_add_u32 %s, %s, %d" % (S_T0, S_T0, L_YF))
    e("v_add_u32 v28, %s, v28" % S_T0)
    e("v_lshrrev_b32 v29, 3, v0")
    e("v_mul_u32_u24 v29, 0x%x, v29" % (4 * REG))
    e("v_and_b32 v27, 7, v0")
    e("v_lshl_add_u32 v29, v27, 4, v29")
    e("s_mul_i32 %s, %s, %d" % (S_OFF, S_W, REG))
    e("s_lshl_b32 %s, s4, 7" % S_T1)
    e("s_add_u32 %s, %s, %s" % (S_OFF, S_OFF, S_T1))
    e("s_add_u32 %s, %s, 8192" % (S_OFF, S_OFF))
    e("s_waitcnt vmcnt(0) lgkmcnt(0)")
    e("s_barrier")
    e("v_readfirstlane_b32 %s, v30" % S_T0)
    e("s_cmp_ge_u32 %s, %d" % (S_T0, NAUX))
    e("s_cbranch_scc1 L_ffn2")
    poll_cleared("L_ffnp", 30, "L_ffn2")
    lab("L_ffn2")
    for k in range(3):
        if k == 2:
            e("s_mov_b32 exec_hi, 0")
        for p in range(4):
            e("ds_read_b128 %s, v28 offset:%d" % (vr(32 + 4 * p), p * 10240 + k * 1024))
        e("s_waitcnt lgkmcnt(0)")
        for i in range(4):
            e("v_add_f32 v%d, v%d, v%d" % (32 + i, 32 + i, 36 + i))
            e("v_add_f32 v%d, v%d, v%d" % (40 + i, 40 + i, 44 + i))
        for i in range(4):
            e("v_add_f32 v%d, v%d, v%d" % (48 + 4 * k + i, 32 + i, 40 + i))
        e("buffer_store_dwordx4 %s, v29, %s, %s offen sc1" % (vr(48 + 4 * k), srd(SRD_WS), S_OFF))
        if k < 2: e("s_add_u32 %s, %s, 0x%x" % (S_OFF, S_OFF, 8 * 4 * REG))
    e("s_mov_b64 exec, -1")
    lab("L_consume")
    stamp(2)
    e("v_add_u32 v3, 8192, v2")
    e("v_mov_b32 v4, 0x7f000000")
    e("v_cmp_gt_u32 vcc, %d, v1" % (NFFN * 8))
    e("s_add_u32 %s, %s, 0x1000" % (S_T1, S_REC))
    e("s_nop 0")
    e("v_cndmask_b32 v3, v4, v3, vcc")
    e("s_cmp_lg_u32 %s, 0" % S_W)
    e("s_cbranch_scc1 L_cons1")
    lab("L_slow")
    e("buffer_load_dword v4, off, %s, 0 offset:128 sc1" % srd(SRD_DBG))
    e("s_waitcnt vmcnt(0)")
    e("v_readfirstlane_b32 %s, v4" % S_T0)
    e("s_cmp_lg_u32 %s, 0" % S_T0)
    e("s_cbranch_scc1 L_cons1")
    spin_guard("L_cons1")
    e("s_sleep 8")
    e("s_branch L_slow")
    lab("L_cons1")
    e("s_barrier")
    stamp(3)
    lab("L_full")
    spin_guard("L_fulld")
    e("buffer_load_dwordx4 v[8:11], v2, %s, %s offen sc1" % (srd(SRD_WS), S_REC))
    e("buffer_load_dwordx4 v[12:15], v2, %s, %s offen sc1" % (srd(SRD_WS), S_T1))
    e("buffer_load_dwordx4 v[16:19], v3, %s, %s offen sc1" % (srd(SRD_WS), S_REC))
    e("s_waitcnt vmcnt(0)")
    e("v_max3_u32 v20, v8, v9, v10")
    e("v_max3_u32 v21, v11, v12, v13")
    e("v_max3_u32 v22, v14, v15, v16")
    e("v_max3_u32 v23, v17, v18, v19")
    e("v_max3_u32 v20, v20, v21, v22")
    e("v_max_u32 v20, v20, v23")
    e("v_cmp_eq_u32 vcc, -1, v20")
    e("s_mov_b64 exec, vcc")
    e("s_cbranch_vccnz L_full")
    lab("L_fulld")
    e("s_mov_b64 exec, -1")
    stamp(4)
    for i in range(4):
        e("v_add_f32 v%d, v%d, v%d" % (8 + i, 8 + i, 12 + i))
    e("s_nop 1")
    for i in range(4):
        e("v_permlane32_swap_b32 v%d, v%d" % (8 + i, 16 + i))
    e("s_nop 1")
    for i in range(4):
        e("v_add_f32 v%d, v%d, v%d" % (8 + i, 8 + i, 16 + i))
    e("s_nop 1")
    e("v_permlane16_swap_b32 v8, v9")
    e("v_permlane16_swap_b32 v10, v11")
    e("s_nop 1")
    e("v_add_f32 v8, v8, v9")
    e("v_add_f32 v10, v10, v11")
    e("v_and_b32 v12, 7, v0")
    e("v_lshlrev_b32 v12, 4, v12")
    e("v_add_f32_dpp v8, v8, v8 row_ror:8 row_mask:0xf bank_mask:0xf")
    e("v_add_f32_dpp v10, v10, v10 row_ror:8 row_mask:0xf bank_mask:0xf")
    e("v_bfe_u32 v13, v0, 4, 1")
    e("v_lshl_add_u32 v12, v13, 2, v12")
    e("v_lshrrev_b32 v13, 5, v0")
    e("v_lshl_add_u32 v12, v13, 7, v12")
    e("s_lshl_b32 %s, %s, 8" % (S_T0, S_W))
    e("v_add_u32 v12, %s, v12" % S_T0)
    e("ds_write_b32 v12, v8 offset:%d" % L_R)
    e("ds_write_b32 v12, v10 offset:%d" % (L_R + 8))
    e("v_lshlrev_b32 v12, 2, v0")
    e("s_waitcnt lgkmcnt(0)")
    e("s_barrier")
    e("s_cmp_lg_u32 %s, 0" % S_W)
    e("s_cbranch_scc1 %s" % ("L_tsout" if TS else "L_end"))
    e("s_mov_b32 exec_hi, 0")
    for w in range(4):
        e("ds_read_b32 v%d, v12 offset:%d" % (8 + w, L_R + w * 256))
        e("ds_read_b32 v%d, v12 offset:%d" % (16 + w, L_R + w * 256 + 128))
    mk_srd(SRD_X, "s36", "s37", 5120)
    e("s_mul_i32 %s, %s, 1280" % (S_T0, S_B))
    e("s_lshl_b32 %s, s5, 6" % S_T1)
    e("s_add_u32 %s, %s, %s" % (S_T0, S_T0, S_T1))
    e("v_lshlrev_b32 v12, 1, v0")
    e("v_sub_f32 v30, 1.0, v31")
    bf16r(30)
    e("s_waitcnt lgkmcnt(0)")
    e("v_add_f32 v8, v8, v9"); e("v_add_f32 v10, v10, v11")
    e("v_add_f32 v16, v16, v17"); e("v_add_f32 v18, v18, v19")
    e("v_add_f32 v8, v8, v10"); e("v_add_f32 v16, v16, v18")
    bf16r(8); bf16r(16)
    e("v_mul_f32 v8, v31, v8"); e("v_mul_f32 v16, v30, v16")
    bf16r(8); bf16r(16)
    e("v_add_f32 v8, v8, v16")
    e("v_cvt_pk_bf16_f32 v8, v8, v8")
    e("buffer_store_short v8, v12, %s, %s offen" % (srd(SRD_X), S_T0))
    if TS: e("s_branch L_tsout")

def main():
    ref = open("cdna_kernels/%s.s.ref" % NAME).read().split("\n")
    head = []
    for ln in ref:
        if ln.startswith("; @launch"):
            break
        head.append(ln)
    out = head + ["; @launch grid=(%d,1,1) block=(256,1,1) lds=%d" % (NATT + NAUX, LDS_BYTES)]
    out += ['.amdgcn_target "amdgcn-amd-amdhsa--gfx950"', ".text", ".globl " + KNAME, ".p2align 8",
            ".type %s,@function" % KNAME, KNAME + ":"]
    e("s_cmp_ge_u32 s2, %d" % (NATT + NAUX))
    e("s_cbranch_scc1 L_end")
    e("s_load_dwordx16 s[16:31], s[0:1], 0")
    e("s_load_dwordx8 s[32:39], s[0:1], 64")
    e("s_load_dwordx2 s[40:41], s[0:1], 96")
    e("v_lshrrev_b32 v1, 6, v0")
    e("v_and_b32 v0, 63, v0")
    e("s_mov_b32 s72, 0")
    e("v_readfirstlane_b32 %s, v1" % S_W)
    e("s_cmp_ge_u32 s2, %d" % NATT)
    e("s_cbranch_scc1 L_aux")
    attention()
    aux()
    lab("L_end")
    e("s_endpgm")
    out += L
    out += ['.section .rodata,"a"', ".p2align 6", ".amdhsa_kernel " + KNAME,
            "  .amdhsa_next_free_vgpr 256", "  .amdhsa_next_free_sgpr %d" % (96 if TS else 80), "  .amdhsa_accum_offset 256",
            "  .amdhsa_group_segment_fixed_size 0", "  .amdhsa_kernarg_size 104",
            "  .amdhsa_user_sgpr_count 2", "  .amdhsa_user_sgpr_kernarg_segment_ptr 1",
            "  .amdhsa_system_sgpr_workgroup_id_x 1", "  .amdhsa_float_denorm_mode_32 3",
            ".end_amdhsa_kernel", ""]
    open(OUT, "w").write("\n".join(out))

main()
```

```python
import sys

NAME = "gated_mix__mha_block_cached__glu_gated_bilinear__decode"
KNAME = NAME + "_kernel"
TS = "--ts" in sys.argv
XP = [a[2:] for a in sys.argv if a.startswith("--")]
OUT = [a for a in sys.argv[1:] if not a.startswith("--")]
OUT = OUT[0] if OUT else "cdna_kernels/%s.s" % NAME
def xpv(name, default):
    for a in XP:
        if a.startswith(name + "="): return int(a.split("=")[1])
    return default

NWG, NCONS, NFFN = 256, 80, 27
NWARM = 4
if "noffn" in XP: NFFN = 0
CONS0 = NWG - NCONS
REG = 12288
REC_OFF = 11776
WS_USED = NCONS * REG
DBG_WS = 1 << 20
WS_REC = (WS_USED if not TS else (64 << 20))
WO_WIN = xpv("wowin", 10)
WQ_WIN = xpv("wqwin", 40)
RB = xpv("rb", 3)
SHIFT = xpv("shift", 1)

P_ROW = 64 * (8 + SHIFT) + 16
P_WAVE = 4 * P_ROW
L_QP = 10240
L_OP = 14336
L_ML = 16384
L_CNT = 16416
L_YP = 16896
L_X = 37376
L_H = 45568
L_R = 46080
L_GU = 47104
L_YF = 47104
LDS_BYTES = 88064
assert 4 * P_WAVE <= L_QP

L = []
def e(s): L.append("    " + s)
def lab(s): L.append(s + ":")
def cmt(s): L.append("    ; " + s)
def vr(a, n=4): return "v[%d:%d]" % (a, a + n - 1)

S_W, S_H, S_B, S_HALF, S_BH = "s3", "s6", "s7", "s8", "s9"
S_OFF, S_IT, S_T0, S_T1, S_REC = "s10", "s11", "s12", "s13", "s14"
S_NB, S_NBM, S_TH, S_HS = "s15", "s68", "s69", "s73"
SRD_S, SRD_W, SRD_WS, SRD_DBG, SRD_X = 44, 48, 52, 56, 60
S_SC = 64
def srd(n): return "s[%d:%d]" % (n, n + 3)
def mk_srd(n, lo, hi, nrec):
    e("s_mov_b32 s%d, %s" % (n, lo))
    e("s_mov_b32 s%d, %s" % (n + 1, hi))
    e("s_mov_b32 s%d, 0x%x" % (n + 2, nrec))
    e("s_mov_b32 s%d, 0x00020000" % (n + 3))

BUF = 64
WREG = 96
def B(i): return BUF + 4 * i
def W(i): return WREG + 4 * i

LOG2E = "0x3fb8aa3b"
SCALE = "0x3db504f3"
MFMA = "v_mfma_f32_16x16x32_bf16"

class VM:
    def __init__(self): self.q = []
    def issue(self, tag): self.q.append(tag); assert len(self.q) <= 63
    def wait(self, tag):
        idx = [i for i, t in enumerate(self.q) if t == tag]
        if not idx: return
        idx = max(idx)
        e("s_waitcnt vmcnt(%d)" % (len(self.q) - 1 - idx))
        self.q = self.q[idx + 1:]

def sel_build(dst, kind, t):
    pa = {"E": 0x0100, "PV": 0x0100, "KP": 0x0100, "KO": 0x0302, "TE": 0x0100, "TO": 0x0302}[kind]
    pb = {"E": 0x0100, "PV": 0x0302, "KP": 0x0100, "KO": 0x0302, "TE": 0x0504, "TO": 0x0706}[kind]
    a, b, c = t, t + 1, t + 2
    e("v_mov_b32 v%d, 0x%x" % (a, pa))
    e("v_mov_b32 v%d, 0x%x" % (b, pb))
    e("v_and_b32 v%d, 8, v0" % c)
    e("v_cmp_ne_u32 vcc, 0, v%d" % c)
    e("s_nop 1")
    e("v_cndmask_b32 v%d, v%d, v%d, vcc" % (a, a, b))
    e("v_or_b32 v%d, 0x0c0c0000, v%d" % (b, a))
    e("v_lshlrev_b32 v%d, 16, v%d" % (a, a))
    e("v_or_b32 v%d, 0x0c0c, v%d" % (a, a))
    e("v_and_b32 v%d, 1, v0" % c)
    e("v_cmp_ne_u32 vcc, 0, v%d" % c)
    e("s_nop 1")
    e("v_cndmask_b32 v%d, v%d, v%d, vcc" % (a, b, a))
    e("v_mov_b32 v%d, 0x0c0c0c0c" % b)
    e("v_bfe_u32 v%d, v0, 1, %d" % (c, 3 if kind == "E" else 2))
    for i in range(4):
        e("v_cmp_eq_u32 vcc, %d, v%d" % (i, c))
        e("s_nop 1")
        e("v_cndmask_b32 v%d, v%d, v%d, vcc" % (dst + i, b, a))

def allreduce64(op, v, t):
    for r in (8, 4, 2, 1):
        e("s_nop 1")
        e("v_%s_f32_dpp v%d, v%d, v%d row_ror:%d row_mask:0xf bank_mask:0xf" % (op, v, v, v, r))
    for sw in ("16", "32"):
        e("v_mov_b32 v%d, v%d" % (t, v))
        e("s_nop 1")
        e("v_permlane%s_swap_b32 v%d, v%d" % (sw, v, t))
        e("s_nop 1")
        e("v_%s_f32 v%d, v%d, v%d" % (op, v, v, t))

def allreduce4(op, v):
    for m in ("quad_perm:[1,0,3,2]", "quad_perm:[2,3,0,1]"):
        e("s_nop 1")
        e("v_%s_f32_dpp v%d, v%d, v%d %s row_mask:0xf bank_mask:0xf" % (op, v, v, v, m))

def bf16r(v):
    e("v_cvt_pk_bf16_f32 v%d, v%d, v%d" % (v, v, v))
    e("v_lshlrev_b32 v%d, 16, v%d" % (v, v))

def hilo_pack(a, b, t):
    e("v_cvt_pk_bf16_f32 v%d, v%d, v%d" % (t, a, b))
    e("v_lshlrev_b32 v%d, 16, v%d" % (t + 1, t))
    e("v_and_b32 v%d, 0xffff0000, v%d" % (t + 2, t))
    e("v_sub_f32 v%d, v%d, v%d" % (t + 1, a, t + 1))
    e("v_sub_f32 v%d, v%d, v%d" % (t + 2, b, t + 2))
    e("v_cvt_pk_bf16_f32 v%d, v%d, v%d" % (t + 1, t + 1, t + 2))
    e("v_perm_b32 v%d, v%d, v%d, %s" % (a, t + 1, t, S_T0))
    e("v_perm_b32 v%d, v%d, v%d, %s" % (b, t + 1, t, S_T1))

def stream_load(t):
    e("buffer_load_dwordx4 %s, v1, %s, %s offen nt" % (vr(B(t)), srd(SRD_S), S_OFF))
    e("s_add_u32 %s, %s, 0x1000" % (S_OFF, S_OFF))

NSTAMP = 10
def stamp(i):
    if not TS: return
    e("s_memrealtime s[%d:%d]" % (76 + 2 * i, 77 + 2 * i))
    e("s_waitcnt lgkmcnt(0)")

def stamps_out(w8off):
    if not TS: return
    e("s_mov_b64 exec, 1")
    mk_srd(SRD_WS, "s40", "s41", WS_REC)
    e("s_lshl_b32 s12, s2, 3")
    e("s_add_u32 s12, s12, %s" % S_W)
    e("s_add_u32 s12, s12, %d" % w8off)
    e("s_lshl_b32 s12, s12, 6")
    e("s_add_u32 s12, s12, 0x%x" % DBG_WS)
    for i in range(NSTAMP):
        e("v_mov_b32 v5, s%d" % (76 + 2 * i))
        e("buffer_store_dword v5, off, %s, s12 offset:%d" % (srd(SRD_WS), 4 * i))
    e("s_getreg_b32 s13, hwreg(HW_REG_XCC_ID)")
    e("v_mov_b32 v5, s13")
    e("buffer_store_dword v5, off, %s, s12 offset:56" % srd(SRD_WS))
    e("s_getreg_b32 s13, hwreg(HW_REG_HW_ID)")
    e("v_mov_b32 v5, s13")
    e("buffer_store_dword v5, off, %s, s12 offset:60" % srd(SRD_WS))

SPIN_MAX = 400000
def spin_guard(exit_lbl):
    e("s_add_u32 s72, s72, 1")
    e("s_cmp_gt_u32 s72, %d" % SPIN_MAX)
    e("s_cbranch_scc1 %s" % exit_lbl)

NLAB = [0]
def newlab(p):
    NLAB[0] += 1
    return "L_%s%d" % (p, NLAB[0])

def lds_wait(off, target, vt, va):
    l0, l1 = newlab("lw"), newlab("lw")
    lab(l0)
    e("ds_read_b32 v%d, v%d offset:%d" % (vt, va, L_CNT + off))
    e("s_waitcnt lgkmcnt(0)")
    e("v_readfirstlane_b32 %s, v%d" % (S_T0, vt))
    e("s_cmp_ge_u32 %s, %s" % (S_T0, target))
    e("s_cbranch_scc1 %s" % l1)
    spin_guard(l1)
    e("s_sleep 1")
    e("s_branch %s" % l0)
    lab(l1)

def lds_signal(off, vt, va):
    e("v_mov_b32 v%d, 1" % vt)
    e("s_mov_b64 exec, 1")
    e("ds_add_u32 v%d, v%d offset:%d" % (va, vt, L_CNT + off))
    e("s_mov_b64 exec, -1")

VZ = 95
def hsync():
    e("s_add_u32 %s, %s, 4" % (S_HS, S_HS))
    lds_signal(8, 94, VZ)
    lds_wait(8, S_HS, 94, VZ)

def wait_cleared(v):
    l0, l1 = newlab("cl"), newlab("cl")
    lab(l0)
    e("v_readfirstlane_b32 %s, v%d" % (S_T0, v))
    e("s_cmp_ge_u32 %s, %d" % (S_T0, 4 * NCONS))
    e("s_cbranch_scc1 %s" % l1)
    spin_guard(l1)
    e("s_sleep 4")
    e("buffer_load_dword v%d, off, %s, 0 sc1" % (v, srd(SRD_DBG)))
    e("s_waitcnt vmcnt(0)")
    e("s_branch %s" % l0)
    lab(l1)

def k_body(th):
    P = [8, 9, 10, 11]; Y0, Y1, Z, T, S, TMP = 12, 13, 14, 15, 16, 17
    b0 = 16 * th
    for G in range(4):
        e("s_waitcnt vmcnt(%d)" % (16 * RB - 4))
        for k in range(4):
            for u in range(4):
                c = "0" if k == 0 else "v%d" % P[u]
                e("v_dot2_f32_bf16 v%d, v%d, v%d, %s" % (P[u], B(b0 + 4 * G + u) + k, 4 + k, c))
        e("v_add_f32_dpp v%d, v%d, v%d row_ror:8 row_mask:0xf bank_mask:0x3" % (Y0, P[0], P[0]))
        e("v_add_f32_dpp v%d, v%d, v%d row_ror:8 row_mask:0xf bank_mask:0xc" % (Y0, P[1], P[1]))
        e("v_add_f32_dpp v%d, v%d, v%d row_ror:8 row_mask:0xf bank_mask:0x3" % (Y1, P[2], P[2]))
        e("v_add_f32_dpp v%d, v%d, v%d row_ror:8 row_mask:0xf bank_mask:0xc" % (Y1, P[3], P[3]))
        stream_load(b0 + 4 * G + 0)
        e("v_add_f32_dpp v%d, v%d, v%d row_half_mirror row_mask:0xf bank_mask:0x5" % (Z, Y0, Y0))
        e("v_add_f32_dpp v%d, v%d, v%d row_half_mirror row_mask:0xf bank_mask:0xa" % (Z, Y1, Y1))
        stream_load(b0 + 4 * G + 1)
        e("v_add_f32_dpp v%d, v%d, v%d quad_perm:[1,0,3,2] row_mask:0xf bank_mask:0xf" % (Z, Z, Z))
        stream_load(b0 + 4 * G + 2)
        d = S if G == 0 else T
        e("v_add_f32_dpp v%d, v%d, v%d quad_perm:[2,3,0,1] row_mask:0xf bank_mask:0xf" % (d, Z, Z))
        stream_load(b0 + 4 * G + 3)
        if G:
            e("v_cndmask_b32 v%d, v%d, v%d, s[%d:%d]" % (S, S, T, 60 + 2 * G, 61 + 2 * G))
    e("v_cvt_pk_bf16_f32 v%d, v%d, v%d" % (TMP, S, S))
    e("v_lshlrev_b32 v%d, 16, v%d" % (TMP, TMP))
    e("v_mul_f32 v%d, %s, v%d" % (TMP, SCALE, TMP))
    bf16r(TMP)
    e("s_add_u32 %s, %s, 1" % (S_IT, S_IT))
    e("v_max_f32 v3, v3, v%d" % TMP)
    e("ds_write_b32 v2, v%d" % TMP)
    e("v_add_u32 v2, 64, v2")
    e("s_cmp_eq_u32 %s, %s" % (S_IT, S_NBM))
    e("s_cselect_b32 s%d, s42, s%d" % (SRD_S, SRD_S))
    e("s_cselect_b32 s%d, s43, s%d" % (SRD_S + 1, SRD_S + 1))
    e("s_cselect_b32 %s, 0, %s" % (S_OFF, S_OFF))
    e("s_mov_b32 %s, %d" % (S_TH, (th + 1) % RB))
    e("s_cmp_eq_u32 %s, %s" % (S_IT, S_NB))
    e("s_cbranch_scc1 L_sm")

def v_body(th):
    A, ACC = 8, 20
    PB = [12, 16]
    b0 = 16 * th
    for G in range(4):
        e("s_waitcnt lgkmcnt(0)")
        e("ds_read_b128 %s, v2 offset:%d" % (vr(PB[(G + 1) & 1]), (G + 1) * 16))
        for u in range(4):
            t = b0 + 4 * G + u
            p = PB[G & 1] + u
            for i in range(4):
                e("v_perm_b32 v%d, v%d, v%d, v%d" % (A + i, p, p, 4 + i))
            e("s_waitcnt vmcnt(%d)" % (16 * RB - 1))
            e("s_nop 0")
            e("%s %s, %s, %s, %s" % (MFMA, vr(ACC), vr(A), vr(B(t)), vr(ACC)))
            stream_load(t)
    e("s_add_u32 %s, %s, 1" % (S_IT, S_IT))
    e("v_add_u32 v2, 64, v2")
    e("s_cmp_eq_u32 %s, %s" % (S_IT, S_NB))
    e("s_cbranch_scc1 L_stail")

def streamer():
    NBMAX = 8 + SHIFT
    e("s_and_b32 %s, s2, 127" % S_T0)
    e("s_cmp_lt_u32 %s, %d" % (S_T0, NFFN))
    e("s_cselect_b32 %s, %d, 0" % (S_T0, SHIFT))
    e("s_sub_u32 %s, 8, %s" % (S_NB, S_T0))
    e("s_lshl_b32 %s, %s, 16" % (S_T1, S_NB))
    e("s_add_u32 s4, %s, 8" % S_T0)
    e("s_cmp_lg_u32 %s, 0" % S_HALF)
    e("s_cselect_b32 %s, s4, %s" % (S_NB, S_NB))
    e("s_cselect_b32 %s, %s, 0" % (S_T1, S_T1))
    e("s_sub_u32 %s, %s, %d" % (S_NBM, S_NB, RB))
    e("s_lshl_b32 %s, %s, 20" % (S_T0, S_BH))
    e("s_add_u32 %s, %s, %s" % (S_T0, S_T0, S_T1))
    e("s_lshl_b32 %s, %s, 10" % (S_T1, S_W))
    e("v_lshlrev_b32 v1, 4, v0")
    e("v_add_u32 v1, %s, v1" % S_T1)
    e("s_lshl_b32 s%d, %s, 16" % (SRD_S + 2, S_NB))
    e("s_mov_b32 s%d, 0x00020000" % (SRD_S + 3))
    e("s_mov_b32 %s, 0" % S_OFF)
    e("s_waitcnt lgkmcnt(0)")
    stamp(0)
    e("s_add_u32 s%d, s18, %s" % (SRD_S, S_T0))
    e("s_addc_u32 s%d, s19, 0" % (SRD_S + 1))
    e("s_add_u32 s42, s20, %s" % S_T0)
    e("s_addc_u32 s43, s21, 0")
    for t in range(16 * RB):
        stream_load(t)
    stamp(1)
    for i, m in enumerate((0x22222222, 0x44444444, 0x88888888)):
        e("s_mov_b32 s%d, 0x%x" % (62 + 2 * i, m)); e("s_mov_b32 s%d, 0x%x" % (63 + 2 * i, m))
    e("v_lshrrev_b32 v24, 4, v0")
    e("v_and_b32 v25, 15, v0")
    e("v_lshlrev_b32 v25, 4, v25")
    e("v_mul_u32_u24 v2, %d, v24" % P_ROW)
    e("s_mul_i32 %s, %s, %d" % (S_T0, S_W, P_WAVE))
    e("v_add_u32 v28, %s, v2" % S_T0)
    e("v_and_b32 v26, 3, v0")
    e("v_lshlrev_b32 v26, 4, v26")
    e("v_bfe_u32 v27, v0, 2, 1")
    e("v_lshl_add_u32 v26, v27, 3, v26")
    e("v_bfe_u32 v27, v0, 3, 1")
    e("v_lshl_add_u32 v26, v27, 2, v26")
    e("v_add_u32 v2, v28, v26")
    e("v_mov_b32 v29, v2")
    e("v_mov_b32 v3, 0xff800000")
    for k in range(8 - SHIFT, NBMAX):
        e("ds_write_b32 v2, v3 offset:%d" % (64 * k))
    e("v_add_u32 v26, 0x%x, v25" % L_QP)
    e("v_mov_b32 v30, 0")
    e("s_mov_b32 %s, 0" % S_IT)
    e("s_waitcnt lgkmcnt(0)")
    e("s_barrier")
    for w in range(4):
        e("ds_read_b128 %s, v26 offset:%d" % (vr(32 + 8 * w), w * 1024))
        e("ds_read_b128 %s, v26 offset:%d" % (vr(36 + 8 * w), w * 1024 + 256))
    e("s_waitcnt lgkmcnt(4)")
    for i in range(8):
        e("v_add_f32 v%d, v%d, v%d" % (32 + i, 32 + i, 40 + i))
    e("s_waitcnt lgkmcnt(2)")
    for i in range(8):
        e("v_add_f32 v%d, v%d, v%d" % (32 + i, 32 + i, 48 + i))
    e("s_waitcnt lgkmcnt(0)")
    for i in range(8):
        e("v_add_f32 v%d, v%d, v%d" % (32 + i, 32 + i, 56 + i))
    for i in range(4):
        e("v_cvt_pk_bf16_f32 v%d, v%d, v%d" % (4 + i, 32 + 2 * i, 33 + 2 * i))
    stamp(2)
    e("s_nop 0")
    lab("L_k0")
    for th in range(RB): k_body(th)
    e("s_branch L_k0")
    lab("L_sm")
    stamp(3)
    for k in range(NBMAX):
        e("ds_read_b32 v%d, v29 offset:%d" % (32 + k, 64 * k))
    allreduce64("max", 3, 16)
    e("s_mov_b32 %s, 0x05040100" % S_T0)
    e("s_mov_b32 %s, 0x07060302" % S_T1)
    e("s_waitcnt lgkmcnt(0)")
    for k in range(NBMAX):
        e("v_sub_f32 v%d, v%d, v3" % (32 + k, 32 + k))
    for k in range(NBMAX):
        e("v_mul_f32 v%d, %s, v%d" % (32 + k, LOG2E, 32 + k))
    for k in range(NBMAX):
        e("v_exp_f32 v%d, v%d" % (32 + k, 32 + k))
    e("s_nop 0")
    e("v_add_f32 v24, v32, v33")
    for k in range(2, NBMAX):
        e("v_add_f32 v24, v24, v%d" % (32 + k))
    if NBMAX & 1: e("v_mov_b32 v%d, 0" % (32 + NBMAX))
    for k in range((NBMAX + 1) // 2):
        hilo_pack(32 + 2 * k, 33 + 2 * k, 16)
    for k in range(NBMAX):
        e("ds_write_b32 v29, v%d offset:%d" % (32 + k, 64 * k))
    e("v_mov_b32 v2, v28")
    e("ds_read_b128 %s, v2" % vr(12))
    allreduce64("add", 24, 20)
    sel_build(4, "PV", 8)
    e("v_mov_b32 v25, v24")
    e("v_mov_b32 v24, v3")
    e("s_lshl_b32 %s, %s, 3" % (S_T0, S_W))
    e("v_mov_b32 v26, %s" % S_T0)
    e("s_mov_b64 exec, 1")
    e("ds_write_b64 v26, v[24:25] offset:%d" % L_ML)
    e("s_mov_b64 exec, -1")
    lds_signal(0, 27, 30)
    for i in range(4):
        e("v_mov_b32 v%d, 0" % (20 + i))
    e("s_mov_b32 %s, 0" % S_IT)
    stamp(4)
    for th in range(1, RB):
        e("s_cmp_eq_u32 %s, %d" % (S_TH, th))
        e("s_cbranch_scc1 L_v%d" % th)
    for th in range(RB):
        lab("L_v%d" % th); v_body(th)
    e("s_branch L_v0")
    lab("L_stail")
    stamp(5)
    ACC = 20
    e("v_and_b32 v26, 31, v0")
    e("v_and_b32 v27, 15, v26")
    e("v_lshlrev_b32 v27, 5, v27")
    e("v_lshrrev_b32 v26, 4, v26")
    e("v_lshl_add_u32 v27, v26, 4, v27")
    e("v_lshrrev_b32 v26, 5, v0")
    e("s_lshl_b32 %s, %s, 9" % (S_T0, S_W))
    e("s_add_u32 %s, %s, %d" % (S_T0, S_T0, L_OP))
    e("v_lshl_add_u32 v28, v26, 2, v27")
    e("v_add_u32 v28, %s, v28" % S_T0)
    e("s_nop 4")
    e("v_permlane32_swap_b32 v%d, v%d" % (ACC, ACC + 1))
    e("v_permlane32_swap_b32 v%d, v%d" % (ACC + 2, ACC + 3))
    e("s_nop 1")
    e("v_add_f32 v%d, v%d, v%d" % (ACC, ACC, ACC + 1))
    e("v_add_f32 v%d, v%d, v%d" % (ACC + 2, ACC + 2, ACC + 3))
    e("ds_write_b32 v28, v%d" % ACC)
    e("ds_write_b32 v28, v%d offset:8" % (ACC + 2))
    lds_signal(4, 27, 30)
    e("s_waitcnt lgkmcnt(0)")
    e("s_barrier")
    stamps_out(0)
    e("s_endpgm")

def ffn():
    cmt("---- FFN column chunk cc = wg (s2 < NFFN)")
    vm = VM()
    e("buffer_load_dwordx4 v[8:11], v2, %s, 0 offen" % srd(SRD_X)); vm.issue("x")
    e("s_mov_b32 %s, 0x1000" % S_T0)
    e("buffer_load_dwordx4 v[12:15], v2, %s, %s offen" % (srd(SRD_X), S_T0)); vm.issue("x")
    e("v_lshrrev_b32 v24, 3, v0")
    e("v_mul_u32_u24 v3, 0x%x, v24" % (20 * 3456))
    e("v_and_b32 v25, 7, v0")
    e("v_lshl_add_u32 v3, v25, 4, v3")
    e("s_mul_i32 %s, %s, %d" % (S_T0, S_W, 160 * 3456))
    e("s_lshl_b32 %s, s2, 7" % S_T1)
    e("s_add_u32 %s, %s, %s" % (S_T0, S_T0, S_T1))
    e("v_add_u32 v3, %s, v3" % S_T0)
    mk_srd(SRD_W, "s28", "s29", 640 * 3456)
    mk_srd(SRD_S, "s30", "s31", 640 * 3456)
    e("s_mov_b32 %s, 0" % S_T1)
    for t in range(20):
        e("buffer_load_dwordx4 %s, v3, %s, %s offen nt" % (vr(W(2 * t)), srd(SRD_W), S_T1)); vm.issue("w%d" % t)
        e("buffer_load_dwordx4 %s, v3, %s, %s offen nt" % (vr(W(2 * t + 1)), srd(SRD_S), S_T1)); vm.issue("w%d" % t)
        if t < 19: e("s_add_u32 %s, %s, 3456" % (S_T1, S_T1))
    SE, SO = 16, 20
    sel_build(SE, "KP", 28)
    sel_build(SO, "KO", 28)
    e("v_mul_u32_u24 v4, 40, v24")
    e("s_mul_i32 %s, %s, 320" % (S_T0, S_W))
    e("v_add_u32 v4, %s, v4" % S_T0)
    vm.wait("x")
    e("ds_write_b128 v2, v[8:11] offset:%d" % L_X)
    e("ds_write_b128 v2, v[12:15] offset:%d" % (L_X + 4096))
    hsync()
    XB = 32
    AF = [48, 52]
    GA = 56
    def xread(q):
        for b in range(4):
            e("ds_read_b64 %s, v4 offset:%d" % (vr(XB + 8 * (q & 1) + 2 * b, 2), L_X + b * 1280 + q * 8))
    xread(0)
    na = 0
    for q in range(5):
        e("s_waitcnt lgkmcnt(0)")
        if q < 4: xread(q + 1)
        for tt in range(4):
            t = 4 * q + tt
            for b in range(4):
                src = XB + 8 * (q & 1) + 2 * b + (tt >> 1)
                sel = SO if tt & 1 else SE
                a = AF[na & 1]; na += 1
                for i in range(4):
                    e("v_perm_b32 v%d, v%d, v%d, v%d" % (a + i, src, src, sel + i))
                vm.wait("w%d" % t)
                e("s_nop 1")
                for mat in range(2):
                    acc = GA + (b * 2 + mat) * 4
                    e("%s %s, %s, %s, %s" % (MFMA, vr(acc), vr(a), vr(W(2 * t + mat)), "0" if t == 0 else vr(acc)))
    stamp(3)
    e("v_lshrrev_b32 v24, 4, v0")
    e("v_and_b32 v25, 15, v0")
    e("v_lshlrev_b32 v25, 4, v25")
    e("v_mul_u32_u24 v3, 0x%x, v24" % (4 * 1280))
    e("s_lshl_b32 %s, s2, 6" % S_T0)
    e("s_lshl_b32 %s, %s, 4" % (S_T1, S_W))
    e("s_add_u32 %s, %s, %s" % (S_T0, S_T0, S_T1))
    e("s_mul_i32 %s, %s, 1280" % (S_T0, S_T0))
    e("v_add3_u32 v3, v3, v25, %s" % S_T0)
    mk_srd(SRD_W, "s32", "s33", 1728 * 1280)
    e("s_mov_b32 %s, 0" % S_T1)
    for g in range(4):
        for cb in range(5):
            e("buffer_load_dwordx4 %s, v3, %s, %s offen offset:%d nt" % (vr(W(g * 5 + cb)), srd(SRD_W), S_T1, cb * 256)); vm.issue("d%d" % g)
        if g < 3: e("s_add_u32 %s, %s, 1280" % (S_T1, S_T1))
    e("v_lshrrev_b32 v26, 5, v0")
    e("v_bfe_u32 v27, v0, 3, 1")
    e("v_cmp_eq_u32 vcc, v26, v27")
    e("v_and_b32 v28, 7, v0")
    e("v_lshlrev_b32 v28, 5, v28")
    e("v_bfe_u32 v29, v0, 4, 1")
    e("v_lshl_add_u32 v28, v29, 4, v28")
    e("v_lshl_add_u32 v28, v26, 11, v28")
    e("s_lshl_b32 %s, %s, 12" % (S_T0, S_W))
    e("s_add_u32 %s, %s, %d" % (S_T0, S_T0, L_GU))
    e("v_add_u32 v28, %s, v28" % S_T0)
    e("s_and_saveexec_b64 s[70:71], vcc")
    for b in range(4):
        for mat in range(2):
            e("ds_write_b128 v28, %s offset:%d" % (vr(GA + (b * 2 + mat) * 4), mat * 1024 + b * 256))
    e("s_mov_b64 exec, s[70:71]")
    e("v_lshlrev_b32 v28, 2, v1")
    hsync()
    for p in range(8):
        e("ds_read_b32 v%d, v28 offset:%d" % (32 + p, L_GU + p * 2048))
        e("ds_read_b32 v%d, v28 offset:%d" % (40 + p, L_GU + p * 2048 + 1024))
    sel_build(SE, "TE", 8)
    sel_build(SO, "TO", 8)
    e("s_waitcnt lgkmcnt(0)")
    for p in range(1, 8):
        e("v_add_f32 v32, v32, v%d" % (32 + p))
        e("v_add_f32 v40, v40, v%d" % (40 + p))
    bf16r(32); bf16r(40)
    e("v_mul_f32 v32, v32, v40")
    e("v_cvt_pk_bf16_f32 v32, v32, v32")
    e("v_lshlrev_b32 v28, 1, v1")
    e("ds_write_b16 v28, v32 offset:%d" % L_H)
    e("v_lshlrev_b32 v4, 3, v24")
    e("s_lshl_b32 %s, %s, 5" % (S_T0, S_W))
    e("v_add_u32 v4, %s, v4" % S_T0)
    hsync()
    HB = 32
    for b in range(4):
        e("ds_read_b64 %s, v4 offset:%d" % (vr(HB + 2 * b, 2), L_H + b * 128))
    e("s_waitcnt lgkmcnt(0)")
    YA = 48
    AF = [40, 44]
    na = 0
    for g in range(4):
        for bp in range(2):
            a = AF[na & 1]; na += 1
            sel = SO if g & 1 else SE
            for i in range(4):
                e("v_perm_b32 v%d, v%d, v%d, v%d" % (a + i, HB + 2 * (2 * bp + 1) + (g >> 1), HB + 2 * (2 * bp) + (g >> 1), sel + i))
            vm.wait("d%d" % g)
            e("s_nop 1")
            for cb in range(5):
                acc = YA + (bp * 5 + cb) * 4
                e("%s %s, %s, %s, %s" % (MFMA, vr(acc), vr(a), vr(W(g * 5 + cb)), "0" if g == 0 else vr(acc)))
    e("v_lshlrev_b32 v28, 1, v25")
    e("v_bfe_u32 v29, v0, 4, 1")
    e("v_lshl_add_u32 v28, v29, 4, v28")
    e("v_mul_u32_u24 v29, 2560, v26")
    e("s_mul_i32 %s, %s, 10240" % (S_T0, S_W))
    e("s_add_u32 %s, %s, %d" % (S_T0, S_T0, L_YF))
    e("v_add3_u32 v28, v28, v29, %s" % S_T0)
    e("buffer_load_dword v30, off, %s, 0 sc1" % srd(SRD_DBG))
    e("s_nop 7")
    for bp in range(2):
        for cb in range(5):
            e("ds_write_b128 v28, %s offset:%d" % (vr(YA + (bp * 5 + cb) * 4), bp * 5120 + cb * 512))
    e("v_lshlrev_b32 v28, 4, v0")
    e("s_mul_i32 %s, %s, 2560" % (S_T0, S_W))
    e("s_add_u32 %s, %s, %d" % (S_T0, S_T0, L_YF))
    e("v_add_u32 v28, %s, v28" % S_T0)
    e("v_lshrrev_b32 v29, 3, v0")
    e("v_mul_u32_u24 v29, 0x%x, v29" % (4 * REG))
    e("v_and_b32 v27, 7, v0")
    e("v_lshl_add_u32 v29, v27, 4, v29")
    e("s_mul_i32 %s, %s, %d" % (S_OFF, S_W, REG))
    e("s_lshl_b32 %s, s2, 7" % S_T1)
    e("s_add_u32 %s, %s, %s" % (S_OFF, S_OFF, S_T1))
    e("s_add_u32 %s, %s, 8192" % (S_OFF, S_OFF))
    hsync()
    e("s_waitcnt vmcnt(0)")
    wait_cleared(30)
    for k in range(3):
        if k == 2:
            e("s_mov_b32 exec_hi, 0")
        for p in range(4):
            e("ds_read_b128 %s, v28 offset:%d" % (vr(32 + 4 * p), p * 10240 + k * 1024))
        e("s_waitcnt lgkmcnt(0)")
        for i in range(4):
            e("v_add_f32 v%d, v%d, v%d" % (32 + i, 32 + i, 36 + i))
            e("v_add_f32 v%d, v%d, v%d" % (40 + i, 40 + i, 44 + i))
        for i in range(4):
            e("v_add_f32 v%d, v%d, v%d" % (48 + 4 * k + i, 32 + i, 40 + i))
        e("buffer_store_dwordx4 %s, v29, %s, %s offen sc1" % (vr(48 + 4 * k), srd(SRD_WS), S_OFF))
        if k < 2: e("s_add_u32 %s, %s, 0x%x" % (S_OFF, S_OFF, 8 * 4 * REG))
    e("s_mov_b64 exec, -1")
    stamp(4)

def rec_weights(done_lbl_missing):
    e("v_max3_u32 v40, v32, v33, v34")
    e("v_max3_u32 v41, v35, v36, v37")
    e("v_max3_u32 v40, v40, v38, v39")
    e("v_max_u32 v40, v40, v41")
    e("v_cmp_eq_u32 vcc, -1, v40")

def helper():
    vm = VM()
    lab("L_helper")
    if "noprio" not in XP: e("s_setprio 3")
    e("s_sub_u32 %s, %s, 4" % (S_W, S_W))
    e("v_lshrrev_b32 v24, 4, v0")
    e("v_and_b32 v25, 15, v0")
    e("v_lshlrev_b32 v25, 4, v25")
    e("s_mul_i32 %s, %s, 1280" % (S_T0, S_B))
    e("s_mul_i32 %s, %s, 320" % (S_T1, S_W))
    e("s_add_u32 %s, %s, %s" % (S_T0, S_T0, S_T1))
    e("v_mul_u32_u24 v26, 80, v24")
    e("v_add_u32 v26, %s, v26" % S_T0)
    e("s_mul_i32 %s, %s, %d" % (S_T0, S_W, 160 * 8192))
    e("s_lshl_b32 %s, %s, 8" % (S_T1, S_H))
    e("s_add_u32 %s, %s, %s" % (S_T0, S_T0, S_T1))
    e("v_mul_u32_u24 v27, 0x%x, v24" % (40 * 8192))
    e("v_add3_u32 v27, v27, v25, %s" % S_T0)
    e("s_lshl_b32 %s, %s, 6" % (S_T0, S_W))
    e("v_add_u32 v1, %s, v0" % S_T0)
    e("v_lshlrev_b32 v2, 4, v1")
    e("v_mov_b32 v%d, 0" % VZ)
    e("s_mov_b32 %s, 0" % S_HS)
    e("s_waitcnt lgkmcnt(0)")
    stamp(0)
    mk_srd(SRD_X, "s16", "s17", 5120)
    mk_srd(SRD_W, "s22", "s23", 640 * 8192)
    XR = [8, 12, 16, 20, 36]
    for i in range(5):
        e("buffer_load_dwordx4 %s, v26, %s, 0 offen offset:%d" % (vr(XR[i]), srd(SRD_X), 16 * i)); vm.issue("x")
    e("s_mov_b32 %s, 0" % S_NB)
    WQP = " nt" if "wqnt" in XP else ""
    if "a3" in XP: WQP = " sc1"
    def wq_load(t):
        e("buffer_load_dwordx4 %s, v27, %s, %s offen%s" % (vr(W(t)), srd(SRD_W), S_NB, WQP)); vm.issue("wq%d" % t)
        if t < 39 and "a2" not in XP and "a3" not in XP: e("s_add_u32 %s, %s, 0x2000" % (S_NB, S_NB))
    for t in range(WQ_WIN): wq_load(t)
    mk_srd(SRD_WS, "s40", "s41", WS_REC)
    mk_srd(SRD_DBG, "s38", "s39", 256)
    for i in range(4):
        e("v_mov_b32 v%d, 0" % (44 + i))
    e("s_cmp_lg_u32 %s, 0" % S_W)
    e("s_cbranch_scc1 L_h3")
    e("ds_write_b128 v%d, v[44:47] offset:%d" % (VZ, L_CNT))
    lab("L_h3")
    sel_build(4, "E", 28)
    A, ACC = 28, 32
    for t in range(40):
        xr = XR[t // 8] + (t % 8) // 2
        vm.wait("x")
        if t == 0: stamp(1)
        if t & 1:
            e("v_lshrrev_b32 v3, 16, v%d" % xr); src = 3
        else:
            src = xr
        for i in range(4):
            e("v_perm_b32 v%d, v%d, v%d, v%d" % (A + i, src, src, 4 + i))
        vm.wait("wq%d" % t)
        e("s_nop 0")
        e("%s %s, %s, %s, %s" % (MFMA, vr(ACC), vr(A), vr(W(t)), "0" if t == 0 else vr(ACC)))
        if t + WQ_WIN < 40: wq_load(t + WQ_WIN)
    e("v_lshlrev_b32 v26, 4, v0")
    e("s_lshl_b32 %s, %s, 10" % (S_T0, S_W))
    e("s_add_u32 %s, %s, 0x%x" % (S_T0, S_T0, L_QP))
    e("v_add_u32 v26, %s, v26" % S_T0)
    e("s_nop 4")
    e("ds_write_b128 v26, %s" % vr(ACC))
    e("s_waitcnt lgkmcnt(0)")
    e("s_barrier")
    stamp(2)
    if "nowarm" not in XP:
        e("s_cmp_lg_u32 %s, 3" % S_W)
        e("s_cbranch_scc1 L_h4")
        e("s_getpc_b64 s[4:5]")
        lab("L_pc")
        e("s_sub_u32 s4, s4, L_pc-%s" % KNAME)
        e("s_subb_u32 s5, s5, 0")
        e("v_lshlrev_b32 v26, 7, v0")
        for i in range(NWARM):
            e("v_min_u32 v27, L_code_end-%s-4, v26" % KNAME)
            e("global_load_dword v89, v27, s[4:5]")
            e("v_add_u32 v26, 0x2000, v26")
        lab("L_h4")
    e("s_sub_u32 s4, s2, %d" % CONS0)
    e("s_cmp_lt_u32 s2, %d" % CONS0)
    e("s_cbranch_scc1 L_h5")
    e("s_mul_i32 %s, s4, %d" % (S_REC, REG))
    for i in range(4):
        e("v_mov_b32 v%d, -1" % (40 + i))
    e("s_add_u32 %s, %s, 0x1000" % (S_T0, S_REC))
    e("s_add_u32 %s, %s, 0x2000" % (S_T1, S_REC))
    e("buffer_store_dwordx4 v[40:43], v2, %s, %s offen sc1" % (srd(SRD_WS), S_REC))
    e("buffer_store_dwordx4 v[40:43], v2, %s, %s offen sc1" % (srd(SRD_WS), S_T0))
    e("buffer_store_dwordx4 v[40:43], v2, %s, %s offen sc1" % (srd(SRD_WS), S_T1))
    e("s_and_b32 s5, s4, 3")
    mk_srd(SRD_W, "s34", "s35", 1280)
    e("v_lshlrev_b32 v3, 2, v0")
    e("s_mul_i32 %s, s5, 1280" % S_T0)
    for k in range(5):
        e("buffer_load_dword v%d, v3, %s, %s offen offset:%d" % (8 + k, srd(SRD_X), S_T0, 256 * k))
        e("buffer_load_dword v%d, v3, %s, 0 offen offset:%d" % (16 + k, srd(SRD_W), 256 * k))
    e("s_waitcnt vmcnt(10)")
    e("s_mov_b64 exec, 1")
    e("v_mov_b32 v4, 1")
    e("buffer_atomic_add v4, off, %s, 0 sc1" % srd(SRD_DBG))
    e("s_mov_b64 exec, -1")
    e("s_waitcnt vmcnt(1)")
    G = 91
    e("v_mov_b32 v%d, 0" % G)
    for k in range(5):
        e("v_lshlrev_b32 v24, 16, v%d" % (8 + k))
        e("v_and_b32 v25, 0xffff0000, v%d" % (8 + k))
        e("v_lshlrev_b32 v26, 16, v%d" % (16 + k))
        e("v_and_b32 v27, 0xffff0000, v%d" % (16 + k))
        e("v_mul_f32 v24, v24, v26")
        e("v_mul_f32 v25, v25, v27")
        e("v_cvt_pk_bf16_f32 v24, v24, v25")
        e("v_lshlrev_b32 v25, 16, v24")
        e("v_and_b32 v24, 0xffff0000, v24")
        e("v_add_f32 v%d, v%d, v25" % (G, G))
        e("v_add_f32 v%d, v%d, v24" % (G, G))
    allreduce64("add", G, 24)
    bf16r(G)
    e("v_mul_f32 v%d, 0xbfb8aa3b, v%d" % (G, G))
    e("v_exp_f32 v%d, v%d" % (G, G))
    e("s_nop 0")
    e("v_add_f32 v%d, 1.0, v%d" % (G, G))
    e("v_rcp_f32 v%d, v%d" % (G, G))
    e("s_nop 0")
    bf16r(G)
    lab("L_h5")
    e("s_cmp_ge_u32 s2, %d" % NFFN)
    e("s_cbranch_scc1 L_h6")
    ffn()
    lab("L_h6")
    e("v_lshrrev_b32 v24, 4, v0")
    e("v_and_b32 v25, 15, v0")
    e("v_lshlrev_b32 v25, 4, v25")
    e("s_lshl_b32 %s, %s, 7" % (S_T0, S_H))
    e("s_lshl_b32 %s, %s, 5" % (S_T1, S_W))
    e("s_add_u32 %s, %s, %s" % (S_T0, S_T0, S_T1))
    e("s_mul_i32 %s, %s, 1280" % (S_T0, S_T0))
    e("v_mul_u32_u24 v27, 0x%x, v24" % (8 * 1280))
    e("v_add3_u32 v27, v27, v25, %s" % S_T0)
    mk_srd(SRD_W, "s24", "s25", 4096 * 1280)
    e("s_mov_b32 %s, 0" % S_T1)
    WOP = " nt" if "wont" in XP else ""
    if "a3" in XP: WOP = " sc1"
    for g in range(0 if "nowo" in XP else 8):
        for cb in range(5):
            if g * 5 + cb >= WO_WIN: e("s_waitcnt vmcnt(%d)" % (WO_WIN - 1))
            e("buffer_load_dwordx4 %s, v27, %s, %s offen offset:%d%s" % (vr(W(g * 5 + cb)), srd(SRD_W), S_T1, 0 if ("a2" in XP or "a3" in XP) else cb * 256, WOP))
        if g < 7 and "a2" not in XP and "a3" not in XP: e("s_add_u32 %s, %s, 1280" % (S_T1, S_T1))
    sel_build(4, "PV", 28)
    e("v_and_b32 v26, 31, v0")
    e("v_and_b32 v27, 15, v26")
    e("v_lshlrev_b32 v27, 5, v27")
    e("v_lshrrev_b32 v26, 4, v26")
    e("v_lshl_add_u32 v27, v26, 4, v27")
    e("v_lshrrev_b32 v26, 5, v0")
    e("s_mul_i32 %s, %s, 5120" % (S_T0, S_W))
    e("s_add_u32 %s, %s, %d" % (S_T0, S_T0, L_YP))
    e("v_mul_u32_u24 v8, 2560, v26")
    e("v_add3_u32 v8, v8, v27, %s" % S_T0)
    e("v_lshlrev_b32 v9, 5, v24")
    e("s_lshl_b32 %s, %s, 7" % (S_T0, S_W))
    e("s_add_u32 %s, %s, %d" % (S_T0, S_T0, L_OP))
    e("v_add_u32 v9, %s, v9" % S_T0)
    e("v_lshrrev_b32 v10, 3, v1")
    e("v_mul_u32_u24 v10, 0x%x, v10" % (4 * REG))
    e("v_and_b32 v28, 7, v1")
    e("v_lshl_add_u32 v10, v28, 4, v10")
    e("v_add_u32 v11, 0x%x, v2" % L_YP)
    e("s_mul_i32 %s, %s, %d" % (S_OFF, S_B, REG))
    e("s_lshl_b32 %s, %s, 8" % (S_T1, S_H))
    e("s_add_u32 %s, %s, %s" % (S_IT, S_OFF, S_T1))
    e("s_lshl_b32 %s, %s, 7" % (S_T1, S_HALF))
    e("s_add_u32 %s, %s, %s" % (S_IT, S_IT, S_T1))
    e("s_lshl_b32 %s, %s, 4" % (S_T1, S_H))
    e("s_add_u32 %s, %s, %s" % (S_OFF, S_OFF, S_T1))
    e("s_lshl_b32 %s, %s, 3" % (S_T1, S_HALF))
    e("s_add_u32 %s, %s, %s" % (S_OFF, S_OFF, S_T1))
    e("s_add_u32 %s, %s, %d" % (S_OFF, S_OFF, REC_OFF))
    e("v_and_b32 v12, 3, v0")
    e("v_lshlrev_b32 v12, 3, v12")
    e("s_waitcnt vmcnt(0)")
    stamp(5)
    lds_wait(0, "4", 94, VZ)
    e("ds_read_b64 v[14:15], v12 offset:%d" % L_ML)
    e("s_waitcnt lgkmcnt(0)")
    e("v_mov_b32 v16, v14")
    allreduce4("max", 16)
    e("v_sub_f32 v14, v14, v16")
    e("v_mul_f32 v14, %s, v14" % LOG2E)
    e("v_exp_f32 v14, v14")
    e("s_nop 0")
    e("v_mul_f32 v17, v14, v15")
    allreduce4("add", 17)
    for w in range(4):
        e("v_readlane_b32 s%d, v14, %d" % (S_SC + w, w))
    e("s_cmp_lg_u32 %s, 0" % S_W)
    e("s_cbranch_scc1 L_h7")
    e("buffer_load_dword v30, off, %s, 0 sc1" % srd(SRD_DBG))
    e("s_waitcnt vmcnt(0)")
    wait_cleared(30)
    e("s_mov_b64 exec, 1")
    e("buffer_store_dwordx2 v[16:17], off, %s, %s sc1" % (srd(SRD_WS), S_OFF))
    e("s_mov_b64 exec, -1")
    lab("L_h7")
    stamp(6)
    e("v_lshrrev_b32 v13, 4, v1")
    e("v_lshlrev_b32 v13, 4, v13")
    e("s_and_b32 s5, s4, 3")
    e("s_mul_i32 %s, s5, %d" % (S_OFF, REG))
    e("s_add_u32 %s, %s, %d" % (S_OFF, S_OFF, REC_OFF))
    e("s_mov_b32 %s, 0" % S_TH)
    e("s_cmp_lt_u32 s2, %d" % CONS0)
    e("s_cbranch_scc1 L_h9")
    lab("L_rp")
    e("buffer_load_dwordx4 v[32:35], v13, %s, %s offen sc1" % (srd(SRD_WS), S_OFF))
    e("buffer_load_dwordx4 v[36:39], v13, %s, %s offen offset:256 sc1" % (srd(SRD_WS), S_OFF))
    e("ds_read_b32 v94, v%d offset:%d" % (VZ, L_CNT + 4))
    e("s_waitcnt vmcnt(0) lgkmcnt(0)")
    rec_weights(None)
    e("s_cbranch_vccz L_rw")
    e("v_readfirstlane_b32 %s, v94" % S_T0)
    e("s_cmp_lg_u32 %s, 0" % S_TH)
    e("s_cbranch_scc1 L_rp2")
    e("s_cmp_lg_u32 %s, 0" % S_T0)
    e("s_cbranch_scc1 L_h9")
    lab("L_rp2")
    spin_guard("L_rw")
    e("s_sleep 8")
    e("s_branch L_rp")
    lab("L_rw")
    e("v_bfe_u32 v40, v1, 3, 1")
    e("v_cmp_ne_u32 vcc, 0, v40")
    for (r, dst) in ((32, 92), (36, 93)):
        e("v_max_f32 v41, v%d, v%d" % (r, r + 2))
        e("v_sub_f32 v%d, v%d, v41" % (r, r))
        e("v_sub_f32 v%d, v%d, v41" % (r + 2, r + 2))
        e("v_mul_f32 v%d, %s, v%d" % (r, LOG2E, r))
        e("v_mul_f32 v%d, %s, v%d" % (r + 2, LOG2E, r + 2))
        e("v_exp_f32 v%d, v%d" % (r, r))
        e("v_exp_f32 v%d, v%d" % (r + 2, r + 2))
        e("s_nop 0")
        e("v_mul_f32 v%d, v%d, v%d" % (r + 1, r, r + 1))
        e("v_fma_f32 v%d, v%d, v%d, v%d" % (r + 1, r + 2, r + 3, r + 1))
        e("v_rcp_f32 v%d, v%d" % (r + 1, r + 1))
        e("v_cndmask_b32 v%d, v%d, v%d, vcc" % (r, r, r + 2))
        e("s_nop 0")
        e("v_mul_f32 v%d, v%d, v%d" % (dst, r, r + 1))
    e("s_cmp_lg_u32 %s, 0" % S_TH)
    e("s_mov_b32 %s, 2" % S_TH)
    e("s_cbranch_scc1 L_full")
    lab("L_h9")
    e("s_mov_b32 %s, 0x05040100" % S_T0)
    e("s_mov_b32 %s, 0x07060302" % S_T1)
    stamp(7)
    e("s_barrier")
    O = 32
    for w in range(4):
        e("ds_read_b128 %s, v9 offset:%d" % (vr(O + 8 * w), w * 512))
        e("ds_read_b128 %s, v9 offset:%d" % (vr(O + 8 * w + 4), w * 512 + 16))
    e("s_waitcnt lgkmcnt(6)")
    for i in range(8):
        e("v_mul_f32 v%d, s%d, v%d" % (O + i, S_SC, O + i))
    for w in range(1, 4):
        e("s_waitcnt lgkmcnt(%d)" % (6 - 2 * w))
        for i in range(8):
            e("v_fmac_f32 v%d, s%d, v%d" % (O + i, S_SC + w, O + 8 * w + i))
    for k in range(4):
        hilo_pack(O + 2 * k, O + 2 * k + 1, O + 8 + 3 * k)
    AB = [64, 68]; YA = 72
    YA = 12
    def perms(g):
        for i in range(4):
            e("v_perm_b32 v%d, v%d, v%d, v%d" % (AB[g & 1] + i, O + g, O + g, 4 + i))
    e("v_mov_b32 v90, v13")
    perms(0)
    e("s_nop 1")
    for g in range(8):
        for cb in range(5):
            e("%s %s, %s, %s, %s" % (MFMA, vr(YA + 4 * cb), vr(AB[g & 1]), vr(W(g * 5 + cb)), "0" if g == 0 else vr(YA + 4 * cb)))
            if cb == 0 and g < 7: perms(g + 1)
    e("v_cmp_gt_u32 vcc, 160, v1")
    e("s_nop 7")
    for cb in range(5):
        e("ds_write_b128 v8, %s offset:%d" % (vr(YA + 4 * cb), cb * 512))
    e("s_waitcnt lgkmcnt(0)")
    e("s_barrier")
    e("s_and_saveexec_b64 s[70:71], vcc")
    e("s_cbranch_execz L_h10")
    for p in range(8):
        e("ds_read_b128 %s, v11 offset:%d" % (vr(O + 4 * p), p * 2560))
    for p in (1, 3, 5, 7):
        e("s_waitcnt lgkmcnt(%d)" % (7 - p))
        for i in range(4):
            e("v_add_f32 v%d, v%d, v%d" % (O + 4 * (p - 1) + i, O + 4 * (p - 1) + i, O + 4 * p + i))
    for i in range(4):
        e("v_add_f32 v%d, v%d, v%d" % (O + i, O + i, O + 8 + i))
        e("v_add_f32 v%d, v%d, v%d" % (O + 16 + i, O + 16 + i, O + 24 + i))
    for i in range(4):
        e("v_add_f32 v%d, v%d, v%d" % (O + i, O + i, O + 16 + i))
    e("buffer_store_dwordx4 %s, v10, %s, %s offen sc1" % (vr(O), srd(SRD_WS), S_IT))
    lab("L_h10")
    e("s_mov_b64 exec, -1")
    stamp(8)
    e("s_cmp_lt_u32 s2, %d" % CONS0)
    e("s_cbranch_scc1 L_hend")
    e("v_mov_b32 v13, v90")
    e("v_add_u32 v3, 8192, v2")
    e("v_mov_b32 v4, 0x7f000000")
    e("v_cmp_gt_u32 vcc, %d, v1" % (NFFN * 8))
    e("s_add_u32 %s, %s, 0x1000" % (S_NB, S_REC))
    e("s_nop 0")
    e("v_cndmask_b32 v3, v4, v3, vcc")
    e("s_cmp_eq_u32 %s, 2" % S_TH)
    e("s_mov_b32 %s, 1" % S_TH)
    e("s_cbranch_scc0 L_rp")
    lab("L_full")
    spin_guard("L_fulld")
    e("buffer_load_dwordx4 v[8:11], v2, %s, %s offen sc1" % (srd(SRD_WS), S_REC))
    e("buffer_load_dwordx4 v[12:15], v2, %s, %s offen sc1" % (srd(SRD_WS), S_NB))
    e("buffer_load_dwordx4 v[16:19], v3, %s, %s offen sc1" % (srd(SRD_WS), S_REC))
    e("s_waitcnt vmcnt(0)")
    e("v_max3_u32 v20, v8, v9, v10")
    e("v_max3_u32 v21, v11, v12, v13")
    e("v_max3_u32 v22, v14, v15, v16")
    e("v_max3_u32 v23, v17, v18, v19")
    e("v_max3_u32 v20, v20, v21, v22")
    e("v_max_u32 v20, v20, v23")
    e("v_cmp_eq_u32 vcc, -1, v20")
    e("s_mov_b64 exec, vcc")
    e("s_cbranch_vccnz L_full")
    lab("L_fulld")
    e("s_mov_b64 exec, -1")
    for i in range(4):
        e("v_mul_f32 v%d, v92, v%d" % (8 + i, 8 + i))
    for i in range(4):
        e("v_fmac_f32 v%d, v93, v%d" % (8 + i, 12 + i))
    e("s_nop 1")
    for i in range(4):
        e("v_permlane32_swap_b32 v%d, v%d" % (8 + i, 16 + i))
    e("s_nop 1")
    for i in range(4):
        e("v_add_f32 v%d, v%d, v%d" % (8 + i, 8 + i, 16 + i))
    e("s_nop 1")
    e("v_permlane16_swap_b32 v8, v9")
    e("v_permlane16_swap_b32 v10, v11")
    e("s_nop 1")
    e("v_add_f32 v8, v8, v9")
    e("v_add_f32 v10, v10, v11")
    e("v_and_b32 v12, 7, v0")
    e("v_lshlrev_b32 v12, 4, v12")
    e("v_add_f32_dpp v8, v8, v8 row_ror:8 row_mask:0xf bank_mask:0xf")
    e("v_add_f32_dpp v10, v10, v10 row_ror:8 row_mask:0xf bank_mask:0xf")
    e("v_bfe_u32 v13, v0, 4, 1")
    e("v_lshl_add_u32 v12, v13, 2, v12")
    e("v_lshrrev_b32 v13, 5, v0")
    e("v_lshl_add_u32 v12, v13, 7, v12")
    e("s_lshl_b32 %s, %s, 8" % (S_T0, S_W))
    e("v_add_u32 v12, %s, v12" % S_T0)
    e("ds_write_b32 v12, v8 offset:%d" % L_R)
    e("ds_write_b32 v12, v10 offset:%d" % (L_R + 8))
    e("v_lshlrev_b32 v12, 2, v0")
    e("s_waitcnt lgkmcnt(0)")
    e("s_barrier")
    e("s_cmp_lg_u32 %s, 0" % S_W)
    e("s_cbranch_scc1 L_hend")
    e("s_mov_b32 exec_hi, 0")
    for w in range(4):
        e("ds_read_b32 v%d, v12 offset:%d" % (8 + w, L_R + w * 256))
        e("ds_read_b32 v%d, v12 offset:%d" % (16 + w, L_R + w * 256 + 128))
    mk_srd(SRD_X, "s36", "s37", 5120)
    e("s_mul_i32 %s, s5, 1280" % S_T0)
    e("s_lshr_b32 %s, s4, 2" % S_T1)
    e("s_lshl_b32 %s, %s, 6" % (S_T1, S_T1))
    e("s_add_u32 %s, %s, %s" % (S_T0, S_T0, S_T1))
    e("v_lshlrev_b32 v12, 1, v0")
    e("v_sub_f32 v30, 1.0, v91")
    bf16r(30)
    e("s_waitcnt lgkmcnt(0)")
    e("v_add_f32 v8, v8, v9"); e("v_add_f32 v10, v10, v11")
    e("v_add_f32 v16, v16, v17"); e("v_add_f32 v18, v18, v19")
    e("v_add_f32 v8, v8, v10"); e("v_add_f32 v16, v16, v18")
    bf16r(8); bf16r(16)
    e("v_mul_f32 v8, v91, v8"); e("v_mul_f32 v16, v30, v16")
    bf16r(8); bf16r(16)
    e("v_add_f32 v8, v8, v16")
    e("v_cvt_pk_bf16_f32 v8, v8, v8")
    e("buffer_store_short v8, v12, %s, %s offen" % (srd(SRD_X), S_T0))
    lab("L_hend")
    stamp(9)
    stamps_out(4)

def main():
    ref = open("cdna_kernels/%s.s.ref" % NAME).read().split("\n")
    head = []
    for ln in ref:
        if ln.startswith("; @launch"):
            break
        head.append(ln)
    out = head + ["; @launch grid=(%d,1,1) block=(512,1,1) lds=%d" % (NWG, LDS_BYTES)]
    out += ['.amdgcn_target "amdgcn-amd-amdhsa--gfx950"', ".text", ".globl " + KNAME, ".p2align 8",
            ".type %s,@function" % KNAME, KNAME + ":"]
    e("s_cmp_ge_u32 s2, %d" % NWG)
    e("s_cbranch_scc1 L_end")
    e("s_load_dwordx16 s[16:31], s[0:1], 0")
    e("s_load_dwordx8 s[32:39], s[0:1], 64")
    e("s_load_dwordx2 s[40:41], s[0:1], 96")
    e("v_lshrrev_b32 v1, 6, v0")
    e("v_and_b32 v0, 63, v0")
    e("s_mov_b32 s72, 0")
    e("v_readfirstlane_b32 %s, v1" % S_W)
    e("s_and_b32 s4, s2, 7")
    e("s_lshr_b32 s5, s2, 3")
    e("s_and_b32 %s, s5, 3" % S_H)
    e("s_lshl_b32 %s, %s, 3" % (S_H, S_H))
    e("s_add_u32 %s, %s, s4" % (S_H, S_H))
    e("s_lshr_b32 %s, s5, 2" % S_B)
    e("s_and_b32 %s, %s, 3" % (S_B, S_B))
    e("s_lshr_b32 %s, s5, 4" % S_HALF)
    e("s_lshl_b32 %s, %s, 5" % (S_BH, S_B))
    e("s_add_u32 %s, %s, %s" % (S_BH, S_BH, S_H))
    if TS:
        for i in range(NSTAMP): e("s_mov_b32 s%d, 0" % (76 + 2 * i))
    e("s_cmp_ge_u32 %s, 4" % S_W)
    e("s_cbranch_scc1 L_helper")
    streamer()
    helper()
    lab("L_end")
    e("s_endpgm")
    lab("L_code_end")
    out += L
    out += ['.section .rodata,"a"', ".p2align 6", ".amdhsa_kernel " + KNAME,
            "  .amdhsa_next_free_vgpr 256", "  .amdhsa_next_free_sgpr %d" % (96 if TS else 80), "  .amdhsa_accum_offset 256",
            "  .amdhsa_group_segment_fixed_size 0", "  .amdhsa_kernarg_size 104",
            "  .amdhsa_user_sgpr_count 2", "  .amdhsa_user_sgpr_kernarg_segment_ptr 1",
            "  .amdhsa_system_sgpr_workgroup_id_x 1", "  .amdhsa_float_denorm_mode_32 3",
            ".end_amdhsa_kernel", ""]
    open(OUT, "w").write("\n".join(out))

main()
```

```python
import sys

NAME = "gated_mix__mha_block_cached__glu_gated_bilinear__decode"
KNAME = NAME + "_kernel"
TS = "--ts" in sys.argv or any(a.startswith("--diag=") for a in sys.argv)
XP = [a[2:] for a in sys.argv if a.startswith("--")]
OUT = [a for a in sys.argv[1:] if not a.startswith("--")]
OUT = OUT[0] if OUT else "cdna_kernels/%s.s" % NAME
def xpv(name, default):
    for a in XP:
        if a.startswith(name + "="): return int(a.split("=")[1])
    return default

NWG, NCONS, NFFN = 256, 80, 27
NWARM = 4
if "noffn" in XP: NFFN = 0
CONS0 = NWG - NCONS
REG = 12288
REC_OFF = 11776
WS_USED = NCONS * REG
DBG_WS = 1 << 20
WS_REC = (WS_USED if "--ts" not in sys.argv else (64 << 20))
WO_WIN = xpv("wowin", 10)
WQ_WIN = xpv("wqwin", 40)
RB = xpv("rb", 3)
SHIFT = xpv("shift", 1)

P_ROW = 64 * (8 + SHIFT) + 16
P_WAVE = 4 * P_ROW
L_QP = 10240
L_OP = 14336
L_ML = 16384
L_CNT = 16416
L_YP = 16896
L_X = 37376
L_H = 45568
L_R = 46080
L_GU = 47104
L_YF = 47104
LDS_BYTES = 88064
assert 4 * P_WAVE <= L_QP

L = []
def e(s): L.append("    " + s)
def lab(s): L.append(s + ":")
def cmt(s): L.append("    ; " + s)
def vr(a, n=4): return "v[%d:%d]" % (a, a + n - 1)

S_W, S_H, S_B, S_HALF, S_BH = "s3", "s6", "s7", "s8", "s9"
S_OFF, S_IT, S_T0, S_T1, S_REC = "s10", "s11", "s12", "s13", "s14"
S_NB, S_NBM, S_TH, S_HS = "s15", "s68", "s69", "s73"
SRD_S, SRD_W, SRD_WS, SRD_DBG, SRD_X = 44, 48, 52, 56, 60
S_SC = 64
def srd(n): return "s[%d:%d]" % (n, n + 3)
def mk_srd(n, lo, hi, nrec):
    e("s_mov_b32 s%d, %s" % (n, lo))
    e("s_mov_b32 s%d, %s" % (n + 1, hi))
    e("s_mov_b32 s%d, 0x%x" % (n + 2, nrec))
    e("s_mov_b32 s%d, 0x00020000" % (n + 3))

BUF = 64
WREG = 96
def B(i): return BUF + 4 * i
def W(i): return WREG + 4 * i

LOG2E = "0x3fb8aa3b"
SCALE = "0x3db504f3"
MFMA = "v_mfma_f32_16x16x32_bf16"

class VM:
    def __init__(self): self.q = []
    def issue(self, tag): self.q.append(tag); assert len(self.q) <= 63
    def wait(self, tag):
        idx = [i for i, t in enumerate(self.q) if t == tag]
        if not idx: return
        idx = max(idx)
        e("s_waitcnt vmcnt(%d)" % (len(self.q) - 1 - idx))
        self.q = self.q[idx + 1:]

def sel_build(dst, kind, t):
    pa = {"E": 0x0100, "PV": 0x0100, "KP": 0x0100, "KO": 0x0302, "TE": 0x0100, "TO": 0x0302}[kind]
    pb = {"E": 0x0100, "PV": 0x0302, "KP": 0x0100, "KO": 0x0302, "TE": 0x0504, "TO": 0x0706}[kind]
    a, b, c = t, t + 1, t + 2
    e("v_mov_b32 v%d, 0x%x" % (a, pa))
    e("v_mov_b32 v%d, 0x%x" % (b, pb))
    e("v_and_b32 v%d, 8, v0" % c)
    e("v_cmp_ne_u32 vcc, 0, v%d" % c)
    e("s_nop 1")
    e("v_cndmask_b32 v%d, v%d, v%d, vcc" % (a, a, b))
    e("v_or_b32 v%d, 0x0c0c0000, v%d" % (b, a))
    e("v_lshlrev_b32 v%d, 16, v%d" % (a, a))
    e("v_or_b32 v%d, 0x0c0c, v%d" % (a, a))
    e("v_and_b32 v%d, 1, v0" % c)
    e("v_cmp_ne_u32 vcc, 0, v%d" % c)
    e("s_nop 1")
    e("v_cndmask_b32 v%d, v%d, v%d, vcc" % (a, b, a))
    e("v_mov_b32 v%d, 0x0c0c0c0c" % b)
    e("v_bfe_u32 v%d, v0, 1, %d" % (c, 3 if kind == "E" else 2))
    for i in range(4):
        e("v_cmp_eq_u32 vcc, %d, v%d" % (i, c))
        e("s_nop 1")
        e("v_cndmask_b32 v%d, v%d, v%d, vcc" % (dst + i, b, a))

def allreduce64(op, v, t):
    for r in (8, 4, 2, 1):
        e("s_nop 1")
        e("v_%s_f32_dpp v%d, v%d, v%d row_ror:%d row_mask:0xf bank_mask:0xf" % (op, v, v, v, r))
    for sw in ("16", "32"):
        e("v_mov_b32 v%d, v%d" % (t, v))
        e("s_nop 1")
        e("v_permlane%s_swap_b32 v%d, v%d" % (sw, v, t))
        e("s_nop 1")
        e("v_%s_f32 v%d, v%d, v%d" % (op, v, v, t))

def allreduce4(op, v):
    for m in ("quad_perm:[1,0,3,2]", "quad_perm:[2,3,0,1]"):
        e("s_nop 1")
        e("v_%s_f32_dpp v%d, v%d, v%d %s row_mask:0xf bank_mask:0xf" % (op, v, v, v, m))

def bf16r(v):
    e("v_cvt_pk_bf16_f32 v%d, v%d, v%d" % (v, v, v))
    e("v_lshlrev_b32 v%d, 16, v%d" % (v, v))

def hilo_pack(a, b, t):
    e("v_cvt_pk_bf16_f32 v%d, v%d, v%d" % (t, a, b))
    e("v_lshlrev_b32 v%d, 16, v%d" % (t + 1, t))
    e("v_and_b32 v%d, 0xffff0000, v%d" % (t + 2, t))
    e("v_sub_f32 v%d, v%d, v%d" % (t + 1, a, t + 1))
    e("v_sub_f32 v%d, v%d, v%d" % (t + 2, b, t + 2))
    e("v_cvt_pk_bf16_f32 v%d, v%d, v%d" % (t + 1, t + 1, t + 2))
    e("v_perm_b32 v%d, v%d, v%d, %s" % (a, t + 1, t, S_T0))
    e("v_perm_b32 v%d, v%d, v%d, %s" % (b, t + 1, t, S_T1))

def stream_load(t):
    e("buffer_load_dwordx4 %s, v1, %s, %s offen nt" % (vr(B(t)), srd(SRD_S), S_OFF))
    e("s_add_u32 %s, %s, 0x1000" % (S_OFF, S_OFF))

NSTAMP = 10
def stamp(i):
    if not TS: return
    e("s_memrealtime s[%d:%d]" % (76 + 2 * i, 77 + 2 * i))
    e("s_waitcnt lgkmcnt(0)")

def stamps_out(w8off):
    if not TS: return
    DG = xpv("diag", -1)
    if DG >= 0:
        if w8off != 0: return
        e("s_cmp_lg_u32 %s, 0" % S_W)
        e("s_cbranch_scc1 L_dg_end")
        e("s_mov_b64 exec, 1")
        mk_srd(SRD_DBG, "s38", "s39", 256)
        i = DG % 10
        if DG == 0: e("s_mov_b32 s12, 2000")
        else: e("s_sub_u32 s12, s%d, s76" % (76 + 2 * (5 if i == 9 else i)))
        e("v_mov_b32 v5, s12")
        e("buffer_atomic_%s v5, off, %s, 0 offset:64 sc1" % ("umax" if DG >= 10 else "add", srd(SRD_DBG)))
        e("s_waitcnt vmcnt(0)")
        e("v_mov_b32 v5, 1")
        e("buffer_atomic_add v5, off, %s, 0 offset:128 sc0 sc1" % srd(SRD_DBG))
        e("s_waitcnt vmcnt(0)")
        e("v_readfirstlane_b32 s13, v5")
        e("s_cmp_lg_u32 s13, %d" % (NWG - 1))
        e("s_cbranch_scc1 L_dg_end")
        e("s_memrealtime s[78:79]")
        e("v_mov_b32 v5, 0")
        e("buffer_atomic_add v5, off, %s, 0 offset:64 sc0 sc1" % srd(SRD_DBG))
        e("s_waitcnt vmcnt(0) lgkmcnt(0)")
        e("v_readfirstlane_b32 s13, v5")
        if DG < 10: e("s_lshr_b32 s13, s13, 8")
        if DG == 9: e("s_sub_u32 s13, s78, s76")
        e("s_min_u32 s13, s13, 20000")
        lab("L_dg_spin")
        e("s_memrealtime s[80:81]")
        e("s_waitcnt lgkmcnt(0)")
        e("s_sub_u32 s12, s80, s78")
        e("s_cmp_lt_u32 s12, s13")
        e("s_cbranch_scc1 L_dg_spin")
        lab("L_dg_end")
        return
    e("s_mov_b64 exec, 1")
    mk_srd(SRD_WS, "s40", "s41", WS_REC)
    e("s_lshl_b32 s12, s2, 3")
    e("s_add_u32 s12, s12, %s" % S_W)
    e("s_add_u32 s12, s12, %d" % w8off)
    e("s_lshl_b32 s12, s12, 6")
    e("s_add_u32 s12, s12, 0x%x" % DBG_WS)
    for i in range(NSTAMP):
        e("v_mov_b32 v5, s%d" % (76 + 2 * i))
        e("buffer_store_dword v5, off, %s, s12 offset:%d" % (srd(SRD_WS), 4 * i))
    e("s_getreg_b32 s13, hwreg(HW_REG_XCC_ID)")
    e("v_mov_b32 v5, s13")
    e("buffer_store_dword v5, off, %s, s12 offset:56" % srd(SRD_WS))
    e("s_getreg_b32 s13, hwreg(HW_REG_HW_ID)")
    e("v_mov_b32 v5, s13")
    e("buffer_store_dword v5, off, %s, s12 offset:60" % srd(SRD_WS))

SPIN_MAX = 400000
def spin_guard(exit_lbl):
    e("s_add_u32 s72, s72, 1")
    e("s_cmp_gt_u32 s72, %d" % SPIN_MAX)
    e("s_cbranch_scc1 %s" % exit_lbl)

NLAB = [0]
def newlab(p):
    NLAB[0] += 1
    return "L_%s%d" % (p, NLAB[0])

def lds_wait(off, target, vt, va):
    l0, l1 = newlab("lw"), newlab("lw")
    lab(l0)
    e("ds_read_b32 v%d, v%d offset:%d" % (vt, va, L_CNT + off))
    e("s_waitcnt lgkmcnt(0)")
    e("v_readfirstlane_b32 %s, v%d" % (S_T0, vt))
    e("s_cmp_ge_u32 %s, %s" % (S_T0, target))
    e("s_cbranch_scc1 %s" % l1)
    spin_guard(l1)
    e("s_sleep 1")
    e("s_branch %s" % l0)
    lab(l1)

def lds_signal(off, vt, va):
    e("v_mov_b32 v%d, 1" % vt)
    e("s_mov_b64 exec, 1")
    e("ds_add_u32 v%d, v%d offset:%d" % (va, vt, L_CNT + off))
    e("s_mov_b64 exec, -1")

VZ = 95
def hsync():
    e("s_add_u32 %s, %s, 4" % (S_HS, S_HS))
    lds_signal(8, 94, VZ)
    lds_wait(8, S_HS, 94, VZ)

def wait_cleared(v):
    l0, l1 = newlab("cl"), newlab("cl")
    lab(l0)
    e("v_readfirstlane_b32 %s, v%d" % (S_T0, v))
    e("s_cmp_ge_u32 %s, %d" % (S_T0, 4 * NCONS))
    e("s_cbranch_scc1 %s" % l1)
    spin_guard(l1)
    e("s_sleep 4")
    e("buffer_load_dword v%d, off, %s, 0 sc1" % (v, srd(SRD_DBG)))
    e("s_waitcnt vmcnt(0)")
    e("s_branch %s" % l0)
    lab(l1)

def k_body(th):
    P = [8, 9, 10, 11]; Y0, Y1, Z, T, S, TMP = 12, 13, 14, 15, 16, 17
    b0 = 16 * th
    for G in range(4):
        e("s_waitcnt vmcnt(%d)" % (16 * RB - 4))
        for k in range(4):
            for u in range(4):
                c = "0" if k == 0 else "v%d" % P[u]
                e("v_dot2_f32_bf16 v%d, v%d, v%d, %s" % (P[u], B(b0 + 4 * G + u) + k, 4 + k, c))
        e("v_add_f32_dpp v%d, v%d, v%d row_ror:8 row_mask:0xf bank_mask:0x3" % (Y0, P[0], P[0]))
        e("v_add_f32_dpp v%d, v%d, v%d row_ror:8 row_mask:0xf bank_mask:0xc" % (Y0, P[1], P[1]))
        e("v_add_f32_dpp v%d, v%d, v%d row_ror:8 row_mask:0xf bank_mask:0x3" % (Y1, P[2], P[2]))
        e("v_add_f32_dpp v%d, v%d, v%d row_ror:8 row_mask:0xf bank_mask:0xc" % (Y1, P[3], P[3]))
        stream_load(b0 + 4 * G + 0)
        e("v_add_f32_dpp v%d, v%d, v%d row_half_mirror row_mask:0xf bank_mask:0x5" % (Z, Y0, Y0))
        e("v_add_f32_dpp v%d, v%d, v%d row_half_mirror row_mask:0xf bank_mask:0xa" % (Z, Y1, Y1))
        stream_load(b0 + 4 * G + 1)
        e("v_add_f32_dpp v%d, v%d, v%d quad_perm:[1,0,3,2] row_mask:0xf bank_mask:0xf" % (Z, Z, Z))
        stream_load(b0 + 4 * G + 2)
        d = S if G == 0 else T
        e("v_add_f32_dpp v%d, v%d, v%d quad_perm:[2,3,0,1] row_mask:0xf bank_mask:0xf" % (d, Z, Z))
        stream_load(b0 + 4 * G + 3)
        if G:
            e("v_cndmask_b32 v%d, v%d, v%d, s[%d:%d]" % (S, S, T, 60 + 2 * G, 61 + 2 * G))
    e("v_cvt_pk_bf16_f32 v%d, v%d, v%d" % (TMP, S, S))
    e("v_lshlrev_b32 v%d, 16, v%d" % (TMP, TMP))
    e("v_mul_f32 v%d, %s, v%d" % (TMP, SCALE, TMP))
    bf16r(TMP)
    e("s_add_u32 %s, %s, 1" % (S_IT, S_IT))
    e("v_max_f32 v3, v3, v%d" % TMP)
    e("ds_write_b32 v2, v%d" % TMP)
    e("v_add_u32 v2, 64, v2")
    e("s_cmp_eq_u32 %s, %s" % (S_IT, S_NBM))
    e("s_cselect_b32 s%d, s42, s%d" % (SRD_S, SRD_S))
    e("s_cselect_b32 s%d, s43, s%d" % (SRD_S + 1, SRD_S + 1))
    e("s_cselect_b32 %s, 0, %s" % (S_OFF, S_OFF))
    e("s_mov_b32 %s, %d" % (S_TH, (th + 1) % RB))
    e("s_cmp_eq_u32 %s, %s" % (S_IT, S_NB))
    e("s_cbranch_scc1 L_sm")

def v_body(th):
    A, ACC = 8, 20
    PB = [12, 16]
    b0 = 16 * th
    for G in range(4):
        e("s_waitcnt lgkmcnt(0)")
        e("ds_read_b128 %s, v2 offset:%d" % (vr(PB[(G + 1) & 1]), (G + 1) * 16))
        for u in range(4):
            t = b0 + 4 * G + u
            p = PB[G & 1] + u
            for i in range(4):
                e("v_perm_b32 v%d, v%d, v%d, v%d" % (A + i, p, p, 4 + i))
            e("s_waitcnt vmcnt(%d)" % (16 * RB - 1))
            e("s_nop 0")
            e("%s %s, %s, %s, %s" % (MFMA, vr(ACC), vr(A), vr(B(t)), vr(ACC)))
            stream_load(t)
    e("s_add_u32 %s, %s, 1" % (S_IT, S_IT))
    e("v_add_u32 v2, 64, v2")
    e("s_cmp_eq_u32 %s, %s" % (S_IT, S_NB))
    e("s_cbranch_scc1 L_stail")

def streamer():
    NBMAX = 8 + SHIFT
    e("s_and_b32 %s, s2, 127" % S_T0)
    e("s_cmp_lt_u32 %s, %d" % (S_T0, NFFN))
    e("s_cselect_b32 %s, %d, 0" % (S_T0, SHIFT))
    e("s_sub_u32 %s, 8, %s" % (S_NB, S_T0))
    e("s_lshl_b32 %s, %s, 16" % (S_T1, S_NB))
    e("s_add_u32 s4, %s, 8" % S_T0)
    e("s_cmp_lg_u32 %s, 0" % S_HALF)
    e("s_cselect_b32 %s, s4, %s" % (S_NB, S_NB))
    e("s_cselect_b32 %s, %s, 0" % (S_T1, S_T1))
    e("s_sub_u32 %s, %s, %d" % (S_NBM, S_NB, RB))
    e("s_lshl_b32 %s, %s, 20" % (S_T0, S_BH))
    e("s_add_u32 %s, %s, %s" % (S_T0, S_T0, S_T1))
    e("s_lshl_b32 %s, %s, 10" % (S_T1, S_W))
    e("v_lshlrev_b32 v1, 4, v0")
    e("v_add_u32 v1, %s, v1" % S_T1)
    e("s_lshl_b32 s%d, %s, 16" % (SRD_S + 2, S_NB))
    e("s_mov_b32 s%d, 0x00020000" % (SRD_S + 3))
    e("s_mov_b32 %s, 0" % S_OFF)
    e("s_waitcnt lgkmcnt(0)")
    stamp(0)
    e("s_add_u32 s%d, s18, %s" % (SRD_S, S_T0))
    e("s_addc_u32 s%d, s19, 0" % (SRD_S + 1))
    e("s_add_u32 s42, s20, %s" % S_T0)
    e("s_addc_u32 s43, s21, 0")
    for t in range(16 * RB):
        stream_load(t)
    stamp(1)
    for i, m in enumerate((0x22222222, 0x44444444, 0x88888888)):
        e("s_mov_b32 s%d, 0x%x" % (62 + 2 * i, m)); e("s_mov_b32 s%d, 0x%x" % (63 + 2 * i, m))
    e("v_lshrrev_b32 v24, 4, v0")
    e("v_and_b32 v25, 15, v0")
    e("v_lshlrev_b32 v25, 4, v25")
    e("v_mul_u32_u24 v2, %d, v24" % P_ROW)
    e("s_mul_i32 %s, %s, %d" % (S_T0, S_W, P_WAVE))
    e("v_add_u32 v28, %s, v2" % S_T0)
    e("v_and_b32 v26, 3, v0")
    e("v_lshlrev_b32 v26, 4, v26")
    e("v_bfe_u32 v27, v0, 2, 1")
    e("v_lshl_add_u32 v26, v27, 3, v26")
    e("v_bfe_u32 v27, v0, 3, 1")
    e("v_lshl_add_u32 v26, v27, 2, v26")
    e("v_add_u32 v2, v28, v26")
    e("v_mov_b32 v29, v2")
    e("v_mov_b32 v3, 0xff800000")
    for k in range(8 - SHIFT, NBMAX):
        e("ds_write_b32 v2, v3 offset:%d" % (64 * k))
    e("v_add_u32 v26, 0x%x, v25" % L_QP)
    e("v_mov_b32 v30, 0")
    e("s_mov_b32 %s, 0" % S_IT)
    e("s_waitcnt lgkmcnt(0)")
    e("s_barrier")
    for w in range(4):
        e("ds_read_b128 %s, v26 offset:%d" % (vr(32 + 8 * w), w * 1024))
        e("ds_read_b128 %s, v26 offset:%d" % (vr(36 + 8 * w), w * 1024 + 256))
    e("s_waitcnt lgkmcnt(4)")
    for i in range(8):
        e("v_add_f32 v%d, v%d, v%d" % (32 + i, 32 + i, 40 + i))
    e("s_waitcnt lgkmcnt(2)")
    for i in range(8):
        e("v_add_f32 v%d, v%d, v%d" % (32 + i, 32 + i, 48 + i))
    e("s_waitcnt lgkmcnt(0)")
    for i in range(8):
        e("v_add_f32 v%d, v%d, v%d" % (32 + i, 32 + i, 56 + i))
    for i in range(4):
        e("v_cvt_pk_bf16_f32 v%d, v%d, v%d" % (4 + i, 32 + 2 * i, 33 + 2 * i))
    stamp(2)
    e("s_nop 0")
    lab("L_k0")
    for th in range(RB): k_body(th)
    e("s_branch L_k0")
    lab("L_sm")
    stamp(3)
    for k in range(NBMAX):
        e("ds_read_b32 v%d, v29 offset:%d" % (32 + k, 64 * k))
    allreduce64("max", 3, 16)
    e("s_mov_b32 %s, 0x05040100" % S_T0)
    e("s_mov_b32 %s, 0x07060302" % S_T1)
    e("s_waitcnt lgkmcnt(0)")
    for k in range(NBMAX):
        e("v_sub_f32 v%d, v%d, v3" % (32 + k, 32 + k))
    for k in range(NBMAX):
        e("v_mul_f32 v%d, %s, v%d" % (32 + k, LOG2E, 32 + k))
    for k in range(NBMAX):
        e("v_exp_f32 v%d, v%d" % (32 + k, 32 + k))
    e("s_nop 0")
    e("v_add_f32 v24, v32, v33")
    for k in range(2, NBMAX):
        e("v_add_f32 v24, v24, v%d" % (32 + k))
    if NBMAX & 1: e("v_mov_b32 v%d, 0" % (32 + NBMAX))
    for k in range((NBMAX + 1) // 2):
        hilo_pack(32 + 2 * k, 33 + 2 * k, 16)
    for k in range(NBMAX):
        e("ds_write_b32 v29, v%d offset:%d" % (32 + k, 64 * k))
    e("v_mov_b32 v2, v28")
    e("ds_read_b128 %s, v2" % vr(12))
    allreduce64("add", 24, 20)
    sel_build(4, "PV", 8)
    e("v_mov_b32 v25, v24")
    e("v_mov_b32 v24, v3")
    e("s_lshl_b32 %s, %s, 3" % (S_T0, S_W))
    e("v_mov_b32 v26, %s" % S_T0)
    e("s_mov_b64 exec, 1")
    e("ds_write_b64 v26, v[24:25] offset:%d" % L_ML)
    e("s_mov_b64 exec, -1")
    lds_signal(0, 27, 30)
    for i in range(4):
        e("v_mov_b32 v%d, 0" % (20 + i))
    e("s_mov_b32 %s, 0" % S_IT)
    stamp(4)
    for th in range(1, RB):
        e("s_cmp_eq_u32 %s, %d" % (S_TH, th))
        e("s_cbranch_scc1 L_v%d" % th)
    for th in range(RB):
        lab("L_v%d" % th); v_body(th)
    e("s_branch L_v0")
    lab("L_stail")
    stamp(5)
    ACC = 20
    e("v_and_b32 v26, 31, v0")
    e("v_and_b32 v27, 15, v26")
    e("v_lshlrev_b32 v27, 5, v27")
    e("v_lshrrev_b32 v26, 4, v26")
    e("v_lshl_add_u32 v27, v26, 4, v27")
    e("v_lshrrev_b32 v26, 5, v0")
    e("s_lshl_b32 %s, %s, 9" % (S_T0, S_W))
    e("s_add_u32 %s, %s, %d" % (S_T0, S_T0, L_OP))
    e("v_lshl_add_u32 v28, v26, 2, v27")
    e("v_add_u32 v28, %s, v28" % S_T0)
    e("s_nop 4")
    e("v_permlane32_swap_b32 v%d, v%d" % (ACC, ACC + 1))
    e("v_permlane32_swap_b32 v%d, v%d" % (ACC + 2, ACC + 3))
    e("s_nop 1")
    e("v_add_f32 v%d, v%d, v%d" % (ACC, ACC, ACC + 1))
    e("v_add_f32 v%d, v%d, v%d" % (ACC + 2, ACC + 2, ACC + 3))
    e("ds_write_b32 v28, v%d" % ACC)
    e("ds_write_b32 v28, v%d offset:8" % (ACC + 2))
    lds_signal(4, 27, 30)
    e("s_waitcnt lgkmcnt(0)")
    e("s_barrier")
    stamps_out(0)
    e("s_endpgm")

def ffn():
    cmt("---- FFN column chunk cc = wg (s2 < NFFN)")
    vm = VM()
    e("buffer_load_dwordx4 v[8:11], v2, %s, 0 offen" % srd(SRD_X)); vm.issue("x")
    e("s_mov_b32 %s, 0x1000" % S_T0)
    e("buffer_load_dwordx4 v[12:15], v2, %s, %s offen" % (srd(SRD_X), S_T0)); vm.issue("x")
    e("v_lshrrev_b32 v24, 3, v0")
    e("v_mul_u32_u24 v3, 0x%x, v24" % (20 * 3456))
    e("v_and_b32 v25, 7, v0")
    e("v_lshl_add_u32 v3, v25, 4, v3")
    e("s_mul_i32 %s, %s, %d" % (S_T0, S_W, 160 * 3456))
    e("s_lshl_b32 %s, s2, 7" % S_T1)
    e("s_add_u32 %s, %s, %s" % (S_T0, S_T0, S_T1))
    e("v_add_u32 v3, %s, v3" % S_T0)
    mk_srd(SRD_W, "s28", "s29", 640 * 3456)
    mk_srd(SRD_S, "s30", "s31", 640 * 3456)
    e("s_mov_b32 %s, 0" % S_T1)
    for t in range(20):
        e("buffer_load_dwordx4 %s, v3, %s, %s offen nt" % (vr(W(2 * t)), srd(SRD_W), S_T1)); vm.issue("w%d" % t)
        e("buffer_load_dwordx4 %s, v3, %s, %s offen nt" % (vr(W(2 * t + 1)), srd(SRD_S), S_T1)); vm.issue("w%d" % t)
        if t < 19: e("s_add_u32 %s, %s, 3456" % (S_T1, S_T1))
    SE, SO = 16, 20
    sel_build(SE, "KP", 28)
    sel_build(SO, "KO", 28)
    e("v_mul_u32_u24 v4, 40, v24")
    e("s_mul_i32 %s, %s, 320" % (S_T0, S_W))
    e("v_add_u32 v4, %s, v4" % S_T0)
    vm.wait("x")
    e("ds_write_b128 v2, v[8:11] offset:%d" % L_X)
    e("ds_write_b128 v2, v[12:15] offset:%d" % (L_X + 4096))
    hsync()
    XB = 32
    AF = [48, 52]
    GA = 56
    def xread(q):
        for b in range(4):
            e("ds_read_b64 %s, v4 offset:%d" % (vr(XB + 8 * (q & 1) + 2 * b, 2), L_X + b * 1280 + q * 8))
    xread(0)
    na = 0
    for q in range(5):
        e("s_waitcnt lgkmcnt(0)")
        if q < 4: xread(q + 1)
        for tt in range(4):
            t = 4 * q + tt
            for b in range(4):
                src = XB + 8 * (q & 1) + 2 * b + (tt >> 1)
                sel = SO if tt & 1 else SE
                a = AF[na & 1]; na += 1
                for i in range(4):
                    e("v_perm_b32 v%d, v%d, v%d, v%d" % (a + i, src, src, sel + i))
                vm.wait("w%d" % t)
                e("s_nop 1")
                for mat in range(2):
                    acc = GA + (b * 2 + mat) * 4
                    e("%s %s, %s, %s, %s" % (MFMA, vr(acc), vr(a), vr(W(2 * t + mat)), "0" if t == 0 else vr(acc)))
    stamp(3)
    e("v_lshrrev_b32 v24, 4, v0")
    e("v_and_b32 v25, 15, v0")
    e("v_lshlrev_b32 v25, 4, v25")
    e("v_mul_u32_u24 v3, 0x%x, v24" % (4 * 1280))
    e("s_lshl_b32 %s, s2, 6" % S_T0)
    e("s_lshl_b32 %s, %s, 4" % (S_T1, S_W))
    e("s_add_u32 %s, %s, %s" % (S_T0, S_T0, S_T1))
    e("s_mul_i32 %s, %s, 1280" % (S_T0, S_T0))
    e("v_add3_u32 v3, v3, v25, %s" % S_T0)
    mk_srd(SRD_W, "s32", "s33", 1728 * 1280)
    e("s_mov_b32 %s, 0" % S_T1)
    for g in range(4):
        for cb in range(5):
            e("buffer_load_dwordx4 %s, v3, %s, %s offen offset:%d nt" % (vr(W(g * 5 + cb)), srd(SRD_W), S_T1, cb * 256)); vm.issue("d%d" % g)
        if g < 3: e("s_add_u32 %s, %s, 1280" % (S_T1, S_T1))
    e("v_lshrrev_b32 v26, 5, v0")
    e("v_bfe_u32 v27, v0, 3, 1")
    e("v_cmp_eq_u32 vcc, v26, v27")
    e("v_and_b32 v28, 7, v0")
    e("v_lshlrev_b32 v28, 5, v28")
    e("v_bfe_u32 v29, v0, 4, 1")
    e("v_lshl_add_u32 v28, v29, 4, v28")
    e("v_lshl_add_u32 v28, v26, 11, v28")
    e("s_lshl_b32 %s, %s, 12" % (S_T0, S_W))
    e("s_add_u32 %s, %s, %d" % (S_T0, S_T0, L_GU))
    e("v_add_u32 v28, %s, v28" % S_T0)
    e("s_and_saveexec_b64 s[70:71], vcc")
    for b in range(4):
        for mat in range(2):
            e("ds_write_b128 v28, %s offset:%d" % (vr(GA + (b * 2 + mat) * 4), mat * 1024 + b * 256))
    e("s_mov_b64 exec, s[70:71]")
    e("v_lshlrev_b32 v28, 2, v1")
    hsync()
    for p in range(8):
        e("ds_read_b32 v%d, v28 offset:%d" % (32 + p, L_GU + p * 2048))
        e("ds_read_b32 v%d, v28 offset:%d" % (40 + p, L_GU + p * 2048 + 1024))
    sel_build(SE, "TE", 8)
    sel_build(SO, "TO", 8)
    e("s_waitcnt lgkmcnt(0)")
    for p in range(1, 8):
        e("v_add_f32 v32, v32, v%d" % (32 + p))
        e("v_add_f32 v40, v40, v%d" % (40 + p))
    bf16r(32); bf16r(40)
    e("v_mul_f32 v32, v32, v40")
    e("v_cvt_pk_bf16_f32 v32, v32, v32")
    e("v_lshlrev_b32 v28, 1, v1")
    e("ds_write_b16 v28, v32 offset:%d" % L_H)
    e("v_lshlrev_b32 v4, 3, v24")
    e("s_lshl_b32 %s, %s, 5" % (S_T0, S_W))
    e("v_add_u32 v4, %s, v4" % S_T0)
    hsync()
    HB = 32
    for b in range(4):
        e("ds_read_b64 %s, v4 offset:%d" % (vr(HB + 2 * b, 2), L_H + b * 128))
    e("s_waitcnt lgkmcnt(0)")
    YA = 48
    AF = [40, 44]
    na = 0
    for g in range(4):
        for bp in range(2):
            a = AF[na & 1]; na += 1
            sel = SO if g & 1 else SE
            for i in range(4):
                e("v_perm_b32 v%d, v%d, v%d, v%d" % (a + i, HB + 2 * (2 * bp + 1) + (g >> 1), HB + 2 * (2 * bp) + (g >> 1), sel + i))
            vm.wait("d%d" % g)
            e("s_nop 1")
            for cb in range(5):
                acc = YA + (bp * 5 + cb) * 4
                e("%s %s, %s, %s, %s" % (MFMA, vr(acc), vr(a), vr(W(g * 5 + cb)), "0" if g == 0 else vr(acc)))
    e("v_lshlrev_b32 v28, 1, v25")
    e("v_bfe_u32 v29, v0, 4, 1")
    e("v_lshl_add_u32 v28, v29, 4, v28")
    e("v_mul_u32_u24 v29, 2560, v26")
    e("s_mul_i32 %s, %s, 10240" % (S_T0, S_W))
    e("s_add_u32 %s, %s, %d" % (S_T0, S_T0, L_YF))
    e("v_add3_u32 v28, v28, v29, %s" % S_T0)
    e("buffer_load_dword v30, off, %s, 0 sc1" % srd(SRD_DBG))
    e("s_nop 7")
    for bp in range(2):
        for cb in range(5):
            e("ds_write_b128 v28, %s offset:%d" % (vr(YA + (bp * 5 + cb) * 4), bp * 5120 + cb * 512))
    e("v_lshlrev_b32 v28, 4, v0")
    e("s_mul_i32 %s, %s, 2560" % (S_T0, S_W))
    e("s_add_u32 %s, %s, %d" % (S_T0, S_T0, L_YF))
    e("v_add_u32 v28, %s, v28" % S_T0)
    e("v_lshrrev_b32 v29, 3, v0")
    e("v_mul_u32_u24 v29, 0x%x, v29" % (4 * REG))
    e("v_and_b32 v27, 7, v0")
    e("v_lshl_add_u32 v29, v27, 4, v29")
    e("s_mul_i32 %s, %s, %d" % (S_OFF, S_W, REG))
    e("s_lshl_b32 %s, s2, 7" % S_T1)
    e("s_add_u32 %s, %s, %s" % (S_OFF, S_OFF, S_T1))
    e("s_add_u32 %s, %s, 8192" % (S_OFF, S_OFF))
    hsync()
    e("s_waitcnt vmcnt(0)")
    wait_cleared(30)
    for k in range(3):
        if k == 2:
            e("s_mov_b32 exec_hi, 0")
        for p in range(4):
            e("ds_read_b128 %s, v28 offset:%d" % (vr(32 + 4 * p), p * 10240 + k * 1024))
        e("s_waitcnt lgkmcnt(0)")
        for i in range(4):
            e("v_add_f32 v%d, v%d, v%d" % (32 + i, 32 + i, 36 + i))
            e("v_add_f32 v%d, v%d, v%d" % (40 + i, 40 + i, 44 + i))
        for i in range(4):
            e("v_add_f32 v%d, v%d, v%d" % (48 + 4 * k + i, 32 + i, 40 + i))
        e("buffer_store_dwordx4 %s, v29, %s, %s offen sc1" % (vr(48 + 4 * k), srd(SRD_WS), S_OFF))
        if k < 2: e("s_add_u32 %s, %s, 0x%x" % (S_OFF, S_OFF, 8 * 4 * REG))
    e("s_mov_b64 exec, -1")
    stamp(4)

def rec_weights(done_lbl_missing):
    e("v_max3_u32 v40, v32, v33, v34")
    e("v_max3_u32 v41, v35, v36, v37")
    e("v_max3_u32 v40, v40, v38, v39")
    e("v_max_u32 v40, v40, v41")
    e("v_cmp_eq_u32 vcc, -1, v40")

def helper():
    vm = VM()
    lab("L_helper")
    if "noprio" not in XP: e("s_setprio 3")
    e("s_sub_u32 %s, %s, 4" % (S_W, S_W))
    e("v_lshrrev_b32 v24, 4, v0")
    e("v_and_b32 v25, 15, v0")
    e("v_lshlrev_b32 v25, 4, v25")
    e("s_mul_i32 %s, %s, 1280" % (S_T0, S_B))
    e("s_mul_i32 %s, %s, 320" % (S_T1, S_W))
    e("s_add_u32 %s, %s, %s" % (S_T0, S_T0, S_T1))
    e("v_mul_u32_u24 v26, 80, v24")
    e("v_add_u32 v26, %s, v26" % S_T0)
    e("s_mul_i32 %s, %s, %d" % (S_T0, S_W, 160 * 8192))
    e("s_lshl_b32 %s, %s, 8" % (S_T1, S_H))
    e("s_add_u32 %s, %s, %s" % (S_T0, S_T0, S_T1))
    e("v_mul_u32_u24 v27, 0x%x, v24" % (40 * 8192))
    e("v_add3_u32 v27, v27, v25, %s" % S_T0)
    e("s_lshl_b32 %s, %s, 6" % (S_T0, S_W))
    e("v_add_u32 v1, %s, v0" % S_T0)
    e("v_lshlrev_b32 v2, 4, v1")
    e("v_mov_b32 v%d, 0" % VZ)
    e("s_mov_b32 %s, 0" % S_HS)
    e("s_waitcnt lgkmcnt(0)")
    stamp(0)
    mk_srd(SRD_X, "s16", "s17", 5120)
    mk_srd(SRD_W, "s22", "s23", 640 * 8192)
    XR = [8, 12, 16, 20, 36]
    for i in range(5):
        e("buffer_load_dwordx4 %s, v26, %s, 0 offen offset:%d" % (vr(XR[i]), srd(SRD_X), 16 * i)); vm.issue("x")
    e("s_mov_b32 %s, 0" % S_NB)
    WQP = " nt" if "wqnt" in XP else ""
    if "a3" in XP: WQP = " sc1"
    def wq_load(t):
        e("buffer_load_dwordx4 %s, v27, %s, %s offen%s" % (vr(W(t)), srd(SRD_W), S_NB, WQP)); vm.issue("wq%d" % t)
        if t < 39 and "a2" not in XP and "a3" not in XP: e("s_add_u32 %s, %s, 0x2000" % (S_NB, S_NB))
    for t in range(WQ_WIN): wq_load(t)
    mk_srd(SRD_WS, "s40", "s41", WS_REC)
    mk_srd(SRD_DBG, "s38", "s39", 256)
    for i in range(4):
        e("v_mov_b32 v%d, 0" % (44 + i))
    e("s_cmp_lg_u32 %s, 0" % S_W)
    e("s_cbranch_scc1 L_h3")
    e("ds_write_b128 v%d, v[44:47] offset:%d" % (VZ, L_CNT))
    lab("L_h3")
    sel_build(4, "E", 28)
    A, ACC = 28, 32
    for t in range(40):
        xr = XR[t // 8] + (t % 8) // 2
        vm.wait("x")
        if t == 0: stamp(1)
        if t & 1:
            e("v_lshrrev_b32 v3, 16, v%d" % xr); src = 3
        else:
            src = xr
        for i in range(4):
            e("v_perm_b32 v%d, v%d, v%d, v%d" % (A + i, src, src, 4 + i))
        vm.wait("wq%d" % t)
        e("s_nop 0")
        e("%s %s, %s, %s, %s" % (MFMA, vr(ACC), vr(A), vr(W(t)), "0" if t == 0 else vr(ACC)))
        if t + WQ_WIN < 40: wq_load(t + WQ_WIN)
    e("v_lshlrev_b32 v26, 4, v0")
    e("s_lshl_b32 %s, %s, 10" % (S_T0, S_W))
    e("s_add_u32 %s, %s, 0x%x" % (S_T0, S_T0, L_QP))
    e("v_add_u32 v26, %s, v26" % S_T0)
    e("s_nop 4")
    e("ds_write_b128 v26, %s" % vr(ACC))
    e("s_waitcnt lgkmcnt(0)")
    e("s_barrier")
    stamp(2)
    if "nowarm" not in XP:
        e("s_cmp_lg_u32 %s, 3" % S_W)
        e("s_cbranch_scc1 L_h4")
        e("s_getpc_b64 s[4:5]")
        lab("L_pc")
        e("s_sub_u32 s4, s4, L_pc-%s" % KNAME)
        e("s_subb_u32 s5, s5, 0")
        e("v_lshlrev_b32 v26, 7, v0")
        for i in range(NWARM):
            e("v_min_u32 v27, L_code_end-%s-4, v26" % KNAME)
            e("global_load_dword v89, v27, s[4:5]")
            e("v_add_u32 v26, 0x2000, v26")
        lab("L_h4")
    e("s_sub_u32 s4, s2, %d" % CONS0)
    e("s_cmp_lt_u32 s2, %d" % CONS0)
    e("s_cbranch_scc1 L_h5")
    e("s_mul_i32 %s, s4, %d" % (S_REC, REG))
    for i in range(4):
        e("v_mov_b32 v%d, -1" % (40 + i))
    e("s_add_u32 %s, %s, 0x1000" % (S_T0, S_REC))
    e("s_add_u32 %s, %s, 0x2000" % (S_T1, S_REC))
    e("buffer_store_dwordx4 v[40:43], v2, %s, %s offen sc1" % (srd(SRD_WS), S_REC))
    e("buffer_store_dwordx4 v[40:43], v2, %s, %s offen sc1" % (srd(SRD_WS), S_T0))
    e("buffer_store_dwordx4 v[40:43], v2, %s, %s offen sc1" % (srd(SRD_WS), S_T1))
    e("s_and_b32 s5, s4, 3")
    mk_srd(SRD_W, "s34", "s35", 1280)
    e("v_lshlrev_b32 v3, 2, v0")
    e("s_mul_i32 %s, s5, 1280" % S_T0)
    for k in range(5):
        e("buffer_load_dword v%d, v3, %s, %s offen offset:%d" % (8 + k, srd(SRD_X), S_T0, 256 * k))
        e("buffer_load_dword v%d, v3, %s, 0 offen offset:%d" % (16 + k, srd(SRD_W), 256 * k))
    e("s_waitcnt vmcnt(10)")
    e("s_mov_b64 exec, 1")
    e("v_mov_b32 v4, 1")
    e("buffer_atomic_add v4, off, %s, 0 sc1" % srd(SRD_DBG))
    e("s_mov_b64 exec, -1")
    e("s_waitcnt vmcnt(1)")
    G = 91
    e("v_mov_b32 v%d, 0" % G)
    for k in range(5):
        e("v_lshlrev_b32 v24, 16, v%d" % (8 + k))
        e("v_and_b32 v25, 0xffff0000, v%d" % (8 + k))
        e("v_lshlrev_b32 v26, 16, v%d" % (16 + k))
        e("v_and_b32 v27, 0xffff0000, v%d" % (16 + k))
        e("v_mul_f32 v24, v24, v26")
        e("v_mul_f32 v25, v25, v27")
        e("v_cvt_pk_bf16_f32 v24, v24, v25")
        e("v_lshlrev_b32 v25, 16, v24")
        e("v_and_b32 v24, 0xffff0000, v24")
        e("v_add_f32 v%d, v%d, v25" % (G, G))
        e("v_add_f32 v%d, v%d, v24" % (G, G))
    allreduce64("add", G, 24)
    bf16r(G)
    e("v_mul_f32 v%d, 0xbfb8aa3b, v%d" % (G, G))
    e("v_exp_f32 v%d, v%d" % (G, G))
    e("s_nop 0")
    e("v_add_f32 v%d, 1.0, v%d" % (G, G))
    e("v_rcp_f32 v%d, v%d" % (G, G))
    e("s_nop 0")
    bf16r(G)
    lab("L_h5")
    e("s_cmp_ge_u32 s2, %d" % NFFN)
    e("s_cbranch_scc1 L_h6")
    ffn()
    lab("L_h6")
    e("v_lshrrev_b32 v24, 4, v0")
    e("v_and_b32 v25, 15, v0")
    e("v_lshlrev_b32 v25, 4, v25")
    e("s_lshl_b32 %s, %s, 7" % (S_T0, S_H))
    e("s_lshl_b32 %s, %s, 5" % (S_T1, S_W))
    e("s_add_u32 %s, %s, %s" % (S_T0, S_T0, S_T1))
    e("s_mul_i32 %s, %s, 1280" % (S_T0, S_T0))
    e("v_mul_u32_u24 v27, 0x%x, v24" % (8 * 1280))
    e("v_add3_u32 v27, v27, v25, %s" % S_T0)
    mk_srd(SRD_W, "s24", "s25", 4096 * 1280)
    e("s_mov_b32 %s, 0" % S_T1)
    WOP = " nt" if "wont" in XP else ""
    if "a3" in XP: WOP = " sc1"
    for g in range(0 if "nowo" in XP else 8):
        for cb in range(5):
            if g * 5 + cb >= WO_WIN: e("s_waitcnt vmcnt(%d)" % (WO_WIN - 1))
            e("buffer_load_dwordx4 %s, v27, %s, %s offen offset:%d%s" % (vr(W(g * 5 + cb)), srd(SRD_W), S_T1, 0 if ("a2" in XP or "a3" in XP) else cb * 256, WOP))
        if g < 7 and "a2" not in XP and "a3" not in XP: e("s_add_u32 %s, %s, 1280" % (S_T1, S_T1))
    sel_build(4, "PV", 28)
    e("v_and_b32 v26, 31, v0")
    e("v_and_b32 v27, 15, v26")
    e("v_lshlrev_b32 v27, 5, v27")
    e("v_lshrrev_b32 v26, 4, v26")
    e("v_lshl_add_u32 v27, v26, 4, v27")
    e("v_lshrrev_b32 v26, 5, v0")
    e("s_mul_i32 %s, %s, 5120" % (S_T0, S_W))
    e("s_add_u32 %s, %s, %d" % (S_T0, S_T0, L_YP))
    e("v_mul_u32_u24 v8, 2560, v26")
    e("v_add3_u32 v8, v8, v27, %s" % S_T0)
    e("v_lshlrev_b32 v9, 5, v24")
    e("s_lshl_b32 %s, %s, 7" % (S_T0, S_W))
    e("s_add_u32 %s, %s, %d" % (S_T0, S_T0, L_OP))
    e("v_add_u32 v9, %s, v9" % S_T0)
    e("v_lshrrev_b32 v10, 3, v1")
    e("v_mul_u32_u24 v10, 0x%x, v10" % (4 * REG))
    e("v_and_b32 v28, 7, v1")
    e("v_lshl_add_u32 v10, v28, 4, v10")
    e("v_add_u32 v11, 0x%x, v2" % L_YP)
    e("s_mul_i32 %s, %s, %d" % (S_OFF, S_B, REG))
    e("s_lshl_b32 %s, %s, 8" % (S_T1, S_H))
    e("s_add_u32 %s, %s, %s" % (S_IT, S_OFF, S_T1))
    e("s_lshl_b32 %s, %s, 7" % (S_T1, S_HALF))
    e("s_add_u32 %s, %s, %s" % (S_IT, S_IT, S_T1))
    e("s_lshl_b32 %s, %s, 4" % (S_T1, S_H))
    e("s_add_u32 %s, %s, %s" % (S_OFF, S_OFF, S_T1))
    e("s_lshl_b32 %s, %s, 3" % (S_T1, S_HALF))
    e("s_add_u32 %s, %s, %s" % (S_OFF, S_OFF, S_T1))
    e("s_add_u32 %s, %s, %d" % (S_OFF, S_OFF, REC_OFF))
    e("v_and_b32 v12, 3, v0")
    e("v_lshlrev_b32 v12, 3, v12")
    e("s_waitcnt vmcnt(0)")
    stamp(5)
    lds_wait(0, "4", 94, VZ)
    e("ds_read_b64 v[14:15], v12 offset:%d" % L_ML)
    e("s_waitcnt lgkmcnt(0)")
    e("v_mov_b32 v16, v14")
    allreduce4("max", 16)
    e("v_sub_f32 v14, v14, v16")
    e("v_mul_f32 v14, %s, v14" % LOG2E)
    e("v_exp_f32 v14, v14")
    e("s_nop 0")
    e("v_mul_f32 v17, v14, v15")
    allreduce4("add", 17)
    for w in range(4):
        e("v_readlane_b32 s%d, v14, %d" % (S_SC + w, w))
    e("s_cmp_lg_u32 %s, 0" % S_W)
    e("s_cbranch_scc1 L_h7")
    e("buffer_load_dword v30, off, %s, 0 sc1" % srd(SRD_DBG))
    e("s_waitcnt vmcnt(0)")
    wait_cleared(30)
    e("s_mov_b64 exec, 1")
    e("buffer_store_dwordx2 v[16:17], off, %s, %s sc1" % (srd(SRD_WS), S_OFF))
    e("s_mov_b64 exec, -1")
    lab("L_h7")
    stamp(6)
    e("v_lshrrev_b32 v13, 4, v1")
    e("v_lshlrev_b32 v13, 4, v13")
    e("s_and_b32 s5, s4, 3")
    e("s_mul_i32 %s, s5, %d" % (S_OFF, REG))
    e("s_add_u32 %s, %s, %d" % (S_OFF, S_OFF, REC_OFF))
    e("s_mov_b32 %s, 0" % S_TH)
    e("s_cmp_lt_u32 s2, %d" % CONS0)
    e("s_cbranch_scc1 L_h9")
    lab("L_rp")
    e("buffer_load_dwordx4 v[32:35], v13, %s, %s offen sc1" % (srd(SRD_WS), S_OFF))
    e("buffer_load_dwordx4 v[36:39], v13, %s, %s offen offset:256 sc1" % (srd(SRD_WS), S_OFF))
    e("ds_read_b32 v94, v%d offset:%d" % (VZ, L_CNT + 4))
    e("s_waitcnt vmcnt(0) lgkmcnt(0)")
    rec_weights(None)
    e("s_cbranch_vccz L_rw")
    e("v_readfirstlane_b32 %s, v94" % S_T0)
    e("s_cmp_lg_u32 %s, 0" % S_TH)
    e("s_cbranch_scc1 L_rp2")
    e("s_cmp_lg_u32 %s, 0" % S_T0)
    e("s_cbranch_scc1 L_h9")
    lab("L_rp2")
    spin_guard("L_rw")
    e("s_sleep 8")
    e("s_branch L_rp")
    lab("L_rw")
    e("v_bfe_u32 v40, v1, 3, 1")
    e("v_cmp_ne_u32 vcc, 0, v40")
    for (r, dst) in ((32, 92), (36, 93)):
        e("v_max_f32 v41, v%d, v%d" % (r, r + 2))
        e("v_sub_f32 v%d, v%d, v41" % (r, r))
        e("v_sub_f32 v%d, v%d, v41" % (r + 2, r + 2))
        e("v_mul_f32 v%d, %s, v%d" % (r, LOG2E, r))
        e("v_mul_f32 v%d, %s, v%d" % (r + 2, LOG2E, r + 2))
        e("v_exp_f32 v%d, v%d" % (r, r))
        e("v_exp_f32 v%d, v%d" % (r + 2, r + 2))
        e("s_nop 0")
        e("v_mul_f32 v%d, v%d, v%d" % (r + 1, r, r + 1))
        e("v_fma_f32 v%d, v%d, v%d, v%d" % (r + 1, r + 2, r + 3, r + 1))
        e("v_rcp_f32 v%d, v%d" % (r + 1, r + 1))
        e("v_cndmask_b32 v%d, v%d, v%d, vcc" % (r, r, r + 2))
        e("s_nop 0")
        e("v_mul_f32 v%d, v%d, v%d" % (dst, r, r + 1))
    e("s_cmp_lg_u32 %s, 0" % S_TH)
    e("s_mov_b32 %s, 2" % S_TH)
    e("s_cbranch_scc1 L_full")
    lab("L_h9")
    e("s_mov_b32 %s, 0x05040100" % S_T0)
    e("s_mov_b32 %s, 0x07060302" % S_T1)
    stamp(7)
    e("s_barrier")
    O = 32
    for w in range(4):
        e("ds_read_b128 %s, v9 offset:%d" % (vr(O + 8 * w), w * 512))
        e("ds_read_b128 %s, v9 offset:%d" % (vr(O + 8 * w + 4), w * 512 + 16))
    e("s_waitcnt lgkmcnt(6)")
    for i in range(8):
        e("v_mul_f32 v%d, s%d, v%d" % (O + i, S_SC, O + i))
    for w in range(1, 4):
        e("s_waitcnt lgkmcnt(%d)" % (6 - 2 * w))
        for i in range(8):
            e("v_fmac_f32 v%d, s%d, v%d" % (O + i, S_SC + w, O + 8 * w + i))
    for k in range(4):
        hilo_pack(O + 2 * k, O + 2 * k + 1, O + 8 + 3 * k)
    AB = [64, 68]; YA = 72
    YA = 12
    def perms(g):
        for i in range(4):
            e("v_perm_b32 v%d, v%d, v%d, v%d" % (AB[g & 1] + i, O + g, O + g, 4 + i))
    e("v_mov_b32 v90, v13")
    perms(0)
    e("s_nop 1")
    for g in range(8):
        for cb in range(5):
            e("%s %s, %s, %s, %s" % (MFMA, vr(YA + 4 * cb), vr(AB[g & 1]), vr(W(g * 5 + cb)), "0" if g == 0 else vr(YA + 4 * cb)))
            if cb == 0 and g < 7: perms(g + 1)
    e("v_cmp_gt_u32 vcc, 160, v1")
    e("s_nop 7")
    for cb in range(5):
        e("ds_write_b128 v8, %s offset:%d" % (vr(YA + 4 * cb), cb * 512))
    e("s_waitcnt lgkmcnt(0)")
    e("s_barrier")
    e("s_and_saveexec_b64 s[70:71], vcc")
    e("s_cbranch_execz L_h10")
    for p in range(8):
        e("ds_read_b128 %s, v11 offset:%d" % (vr(O + 4 * p), p * 2560))
    for p in (1, 3, 5, 7):
        e("s_waitcnt lgkmcnt(%d)" % (7 - p))
        for i in range(4):
            e("v_add_f32 v%d, v%d, v%d" % (O + 4 * (p - 1) + i, O + 4 * (p - 1) + i, O + 4 * p + i))
    for i in range(4):
        e("v_add_f32 v%d, v%d, v%d" % (O + i, O + i, O + 8 + i))
        e("v_add_f32 v%d, v%d, v%d" % (O + 16 + i, O + 16 + i, O + 24 + i))
    for i in range(4):
        e("v_add_f32 v%d, v%d, v%d" % (O + i, O + i, O + 16 + i))
    e("buffer_store_dwordx4 %s, v10, %s, %s offen sc1" % (vr(O), srd(SRD_WS), S_IT))
    lab("L_h10")
    e("s_mov_b64 exec, -1")
    stamp(8)
    e("s_cmp_lt_u32 s2, %d" % CONS0)
    e("s_cbranch_scc1 L_hend")
    e("v_mov_b32 v13, v90")
    e("v_add_u32 v3, 8192, v2")
    e("v_mov_b32 v4, 0x7f000000")
    e("v_cmp_gt_u32 vcc, %d, v1" % (NFFN * 8))
    e("s_add_u32 %s, %s, 0x1000" % (S_NB, S_REC))
    e("s_nop 0")
    e("v_cndmask_b32 v3, v4, v3, vcc")
    e("s_cmp_eq_u32 %s, 2" % S_TH)
    e("s_mov_b32 %s, 1" % S_TH)
    e("s_cbranch_scc0 L_rp")
    lab("L_full")
    spin_guard("L_fulld")
    e("buffer_load_dwordx4 v[8:11], v2, %s, %s offen sc1" % (srd(SRD_WS), S_REC))
    e("buffer_load_dwordx4 v[12:15], v2, %s, %s offen sc1" % (srd(SRD_WS), S_NB))
    e("buffer_load_dwordx4 v[16:19], v3, %s, %s offen sc1" % (srd(SRD_WS), S_REC))
    e("s_waitcnt vmcnt(0)")
    e("v_max3_u32 v20, v8, v9, v10")
    e("v_max3_u32 v21, v11, v12, v13")
    e("v_max3_u32 v22, v14, v15, v16")
    e("v_max3_u32 v23, v17, v18, v19")
    e("v_max3_u32 v20, v20, v21, v22")
    e("v_max_u32 v20, v20, v23")
    e("v_cmp_eq_u32 vcc, -1, v20")
    e("s_mov_b64 exec, vcc")
    e("s_cbranch_vccnz L_full")
    lab("L_fulld")
    e("s_mov_b64 exec, -1")
    for i in range(4):
        e("v_mul_f32 v%d, v92, v%d" % (8 + i, 8 + i))
    for i in range(4):
        e("v_fmac_f32 v%d, v93, v%d" % (8 + i, 12 + i))
    e("s_nop 1")
    for i in range(4):
        e("v_permlane32_swap_b32 v%d, v%d" % (8 + i, 16 + i))
    e("s_nop 1")
    for i in range(4):
        e("v_add_f32 v%d, v%d, v%d" % (8 + i, 8 + i, 16 + i))
    e("s_nop 1")
    e("v_permlane16_swap_b32 v8, v9")
    e("v_permlane16_swap_b32 v10, v11")
    e("s_nop 1")
    e("v_add_f32 v8, v8, v9")
    e("v_add_f32 v10, v10, v11")
    e("v_and_b32 v12, 7, v0")
    e("v_lshlrev_b32 v12, 4, v12")
    e("v_add_f32_dpp v8, v8, v8 row_ror:8 row_mask:0xf bank_mask:0xf")
    e("v_add_f32_dpp v10, v10, v10 row_ror:8 row_mask:0xf bank_mask:0xf")
    e("v_bfe_u32 v13, v0, 4, 1")
    e("v_lshl_add_u32 v12, v13, 2, v12")
    e("v_lshrrev_b32 v13, 5, v0")
    e("v_lshl_add_u32 v12, v13, 7, v12")
    e("s_lshl_b32 %s, %s, 8" % (S_T0, S_W))
    e("v_add_u32 v12, %s, v12" % S_T0)
    e("ds_write_b32 v12, v8 offset:%d" % L_R)
    e("ds_write_b32 v12, v10 offset:%d" % (L_R + 8))
    e("v_lshlrev_b32 v12, 2, v0")
    e("s_waitcnt lgkmcnt(0)")
    e("s_barrier")
    e("s_cmp_lg_u32 %s, 0" % S_W)
    e("s_cbranch_scc1 L_hend")
    e("s_mov_b32 exec_hi, 0")
    for w in range(4):
        e("ds_read_b32 v%d, v12 offset:%d" % (8 + w, L_R + w * 256))
        e("ds_read_b32 v%d, v12 offset:%d" % (16 + w, L_R + w * 256 + 128))
    mk_srd(SRD_X, "s36", "s37", 5120)
    e("s_mul_i32 %s, s5, 1280" % S_T0)
    e("s_lshr_b32 %s, s4, 2" % S_T1)
    e("s_lshl_b32 %s, %s, 6" % (S_T1, S_T1))
    e("s_add_u32 %s, %s, %s" % (S_T0, S_T0, S_T1))
    e("v_lshlrev_b32 v12, 1, v0")
    e("v_sub_f32 v30, 1.0, v91")
    bf16r(30)
    e("s_waitcnt lgkmcnt(0)")
    e("v_add_f32 v8, v8, v9"); e("v_add_f32 v10, v10, v11")
    e("v_add_f32 v16, v16, v17"); e("v_add_f32 v18, v18, v19")
    e("v_add_f32 v8, v8, v10"); e("v_add_f32 v16, v16, v18")
    bf16r(8); bf16r(16)
    e("v_mul_f32 v8, v91, v8"); e("v_mul_f32 v16, v30, v16")
    bf16r(8); bf16r(16)
    e("v_add_f32 v8, v8, v16")
    e("v_cvt_pk_bf16_f32 v8, v8, v8")
    e("buffer_store_short v8, v12, %s, %s offen" % (srd(SRD_X), S_T0))
    lab("L_hend")
    stamp(9)
    stamps_out(4)

def main():
    ref = open("cdna_kernels/%s.s.ref" % NAME).read().split("\n")
    head = []
    for ln in ref:
        if ln.startswith("; @launch"):
            break
        head.append(ln)
    out = head + ["; @launch grid=(%d,1,1) block=(512,1,1) lds=%d" % (NWG, LDS_BYTES)]
    out += ['.amdgcn_target "amdgcn-amd-amdhsa--gfx950"', ".text", ".globl " + KNAME, ".p2align 8",
            ".type %s,@function" % KNAME, KNAME + ":"]
    e("s_cmp_ge_u32 s2, %d" % NWG)
    e("s_cbranch_scc1 L_end")
    e("s_load_dwordx16 s[16:31], s[0:1], 0")
    e("s_load_dwordx8 s[32:39], s[0:1], 64")
    e("s_load_dwordx2 s[40:41], s[0:1], 96")
    e("v_lshrrev_b32 v1, 6, v0")
    e("v_and_b32 v0, 63, v0")
    e("s_mov_b32 s72, 0")
    e("v_readfirstlane_b32 %s, v1" % S_W)
    e("s_and_b32 s4, s2, 7")
    e("s_lshr_b32 s5, s2, 3")
    e("s_and_b32 %s, s5, 3" % S_H)
    e("s_lshl_b32 %s, %s, 3" % (S_H, S_H))
    e("s_add_u32 %s, %s, s4" % (S_H, S_H))
    e("s_lshr_b32 %s, s5, 2" % S_B)
    e("s_and_b32 %s, %s, 3" % (S_B, S_B))
    e("s_lshr_b32 %s, s5, 4" % S_HALF)
    e("s_lshl_b32 %s, %s, 5" % (S_BH, S_B))
    e("s_add_u32 %s, %s, %s" % (S_BH, S_BH, S_H))
    if TS:
        for i in range(NSTAMP): e("s_mov_b32 s%d, 0" % (76 + 2 * i))
    e("s_cmp_ge_u32 %s, 4" % S_W)
    e("s_cbranch_scc1 L_helper")
    streamer()
    helper()
    lab("L_end")
    e("s_endpgm")
    lab("L_code_end")
    out += L
    out += ['.section .rodata,"a"', ".p2align 6", ".amdhsa_kernel " + KNAME,
            "  .amdhsa_next_free_vgpr 256", "  .amdhsa_next_free_sgpr %d" % (96 if TS else 80), "  .amdhsa_accum_offset 256",
            "  .amdhsa_group_segment_fixed_size 0", "  .amdhsa_kernarg_size 104",
            "  .amdhsa_user_sgpr_count 2", "  .amdhsa_user_sgpr_kernarg_segment_ptr 1",
            "  .amdhsa_system_sgpr_workgroup_id_x 1", "  .amdhsa_float_denorm_mode_32 3",
            ".end_amdhsa_kernel", ""]
    open(OUT, "w").write("\n".join(out))

main()
```

```python
import sys

NAME = "gated_mix__mha_block_cached__glu_gated_bilinear__decode"
KNAME = NAME + "_kernel"
TS = "--ts" in sys.argv
XP = [a[2:] for a in sys.argv if a.startswith("--")]
OUT = [a for a in sys.argv[1:] if not a.startswith("--")]
OUT = OUT[0] if OUT else "cdna_kernels/%s.s" % NAME
def xpv(name, default):
    for a in XP:
        if a.startswith(name + "="): return int(a.split("=")[1])
    return default

NWG, NCONS, NF2 = 256, 80, 180
NWARM = 3
REG = 8192 + 18 * 128
FOFF = 8192
QX_OFF = 0xD0000
GX_OFF = 0xE0000
RC_OFF = 0xF0000
WS_USED = 0xF4000
WS_BASE = xpv("wsmb", 0) << 20
DBG_WS = 8 << 20
WS_REC = (WS_USED if not TS else (64 << 20))
D = xpv("d", 16)
C0 = xpv("c0", 12)
WO_WIN = xpv("wowin", 4)
NB = 8
assert NCONS * REG <= QX_OFF and D % 4 == 0 and 4 <= D <= 16

P_ROW = 64 * NB + 16
P_WAVE = 4 * P_ROW
L_QB = 8448
L_OP = 8704
L_ML = 10752
L_CNT = 10784
L_SC = 10816
L_R = 10880
L_HT = 11904
L_WQ = 12800
L_X0 = 33280
L_WF = 38400
L_YP = L_WF
L_X1 = 58880
LDS_BYTES = 64000
assert 4 * P_WAVE <= L_QB

L = []
def e(s): L.append("    " + s)
def lab(s): L.append(s + ":")
def cmt(s): L.append("    ; " + s)
def vr(a, n=4): return "v[%d:%d]" % (a, a + n - 1)

S_W, S_H, S_B, S_HALF, S_BH = "s3", "s6", "s7", "s8", "s9"
S_OFF, S_IT, S_T0, S_T1, S_A = "s10", "s11", "s12", "s13", "s14"
S_C, S_I = "s15", "s74"
SRD_S, SRD_W, SRD_WS, SRD_DBG, SRD_X = 44, 48, 52, 56, 60
S_TG = 64
S_P = 68
def srd(n): return "s[%d:%d]" % (n, n + 3)
def mk_srd(n, lo, hi, nrec):
    e("s_mov_b32 s%d, %s" % (n, lo))
    e("s_mov_b32 s%d, %s" % (n + 1, hi))
    e("s_mov_b32 s%d, 0x%x" % (n + 2, nrec))
    e("s_mov_b32 s%d, 0x00020000" % (n + 3))
def mk_ws():
    if WS_BASE:
        e("s_add_u32 s%d, s40, 0x%x" % (SRD_WS, WS_BASE))
        e("s_addc_u32 s%d, s41, 0" % (SRD_WS + 1))
        e("s_mov_b32 s%d, 0x%x" % (SRD_WS + 2, WS_USED))
        e("s_mov_b32 s%d, 0x00020000" % (SRD_WS + 3))
    else:
        mk_srd(SRD_WS, "s40", "s41", WS_USED)

BUF = 64
WREG = 96
def B(i): return BUF + 4 * i
def W(i): return WREG + 4 * i

LOG2E = "0x3fb8aa3b"
SCALE = "0x3db504f3"
MFMA = "v_mfma_f32_16x16x32_bf16"
TAGX = "0x9e3779b9"

def sel_pv(dst, t):
    a, b, c = t, t + 1, t + 2
    e("v_mov_b32 v%d, 0x100" % a)
    e("v_mov_b32 v%d, 0x302" % b)
    e("v_and_b32 v%d, 8, v0" % c)
    e("v_cmp_ne_u32 vcc, 0, v%d" % c)
    e("s_nop 1")
    e("v_cndmask_b32 v%d, v%d, v%d, vcc" % (a, a, b))
    e("v_or_b32 v%d, 0x0c0c0000, v%d" % (b, a))
    e("v_lshlrev_b32 v%d, 16, v%d" % (a, a))
    e("v_or_b32 v%d, 0x0c0c, v%d" % (a, a))
    e("v_and_b32 v%d, 1, v0" % c)
    e("v_cmp_ne_u32 vcc, 0, v%d" % c)
    e("s_nop 1")
    e("v_cndmask_b32 v%d, v%d, v%d, vcc" % (a, b, a))
    e("v_mov_b32 v%d, 0x0c0c0c0c" % b)
    e("v_bfe_u32 v%d, v0, 1, 2" % c)
    for i in range(4):
        e("v_cmp_eq_u32 vcc, %d, v%d" % (i, c))
        e("s_nop 1")
        e("v_cndmask_b32 v%d, v%d, v%d, vcc" % (dst + i, b, a))

def allreduce64(op, v, t):
    for r in (8, 4, 2, 1):
        e("s_nop 1")
        e("v_%s_f32_dpp v%d, v%d, v%d row_ror:%d row_mask:0xf bank_mask:0xf" % (op, v, v, v, r))
    for sw in ("16", "32"):
        e("v_mov_b32 v%d, v%d" % (t, v))
        e("s_nop 1")
        e("v_permlane%s_swap_b32 v%d, v%d" % (sw, v, t))
        e("s_nop 1")
        e("v_%s_f32 v%d, v%d, v%d" % (op, v, v, t))

def allreduce4(op, v):
    for m in ("quad_perm:[1,0,3,2]", "quad_perm:[2,3,0,1]"):
        e("s_nop 1")
        e("v_%s_f32_dpp v%d, v%d, v%d %s row_mask:0xf bank_mask:0xf" % (op, v, v, v, m))

def bf16r(v):
    e("v_cvt_pk_bf16_f32 v%d, v%d, v%d" % (v, v, v))
    e("v_lshlrev_b32 v%d, 16, v%d" % (v, v))

def hilo_pack(a, b, t):
    e("v_cvt_pk_bf16_f32 v%d, v%d, v%d" % (t, a, b))
    e("v_lshlrev_b32 v%d, 16, v%d" % (t + 1, t))
    e("v_and_b32 v%d, 0xffff0000, v%d" % (t + 2, t))
    e("v_sub_f32 v%d, v%d, v%d" % (t + 1, a, t + 1))
    e("v_sub_f32 v%d, v%d, v%d" % (t + 2, b, t + 2))
    e("v_cvt_pk_bf16_f32 v%d, v%d, v%d" % (t + 1, t + 1, t + 2))
    e("v_perm_b32 v%d, v%d, v%d, %s" % (a, t + 1, t, S_T0))
    e("v_perm_b32 v%d, v%d, v%d, %s" % (b, t + 1, t, S_T1))

def stream_load(t):
    e("buffer_load_dwordx4 %s, v1, %s, %s offen nt" % (vr(B(t)), srd(SRD_S), S_OFF))
    e("s_add_u32 %s, %s, 0x1000" % (S_OFF, S_OFF))

NSTAMP = 10
def stamp(i):
    if not TS: return
    e("s_memrealtime s[%d:%d]" % (76 + 2 * i, 77 + 2 * i))
    e("s_waitcnt lgkmcnt(0)")

def stamps_out(w8off):
    if not TS: return
    e("s_mov_b64 exec, 1")
    mk_srd(SRD_WS, "s40", "s41", 64 << 20)
    e("s_lshl_b32 s12, s2, 3")
    e("s_add_u32 s12, s12, %s" % S_W)
    e("s_add_u32 s12, s12, %d" % w8off)
    e("s_lshl_b32 s12, s12, 6")
    e("s_add_u32 s12, s12, 0x%x" % DBG_WS)
    for i in range(NSTAMP):
        e("v_mov_b32 v5, s%d" % (76 + 2 * i))
        e("buffer_store_dword v5, off, %s, s12 offset:%d" % (srd(SRD_WS), 4 * i))
    e("s_getreg_b32 s13, hwreg(HW_REG_XCC_ID)")
    e("v_mov_b32 v5, s13")
    e("buffer_store_dword v5, off, %s, s12 offset:56" % srd(SRD_WS))
    e("s_getreg_b32 s13, hwreg(HW_REG_HW_ID)")
    e("v_mov_b32 v5, s13")
    e("buffer_store_dword v5, off, %s, s12 offset:60" % srd(SRD_WS))

SPIN_MAX = 400000
def spin_guard(exit_lbl):
    e("s_add_u32 s72, s72, 1")
    e("s_cmp_gt_u32 s72, %d" % SPIN_MAX)
    e("s_cbranch_scc1 %s" % exit_lbl)

NLAB = [0]
def newlab(p):
    NLAB[0] += 1
    return "L_%s%d" % (p, NLAB[0])

def lds_wait(off, target, vt, va, sleep=1):
    l0, l1 = newlab("lw"), newlab("lw")
    lab(l0)
    e("ds_read_b32 v%d, v%d offset:%d" % (vt, va, L_CNT + off))
    e("s_waitcnt lgkmcnt(0)")
    e("v_readfirstlane_b32 %s, v%d" % (S_T0, vt))
    e("s_cmp_ge_u32 %s, %s" % (S_T0, target))
    e("s_cbranch_scc1 %s" % l1)
    spin_guard(l1)
    e("s_sleep %d" % sleep)
    e("s_branch %s" % l0)
    lab(l1)

def lds_signal(off, vt, va):
    e("v_mov_b32 v%d, 1" % vt)
    e("s_mov_b64 exec, 1")
    e("ds_add_u32 v%d, v%d offset:%d" % (va, vt, L_CNT + off))
    e("s_mov_b64 exec, -1")

def k_body(b0, waits, loads, pre=None):
    P = [8, 9, 10, 11]; Y0, Y1, Z, T, S, TMP = 12, 13, 14, 15, 16, 17
    for G in range(4):
        ld = list(loads[G])
        def nxt():
            if ld: stream_load(ld.pop(0))
        e("s_waitcnt vmcnt(%d)" % waits[G])
        for k in range(4):
            for u in range(4):
                c = "0" if k == 0 else "v%d" % P[u]
                e("v_dot2_f32_bf16 v%d, v%d, v%d, %s" % (P[u], B(b0 + 4 * G + u) + k, 4 + k, c))
        if pre and pre.get(G): pre[G]()
        e("v_add_f32_dpp v%d, v%d, v%d row_ror:8 row_mask:0xf bank_mask:0x3" % (Y0, P[0], P[0]))
        e("v_add_f32_dpp v%d, v%d, v%d row_ror:8 row_mask:0xf bank_mask:0xc" % (Y0, P[1], P[1]))
        e("v_add_f32_dpp v%d, v%d, v%d row_ror:8 row_mask:0xf bank_mask:0x3" % (Y1, P[2], P[2]))
        e("v_add_f32_dpp v%d, v%d, v%d row_ror:8 row_mask:0xf bank_mask:0xc" % (Y1, P[3], P[3]))
        nxt()
        if len(loads[G]) < 1: e("s_nop 1")
        e("v_add_f32_dpp v%d, v%d, v%d row_half_mirror row_mask:0xf bank_mask:0x5" % (Z, Y0, Y0))
        e("v_add_f32_dpp v%d, v%d, v%d row_half_mirror row_mask:0xf bank_mask:0xa" % (Z, Y1, Y1))
        nxt()
        if len(loads[G]) < 2: e("s_nop 1")
        e("v_add_f32_dpp v%d, v%d, v%d quad_perm:[1,0,3,2] row_mask:0xf bank_mask:0xf" % (Z, Z, Z))
        nxt()
        if len(loads[G]) < 3: e("s_nop 1")
        d = S if G == 0 else T
        e("v_add_f32_dpp v%d, v%d, v%d quad_perm:[2,3,0,1] row_mask:0xf bank_mask:0xf" % (d, Z, Z))
        nxt()
        assert not ld
        if G:
            e("v_cndmask_b32 v%d, v%d, v%d, s[%d:%d]" % (S, S, T, 60 + 2 * G, 61 + 2 * G))
    e("v_cvt_pk_bf16_f32 v%d, v%d, v%d" % (TMP, S, S))
    e("v_lshlrev_b32 v%d, 16, v%d" % (TMP, TMP))
    e("v_mul_f32 v%d, %s, v%d" % (TMP, SCALE, TMP))
    bf16r(TMP)
    e("s_add_u32 %s, %s, 1" % (S_IT, S_IT))
    e("v_max_f32 v3, v3, v%d" % TMP)
    e("ds_write_b32 v2, v%d" % TMP)
    e("v_add_u32 v2, 64, v2")

def v_body():
    A, ACC = 8, 20
    PB = [12, 16]
    for G in range(4):
        e("s_waitcnt lgkmcnt(0)")
        e("ds_read_b128 %s, v2 offset:%d" % (vr(PB[(G + 1) & 1]), (G + 1) * 16))
        for u in range(4):
            t = 4 * G + u
            p = PB[G & 1] + u
            for i in range(4):
                e("v_perm_b32 v%d, v%d, v%d, v%d" % (A + i, p, p, 4 + i))
            e("s_waitcnt vmcnt(%d)" % (D - 1))
            e("s_nop 0")
            e("%s %s, %s, %s, %s" % (MFMA, vr(ACC), vr(A), vr(B(t)), vr(ACC)))
            stream_load((t + D) % 16)
    e("s_add_u32 %s, %s, 1" % (S_IT, S_IT))
    e("v_add_u32 v2, 64, v2")

def streamer():
    cmt("---- streaming waves")
    e("s_lshl_b32 %s, %s, 20" % (S_T0, S_BH))
    e("s_lshl_b32 %s, %s, 19" % (S_T1, S_HALF))
    e("s_add_u32 %s, %s, %s" % (S_T0, S_T0, S_T1))
    e("s_lshl_b32 %s, %s, 10" % (S_T1, S_W))
    e("v_lshlrev_b32 v1, 4, v0")
    e("v_add_u32 v1, %s, v1" % S_T1)
    e("s_mov_b32 s%d, 0x%x" % (SRD_S + 2, NB << 16))
    e("s_mov_b32 s%d, 0x00020000" % (SRD_S + 3))
    e("s_mov_b32 %s, 0" % S_OFF)
    e("s_waitcnt lgkmcnt(0)")
    stamp(0)
    e("s_add_u32 s%d, s18, %s" % (SRD_S, S_T0))
    e("s_addc_u32 s%d, s19, 0" % (SRD_S + 1))
    e("s_add_u32 s42, s20, %s" % S_T0)
    e("s_addc_u32 s43, s21, 0")
    PRE = min(xpv("pre", 4), C0)
    for t in range(PRE):
        stream_load(t)
    e("s_barrier")
    for t in range(PRE, C0):
        stream_load(t)
    for i, m in enumerate((0x22222222, 0x44444444, 0x88888888)):
        e("s_mov_b32 s%d, 0x%x" % (62 + 2 * i, m)); e("s_mov_b32 s%d, 0x%x" % (63 + 2 * i, m))
    e("v_lshrrev_b32 v24, 4, v0")
    e("v_and_b32 v25, 15, v0")
    e("v_lshlrev_b32 v25, 4, v25")
    e("v_mul_u32_u24 v2, %d, v24" % P_ROW)
    e("s_mul_i32 %s, %s, %d" % (S_T0, S_W, P_WAVE))
    e("v_add_u32 v28, %s, v2" % S_T0)
    e("v_and_b32 v26, 3, v0")
    e("v_lshlrev_b32 v26, 4, v26")
    e("v_bfe_u32 v27, v0, 2, 1")
    e("v_lshl_add_u32 v26, v27, 3, v26")
    e("v_bfe_u32 v27, v0, 3, 1")
    e("v_lshl_add_u32 v26, v27, 2, v26")
    e("v_add_u32 v2, v28, v26")
    e("v_mov_b32 v29, v2")
    e("v_mov_b32 v3, 0xff800000")
    e("v_mov_b32 v30, 0")
    e("s_mov_b32 %s, 0" % S_IT)
    for t in range(C0, 48):
        e("s_waitcnt vmcnt(%d)" % (C0 - 1))
        stream_load(t)
    stamp(1)
    lds_wait(4, "1", 31, 30)
    e("ds_read_b128 v[4:7], v25 offset:%d" % L_QB)
    e("s_waitcnt lgkmcnt(0)")
    stamp(2)
    iss = 0
    for th in range(3):
        waits, loads = [], []
        for G in range(4):
            g = 4 * th + G
            waits.append(44 - 4 * g + iss)
            n = (g + 1) * D // 12 - g * D // 12
            loads.append(list(range(iss, iss + n))); iss += n
        k_body(16 * th, waits, loads)
    assert iss == D
    def switch():
        e("s_cmp_eq_u32 %s, %d" % (S_IT, NB - 1))
        e("s_cselect_b32 s%d, s42, s%d" % (SRD_S, SRD_S))
        e("s_cselect_b32 s%d, s43, s%d" % (SRD_S + 1, SRD_S + 1))
        e("s_cselect_b32 %s, 0, %s" % (S_OFF, S_OFF))
    lab("L_k")
    k_body(0, [D - 4] * 4, [[(4 * G + u + D) % 16 for u in range(4)] for G in range(4)], {(16 - D) // 4: switch})
    e("s_cmp_lg_u32 %s, %d" % (S_IT, NB))
    e("s_cbranch_scc1 L_k")
    stamp(3)
    for k in range(NB):
        e("ds_read_b32 v%d, v29 offset:%d" % (32 + k, 64 * k))
    allreduce64("max", 3, 16)
    e("s_mov_b32 %s, 0x05040100" % S_T0)
    e("s_mov_b32 %s, 0x07060302" % S_T1)
    e("s_waitcnt lgkmcnt(0)")
    for k in range(NB):
        e("v_sub_f32 v%d, v%d, v3" % (32 + k, 32 + k))
    for k in range(NB):
        e("v_mul_f32 v%d, %s, v%d" % (32 + k, LOG2E, 32 + k))
    for k in range(NB):
        e("v_exp_f32 v%d, v%d" % (32 + k, 32 + k))
    e("s_nop 0")
    e("v_add_f32 v24, v32, v33")
    for k in range(2, NB):
        e("v_add_f32 v24, v24, v%d" % (32 + k))
    for k in range(NB // 2):
        hilo_pack(32 + 2 * k, 33 + 2 * k, 16)
    for k in range(NB):
        e("ds_write_b32 v29, v%d offset:%d" % (32 + k, 64 * k))
    e("v_mov_b32 v2, v28")
    e("ds_read_b128 %s, v2" % vr(12))
    allreduce64("add", 24, 20)
    sel_pv(4, 8)
    e("v_mov_b32 v25, v24")
    e("v_mov_b32 v24, v3")
    e("s_lshl_b32 %s, %s, 3" % (S_T0, S_W))
    e("v_mov_b32 v26, %s" % S_T0)
    e("s_mov_b64 exec, 1")
    e("ds_write_b64 v26, v[24:25] offset:%d" % L_ML)
    e("s_mov_b64 exec, -1")
    lds_signal(0, 27, 30)
    for i in range(4):
        e("v_mov_b32 v%d, 0" % (20 + i))
    e("s_mov_b32 %s, 0" % S_IT)
    e("v_and_b32 v26, 31, v0")
    e("v_and_b32 v27, 15, v26")
    e("v_lshlrev_b32 v27, 5, v27")
    e("v_lshrrev_b32 v26, 4, v26")
    e("v_lshl_add_u32 v27, v26, 4, v27")
    e("v_lshrrev_b32 v26, 5, v0")
    e("s_lshl_b32 %s, %s, 9" % (S_T0, S_W))
    e("s_add_u32 %s, %s, %d" % (S_T0, S_T0, L_OP))
    e("v_lshl_add_u32 v28, v26, 2, v27")
    e("v_add_u32 v28, %s, v28" % S_T0)
    stamp(4)
    lab("L_v")
    v_body()
    e("s_cmp_lg_u32 %s, %d" % (S_IT, NB))
    e("s_cbranch_scc1 L_v")
    stamp(5)
    ACC = 20
    e("s_nop 4")
    e("v_permlane32_swap_b32 v%d, v%d" % (ACC, ACC + 1))
    e("v_permlane32_swap_b32 v%d, v%d" % (ACC + 2, ACC + 3))
    e("s_nop 1")
    e("v_add_f32 v%d, v%d, v%d" % (ACC, ACC, ACC + 1))
    e("v_add_f32 v%d, v%d, v%d" % (ACC + 2, ACC + 2, ACC + 3))
    e("ds_write_b32 v28, v%d" % ACC)
    e("ds_write_b32 v28, v%d offset:8" % (ACC + 2))
    e("s_waitcnt lgkmcnt(0)")
    e("s_barrier")
    stamps_out(0)
    e("s_endpgm")

VZ = 95
V_G, V_FB, V_M10 = 91, 92, 93

def tpoll(loads, grans, sleep, ex="-1"):
    l0, l1 = newlab("tp"), newlab("tp")
    lab(l0)
    for x in loads: e(x)
    e("s_waitcnt vmcnt(0)")
    for g, t0, t1 in grans:
        e("v_xor_b32 v%d, v%d, v%d" % (g + 2, g + 2, t0))
        e("v_xor_b32 v%d, v%d, v%d" % (g + 3, g + 3, t1))
    g0 = grans[0][0]
    e("v_or_b32 v%d, v%d, v%d" % (g0 + 2, g0 + 2, g0 + 3))
    for g, _, _ in grans[1:]:
        e("v_or3_b32 v%d, v%d, v%d, v%d" % (g0 + 2, g0 + 2, g + 2, g + 3))
    e("v_cmp_ne_u32 vcc, 0, v%d" % (g0 + 2))
    e("s_cbranch_vccz %s" % l1)
    spin_guard(l1)
    e("s_mov_b64 exec, vcc")
    if sleep: e("s_sleep %d" % sleep)
    e("s_branch %s" % l0)
    lab(l1)
    e("s_mov_b64 exec, %s" % ex)

def ypoll(loads, grans, t, sleep):
    l0, l1 = newlab("yp"), newlab("yp")
    lab(l0)
    for x in loads: e(x)
    e("s_waitcnt vmcnt(0)")
    first = True
    for g, tg in grans:
        for i in range(0, 4, 2):
            if first:
                e("v_xor_b32 v%d, v%d, v%d" % (t, g + i, tg + i))
                e("v_xor_b32 v%d, v%d, v%d" % (t + 1, g + i + 1, tg + i + 1))
                e("v_or_b32 v%d, v%d, v%d" % (t, t, t + 1)); first = False
            else:
                e("v_xor_b32 v%d, v%d, v%d" % (t + 1, g + i, tg + i))
                e("v_xor_b32 v%d, v%d, v%d" % (t + 2, g + i + 1, tg + i + 1))
                e("v_or3_b32 v%d, v%d, v%d, v%d" % (t, t, t + 1, t + 2))
    e("v_and_b32 v%d, 0x3ff, v%d" % (t, t))
    e("v_cmp_ne_u32 vcc, 0, v%d" % t)
    e("s_cbranch_vccz %s" % l1)
    spin_guard(l1)
    e("s_mov_b64 exec, vcc")
    if sleep: e("s_sleep %d" % sleep)
    e("s_branch %s" % l0)
    lab(l1)
    e("s_mov_b64 exec, -1")

def nonce_fetch(regs_offs):
    l0, l1 = newlab("nf"), newlab("nf")
    lab(l0)
    for d, o in regs_offs:
        e("buffer_load_dword v%d, v%d, %s, 0 offen sc1" % (d, o, srd(SRD_DBG)))
    e("s_waitcnt vmcnt(0)")
    ds = [d for d, _ in regs_offs]
    e("v_min_u32 v94, v%d, v%d" % (ds[0], ds[-1]))
    for d in ds[1:-1]:
        e("v_min_u32 v94, v94, v%d" % d)
    e("v_cmp_eq_u32 vcc, 0, v94")
    e("s_cbranch_vccz %s" % l1)
    spin_guard(l1)
    e("s_sleep 16")
    e("s_branch %s" % l0)
    lab(l1)

def head_off(dst, h):
    e("v_and_b32 v%d, 15, v%d" % (dst, h))
    e("v_lshrrev_b32 v%d, 4, v%d" % (h, h))
    e("v_lshlrev_b32 v%d, 2, v%d" % (dst, dst))
    e("v_lshl_add_u32 v%d, v%d, 7, v%d" % (dst, h, dst))

def vtags(n):
    e("v_lshrrev_b32 v%d, 10, v%d" % (n + 1, n))
    e("v_lshrrev_b32 v%d, 20, v%d" % (n + 2, n))
    e("v_not_b32 v%d, v%d" % (n + 3, n))
    e("v_alignbit_b32 v%d, v%d, v%d, 30" % (n + 3, n + 3, n))

def stags():
    e("s_mov_b32 s%d, %s" % (S_TG, S_T0))
    e("s_lshr_b32 s%d, %s, 10" % (S_TG + 1, S_T0))
    e("s_lshr_b32 s%d, %s, 20" % (S_TG + 2, S_T0))
    e("s_not_b32 s%d, %s" % (S_TG + 3, S_T0))
    e("s_lshl_b32 s%d, s%d, 2" % (S_TG + 3, S_TG + 3))
    e("s_lshr_b32 %s, %s, 30" % (S_T0, S_T0))
    e("s_or_b32 s%d, s%d, %s" % (S_TG + 3, S_TG + 3, S_T0))

def ypack(r):
    for i in range(4):
        e("v_add_u32 v%d, 0x200, v%d" % (r + i, r + i))
    for i in range(4):
        e("v_bfi_b32 v%d, v%d, s%d, v%d" % (r + i, V_M10, S_TG + i, r + i))

def red8(a):
    e("s_nop 1")
    e("v_permlane32_swap_b32 v%d, v%d" % (a, a + 1))
    e("v_permlane32_swap_b32 v%d, v%d" % (a + 2, a + 3))
    e("s_nop 1")
    e("v_add_f32 v%d, v%d, v%d" % (a, a, a + 1))
    e("v_add_f32 v%d, v%d, v%d" % (a + 2, a + 2, a + 3))
    e("s_nop 1")
    e("v_permlane16_swap_b32 v%d, v%d" % (a, a + 2))
    e("s_nop 1")
    e("v_add_f32 v%d, v%d, v%d" % (a, a, a + 2))
    e("s_nop 1")
    e("v_add_f32_dpp v%d, v%d, v%d row_ror:8 row_mask:0xf bank_mask:0xf" % (a, a, a))

def helper():
    lab("L_helper")
    e("s_setprio 3")
    e("s_memrealtime s[4:5]")
    e("s_sub_u32 %s, %s, 4" % (S_W, S_W))
    e("s_lshl_b32 %s, %s, 1" % (S_I, S_B))
    e("s_add_u32 %s, %s, %s" % (S_I, S_I, S_HALF))
    e("v_lshrrev_b32 v24, 4, v0")
    e("v_and_b32 v25, 15, v0")
    e("s_lshl_b32 %s, %s, 6" % (S_T0, S_W))
    e("v_add_u32 v1, %s, v0" % S_T0)
    e("v_lshlrev_b32 v2, 4, v0")
    e("v_mov_b32 v%d, 0" % VZ)
    e("v_mov_b32 v%d, 0x3ff" % V_M10)
    e("s_cmp_ge_u32 %s, 2" % S_W)
    e("s_cbranch_scc1 L_h23")
    S_STR, S_COL, S_PUB, S_BS = "s68", "s69", "s70", "s71"
    e("s_and_b32 s73, s2, 7")
    e("s_lshr_b32 s75, s2, 3")
    e("s_mul_i32 %s, s73, 7" % S_T0)
    e("s_lshr_b32 %s, s75, 2" % S_T1)
    e("s_add_u32 %s, %s, %s" % (S_T0, S_T0, S_T1))
    e("s_cmp_lt_u32 s75, 28")
    e("s_cselect_b32 %s, %s, 99" % (S_C, S_T0))
    e("s_cmp_ge_u32 %s, 27" % S_T0)
    e("s_cselect_b32 %s, 27, 0" % S_T1)
    e("s_cselect_b32 %s, 1, 0" % S_A)
    e("s_sub_u32 %s, %s, %s" % (S_T0, S_T0, S_T1))
    e("s_lshl_b32 %s, %s, 2" % (S_T0, S_T0))
    e("s_and_b32 %s, s75, 3" % S_T1)
    e("s_add_u32 %s, %s, %s" % (S_T0, S_T0, S_T1))
    e("s_lshl_b32 %s, %s, 5" % (S_COL, S_T0))
    e("s_lshl_b32 %s, %s, 6" % (S_T0, S_T0))
    e("s_mul_i32 %s, %s, 27648" % (S_PUB, S_A))
    e("s_add_u32 %s, %s, %s" % (S_PUB, S_PUB, S_T0))
    e("s_add_u32 %s, %s, 0x%x" % (S_PUB, S_PUB, GX_OFF))
    e("s_lshl_b32 %s, %s, 3" % (S_T0, S_H))
    e("s_add_u32 %s, %s, %s" % (S_T0, S_T0, S_I))
    e("s_lshl_b32 %s, %s, 5" % (S_T1, S_T0))
    e("s_lshl_b32 s73, %s, 11" % S_H)
    e("s_lshl_b32 s75, %s, 6" % S_I)
    e("s_add_u32 s73, s73, s75")
    e("s_add_u32 s73, s73, 0x%x" % QX_OFF)
    e("s_cmp_eq_u32 %s, 0" % S_W)
    e("s_cselect_b32 %s, %s, %s" % (S_COL, S_T1, S_COL))
    e("s_cselect_b32 %s, s73, %s" % (S_PUB, S_PUB))
    e("s_cselect_b32 %s, 0, %s" % (S_C, S_C))
    e("s_mul_i32 %s, %s, %d" % (S_STR, S_W, 8192 - 3456))
    e("s_sub_u32 %s, 8192, %s" % (S_STR, S_STR))
    e("s_mul_i32 %s, %s, %d" % (S_BS, S_W, 6912 - 512))
    e("s_add_u32 %s, %s, 512" % (S_BS, S_BS))
    e("s_mul_i32 s73, %s, %d" % (S_W, L_WF - L_WQ))
    e("s_add_u32 s75, s73, %d" % L_X0)
    e("s_add_u32 s73, s73, %d" % L_WQ)
    assert L_WF - L_WQ == L_X1 - L_X0
    e("v_lshrrev_b32 v26, 1, v0")
    e("v_mul_u32_u24 v26, %s, v26" % S_STR)
    e("v_and_b32 v27, 1, v0")
    e("v_lshl_add_u32 v26, v27, 4, v26")
    e("v_add_u32 v26, %s, v26" % S_COL)
    e("s_and_b32 %s, %s, 15" % (S_T0, S_H))
    e("s_lshl_b32 %s, %s, 2" % (S_T0, S_T0))
    e("s_lshr_b32 %s, %s, 4" % (S_T1, S_H))
    e("s_lshl_b32 %s, %s, 7" % (S_T1, S_T1))
    e("s_add_u32 %s, %s, %s" % (S_T0, S_T0, S_T1))
    e("v_mov_b32 v61, 0")
    e("s_mul_i32 s%d, %s, 640" % (SRD_W + 2, S_STR))
    e("s_mov_b32 s%d, 0x00020000" % (SRD_W + 3))
    e("s_lshl_b32 %s, %s, 5" % (S_STR, S_STR))
    e("s_cmp_ge_u32 %s, 54" % S_C)
    e("s_cbranch_scc1 L_hb1")
    e("s_waitcnt lgkmcnt(0)")
    stamp(0)
    mk_srd(SRD_X, "s16", "s17", 5120)
    mk_srd(SRD_DBG, "s38", "s39", 256)
    e("s_cmp_lg_u32 %s, 0" % S_A)
    e("s_cselect_b32 s%d, s30, s28" % SRD_W)
    e("s_cselect_b32 s%d, s31, s29" % (SRD_W + 1))
    e("s_cmp_lg_u32 %s, 0" % S_W)
    e("s_cbranch_scc1 L_h1a")
    e("s_mov_b32 s%d, s22" % SRD_W)
    e("s_mov_b32 s%d, s23" % (SRD_W + 1))
    e("s_or_b32 s4, s4, 1")
    e("v_mov_b32 v60, s4")
    e("s_mov_b64 exec, 1")
    e("buffer_atomic_cmpswap v[60:61], off, %s, %s sc0 sc1" % (srd(SRD_DBG), S_T0))
    e("s_mov_b64 exec, -1")
    lab("L_h1a")
    e("s_mov_b32 m0, s75")
    e("s_mov_b32 %s, 0" % S_OFF)
    for k in range(4):
        e("buffer_load_dwordx4 v2, %s, 0 offen offset:%d lds" % (srd(SRD_X), 1024 * k))
    e("s_add_u32 m0, s75, 0x1000")
    e("s_mov_b32 %s, 0x1000" % S_T1)
    e("buffer_load_dwordx4 v2, %s, %s offen lds" % (srd(SRD_X), S_T1))
    e("s_mov_b32 m0, s73")
    e("s_nop 0")
    for t in range(20):
        e("buffer_load_dwordx4 v26, %s, %s offen nt lds" % (srd(SRD_W), S_OFF))
        if t < 19:
            e("s_add_u32 m0, m0, 0x400")
            e("s_add_u32 %s, %s, %s" % (S_OFF, S_OFF, S_STR))
    e("s_barrier")
    mk_ws()
    e("v_lshlrev_b32 v28, 3, v0")
    e("v_lshl_add_u32 v28, v24, 7, v28")
    e("v_add_u32 v28, s73, v28")
    e("v_and_b32 v29, 3, v0")
    e("v_mul_u32_u24 v29, 1280, v29")
    e("v_lshl_add_u32 v29, v24, 4, v29")
    e("v_add_u32 v29, s75, v29")
    e("v_mul_u32_u24 v30, %s, v25" % S_BS)
    e("v_lshl_add_u32 v30, v24, 4, v30")
    e("s_cmp_lg_u32 %s, 0" % S_W)
    e("s_cbranch_scc1 L_h1b")
    e("s_waitcnt vmcnt(25)")
    e("v_readfirstlane_b32 %s, v60" % S_T0)
    e("s_cmp_eq_u32 %s, 0" % S_T0)
    e("s_cselect_b32 %s, s4, %s" % (S_T0, S_T0))
    e("v_mov_b32 v60, %s" % S_T0)
    e("ds_write_b32 v%d, v60 offset:%d" % (VZ, L_CNT + 8))
    lab("L_h1b")
    XF, WFR, ACC = 96, [176, 196], 32
    e("s_waitcnt vmcnt(20)")
    for s in range(20):
        e("ds_read_b128 %s, v29 offset:%d" % (vr(XF + 4 * s), 64 * s))
    def mm(k):
        for s5 in range(5):
            s = 5 * k + s5
            e("%s %s, %s, %s, %s" % (MFMA, vr(ACC), vr(WFR[k & 1] + 4 * s5), vr(XF + 4 * s), "0" if s == 0 else vr(ACC)))
    for k in range(4):
        e("s_waitcnt vmcnt(%d)" % (15 - 5 * k))
        for s5 in range(5):
            s = 5 * k + s5
            e("ds_read_b64_tr_b16 %s, v28 offset:%d" % (vr(WFR[k & 1] + 4 * s5, 2), 1024 * s))
            e("ds_read_b64_tr_b16 %s, v28 offset:%d" % (vr(WFR[k & 1] + 4 * s5 + 2, 2), 1024 * s + 128))
        if k:
            e("s_waitcnt lgkmcnt(10)")
            mm(k - 1)
    e("s_waitcnt lgkmcnt(0)")
    mm(3)
    lds_wait(8, "1", 94, VZ)
    e("v_mov_b32 v38, %s" % S_T0)
    e("v_xor_b32 v39, %s, v38" % TAGX)
    e("s_nop 4")
    e("v_cvt_pk_bf16_f32 v36, v32, v33")
    e("v_cvt_pk_bf16_f32 v37, v34, v35")
    e("s_mov_b32 exec_lo, 0x000f000f")
    e("s_mov_b32 exec_hi, 0x000f000f")
    e("buffer_store_dwordx4 v[36:39], v30, %s, %s offen sc1" % (srd(SRD_WS), S_PUB))
    e("s_mov_b64 exec, -1")
    stamp(1)
    e("s_cmp_lg_u32 %s, 0" % S_W)
    e("s_cbranch_scc1 L_wo")
    e("s_lshl_b32 %s, %s, 2" % (S_OFF, S_H))
    e("s_add_u32 %s, %s, %s" % (S_OFF, S_OFF, S_B))
    e("s_lshl_b32 %s, %s, 9" % (S_OFF, S_OFF))
    e("s_add_u32 %s, %s, 0x%x" % (S_OFF, S_OFF, QX_OFF))
    e("v_lshlrev_b32 v3, 3, v0")
    e("s_mov_b32 exec_hi, 0")
    e("s_mov_b64 s[68:69], exec")
    tpoll(["buffer_load_dwordx4 v[40:43], v2, %s, %s offen sc1" % (srd(SRD_WS), S_OFF)], [(40, 38, 39)], xpv("qsl", 0), "s[68:69]")
    e("ds_write_b64 v3, v[40:41] offset:%d" % L_QB)
    e("s_mov_b64 exec, -1")
    e("v_mov_b32 v40, 1")
    e("s_waitcnt lgkmcnt(0)")
    e("ds_write_b32 v%d, v40 offset:%d" % (VZ, L_CNT + 4))
    stamp(2)
    e("s_branch L_wo")

    lab("L_h23")
    e("s_cmp_eq_u32 %s, 2" % S_W)
    e("s_cbranch_scc1 L_hb1")
    for i in range(4):
        e("v_mov_b32 v%d, 0" % (44 + i))
    e("ds_write_b128 v%d, v[44:47] offset:%d" % (VZ, L_CNT))
    lab("L_hb1")
    e("s_waitcnt lgkmcnt(0)")
    stamp(0)
    e("s_barrier")
    mk_ws()
    mk_srd(SRD_DBG, "s38", "s39", 256)
    e("s_cmp_eq_u32 %s, 2" % S_W)
    e("s_cbranch_scc1 L_h2")
    e("s_cmp_lg_u32 %s, 3" % S_W)
    e("s_cbranch_scc1 L_wo")
    lds_wait(4, "1", 94, VZ, 4)
    if "nowarm" not in XP:
        e("s_getpc_b64 s[4:5]")
        lab("L_pc")
        e("s_sub_u32 s4, s4, L_pc-%s" % KNAME)
        e("s_subb_u32 s5, s5, 0")
        e("v_lshlrev_b32 v28, 7, v0")
        for i in range(NWARM):
            e("v_min_u32 v27, L_code_end-%s-4, v28" % KNAME)
            e("global_load_dword v89, v27, s[4:5]")
            e("v_add_u32 v28, 0x2000, v28")
    e("s_cmp_ge_u32 s2, %d" % NCONS)
    e("s_cbranch_scc1 L_wo")
    e("s_and_b32 s5, s2, 3")
    mk_srd(SRD_X, "s16", "s17", 5120)
    mk_srd(SRD_W, "s34", "s35", 1280)
    e("v_lshlrev_b32 v3, 2, v0")
    e("s_mul_i32 %s, s5, 1280" % S_T0)
    for k in range(5):
        e("buffer_load_dword v%d, v3, %s, %s offen offset:%d" % (64 + k, srd(SRD_X), S_T0, 256 * k))
        e("buffer_load_dword v%d, v3, %s, 0 offen offset:%d" % (72 + k, srd(SRD_W), 256 * k))
    e("s_waitcnt vmcnt(0)")
    G = V_G
    e("v_mov_b32 v%d, 0" % G)
    for k in range(5):
        e("v_lshlrev_b32 v80, 16, v%d" % (64 + k))
        e("v_and_b32 v81, 0xffff0000, v%d" % (64 + k))
        e("v_lshlrev_b32 v82, 16, v%d" % (72 + k))
        e("v_and_b32 v83, 0xffff0000, v%d" % (72 + k))
        e("v_mul_f32 v80, v80, v82")
        e("v_mul_f32 v81, v81, v83")
        e("v_cvt_pk_bf16_f32 v80, v80, v81")
        e("v_lshlrev_b32 v81, 16, v80")
        e("v_and_b32 v80, 0xffff0000, v80")
        e("v_add_f32 v%d, v%d, v81" % (G, G))
        e("v_add_f32 v%d, v%d, v80" % (G, G))
    allreduce64("add", G, 80)
    bf16r(G)
    e("v_mul_f32 v%d, 0xbfb8aa3b, v%d" % (G, G))
    e("v_exp_f32 v%d, v%d" % (G, G))
    e("s_nop 0")
    e("v_add_f32 v%d, 1.0, v%d" % (G, G))
    e("v_rcp_f32 v%d, v%d" % (G, G))
    e("s_nop 0")
    bf16r(G)
    e("s_branch L_wo")

    lab("L_h2")
    e("s_cmp_lt_u32 s2, %d" % (NWG - NF2))
    e("s_cbranch_scc1 L_wo")
    S_RG, S_CB = "s68", "s69"
    e("s_sub_u32 %s, 255, s2" % S_T0)
    e("s_mul_i32 %s, %s, 205" % (S_RG, S_T0))
    e("s_lshr_b32 %s, %s, 11" % (S_RG, S_RG))
    e("s_mul_i32 %s, %s, 10" % (S_T1, S_RG))
    e("s_sub_u32 %s, %s, %s" % (S_CB, S_T0, S_T1))
    e("v_lshrrev_b32 v26, 3, v0")
    e("v_mul_u32_u24 v26, 1280, v26")
    e("v_and_b32 v27, 7, v0")
    e("v_lshl_add_u32 v26, v27, 4, v26")
    e("s_mul_i32 %s, %s, %d" % (S_OFF, S_RG, 96 * 1280))
    e("s_lshl_b32 %s, %s, 7" % (S_T0, S_CB))
    e("s_add_u32 %s, %s, %s" % (S_OFF, S_OFF, S_T0))
    mk_srd(SRD_W, "s32", "s33", 1728 * 1280)
    e("v_cmp_le_u32 vcc, 24, v0")
    e("v_mov_b32 v28, 24")
    e("v_mov_b32 v29, 6912")
    e("v_cndmask_b32 v28, 0, v28, vcc")
    e("v_cndmask_b32 v29, 0, v29, vcc")
    e("v_sub_u32 v28, v0, v28")
    e("v_min_u32 v28, 23, v28")
    e("v_lshl_add_u32 v29, v28, 4, v29")
    e("v_mov_b32 v30, 192")
    e("v_cndmask_b32 v30, 0, v30, vcc")
    e("v_lshl_add_u32 v30, v28, 3, v30")
    e("s_mul_i32 %s, %s, 6" % (S_T0, S_RG))
    e("v_lshrrev_b32 v31, 2, v28")
    e("v_add_u32 v31, %s, v31" % S_T0)
    e("v_and_b32 v32, 3, v31")
    e("v_lshlrev_b32 v32, 3, v32")
    e("v_lshrrev_b32 v31, 2, v31")
    e("v_add_u32 v33, 27, v31")
    for g in (31, 33):
        e("v_mul_u32_u24 v%d, 37, v%d" % (g, g))
        e("v_lshrrev_b32 v%d, 8, v%d" % (g, g))
        e("v_add_u32 v%d, v%d, v32" % (g, g))
    head_off(34, 31)
    head_off(35, 33)
    e("s_mul_i32 %s, %s, 384" % (S_IT, S_RG))
    e("s_add_u32 %s, %s, 0x%x" % (S_IT, S_IT, GX_OFF))
    e("s_add_u32 s70, %s, 13824" % S_IT)
    e("s_add_u32 s71, %s, 27648" % S_IT)
    e("s_add_u32 s73, %s, 41472" % S_IT)
    lds_wait(4, "1", 94, VZ, 4)
    e("s_mov_b32 m0, %d" % L_WQ)
    e("s_nop 0")
    for t in range(12):
        e("buffer_load_dwordx4 v26, %s, %s offen nt lds" % (srd(SRD_W), S_OFF))
        if t < 11:
            e("s_add_u32 m0, m0, 0x400")
            e("s_add_u32 %s, %s, %d" % (S_OFF, S_OFF, 8 * 1280))
    nonce_fetch([(36, 34), (38, 35)])
    e("v_xor_b32 v37, %s, v36" % TAGX)
    e("v_xor_b32 v39, %s, v38" % TAGX)
    e("s_mov_b32 exec_hi, 0xffff")
    e("s_mov_b64 s[4:5], exec")
    tpoll(["buffer_load_dwordx4 %s, v29, %s, %s offen sc1" % (vr(40 + 4 * k), srd(SRD_WS), [S_IT, "s70", "s71", "s73"][k]) for k in range(4)],
          [(40, 36, 37), (44, 36, 37), (48, 38, 39), (52, 38, 39)], 16, "s[4:5]")
    for bb in range(2):
        g, u = 40 + 4 * bb, 48 + 4 * bb
        for k in range(2):
            e("v_lshlrev_b32 v56, 16, v%d" % (g + k))
            e("v_and_b32 v57, 0xffff0000, v%d" % (g + k))
            e("v_lshlrev_b32 v58, 16, v%d" % (u + k))
            e("v_and_b32 v59, 0xffff0000, v%d" % (u + k))
            e("v_mul_f32 v56, v56, v58")
            e("v_mul_f32 v57, v57, v59")
            e("v_cvt_pk_bf16_f32 v%d, v56, v57" % (g + k))
        e("ds_write_b64 v30, %s offset:%d" % (vr(g, 2), L_HT + 384 * bb))
    e("s_mov_b64 exec, -1")
    stamp(3)
    e("v_lshlrev_b32 v28, 10, v24")
    e("v_lshrrev_b32 v29, 2, v25")
    e("v_lshl_add_u32 v28, v29, 7, v28")
    e("v_and_b32 v29, 3, v0")
    e("v_lshl_add_u32 v28, v29, 3, v28")
    e("v_mul_u32_u24 v29, 192, v29")
    e("v_lshl_add_u32 v29, v24, 4, v29")
    e("s_waitcnt lgkmcnt(0)")
    HF, WF, AC = 96, 112, 160
    for s in range(3):
        e("ds_read_b128 %s, v29 offset:%d" % (vr(HF + 4 * s), L_HT + 64 * s))
    for s in range(3):
        for nt in range(4):
            r = WF + 16 * s + 4 * nt
            e("ds_read_b64_tr_b16 %s, v28 offset:%d" % (vr(r, 2), L_WQ + 4096 * s + 32 * nt))
            e("ds_read_b64_tr_b16 %s, v28 offset:%d" % (vr(r + 2, 2), L_WQ + 4096 * s + 32 * nt + 512))
    e("ds_read_b32 v94, v%d offset:%d" % (VZ, L_CNT + 8))
    e("v_bfe_u32 v30, v0, 3, 1")
    e("v_lshlrev_b32 v30, 2, v30")
    e("v_and_b32 v31, 3, v0")
    e("v_add_u32 v30, v30, v31")
    e("v_mul_u32_u24 v30, %d, v30" % REG)
    e("v_bfe_u32 v31, v0, 2, 1")
    e("v_lshl_add_u32 v30, v31, 6, v30")
    e("v_lshl_add_u32 v30, v24, 4, v30")
    e("s_mul_i32 %s, %s, %d" % (S_OFF, S_CB, 8 * REG))
    e("s_lshl_b32 %s, %s, 7" % (S_T0, S_RG))
    e("s_add_u32 %s, %s, %s" % (S_OFF, S_OFF, S_T0))
    e("s_add_u32 %s, %s, %d" % (S_OFF, S_OFF, FOFF))
    e("s_waitcnt lgkmcnt(0)")
    e("v_readfirstlane_b32 %s, v94" % S_T0)
    for s in range(3):
        for nt in range(4):
            e("%s %s, %s, %s, %s" % (MFMA, vr(AC + 4 * nt), vr(WF + 16 * s + 4 * nt), vr(HF + 4 * s), "0" if s == 0 else vr(AC + 4 * nt)))
    stags()
    e("s_nop 3")
    for nt in range(1, 4):
        for i in range(4):
            e("v_mov_b32_dpp v%d, v%d row_shr:%d row_mask:0xf bank_mask:0x%x" % (AC + i, AC + 4 * nt + i, 4 * nt, 1 << nt))
    ypack(AC)
    e("buffer_store_dwordx4 %s, v30, %s, %s offen sc1" % (vr(AC), srd(SRD_WS), S_OFF))
    e("s_waitcnt vmcnt(0)")
    stamp(4)

    lab("L_wo")
    e("v_lshlrev_b32 v25, 4, v25")
    e("s_lshl_b32 %s, %s, 7" % (S_T0, S_H))
    e("s_lshl_b32 %s, %s, 5" % (S_T1, S_W))
    e("s_add_u32 %s, %s, %s" % (S_T0, S_T0, S_T1))
    e("s_mul_i32 %s, %s, 1280" % (S_T0, S_T0))
    e("v_mul_u32_u24 v27, 0x%x, v24" % (8 * 1280))
    e("v_add3_u32 v27, v27, v25, %s" % S_T0)
    mk_srd(SRD_W, "s24", "s25", 4096 * 1280)
    e("s_mov_b32 %s, 0" % S_T1)
    lds_wait(4, "1", 94, VZ, 4)
    for g in range(0 if "nowo" in XP else 8):
        for cb in range(5):
            if g * 5 + cb >= WO_WIN: e("s_waitcnt vmcnt(%d)" % (WO_WIN - 1))
            e("buffer_load_dwordx4 %s, v27, %s, %s offen offset:%d nt" % (vr(W(g * 5 + cb)), srd(SRD_W), S_T1, cb * 256))
        if g < 7: e("s_add_u32 %s, %s, 1280" % (S_T1, S_T1))
    e("ds_read_b32 v94, v%d offset:%d" % (VZ, L_CNT + 8))
    sel_pv(4, 28)
    e("v_and_b32 v26, 31, v0")
    e("v_and_b32 v27, 15, v26")
    e("v_lshlrev_b32 v27, 5, v27")
    e("v_lshrrev_b32 v26, 4, v26")
    e("v_lshl_add_u32 v27, v26, 4, v27")
    e("v_lshrrev_b32 v26, 5, v0")
    e("s_mul_i32 %s, %s, 5120" % (S_T0, S_W))
    e("s_add_u32 %s, %s, %d" % (S_T0, S_T0, L_YP))
    e("v_mul_u32_u24 v8, 2560, v26")
    e("v_add3_u32 v8, v8, v27, %s" % S_T0)
    e("v_lshlrev_b32 v9, 5, v24")
    e("s_lshl_b32 %s, %s, 7" % (S_T0, S_W))
    e("s_add_u32 %s, %s, %d" % (S_T0, S_T0, L_OP))
    e("v_add_u32 v9, %s, v9" % S_T0)
    e("v_lshrrev_b32 v10, 3, v1")
    e("v_mul_u32_u24 v10, 0x%x, v10" % (4 * REG))
    e("v_and_b32 v28, 7, v1")
    e("v_lshl_add_u32 v10, v28, 4, v10")
    e("v_lshlrev_b32 v11, 4, v1")
    e("v_add_u32 v11, 0x%x, v11" % L_YP)
    e("s_waitcnt lgkmcnt(0)")
    e("v_readfirstlane_b32 %s, v94" % S_T0)
    e("v_mov_b32 v62, v94")
    e("v_xor_b32 v63, %s, v94" % TAGX)
    stags()
    e("s_mul_i32 %s, %s, %d" % (S_IT, S_B, REG))
    e("s_lshl_b32 %s, %s, 8" % (S_T1, S_H))
    e("s_add_u32 %s, %s, %s" % (S_IT, S_IT, S_T1))
    e("s_lshl_b32 %s, %s, 7" % (S_T1, S_HALF))
    e("s_add_u32 %s, %s, %s" % (S_IT, S_IT, S_T1))
    e("s_mul_i32 %s, s2, %d" % (S_C, REG))
    e("v_and_b32 v86, 7, v0")
    e("v_lshlrev_b32 v86, 4, v86")
    e("v_bfe_u32 v87, v0, 4, 1")
    e("v_lshl_add_u32 v86, v87, 3, v86")
    e("v_lshrrev_b32 v87, 5, v0")
    e("v_lshl_add_u32 v86, v87, 2, v86")
    e("s_lshl_b32 %s, %s, 11" % (S_T0, S_W))
    e("v_add_u32 v87, %s, v2" % S_T0)
    e("s_waitcnt vmcnt(0)")
    stamp(5)
    e("s_cmp_ge_u32 s2, %d" % NCONS)
    e("s_cbranch_scc1 L_nc")
    e("s_lshl_b32 %s, %s, 3" % (S_T0, S_W))
    e("v_add_u32 v30, %s, v24" % S_T0)
    e("v_add_u32 v31, 4, v30")
    head_off(32, 30)
    head_off(33, 31)
    nonce_fetch([(76, 32), (80, 33)])
    vtags(76); vtags(80)
    e("s_cmp_lg_u32 %s, 3" % S_W)
    e("s_cbranch_scc1 L_nc")
    e("s_lshr_b32 %s, s2, 3" % S_T1)
    e("v_lshrrev_b32 v30, 3, v0")
    e("v_and_b32 v29, 7, v0")
    e("v_lshlrev_b32 v29, 4, v29")
    for k in range(3):
        e("v_add_u32 v31, %d, v30" % (8 * k))
        if k == 2: e("v_min_u32 v31, 17, v31")
        e("v_lshl_add_u32 v%d, v31, 7, v29" % (36 + k))
        e("v_mul_u32_u24 v31, 10, v31")
        e("v_add_u32 v31, %s, v31" % S_T1)
        e("v_sub_u32 v31, 255, v31")
        e("v_bfe_u32 v32, v31, 3, 2")
        e("v_and_b32 v31, 7, v31")
        e("v_lshl_add_u32 v31, v32, 3, v31")
        head_off(33 + k, 31)
    nonce_fetch([(64, 33), (68, 34), (72, 35)])
    vtags(64); vtags(68); vtags(72)
    e("s_add_u32 %s, %s, %d" % (S_OFF, S_C, FOFF))
    lds_wait(0, "1", 94, VZ, 16)
    ypoll(["buffer_load_dwordx4 %s, v%d, %s, %s offen sc1" % (vr(40 + 4 * k), 36 + k, srd(SRD_WS), S_OFF) for k in range(3)],
          [(40, 64), (44, 68), (48, 72)], 52, 32)
    e("v_cmp_gt_u32 vcc, 16, v0")
    for i in range(4):
        e("v_add_f32 v%d, v%d, v%d" % (40 + i, 40 + i, 44 + i))
    for i in range(4):
        e("v_cndmask_b32 v%d, 0, v%d, vcc" % (48 + i, 48 + i))
    for i in range(4):
        e("v_add_f32 v%d, v%d, v%d" % (40 + i, 40 + i, 48 + i))
    red8(40)
    e("ds_write_b32 v86, v40 offset:%d" % (L_R + 512))
    e("v_lshlrev_b32 v30, 2, v0")
    e("v_and_b32 v30, 127, v30")
    e("v_sub_f32 v31, 1.0, v%d" % V_G)
    bf16r(31)
    e("s_waitcnt lgkmcnt(0)")
    e("ds_read_b32 v%d, v30 offset:%d" % (V_FB, L_R + 512))
    e("s_waitcnt lgkmcnt(0)")
    bf16r(V_FB)
    e("v_mul_f32 v%d, v31, v%d" % (V_FB, V_FB))
    bf16r(V_FB)
    lab("L_nc")
    e("s_cmp_lg_u32 %s, 0" % S_W)
    e("s_cbranch_scc1 L_h9")
    e("v_and_b32 v12, 3, v0")
    e("v_lshlrev_b32 v13, 2, v12")
    e("v_lshlrev_b32 v12, 3, v12")
    e("s_and_b32 %s, s2, 127" % S_OFF)
    e("s_lshl_b32 %s, %s, 7" % (S_OFF, S_OFF))
    e("s_add_u32 %s, %s, 0x%x" % (S_OFF, S_OFF, RC_OFF))
    e("s_lshl_b32 %s, %s, 6" % (S_T1, S_HALF))
    e("s_add_u32 s68, %s, %s" % (S_OFF, S_T1))
    e("s_xor_b32 s69, s68, 64")
    lds_wait(0, "4", 94, VZ, 8)
    e("ds_read_b64 v[14:15], v12 offset:%d" % L_ML)
    e("s_waitcnt lgkmcnt(0)")
    e("v_mov_b32 v60, v14")
    allreduce4("max", 60)
    e("v_sub_f32 v16, v14, v60")
    e("v_mul_f32 v16, %s, v16" % LOG2E)
    e("v_exp_f32 v16, v16")
    e("s_nop 0")
    e("v_mul_f32 v61, v16, v15")
    allreduce4("add", 61)
    e("s_mov_b64 exec, 1")
    e("buffer_store_dwordx4 v[60:63], off, %s, s68 sc1" % srd(SRD_WS))
    e("s_mov_b64 exec, -1")
    stamp(6)
    tpoll(["buffer_load_dwordx4 v[40:43], off, %s, s69 sc1" % srd(SRD_WS)], [(40, 62, 63)], xpv("rsl", 32))
    e("v_max_f32 v17, v60, v40")
    e("v_sub_f32 v60, v60, v17")
    e("v_sub_f32 v40, v40, v17")
    e("v_sub_f32 v14, v14, v17")
    e("v_mul_f32 v60, %s, v60" % LOG2E)
    e("v_mul_f32 v40, %s, v40" % LOG2E)
    e("v_mul_f32 v14, %s, v14" % LOG2E)
    e("v_exp_f32 v60, v60")
    e("v_exp_f32 v40, v40")
    e("v_exp_f32 v14, v14")
    e("v_mul_f32 v61, v60, v61")
    e("v_fmac_f32 v61, v40, v41")
    e("v_rcp_f32 v61, v61")
    e("s_nop 0")
    e("v_mul_f32 v14, v14, v61")
    e("ds_write_b32 v13, v14 offset:%d" % L_SC)
    e("s_waitcnt lgkmcnt(0)")
    lab("L_h9")
    e("s_mov_b32 %s, 0x05040100" % S_T0)
    e("s_mov_b32 %s, 0x07060302" % S_T1)
    stamp(7)
    e("s_barrier")
    O = 32
    e("ds_read_b128 v[64:67], v%d offset:%d" % (VZ, L_SC))
    for w in range(4):
        e("ds_read_b128 %s, v9 offset:%d" % (vr(O + 8 * w), w * 512))
        e("ds_read_b128 %s, v9 offset:%d" % (vr(O + 8 * w + 4), w * 512 + 16))
    e("s_waitcnt lgkmcnt(6)")
    for i in range(8):
        e("v_mul_f32 v%d, v64, v%d" % (O + i, O + i))
    for w in range(1, 4):
        e("s_waitcnt lgkmcnt(%d)" % (6 - 2 * w))
        for i in range(8):
            e("v_fmac_f32 v%d, v%d, v%d" % (O + i, 64 + w, O + 8 * w + i))
    for k in range(4):
        hilo_pack(O + 2 * k, O + 2 * k + 1, O + 8 + 3 * k)
    AB = [64, 68]
    YA = 12
    def perms(g):
        for i in range(4):
            e("v_perm_b32 v%d, v%d, v%d, v%d" % (AB[g & 1] + i, O + g, O + g, 4 + i))
    perms(0)
    e("s_nop 1")
    for g in range(8):
        for cb in range(5):
            e("%s %s, %s, %s, %s" % (MFMA, vr(YA + 4 * cb), vr(AB[g & 1]), vr(W(g * 5 + cb)), "0" if g == 0 else vr(YA + 4 * cb)))
            if cb == 0 and g < 7: perms(g + 1)
    e("v_cmp_gt_u32 vcc, 160, v1")
    e("s_nop 7")
    for cb in range(5):
        e("ds_write_b128 v8, %s offset:%d" % (vr(YA + 4 * cb), cb * 512))
    e("s_waitcnt lgkmcnt(0)")
    e("s_barrier")
    e("s_and_saveexec_b64 s[70:71], vcc")
    e("s_cbranch_execz L_h10")
    for p in range(8):
        e("ds_read_b128 %s, v11 offset:%d" % (vr(O + 4 * p), p * 2560))
    for p in (1, 3, 5, 7):
        e("s_waitcnt lgkmcnt(%d)" % (7 - p))
        for i in range(4):
            e("v_add_f32 v%d, v%d, v%d" % (O + 4 * (p - 1) + i, O + 4 * (p - 1) + i, O + 4 * p + i))
    for i in range(4):
        e("v_add_f32 v%d, v%d, v%d" % (O + i, O + i, O + 8 + i))
        e("v_add_f32 v%d, v%d, v%d" % (O + 16 + i, O + 16 + i, O + 24 + i))
    for i in range(4):
        e("v_add_f32 v%d, v%d, v%d" % (O + i, O + i, O + 16 + i))
    ypack(O)
    e("buffer_store_dwordx4 %s, v10, %s, %s offen sc1" % (vr(O), srd(SRD_WS), S_IT))
    lab("L_h10")
    e("s_mov_b64 exec, -1")
    stamp(8)
    e("s_cmp_ge_u32 s2, %d" % NCONS)
    e("s_cbranch_scc1 L_hend")
    ypoll(["buffer_load_dwordx4 v[12:15], v87, %s, %s offen sc1" % (srd(SRD_WS), S_C),
           "buffer_load_dwordx4 v[16:19], v87, %s, %s offen offset:1024 sc1" % (srd(SRD_WS), S_C)], [(12, 76), (16, 80)], 20, 0)
    for i in range(4):
        e("v_add_f32 v%d, v%d, v%d" % (12 + i, 12 + i, 16 + i))
    e("s_lshl_b32 %s, %s, 7" % (S_T0, S_W))
    e("v_add_u32 v86, %s, v86" % S_T0)
    red8(12)
    e("ds_write_b32 v86, v12 offset:%d" % L_R)
    e("v_lshlrev_b32 v12, 2, v0")
    e("s_waitcnt lgkmcnt(0)")
    e("s_barrier")
    e("s_cmp_lg_u32 %s, 3" % S_W)
    e("s_cbranch_scc1 L_hend")
    e("s_mov_b32 exec_hi, 0")
    for w in range(4):
        e("ds_read_b32 v%d, v12 offset:%d" % (8 + w, L_R + w * 128))
    mk_srd(SRD_X, "s36", "s37", 5120)
    e("s_and_b32 s5, s2, 3")
    e("s_mul_i32 %s, s5, 1280" % S_T0)
    e("s_lshr_b32 %s, s2, 2" % S_T1)
    e("s_lshl_b32 %s, %s, 6" % (S_T1, S_T1))
    e("s_add_u32 %s, %s, %s" % (S_T0, S_T0, S_T1))
    e("v_lshlrev_b32 v12, 1, v0")
    e("s_waitcnt lgkmcnt(0)")
    e("v_add_f32 v8, v8, v9"); e("v_add_f32 v10, v10, v11")
    e("v_add_f32 v8, v8, v10")
    bf16r(8)
    e("v_mul_f32 v8, v%d, v8" % V_G)
    bf16r(8)
    e("v_add_f32 v8, v8, v%d" % V_FB)
    e("v_cvt_pk_bf16_f32 v8, v8, v8")
    e("buffer_store_short v8, v12, %s, %s offen" % (srd(SRD_X), S_T0))
    lab("L_hend")
    stamp(9)
    stamps_out(4)


def main():
    ref = open("cdna_kernels/%s.s.ref" % NAME).read().split("\n")
    head = []
    for ln in ref:
        if ln.startswith("; @launch"):
            break
        head.append(ln)
    out = head + ["; @launch grid=(%d,1,1) block=(512,1,1) lds=%d" % (NWG, LDS_BYTES)]
    out += ['.amdgcn_target "amdgcn-amd-amdhsa--gfx950"', ".text", ".globl " + KNAME, ".p2align 8",
            ".type %s,@function" % KNAME, KNAME + ":"]
    e("s_cmp_ge_u32 s2, %d" % NWG)
    e("s_cbranch_scc1 L_end")
    e("s_load_dwordx16 s[16:31], s[0:1], 0")
    e("s_load_dwordx8 s[32:39], s[0:1], 64")
    e("s_load_dwordx2 s[40:41], s[0:1], 96")
    e("v_lshrrev_b32 v1, 6, v0")
    e("v_and_b32 v0, 63, v0")
    e("s_mov_b32 s72, 0")
    e("v_readfirstlane_b32 %s, v1" % S_W)
    e("s_and_b32 s4, s2, 7")
    e("s_lshr_b32 s5, s2, 3")
    e("s_and_b32 %s, s5, 3" % S_H)
    e("s_lshl_b32 %s, %s, 3" % (S_H, S_H))
    e("s_add_u32 %s, %s, s4" % (S_H, S_H))
    e("s_lshr_b32 %s, s5, 2" % S_B)
    e("s_and_b32 %s, %s, 3" % (S_B, S_B))
    e("s_lshr_b32 %s, s5, 4" % S_HALF)
    e("s_lshl_b32 %s, %s, 5" % (S_BH, S_B))
    e("s_add_u32 %s, %s, %s" % (S_BH, S_BH, S_H))
    if TS:
        for i in range(NSTAMP): e("s_mov_b32 s%d, 0" % (76 + 2 * i))
    e("s_cmp_ge_u32 %s, 4" % S_W)
    e("s_cbranch_scc1 L_helper")
    streamer()
    helper()
    lab("L_end")
    e("s_endpgm")
    lab("L_code_end")
    out += L
    out += ['.section .rodata,"a"', ".p2align 6", ".amdhsa_kernel " + KNAME,
            "  .amdhsa_next_free_vgpr 256", "  .amdhsa_next_free_sgpr %d" % (96 if TS else 80), "  .amdhsa_accum_offset 256",
            "  .amdhsa_group_segment_fixed_size 0", "  .amdhsa_kernarg_size 104",
            "  .amdhsa_user_sgpr_count 2", "  .amdhsa_user_sgpr_kernarg_segment_ptr 1",
            "  .amdhsa_system_sgpr_workgroup_id_x 1", "  .amdhsa_float_denorm_mode_32 3",
            ".end_amdhsa_kernel", ""]
    open(OUT, "w").write("\n".join(out))

main()
```

```python
import sys

NAME = "gated_mix__mha_block_cached__glu_gated_bilinear__decode"
KNAME = NAME + "_kernel"
TS = "--ts" in sys.argv
XP = [a[2:] for a in sys.argv if a.startswith("--")]
OUT = [a for a in sys.argv[1:] if not a.startswith("--")]
OUT = OUT[0] if OUT else "cdna_kernels/%s.s" % NAME
def xpv(name, default):
    for a in XP:
        if a.startswith(name + "="): return int(a.split("=")[1])
    return default

NWG, NCONS, NF2 = 256, 80, 180
NWARM = 3
REG = 8192 + 18 * 128
FOFF = 8192
QX_OFF = 0xD0000
GX_OFF = 0xF0000
RC_OFF = 0x10C000
WS_USED = 0x110000
WS_BASE = xpv("wsmb", 0) << 20
DBG_WS = 8 << 20
WS_REC = (WS_USED if not TS else (64 << 20))
D = xpv("d", 16)
C0 = xpv("c0", 12)
WO_WIN = xpv("wowin", 4)
NB = 8
assert NCONS * REG <= QX_OFF and D % 4 == 0 and 4 <= D <= 16

P_ROW = 64 * NB + 16
P_WAVE = 4 * P_ROW
L_QB = 8448
L_OP = 8704
L_ML = 10752
L_CNT = 10784
L_SC = 10816
L_R = 10880
L_HT = 11904
L_WQ = 12800
L_X0 = 33280
L_WF = 38400
L_YP = L_WF
L_X1 = 58880
LDS_BYTES = 64000
assert 4 * P_WAVE <= L_QB

L = []
def e(s): L.append("    " + s)
def lab(s): L.append(s + ":")
def cmt(s): L.append("    ; " + s)
def vr(a, n=4): return "v[%d:%d]" % (a, a + n - 1)

S_W, S_H, S_B, S_HALF, S_BH = "s3", "s6", "s7", "s8", "s9"
S_OFF, S_IT, S_T0, S_T1, S_A = "s10", "s11", "s12", "s13", "s14"
S_C, S_I = "s15", "s74"
SRD_S, SRD_W, SRD_WS, SRD_DBG, SRD_X = 44, 48, 52, 56, 60
S_TG = 64
S_P = 68
def srd(n): return "s[%d:%d]" % (n, n + 3)
def mk_srd(n, lo, hi, nrec):
    e("s_mov_b32 s%d, %s" % (n, lo))
    e("s_mov_b32 s%d, %s" % (n + 1, hi))
    e("s_mov_b32 s%d, 0x%x" % (n + 2, nrec))
    e("s_mov_b32 s%d, 0x00020000" % (n + 3))
def mk_ws():
    if WS_BASE:
        e("s_add_u32 s%d, s40, 0x%x" % (SRD_WS, WS_BASE))
        e("s_addc_u32 s%d, s41, 0" % (SRD_WS + 1))
        e("s_mov_b32 s%d, 0x%x" % (SRD_WS + 2, WS_USED))
        e("s_mov_b32 s%d, 0x00020000" % (SRD_WS + 3))
    else:
        mk_srd(SRD_WS, "s40", "s41", WS_USED)

BUF = 64
WREG = 96
def B(i): return BUF + 4 * i
def W(i): return WREG + 4 * i

LOG2E = "0x3fb8aa3b"
SCALE = "0x3db504f3"
MFMA = "v_mfma_f32_16x16x32_bf16"
TAGX = "0x9e3779b9"

def sel_pv(dst, t):
    a, b, c = t, t + 1, t + 2
    e("v_mov_b32 v%d, 0x100" % a)
    e("v_mov_b32 v%d, 0x302" % b)
    e("v_and_b32 v%d, 8, v0" % c)
    e("v_cmp_ne_u32 vcc, 0, v%d" % c)
    e("s_nop 1")
    e("v_cndmask_b32 v%d, v%d, v%d, vcc" % (a, a, b))
    e("v_or_b32 v%d, 0x0c0c0000, v%d" % (b, a))
    e("v_lshlrev_b32 v%d, 16, v%d" % (a, a))
    e("v_or_b32 v%d, 0x0c0c, v%d" % (a, a))
    e("v_and_b32 v%d, 1, v0" % c)
    e("v_cmp_ne_u32 vcc, 0, v%d" % c)
    e("s_nop 1")
    e("v_cndmask_b32 v%d, v%d, v%d, vcc" % (a, b, a))
    e("v_mov_b32 v%d, 0x0c0c0c0c" % b)
    e("v_bfe_u32 v%d, v0, 1, 2" % c)
    for i in range(4):
        e("v_cmp_eq_u32 vcc, %d, v%d" % (i, c))
        e("s_nop 1")
        e("v_cndmask_b32 v%d, v%d, v%d, vcc" % (dst + i, b, a))

def allreduce64(op, v, t):
    for r in (8, 4, 2, 1):
        e("s_nop 1")
        e("v_%s_f32_dpp v%d, v%d, v%d row_ror:%d row_mask:0xf bank_mask:0xf" % (op, v, v, v, r))
    for sw in ("16", "32"):
        e("v_mov_b32 v%d, v%d" % (t, v))
        e("s_nop 1")
        e("v_permlane%s_swap_b32 v%d, v%d" % (sw, v, t))
        e("s_nop 1")
        e("v_%s_f32 v%d, v%d, v%d" % (op, v, v, t))

def allreduce4(op, v):
    for m in ("quad_perm:[1,0,3,2]", "quad_perm:[2,3,0,1]"):
        e("s_nop 1")
        e("v_%s_f32_dpp v%d, v%d, v%d %s row_mask:0xf bank_mask:0xf" % (op, v, v, v, m))

def bf16r(v):
    e("v_cvt_pk_bf16_f32 v%d, v%d, v%d" % (v, v, v))
    e("v_lshlrev_b32 v%d, 16, v%d" % (v, v))

def hilo_pack(a, b, t):
    e("v_cvt_pk_bf16_f32 v%d, v%d, v%d" % (t, a, b))
    e("v_lshlrev_b32 v%d, 16, v%d" % (t + 1, t))
    e("v_and_b32 v%d, 0xffff0000, v%d" % (t + 2, t))
    e("v_sub_f32 v%d, v%d, v%d" % (t + 1, a, t + 1))
    e("v_sub_f32 v%d, v%d, v%d" % (t + 2, b, t + 2))
    e("v_cvt_pk_bf16_f32 v%d, v%d, v%d" % (t + 1, t + 1, t + 2))
    e("v_perm_b32 v%d, v%d, v%d, %s" % (a, t + 1, t, S_T0))
    e("v_perm_b32 v%d, v%d, v%d, %s" % (b, t + 1, t, S_T1))

def stream_load(t):
    e("buffer_load_dwordx4 %s, v1, %s, %s offen nt" % (vr(B(t)), srd(SRD_S), S_OFF))
    e("s_add_u32 %s, %s, 0x1000" % (S_OFF, S_OFF))

NSTAMP = 10
def stamp(i):
    if not TS: return
    e("s_memrealtime s[%d:%d]" % (76 + 2 * i, 77 + 2 * i))
    e("s_waitcnt lgkmcnt(0)")

def stamps_out(w8off):
    if not TS: return
    e("s_mov_b64 exec, 1")
    mk_srd(SRD_WS, "s40", "s41", 64 << 20)
    e("s_lshl_b32 s12, s2, 3")
    e("s_add_u32 s12, s12, %s" % S_W)
    e("s_add_u32 s12, s12, %d" % w8off)
    e("s_lshl_b32 s12, s12, 6")
    e("s_add_u32 s12, s12, 0x%x" % DBG_WS)
    for i in range(NSTAMP):
        e("v_mov_b32 v5, s%d" % (76 + 2 * i))
        e("buffer_store_dword v5, off, %s, s12 offset:%d" % (srd(SRD_WS), 4 * i))
    e("s_getreg_b32 s13, hwreg(HW_REG_XCC_ID)")
    e("v_mov_b32 v5, s13")
    e("buffer_store_dword v5, off, %s, s12 offset:56" % srd(SRD_WS))
    e("s_getreg_b32 s13, hwreg(HW_REG_HW_ID)")
    e("v_mov_b32 v5, s13")
    e("buffer_store_dword v5, off, %s, s12 offset:60" % srd(SRD_WS))

SPIN_MAX = 400000
def spin_guard(exit_lbl):
    e("s_add_u32 s72, s72, 1")
    e("s_cmp_gt_u32 s72, %d" % SPIN_MAX)
    e("s_cbranch_scc1 %s" % exit_lbl)

NLAB = [0]
def newlab(p):
    NLAB[0] += 1
    return "L_%s%d" % (p, NLAB[0])

def lds_wait(off, target, vt, va, sleep=1):
    l0, l1 = newlab("lw"), newlab("lw")
    lab(l0)
    e("ds_read_b32 v%d, v%d offset:%d" % (vt, va, L_CNT + off))
    e("s_waitcnt lgkmcnt(0)")
    e("v_readfirstlane_b32 %s, v%d" % (S_T0, vt))
    e("s_cmp_ge_u32 %s, %s" % (S_T0, target))
    e("s_cbranch_scc1 %s" % l1)
    spin_guard(l1)
    e("s_sleep %d" % sleep)
    e("s_branch %s" % l0)
    lab(l1)

def lds_signal(off, vt, va):
    e("v_mov_b32 v%d, 1" % vt)
    e("s_mov_b64 exec, 1")
    e("ds_add_u32 v%d, v%d offset:%d" % (va, vt, L_CNT + off))
    e("s_mov_b64 exec, -1")

def k_body(b0, waits, loads, pre=None):
    P = [8, 9, 10, 11]; Y0, Y1, Z, T, S, TMP = 12, 13, 14, 15, 16, 17
    for G in range(4):
        ld = list(loads[G])
        def nxt():
            if ld: stream_load(ld.pop(0))
        e("s_waitcnt vmcnt(%d)" % waits[G])
        for k in range(4):
            for u in range(4):
                c = "0" if k == 0 else "v%d" % P[u]
                e("v_dot2_f32_bf16 v%d, v%d, v%d, %s" % (P[u], B(b0 + 4 * G + u) + k, 4 + k, c))
        if pre and pre.get(G): pre[G]()
        e("v_add_f32_dpp v%d, v%d, v%d row_ror:8 row_mask:0xf bank_mask:0x3" % (Y0, P[0], P[0]))
        e("v_add_f32_dpp v%d, v%d, v%d row_ror:8 row_mask:0xf bank_mask:0xc" % (Y0, P[1], P[1]))
        e("v_add_f32_dpp v%d, v%d, v%d row_ror:8 row_mask:0xf bank_mask:0x3" % (Y1, P[2], P[2]))
        e("v_add_f32_dpp v%d, v%d, v%d row_ror:8 row_mask:0xf bank_mask:0xc" % (Y1, P[3], P[3]))
        nxt()
        if len(loads[G]) < 1: e("s_nop 1")
        e("v_add_f32_dpp v%d, v%d, v%d row_half_mirror row_mask:0xf bank_mask:0x5" % (Z, Y0, Y0))
        e("v_add_f32_dpp v%d, v%d, v%d row_half_mirror row_mask:0xf bank_mask:0xa" % (Z, Y1, Y1))
        nxt()
        if len(loads[G]) < 2: e("s_nop 1")
        e("v_add_f32_dpp v%d, v%d, v%d quad_perm:[1,0,3,2] row_mask:0xf bank_mask:0xf" % (Z, Z, Z))
        nxt()
        if len(loads[G]) < 3: e("s_nop 1")
        d = S if G == 0 else T
        e("v_add_f32_dpp v%d, v%d, v%d quad_perm:[2,3,0,1] row_mask:0xf bank_mask:0xf" % (d, Z, Z))
        nxt()
        assert not ld
        if G:
            e("v_cndmask_b32 v%d, v%d, v%d, s[%d:%d]" % (S, S, T, 60 + 2 * G, 61 + 2 * G))
    e("v_cvt_pk_bf16_f32 v%d, v%d, v%d" % (TMP, S, S))
    e("v_lshlrev_b32 v%d, 16, v%d" % (TMP, TMP))
    e("v_mul_f32 v%d, %s, v%d" % (TMP, SCALE, TMP))
    bf16r(TMP)
    e("s_add_u32 %s, %s, 1" % (S_IT, S_IT))
    e("v_max_f32 v3, v3, v%d" % TMP)
    e("ds_write_b32 v2, v%d" % TMP)
    e("v_add_u32 v2, 64, v2")

def v_body():
    A, ACC = 8, 20
    PB = [12, 16]
    for G in range(4):
        e("s_waitcnt lgkmcnt(0)")
        e("ds_read_b128 %s, v2 offset:%d" % (vr(PB[(G + 1) & 1]), (G + 1) * 16))
        for u in range(4):
            t = 4 * G + u
            p = PB[G & 1] + u
            for i in range(4):
                e("v_perm_b32 v%d, v%d, v%d, v%d" % (A + i, p, p, 4 + i))
            e("s_waitcnt vmcnt(%d)" % (D - 1))
            e("s_nop 0")
            e("%s %s, %s, %s, %s" % (MFMA, vr(ACC), vr(A), vr(B(t)), vr(ACC)))
            stream_load((t + D) % 16)
    e("s_add_u32 %s, %s, 1" % (S_IT, S_IT))
    e("v_add_u32 v2, 64, v2")

def streamer():
    cmt("---- streaming waves")
    e("s_lshl_b32 %s, %s, 20" % (S_T0, S_BH))
    e("s_lshl_b32 %s, %s, 19" % (S_T1, S_HALF))
    e("s_add_u32 %s, %s, %s" % (S_T0, S_T0, S_T1))
    e("s_lshl_b32 %s, %s, 10" % (S_T1, S_W))
    e("v_lshlrev_b32 v1, 4, v0")
    e("v_add_u32 v1, %s, v1" % S_T1)
    e("s_mov_b32 s%d, 0x%x" % (SRD_S + 2, NB << 16))
    e("s_mov_b32 s%d, 0x00020000" % (SRD_S + 3))
    e("s_mov_b32 %s, 0" % S_OFF)
    e("s_waitcnt lgkmcnt(0)")
    stamp(0)
    e("s_add_u32 s%d, s18, %s" % (SRD_S, S_T0))
    e("s_addc_u32 s%d, s19, 0" % (SRD_S + 1))
    e("s_add_u32 s42, s20, %s" % S_T0)
    e("s_addc_u32 s43, s21, 0")
    PRE = min(xpv("pre", 4), C0)
    for t in range(PRE):
        stream_load(t)
    e("s_barrier")
    for t in range(PRE, C0):
        stream_load(t)
    for i, m in enumerate((0x22222222, 0x44444444, 0x88888888)):
        e("s_mov_b32 s%d, 0x%x" % (62 + 2 * i, m)); e("s_mov_b32 s%d, 0x%x" % (63 + 2 * i, m))
    e("v_lshrrev_b32 v24, 4, v0")
    e("v_and_b32 v25, 15, v0")
    e("v_lshlrev_b32 v25, 4, v25")
    e("v_mul_u32_u24 v2, %d, v24" % P_ROW)
    e("s_mul_i32 %s, %s, %d" % (S_T0, S_W, P_WAVE))
    e("v_add_u32 v28, %s, v2" % S_T0)
    e("v_and_b32 v26, 3, v0")
    e("v_lshlrev_b32 v26, 4, v26")
    e("v_bfe_u32 v27, v0, 2, 1")
    e("v_lshl_add_u32 v26, v27, 3, v26")
    e("v_bfe_u32 v27, v0, 3, 1")
    e("v_lshl_add_u32 v26, v27, 2, v26")
    e("v_add_u32 v2, v28, v26")
    e("v_mov_b32 v29, v2")
    e("v_mov_b32 v3, 0xff800000")
    e("v_mov_b32 v30, 0")
    e("s_mov_b32 %s, 0" % S_IT)
    for t in range(C0, 48):
        e("s_waitcnt vmcnt(%d)" % (C0 - 1))
        stream_load(t)
    stamp(1)
    lds_wait(4, "1", 31, 30)
    e("ds_read_b128 v[4:7], v25 offset:%d" % L_QB)
    e("s_waitcnt lgkmcnt(0)")
    stamp(2)
    iss = 0
    for th in range(3):
        waits, loads = [], []
        for G in range(4):
            g = 4 * th + G
            waits.append(44 - 4 * g + iss)
            n = (g + 1) * D // 12 - g * D // 12
            loads.append(list(range(iss, iss + n))); iss += n
        k_body(16 * th, waits, loads)
    assert iss == D
    def switch():
        e("s_cmp_eq_u32 %s, %d" % (S_IT, NB - 1))
        e("s_cselect_b32 s%d, s42, s%d" % (SRD_S, SRD_S))
        e("s_cselect_b32 s%d, s43, s%d" % (SRD_S + 1, SRD_S + 1))
        e("s_cselect_b32 %s, 0, %s" % (S_OFF, S_OFF))
    lab("L_k")
    k_body(0, [D - 4] * 4, [[(4 * G + u + D) % 16 for u in range(4)] for G in range(4)], {(16 - D) // 4: switch})
    e("s_cmp_lg_u32 %s, %d" % (S_IT, NB))
    e("s_cbranch_scc1 L_k")
    stamp(3)
    for k in range(NB):
        e("ds_read_b32 v%d, v29 offset:%d" % (32 + k, 64 * k))
    allreduce64("max", 3, 16)
    e("s_mov_b32 %s, 0x05040100" % S_T0)
    e("s_mov_b32 %s, 0x07060302" % S_T1)
    e("s_waitcnt lgkmcnt(0)")
    for k in range(NB):
        e("v_sub_f32 v%d, v%d, v3" % (32 + k, 32 + k))
    for k in range(NB):
        e("v_mul_f32 v%d, %s, v%d" % (32 + k, LOG2E, 32 + k))
    for k in range(NB):
        e("v_exp_f32 v%d, v%d" % (32 + k, 32 + k))
    e("s_nop 0")
    e("v_add_f32 v24, v32, v33")
    for k in range(2, NB):
        e("v_add_f32 v24, v24, v%d" % (32 + k))
    for k in range(NB // 2):
        hilo_pack(32 + 2 * k, 33 + 2 * k, 16)
    for k in range(NB):
        e("ds_write_b32 v29, v%d offset:%d" % (32 + k, 64 * k))
    e("v_mov_b32 v2, v28")
    e("ds_read_b128 %s, v2" % vr(12))
    allreduce64("add", 24, 20)
    sel_pv(4, 8)
    e("v_mov_b32 v25, v24")
    e("v_mov_b32 v24, v3")
    e("s_lshl_b32 %s, %s, 3" % (S_T0, S_W))
    e("v_mov_b32 v26, %s" % S_T0)
    e("s_mov_b64 exec, 1")
    e("ds_write_b64 v26, v[24:25] offset:%d" % L_ML)
    e("s_mov_b64 exec, -1")
    lds_signal(0, 27, 30)
    for i in range(4):
        e("v_mov_b32 v%d, 0" % (20 + i))
    e("s_mov_b32 %s, 0" % S_IT)
    e("v_and_b32 v26, 31, v0")
    e("v_and_b32 v27, 15, v26")
    e("v_lshlrev_b32 v27, 5, v27")
    e("v_lshrrev_b32 v26, 4, v26")
    e("v_lshl_add_u32 v27, v26, 4, v27")
    e("v_lshrrev_b32 v26, 5, v0")
    e("s_lshl_b32 %s, %s, 9" % (S_T0, S_W))
    e("s_add_u32 %s, %s, %d" % (S_T0, S_T0, L_OP))
    e("v_lshl_add_u32 v28, v26, 2, v27")
    e("v_add_u32 v28, %s, v28" % S_T0)
    stamp(4)
    lab("L_v")
    v_body()
    e("s_cmp_lg_u32 %s, %d" % (S_IT, NB))
    e("s_cbranch_scc1 L_v")
    stamp(5)
    ACC = 20
    e("s_nop 4")
    e("v_permlane32_swap_b32 v%d, v%d" % (ACC, ACC + 1))
    e("v_permlane32_swap_b32 v%d, v%d" % (ACC + 2, ACC + 3))
    e("s_nop 1")
    e("v_add_f32 v%d, v%d, v%d" % (ACC, ACC, ACC + 1))
    e("v_add_f32 v%d, v%d, v%d" % (ACC + 2, ACC + 2, ACC + 3))
    e("ds_write_b32 v28, v%d" % ACC)
    e("ds_write_b32 v28, v%d offset:8" % (ACC + 2))
    e("s_waitcnt lgkmcnt(0)")
    e("s_barrier")
    stamps_out(0)
    e("s_endpgm")

VZ = 95
V_G, V_FB, V_M10 = 91, 92, 93

def tpoll(loads, grans, sleep, ex="-1"):
    l0, l1 = newlab("tp"), newlab("tp")
    lab(l0)
    for x in loads: e(x)
    e("s_waitcnt vmcnt(0)")
    for g, t0, t1 in grans:
        e("v_xor_b32 v%d, v%d, v%d" % (g + 2, g + 2, t0))
        e("v_xor_b32 v%d, v%d, v%d" % (g + 3, g + 3, t1))
    g0 = grans[0][0]
    e("v_or_b32 v%d, v%d, v%d" % (g0 + 2, g0 + 2, g0 + 3))
    for g, _, _ in grans[1:]:
        e("v_or3_b32 v%d, v%d, v%d, v%d" % (g0 + 2, g0 + 2, g + 2, g + 3))
    e("v_cmp_ne_u32 vcc, 0, v%d" % (g0 + 2))
    e("s_cbranch_vccz %s" % l1)
    spin_guard(l1)
    e("s_mov_b64 exec, vcc")
    if sleep: e("s_sleep %d" % sleep)
    e("s_branch %s" % l0)
    lab(l1)
    e("s_mov_b64 exec, %s" % ex)

def ypoll(loads, grans, t, sleep, ex="-1"):
    l0, l1 = newlab("yp"), newlab("yp")
    lab(l0)
    for x in loads: e(x)
    e("s_waitcnt vmcnt(0)")
    first = True
    for g, tg in grans:
        for i in range(0, 4, 2):
            if first:
                e("v_xor_b32 v%d, v%d, v%d" % (t, g + i, tg + i))
                e("v_xor_b32 v%d, v%d, v%d" % (t + 1, g + i + 1, tg + i + 1))
                e("v_or_b32 v%d, v%d, v%d" % (t, t, t + 1)); first = False
            else:
                e("v_xor_b32 v%d, v%d, v%d" % (t + 1, g + i, tg + i))
                e("v_xor_b32 v%d, v%d, v%d" % (t + 2, g + i + 1, tg + i + 1))
                e("v_or3_b32 v%d, v%d, v%d, v%d" % (t, t, t + 1, t + 2))
    e("v_and_b32 v%d, 0x3ff, v%d" % (t, t))
    e("v_cmp_ne_u32 vcc, 0, v%d" % t)
    e("s_cbranch_vccz %s" % l1)
    spin_guard(l1)
    e("s_mov_b64 exec, vcc")
    if sleep: e("s_sleep %d" % sleep)
    e("s_branch %s" % l0)
    lab(l1)
    e("s_mov_b64 exec, %s" % ex)

def nonce_fetch(regs_offs):
    l0, l1 = newlab("nf"), newlab("nf")
    lab(l0)
    for d, o in regs_offs:
        e("buffer_load_dword v%d, v%d, %s, 0 offen sc1" % (d, o, srd(SRD_DBG)))
    e("s_waitcnt vmcnt(0)")
    ds = [d for d, _ in regs_offs]
    e("v_min_u32 v94, v%d, v%d" % (ds[0], ds[-1]))
    for d in ds[1:-1]:
        e("v_min_u32 v94, v94, v%d" % d)
    e("v_cmp_eq_u32 vcc, 0, v94")
    e("s_cbranch_vccz %s" % l1)
    spin_guard(l1)
    e("s_sleep 16")
    e("s_branch %s" % l0)
    lab(l1)

def head_off(dst, h):
    e("v_and_b32 v%d, 15, v%d" % (dst, h))
    e("v_lshrrev_b32 v%d, 4, v%d" % (h, h))
    e("v_lshlrev_b32 v%d, 2, v%d" % (dst, dst))
    e("v_lshl_add_u32 v%d, v%d, 7, v%d" % (dst, h, dst))

def vtags(n):
    e("v_lshrrev_b32 v%d, 10, v%d" % (n + 1, n))
    e("v_lshrrev_b32 v%d, 20, v%d" % (n + 2, n))
    e("v_not_b32 v%d, v%d" % (n + 3, n))
    e("v_alignbit_b32 v%d, v%d, v%d, 30" % (n + 3, n + 3, n))

def stags():
    e("s_mov_b32 s%d, %s" % (S_TG, S_T0))
    e("s_lshr_b32 s%d, %s, 10" % (S_TG + 1, S_T0))
    e("s_lshr_b32 s%d, %s, 20" % (S_TG + 2, S_T0))
    e("s_not_b32 s%d, %s" % (S_TG + 3, S_T0))
    e("s_lshl_b32 s%d, s%d, 2" % (S_TG + 3, S_TG + 3))
    e("s_lshr_b32 %s, %s, 30" % (S_T0, S_T0))
    e("s_or_b32 s%d, s%d, %s" % (S_TG + 3, S_TG + 3, S_T0))

def ypack(r):
    for i in range(4):
        e("v_add_u32 v%d, 0x200, v%d" % (r + i, r + i))
    for i in range(4):
        e("v_bfi_b32 v%d, v%d, s%d, v%d" % (r + i, V_M10, S_TG + i, r + i))

def red8(a):
    e("s_nop 1")
    e("v_permlane32_swap_b32 v%d, v%d" % (a, a + 1))
    e("v_permlane32_swap_b32 v%d, v%d" % (a + 2, a + 3))
    e("s_nop 1")
    e("v_add_f32 v%d, v%d, v%d" % (a, a, a + 1))
    e("v_add_f32 v%d, v%d, v%d" % (a + 2, a + 2, a + 3))
    e("s_nop 1")
    e("v_permlane16_swap_b32 v%d, v%d" % (a, a + 2))
    e("s_nop 1")
    e("v_add_f32 v%d, v%d, v%d" % (a, a, a + 2))
    e("s_nop 1")
    e("v_add_f32_dpp v%d, v%d, v%d row_ror:8 row_mask:0xf bank_mask:0xf" % (a, a, a))

def helper():
    lab("L_helper")
    e("s_setprio 3")
    e("s_memrealtime s[4:5]")
    e("s_sub_u32 %s, %s, 4" % (S_W, S_W))
    e("s_lshl_b32 %s, %s, 1" % (S_I, S_B))
    e("s_add_u32 %s, %s, %s" % (S_I, S_I, S_HALF))
    e("v_lshrrev_b32 v24, 4, v0")
    e("v_and_b32 v25, 15, v0")
    e("s_lshl_b32 %s, %s, 6" % (S_T0, S_W))
    e("v_add_u32 v1, %s, v0" % S_T0)
    e("v_lshlrev_b32 v2, 4, v0")
    e("v_mov_b32 v%d, 0" % VZ)
    e("v_mov_b32 v%d, 0x3ff" % V_M10)
    e("s_cmp_ge_u32 %s, 2" % S_W)
    e("s_cbranch_scc1 L_h23")
    S_STR, S_COL, S_PUB, S_BS = "s68", "s69", "s70", "s71"
    e("s_and_b32 s73, s2, 7")
    e("s_lshr_b32 s75, s2, 3")
    e("s_mul_i32 %s, s73, 7" % S_T0)
    e("s_lshr_b32 %s, s75, 2" % S_T1)
    e("s_add_u32 %s, %s, %s" % (S_T0, S_T0, S_T1))
    e("s_cmp_lt_u32 s75, 28")
    e("s_cselect_b32 %s, %s, 99" % (S_C, S_T0))
    e("s_cmp_ge_u32 %s, 27" % S_T0)
    e("s_cselect_b32 %s, 27, 0" % S_T1)
    e("s_cselect_b32 %s, 1, 0" % S_A)
    e("s_sub_u32 %s, %s, %s" % (S_T0, S_T0, S_T1))
    e("s_lshl_b32 %s, %s, 1" % (S_T0, S_T0))
    e("s_and_b32 %s, s75, 1" % S_T1)
    e("s_add_u32 %s, %s, %s" % (S_T0, S_T0, S_T1))
    e("s_bfe_u32 %s, s75, 0x10001" % S_IT)
    e("s_lshl_b32 %s, %s, 6" % (S_COL, S_T0))
    e("s_lshl_b32 %s, %s, 7" % (S_T0, S_T0))
    e("s_mul_i32 %s, %s, 55296" % (S_PUB, S_A))
    e("s_add_u32 %s, %s, %s" % (S_PUB, S_PUB, S_T0))
    e("s_mul_i32 %s, %s, 6912" % (S_T0, S_IT))
    e("s_add_u32 %s, %s, %s" % (S_PUB, S_PUB, S_T0))
    e("s_add_u32 %s, %s, 0x%x" % (S_PUB, S_PUB, GX_OFF))
    e("s_lshl_b32 %s, %s, 2" % (S_T0, S_H))
    e("s_and_b32 %s, %s, 3" % (S_T1, S_I))
    e("s_add_u32 %s, %s, %s" % (S_T0, S_T0, S_T1))
    e("s_lshl_b32 %s, %s, 6" % (S_T1, S_T0))
    e("s_lshl_b32 s73, %s, 12" % S_H)
    e("s_lshl_b32 s75, %s, 7" % S_I)
    e("s_add_u32 s73, s73, s75")
    e("s_add_u32 s73, s73, 0x%x" % QX_OFF)
    e("s_lshr_b32 s75, %s, 2" % S_I)
    e("s_cmp_eq_u32 %s, 0" % S_W)
    e("s_cselect_b32 %s, %s, %s" % (S_COL, S_T1, S_COL))
    e("s_cselect_b32 %s, s73, %s" % (S_PUB, S_PUB))
    e("s_cselect_b32 %s, 0, %s" % (S_C, S_C))
    e("s_cselect_b32 %s, s75, %s" % (S_IT, S_IT))
    e("s_mul_i32 %s, %s, %d" % (S_STR, S_W, 8192 - 3456))
    e("s_sub_u32 %s, 8192, %s" % (S_STR, S_STR))
    e("s_mul_i32 %s, %s, %d" % (S_BS, S_W, 13824 - 1024))
    e("s_add_u32 %s, %s, 1024" % (S_BS, S_BS))
    e("s_mul_i32 s73, %s, %d" % (S_W, L_WF - L_WQ))
    e("s_add_u32 s75, s73, %d" % L_X0)
    e("s_add_u32 s73, s73, %d" % L_WQ)
    assert L_WF - L_WQ == L_X1 - L_X0
    e("s_mul_i32 %s, %s, 320" % (S_T0, S_IT))
    e("s_mul_i32 %s, %s, %s" % (S_T0, S_T0, S_STR))
    e("s_add_u32 %s, %s, %s" % (S_COL, S_COL, S_T0))
    e("v_lshrrev_b32 v26, 2, v0")
    e("v_mul_u32_u24 v26, %s, v26" % S_STR)
    e("v_and_b32 v27, 3, v0")
    e("v_lshl_add_u32 v26, v27, 4, v26")
    e("v_add_u32 v26, %s, v26" % S_COL)
    e("s_and_b32 %s, %s, 15" % (S_T0, S_H))
    e("s_lshl_b32 %s, %s, 2" % (S_T0, S_T0))
    e("s_lshr_b32 %s, %s, 4" % (S_T1, S_H))
    e("s_lshl_b32 %s, %s, 7" % (S_T1, S_T1))
    e("s_add_u32 %s, %s, %s" % (S_T0, S_T0, S_T1))
    e("v_mov_b32 v61, 0")
    e("s_mul_i32 s%d, %s, 640" % (SRD_W + 2, S_STR))
    e("s_mov_b32 s%d, 0x00020000" % (SRD_W + 3))
    e("s_lshl_b32 %s, %s, 4" % (S_STR, S_STR))
    e("s_cmp_ge_u32 %s, 54" % S_C)
    e("s_cbranch_scc1 L_hb1")
    e("s_waitcnt lgkmcnt(0)")
    stamp(0)
    mk_srd(SRD_X, "s16", "s17", 5120)
    mk_srd(SRD_DBG, "s38", "s39", 256)
    e("s_cmp_lg_u32 %s, 0" % S_A)
    e("s_cselect_b32 s%d, s30, s28" % SRD_W)
    e("s_cselect_b32 s%d, s31, s29" % (SRD_W + 1))
    e("s_cmp_lg_u32 %s, 0" % S_W)
    e("s_cbranch_scc1 L_h1a")
    e("s_mov_b32 s%d, s22" % SRD_W)
    e("s_mov_b32 s%d, s23" % (SRD_W + 1))
    e("s_or_b32 s4, s4, 1")
    e("v_mov_b32 v60, s4")
    e("s_mov_b64 exec, 1")
    e("buffer_atomic_cmpswap v[60:61], off, %s, %s sc0 sc1" % (srd(SRD_DBG), S_T0))
    e("s_mov_b64 exec, -1")
    lab("L_h1a")
    e("s_mov_b32 m0, s75")
    e("s_mov_b32 %s, 0" % S_OFF)
    for k in range(4):
        e("buffer_load_dwordx4 v2, %s, 0 offen offset:%d lds" % (srd(SRD_X), 1024 * k))
    e("s_add_u32 m0, s75, 0x1000")
    e("s_mov_b32 %s, 0x1000" % S_T1)
    e("buffer_load_dwordx4 v2, %s, %s offen lds" % (srd(SRD_X), S_T1))
    e("s_mov_b32 m0, s73")
    e("s_nop 0")
    for t in range(20):
        e("buffer_load_dwordx4 v26, %s, %s offen nt lds" % (srd(SRD_W), S_OFF))
        if t < 19:
            e("s_add_u32 m0, m0, 0x400")
            e("s_add_u32 %s, %s, %s" % (S_OFF, S_OFF, S_STR))
    e("s_barrier")
    mk_ws()
    e("v_lshrrev_b32 v28, 2, v25")
    e("v_lshlrev_b32 v28, 6, v28")
    e("v_lshl_add_u32 v28, v24, 9, v28")
    e("v_lshl_add_u32 v28, v27, 3, v28")
    e("v_add_u32 v28, s73, v28")
    e("v_mul_u32_u24 v29, 1280, v27")
    e("v_lshl_add_u32 v29, v24, 4, v29")
    e("s_mul_i32 %s, %s, 640" % (S_T0, S_IT))
    e("s_add_u32 %s, %s, s75" % (S_T0, S_T0))
    e("v_add_u32 v29, %s, v29" % S_T0)
    e("v_mul_u32_u24 v30, %s, v27" % S_BS)
    e("v_lshl_add_u32 v30, v24, 4, v30")
    e("v_bfe_u32 v31, v0, 2, 1")
    e("v_lshl_add_u32 v30, v31, 6, v30")
    e("s_cmp_lg_u32 %s, 0" % S_W)
    e("s_cbranch_scc1 L_h1b")
    e("s_waitcnt vmcnt(25)")
    e("v_readfirstlane_b32 %s, v60" % S_T0)
    e("s_cmp_eq_u32 %s, 0" % S_T0)
    e("s_cselect_b32 %s, s4, %s" % (S_T0, S_T0))
    e("v_mov_b32 v60, %s" % S_T0)
    e("ds_write_b32 v%d, v60 offset:%d" % (VZ, L_CNT + 8))
    lab("L_h1b")
    XF, WFR, ACC = 96, [176, 192], 32
    e("s_waitcnt vmcnt(20)")
    for s in range(10):
        e("ds_read_b128 %s, v29 offset:%d" % (vr(XF + 4 * s), 64 * s))
    def mm(k):
        for s2 in range(2):
            s = 2 * k + s2
            for ct in range(2):
                e("%s %s, %s, %s, %s" % (MFMA, vr(ACC + 4 * ct), vr(WFR[k & 1] + 8 * s2 + 4 * ct), vr(XF + 4 * s), "0" if s == 0 else vr(ACC + 4 * ct)))
    for k in range(5):
        e("s_waitcnt vmcnt(%d)" % (16 - 4 * k))
        for s2 in range(2):
            s = 2 * k + s2
            for ct in range(2):
                r = WFR[k & 1] + 8 * s2 + 4 * ct
                e("ds_read_b64_tr_b16 %s, v28 offset:%d" % (vr(r, 2), 2048 * s + 32 * ct))
                e("ds_read_b64_tr_b16 %s, v28 offset:%d" % (vr(r + 2, 2), 2048 * s + 32 * ct + 256))
        if k:
            e("s_waitcnt lgkmcnt(8)")
            mm(k - 1)
    e("s_waitcnt lgkmcnt(0)")
    mm(4)
    lds_wait(8, "1", 94, VZ)
    stags()
    e("s_nop 1")
    for i in range(4):
        e("v_mov_b32_dpp v%d, v%d quad_perm:[0,1,2,3] row_mask:0xf bank_mask:0x2" % (ACC + i, ACC + 4 + i))
    ypack(ACC)
    e("s_mov_b32 exec_lo, 0x00ff00ff")
    e("s_mov_b32 exec_hi, 0x00ff00ff")
    e("buffer_store_dwordx4 v[32:35], v30, %s, %s offen sc1" % (srd(SRD_WS), S_PUB))
    e("s_mov_b64 exec, -1")
    stamp(1)
    e("s_cmp_lg_u32 %s, 0" % S_W)
    e("s_cbranch_scc1 L_wo")
    e("s_lshl_b32 %s, %s, 2" % (S_OFF, S_H))
    e("s_add_u32 %s, %s, %s" % (S_OFF, S_OFF, S_B))
    e("s_lshl_b32 %s, %s, 10" % (S_OFF, S_OFF))
    e("s_add_u32 %s, %s, 0x%x" % (S_OFF, S_OFF, QX_OFF))
    for i in range(4):
        e("v_mov_b32 v%d, s%d" % (36 + i, S_TG + i))
    e("v_and_b32 v3, 31, v0")
    e("v_lshlrev_b32 v3, 3, v3")
    e("v_lshrrev_b32 v47, 5, v0")
    e("v_lshl_add_u32 v3, v47, 1, v3")
    ypoll(["buffer_load_dwordx4 v[40:43], v2, %s, %s offen sc1" % (srd(SRD_WS), S_OFF)], [(40, 36)], 44, xpv("qsl", 0))
    for i in range(4):
        e("v_and_b32 v%d, 0xfffffc00, v%d" % (40 + i, 40 + i))
    e("s_nop 0")
    e("v_permlane32_swap_b32 v40, v41")
    e("v_permlane32_swap_b32 v42, v43")
    e("s_nop 1")
    e("v_add_f32 v40, v40, v41")
    e("v_add_f32 v42, v42, v43")
    e("v_cvt_pk_bf16_f32 v40, v40, v42")
    e("ds_write_b16 v3, v40 offset:%d" % L_QB)
    e("ds_write_b16_d16_hi v3, v40 offset:%d" % (L_QB + 4))
    e("v_mov_b32 v40, 1")
    e("s_waitcnt lgkmcnt(0)")
    e("ds_write_b32 v%d, v40 offset:%d" % (VZ, L_CNT + 4))
    stamp(2)
    e("s_branch L_wo")

    lab("L_h23")
    e("s_cmp_eq_u32 %s, 2" % S_W)
    e("s_cbranch_scc1 L_hb1")
    for i in range(4):
        e("v_mov_b32 v%d, 0" % (44 + i))
    e("ds_write_b128 v%d, v[44:47] offset:%d" % (VZ, L_CNT))
    lab("L_hb1")
    e("s_waitcnt lgkmcnt(0)")
    stamp(0)
    e("s_barrier")
    mk_ws()
    mk_srd(SRD_DBG, "s38", "s39", 256)
    e("s_cmp_eq_u32 %s, 2" % S_W)
    e("s_cbranch_scc1 L_h2")
    e("s_cmp_lg_u32 %s, 3" % S_W)
    e("s_cbranch_scc1 L_wo")
    lds_wait(4, "1", 94, VZ, 4)
    if "nowarm" not in XP:
        e("s_getpc_b64 s[4:5]")
        lab("L_pc")
        e("s_sub_u32 s4, s4, L_pc-%s" % KNAME)
        e("s_subb_u32 s5, s5, 0")
        e("v_lshlrev_b32 v28, 7, v0")
        for i in range(NWARM):
            e("v_min_u32 v27, L_code_end-%s-4, v28" % KNAME)
            e("global_load_dword v89, v27, s[4:5]")
            e("v_add_u32 v28, 0x2000, v28")
    e("s_cmp_ge_u32 s2, %d" % NCONS)
    e("s_cbranch_scc1 L_wo")
    e("s_and_b32 s5, s2, 3")
    mk_srd(SRD_X, "s16", "s17", 5120)
    mk_srd(SRD_W, "s34", "s35", 1280)
    e("v_lshlrev_b32 v3, 2, v0")
    e("s_mul_i32 %s, s5, 1280" % S_T0)
    for k in range(5):
        e("buffer_load_dword v%d, v3, %s, %s offen offset:%d" % (64 + k, srd(SRD_X), S_T0, 256 * k))
        e("buffer_load_dword v%d, v3, %s, 0 offen offset:%d" % (72 + k, srd(SRD_W), 256 * k))
    e("s_waitcnt vmcnt(0)")
    G = V_G
    e("v_mov_b32 v%d, 0" % G)
    for k in range(5):
        e("v_lshlrev_b32 v80, 16, v%d" % (64 + k))
        e("v_and_b32 v81, 0xffff0000, v%d" % (64 + k))
        e("v_lshlrev_b32 v82, 16, v%d" % (72 + k))
        e("v_and_b32 v83, 0xffff0000, v%d" % (72 + k))
        e("v_mul_f32 v80, v80, v82")
        e("v_mul_f32 v81, v81, v83")
        e("v_cvt_pk_bf16_f32 v80, v80, v81")
        e("v_lshlrev_b32 v81, 16, v80")
        e("v_and_b32 v80, 0xffff0000, v80")
        e("v_add_f32 v%d, v%d, v81" % (G, G))
        e("v_add_f32 v%d, v%d, v80" % (G, G))
    allreduce64("add", G, 80)
    bf16r(G)
    e("v_mul_f32 v%d, 0xbfb8aa3b, v%d" % (G, G))
    e("v_exp_f32 v%d, v%d" % (G, G))
    e("s_nop 0")
    e("v_add_f32 v%d, 1.0, v%d" % (G, G))
    e("v_rcp_f32 v%d, v%d" % (G, G))
    e("s_nop 0")
    bf16r(G)
    e("s_branch L_wo")

    lab("L_h2")
    e("s_cmp_lt_u32 s2, %d" % (NWG - NF2))
    e("s_cbranch_scc1 L_wo")
    S_RG, S_CB = "s68", "s69"
    e("s_sub_u32 %s, 255, s2" % S_T0)
    e("s_mul_i32 %s, %s, 205" % (S_RG, S_T0))
    e("s_lshr_b32 %s, %s, 11" % (S_RG, S_RG))
    e("s_mul_i32 %s, %s, 10" % (S_T1, S_RG))
    e("s_sub_u32 %s, %s, %s" % (S_CB, S_T0, S_T1))
    e("v_lshrrev_b32 v26, 3, v0")
    e("v_mul_u32_u24 v26, 1280, v26")
    e("v_and_b32 v27, 7, v0")
    e("v_lshl_add_u32 v26, v27, 4, v26")
    e("s_mul_i32 %s, %s, %d" % (S_OFF, S_RG, 96 * 1280))
    e("s_lshl_b32 %s, %s, 7" % (S_T0, S_CB))
    e("s_add_u32 %s, %s, %s" % (S_OFF, S_OFF, S_T0))
    mk_srd(SRD_W, "s32", "s33", 1728 * 1280)
    e("v_cmp_le_u32 vcc, 24, v0")
    e("v_mov_b32 v28, 24")
    e("v_mov_b32 v29, 13824")
    e("v_cndmask_b32 v28, 0, v28, vcc")
    e("v_cndmask_b32 v29, 0, v29, vcc")
    e("v_sub_u32 v28, v0, v28")
    e("v_min_u32 v28, 23, v28")
    e("v_lshl_add_u32 v29, v28, 4, v29")
    e("v_add_u32 v88, 27648, v29")
    e("v_mov_b32 v30, 192")
    e("v_cndmask_b32 v30, 0, v30, vcc")
    e("v_lshl_add_u32 v30, v28, 3, v30")
    e("s_mul_i32 %s, %s, 3" % (S_T0, S_RG))
    e("v_lshrrev_b32 v31, 3, v28")
    e("v_add_u32 v31, %s, v31" % S_T0)
    e("v_and_b32 v32, 1, v31")
    e("v_lshlrev_b32 v32, 3, v32")
    e("v_lshrrev_b32 v31, 1, v31")
    e("v_add_u32 v33, 27, v31")
    for g in (31, 33):
        e("v_mul_u32_u24 v%d, 37, v%d" % (g, g))
        e("v_lshrrev_b32 v%d, 8, v%d" % (g, g))
        e("v_add_u32 v%d, v%d, v32" % (g, g))
    head_off(34, 31)
    head_off(36, 33)
    e("v_add_u32 v35, 128, v34")
    e("v_add_u32 v37, 128, v36")
    e("s_mul_i32 %s, %s, 384" % (S_IT, S_RG))
    e("s_add_u32 %s, %s, 0x%x" % (S_IT, S_IT, GX_OFF))
    e("s_add_u32 s70, %s, 6912" % S_IT)
    e("s_add_u32 s71, %s, 55296" % S_IT)
    e("s_add_u32 s73, %s, %d" % (S_IT, 55296 + 6912))
    lds_wait(4, "1", 94, VZ, 4)
    e("s_mov_b32 m0, %d" % L_WQ)
    e("s_nop 0")
    for t in range(12):
        e("buffer_load_dwordx4 v26, %s, %s offen nt lds" % (srd(SRD_W), S_OFF))
        if t < 11:
            e("s_add_u32 m0, m0, 0x400")
            e("s_add_u32 %s, %s, %d" % (S_OFF, S_OFF, 8 * 1280))
    nonce_fetch([(72 + 4 * k, 34 + k) for k in range(4)])
    for k in range(4): vtags(72 + 4 * k)
    e("s_mov_b32 exec_hi, 0xffff")
    e("s_mov_b64 s[4:5], exec")
    SO = [S_IT, "s70", "s71", "s73"]
    ypoll(["buffer_load_dwordx4 %s, v%d, %s, %s offen sc1" % (vr(40 + 16 * bb + 4 * k), [29, 88][bb], srd(SRD_WS), SO[k]) for bb in range(2) for k in range(4)],
          [(40 + 16 * bb + 4 * k, 72 + 4 * k) for bb in range(2) for k in range(4)], 31, 16, "s[4:5]")
    for r in range(40, 72):
        e("v_and_b32 v%d, 0xfffffc00, v%d" % (r, r))
    for bb in range(2):
        g = 40 + 16 * bb
        for i in range(4):
            e("v_add_f32 v%d, v%d, v%d" % (g + i, g + i, g + 4 + i))
            e("v_add_f32 v%d, v%d, v%d" % (g + 8 + i, g + 8 + i, g + 12 + i))
        for k in range(2):
            e("v_cvt_pk_bf16_f32 v%d, v%d, v%d" % (g + 4 + k, g + 2 * k, g + 2 * k + 1))
            e("v_cvt_pk_bf16_f32 v%d, v%d, v%d" % (g + 12 + k, g + 8 + 2 * k, g + 8 + 2 * k + 1))
        for k in range(2):
            e("v_lshlrev_b32 v31, 16, v%d" % (g + 4 + k))
            e("v_and_b32 v32, 0xffff0000, v%d" % (g + 4 + k))
            e("v_lshlrev_b32 v33, 16, v%d" % (g + 12 + k))
            e("v_and_b32 v34, 0xffff0000, v%d" % (g + 12 + k))
            e("v_mul_f32 v31, v31, v33")
            e("v_mul_f32 v32, v32, v34")
            e("v_cvt_pk_bf16_f32 v%d, v31, v32" % (g + k))
        e("ds_write_b64 v30, %s offset:%d" % (vr(g, 2), L_HT + 384 * bb))
    e("s_mov_b64 exec, -1")
    stamp(3)
    e("v_lshlrev_b32 v28, 10, v24")
    e("v_lshrrev_b32 v29, 2, v25")
    e("v_lshl_add_u32 v28, v29, 7, v28")
    e("v_and_b32 v29, 3, v0")
    e("v_lshl_add_u32 v28, v29, 3, v28")
    e("v_mul_u32_u24 v29, 192, v29")
    e("v_lshl_add_u32 v29, v24, 4, v29")
    e("s_waitcnt lgkmcnt(0)")
    HF, WF, AC = 96, 112, 160
    for s in range(3):
        e("ds_read_b128 %s, v29 offset:%d" % (vr(HF + 4 * s), L_HT + 64 * s))
    for s in range(3):
        for nt in range(4):
            r = WF + 16 * s + 4 * nt
            e("ds_read_b64_tr_b16 %s, v28 offset:%d" % (vr(r, 2), L_WQ + 4096 * s + 32 * nt))
            e("ds_read_b64_tr_b16 %s, v28 offset:%d" % (vr(r + 2, 2), L_WQ + 4096 * s + 32 * nt + 512))
    e("ds_read_b32 v94, v%d offset:%d" % (VZ, L_CNT + 8))
    e("v_bfe_u32 v30, v0, 3, 1")
    e("v_lshlrev_b32 v30, 2, v30")
    e("v_and_b32 v31, 3, v0")
    e("v_add_u32 v30, v30, v31")
    e("v_mul_u32_u24 v30, %d, v30" % REG)
    e("v_bfe_u32 v31, v0, 2, 1")
    e("v_lshl_add_u32 v30, v31, 6, v30")
    e("v_lshl_add_u32 v30, v24, 4, v30")
    e("s_mul_i32 %s, %s, %d" % (S_OFF, S_CB, 8 * REG))
    e("s_lshl_b32 %s, %s, 7" % (S_T0, S_RG))
    e("s_add_u32 %s, %s, %s" % (S_OFF, S_OFF, S_T0))
    e("s_add_u32 %s, %s, %d" % (S_OFF, S_OFF, FOFF))
    e("s_waitcnt lgkmcnt(0)")
    e("v_readfirstlane_b32 %s, v94" % S_T0)
    for s in range(3):
        for nt in range(4):
            e("%s %s, %s, %s, %s" % (MFMA, vr(AC + 4 * nt), vr(WF + 16 * s + 4 * nt), vr(HF + 4 * s), "0" if s == 0 else vr(AC + 4 * nt)))
    stags()
    e("s_nop 3")
    for nt in range(1, 4):
        for i in range(4):
            e("v_mov_b32_dpp v%d, v%d row_shr:%d row_mask:0xf bank_mask:0x%x" % (AC + i, AC + 4 * nt + i, 4 * nt, 1 << nt))
    ypack(AC)
    e("buffer_store_dwordx4 %s, v30, %s, %s offen sc1" % (vr(AC), srd(SRD_WS), S_OFF))
    e("s_waitcnt vmcnt(0)")
    stamp(4)

    lab("L_wo")
    e("v_lshlrev_b32 v25, 4, v25")
    e("s_lshl_b32 %s, %s, 7" % (S_T0, S_H))
    e("s_lshl_b32 %s, %s, 5" % (S_T1, S_W))
    e("s_add_u32 %s, %s, %s" % (S_T0, S_T0, S_T1))
    e("s_mul_i32 %s, %s, 1280" % (S_T0, S_T0))
    e("v_mul_u32_u24 v27, 0x%x, v24" % (8 * 1280))
    e("v_add3_u32 v27, v27, v25, %s" % S_T0)
    mk_srd(SRD_W, "s24", "s25", 4096 * 1280)
    e("s_mov_b32 %s, 0" % S_T1)
    lds_wait(4, "1", 94, VZ, 4)
    for g in range(0 if "nowo" in XP else 8):
        for cb in range(5):
            if g * 5 + cb >= WO_WIN: e("s_waitcnt vmcnt(%d)" % (WO_WIN - 1))
            e("buffer_load_dwordx4 %s, v27, %s, %s offen offset:%d nt" % (vr(W(g * 5 + cb)), srd(SRD_W), S_T1, cb * 256))
        if g < 7: e("s_add_u32 %s, %s, 1280" % (S_T1, S_T1))
    e("ds_read_b32 v94, v%d offset:%d" % (VZ, L_CNT + 8))
    sel_pv(4, 28)
    e("v_and_b32 v26, 31, v0")
    e("v_and_b32 v27, 15, v26")
    e("v_lshlrev_b32 v27, 5, v27")
    e("v_lshrrev_b32 v26, 4, v26")
    e("v_lshl_add_u32 v27, v26, 4, v27")
    e("v_lshrrev_b32 v26, 5, v0")
    e("s_mul_i32 %s, %s, 5120" % (S_T0, S_W))
    e("s_add_u32 %s, %s, %d" % (S_T0, S_T0, L_YP))
    e("v_mul_u32_u24 v8, 2560, v26")
    e("v_add3_u32 v8, v8, v27, %s" % S_T0)
    e("v_lshlrev_b32 v9, 5, v24")
    e("s_lshl_b32 %s, %s, 7" % (S_T0, S_W))
    e("s_add_u32 %s, %s, %d" % (S_T0, S_T0, L_OP))
    e("v_add_u32 v9, %s, v9" % S_T0)
    e("v_lshrrev_b32 v10, 3, v1")
    e("v_mul_u32_u24 v10, 0x%x, v10" % (4 * REG))
    e("v_and_b32 v28, 7, v1")
    e("v_lshl_add_u32 v10, v28, 4, v10")
    e("v_lshlrev_b32 v11, 4, v1")
    e("v_add_u32 v11, 0x%x, v11" % L_YP)
    e("s_waitcnt lgkmcnt(0)")
    e("v_readfirstlane_b32 %s, v94" % S_T0)
    e("v_mov_b32 v62, v94")
    e("v_xor_b32 v63, %s, v94" % TAGX)
    stags()
    e("s_mul_i32 %s, %s, %d" % (S_IT, S_B, REG))
    e("s_lshl_b32 %s, %s, 8" % (S_T1, S_H))
    e("s_add_u32 %s, %s, %s" % (S_IT, S_IT, S_T1))
    e("s_lshl_b32 %s, %s, 7" % (S_T1, S_HALF))
    e("s_add_u32 %s, %s, %s" % (S_IT, S_IT, S_T1))
    e("s_mul_i32 %s, s2, %d" % (S_C, REG))
    e("v_and_b32 v86, 7, v0")
    e("v_lshlrev_b32 v86, 4, v86")
    e("v_bfe_u32 v87, v0, 4, 1")
    e("v_lshl_add_u32 v86, v87, 3, v86")
    e("v_lshrrev_b32 v87, 5, v0")
    e("v_lshl_add_u32 v86, v87, 2, v86")
    e("s_lshl_b32 %s, %s, 11" % (S_T0, S_W))
    e("v_add_u32 v87, %s, v2" % S_T0)
    e("s_waitcnt vmcnt(0)")
    stamp(5)
    e("s_cmp_ge_u32 s2, %d" % NCONS)
    e("s_cbranch_scc1 L_nc")
    e("s_lshl_b32 %s, %s, 3" % (S_T0, S_W))
    e("v_add_u32 v30, %s, v24" % S_T0)
    e("v_add_u32 v31, 4, v30")
    head_off(32, 30)
    head_off(33, 31)
    nonce_fetch([(76, 32), (80, 33)])
    vtags(76); vtags(80)
    e("s_cmp_lg_u32 %s, 3" % S_W)
    e("s_cbranch_scc1 L_nc")
    e("s_lshr_b32 %s, s2, 3" % S_T1)
    e("v_lshrrev_b32 v30, 3, v0")
    e("v_and_b32 v29, 7, v0")
    e("v_lshlrev_b32 v29, 4, v29")
    for k in range(3):
        e("v_add_u32 v31, %d, v30" % (8 * k))
        if k == 2: e("v_min_u32 v31, 17, v31")
        e("v_lshl_add_u32 v%d, v31, 7, v29" % (36 + k))
        e("v_mul_u32_u24 v31, 10, v31")
        e("v_add_u32 v31, %s, v31" % S_T1)
        e("v_sub_u32 v31, 255, v31")
        e("v_bfe_u32 v32, v31, 3, 2")
        e("v_and_b32 v31, 7, v31")
        e("v_lshl_add_u32 v31, v32, 3, v31")
        head_off(33 + k, 31)
    nonce_fetch([(64, 33), (68, 34), (72, 35)])
    vtags(64); vtags(68); vtags(72)
    e("s_add_u32 %s, %s, %d" % (S_OFF, S_C, FOFF))
    lds_wait(0, "1", 94, VZ, 16)
    ypoll(["buffer_load_dwordx4 %s, v%d, %s, %s offen sc1" % (vr(40 + 4 * k), 36 + k, srd(SRD_WS), S_OFF) for k in range(3)],
          [(40, 64), (44, 68), (48, 72)], 52, 32)
    e("v_cmp_gt_u32 vcc, 16, v0")
    for i in range(4):
        e("v_add_f32 v%d, v%d, v%d" % (40 + i, 40 + i, 44 + i))
    for i in range(4):
        e("v_cndmask_b32 v%d, 0, v%d, vcc" % (48 + i, 48 + i))
    for i in range(4):
        e("v_add_f32 v%d, v%d, v%d" % (40 + i, 40 + i, 48 + i))
    red8(40)
    e("ds_write_b32 v86, v40 offset:%d" % (L_R + 512))
    e("v_lshlrev_b32 v30, 2, v0")
    e("v_and_b32 v30, 127, v30")
    e("v_sub_f32 v31, 1.0, v%d" % V_G)
    bf16r(31)
    e("s_waitcnt lgkmcnt(0)")
    e("ds_read_b32 v%d, v30 offset:%d" % (V_FB, L_R + 512))
    e("s_waitcnt lgkmcnt(0)")
    bf16r(V_FB)
    e("v_mul_f32 v%d, v31, v%d" % (V_FB, V_FB))
    bf16r(V_FB)
    lab("L_nc")
    e("s_cmp_lg_u32 %s, 0" % S_W)
    e("s_cbranch_scc1 L_h9")
    e("v_and_b32 v12, 3, v0")
    e("v_lshlrev_b32 v13, 2, v12")
    e("v_lshlrev_b32 v12, 3, v12")
    e("s_and_b32 %s, s2, 127" % S_OFF)
    e("s_lshl_b32 %s, %s, 7" % (S_OFF, S_OFF))
    e("s_add_u32 %s, %s, 0x%x" % (S_OFF, S_OFF, RC_OFF))
    e("s_lshl_b32 %s, %s, 6" % (S_T1, S_HALF))
    e("s_add_u32 s68, %s, %s" % (S_OFF, S_T1))
    e("s_xor_b32 s69, s68, 64")
    lds_wait(0, "4", 94, VZ, 8)
    e("ds_read_b64 v[14:15], v12 offset:%d" % L_ML)
    e("s_waitcnt lgkmcnt(0)")
    e("v_mov_b32 v60, v14")
    allreduce4("max", 60)
    e("v_sub_f32 v16, v14, v60")
    e("v_mul_f32 v16, %s, v16" % LOG2E)
    e("v_exp_f32 v16, v16")
    e("s_nop 0")
    e("v_mul_f32 v61, v16, v15")
    allreduce4("add", 61)
    e("s_mov_b64 exec, 1")
    e("buffer_store_dwordx4 v[60:63], off, %s, s68 sc1" % srd(SRD_WS))
    e("s_mov_b64 exec, -1")
    stamp(6)
    tpoll(["buffer_load_dwordx4 v[40:43], off, %s, s69 sc1" % srd(SRD_WS)], [(40, 62, 63)], xpv("rsl", 32))
    e("v_max_f32 v17, v60, v40")
    e("v_sub_f32 v60, v60, v17")
    e("v_sub_f32 v40, v40, v17")
    e("v_sub_f32 v14, v14, v17")
    e("v_mul_f32 v60, %s, v60" % LOG2E)
    e("v_mul_f32 v40, %s, v40" % LOG2E)
    e("v_mul_f32 v14, %s, v14" % LOG2E)
    e("v_exp_f32 v60, v60")
    e("v_exp_f32 v40, v40")
    e("v_exp_f32 v14, v14")
    e("v_mul_f32 v61, v60, v61")
    e("v_fmac_f32 v61, v40, v41")
    e("v_rcp_f32 v61, v61")
    e("s_nop 0")
    e("v_mul_f32 v14, v14, v61")
    e("ds_write_b32 v13, v14 offset:%d" % L_SC)
    e("s_waitcnt lgkmcnt(0)")
    lab("L_h9")
    e("s_mov_b32 %s, 0x05040100" % S_T0)
    e("s_mov_b32 %s, 0x07060302" % S_T1)
    stamp(7)
    e("s_barrier")
    O = 32
    e("ds_read_b128 v[64:67], v%d offset:%d" % (VZ, L_SC))
    for w in range(4):
        e("ds_read_b128 %s, v9 offset:%d" % (vr(O + 8 * w), w * 512))
        e("ds_read_b128 %s, v9 offset:%d" % (vr(O + 8 * w + 4), w * 512 + 16))
    e("s_waitcnt lgkmcnt(6)")
    for i in range(8):
        e("v_mul_f32 v%d, v64, v%d" % (O + i, O + i))
    for w in range(1, 4):
        e("s_waitcnt lgkmcnt(%d)" % (6 - 2 * w))
        for i in range(8):
            e("v_fmac_f32 v%d, v%d, v%d" % (O + i, 64 + w, O + 8 * w + i))
    for k in range(4):
        hilo_pack(O + 2 * k, O + 2 * k + 1, O + 8 + 3 * k)
    AB = [64, 68]
    YA = 12
    def perms(g):
        for i in range(4):
            e("v_perm_b32 v%d, v%d, v%d, v%d" % (AB[g & 1] + i, O + g, O + g, 4 + i))
    perms(0)
    e("s_nop 1")
    for g in range(8):
        for cb in range(5):
            e("%s %s, %s, %s, %s" % (MFMA, vr(YA + 4 * cb), vr(AB[g & 1]), vr(W(g * 5 + cb)), "0" if g == 0 else vr(YA + 4 * cb)))
            if cb == 0 and g < 7: perms(g + 1)
    e("v_cmp_gt_u32 vcc, 160, v1")
    e("s_nop 7")
    for cb in range(5):
        e("ds_write_b128 v8, %s offset:%d" % (vr(YA + 4 * cb), cb * 512))
    e("s_waitcnt lgkmcnt(0)")
    e("s_barrier")
    e("s_and_saveexec_b64 s[70:71], vcc")
    e("s_cbranch_execz L_h10")
    for p in range(8):
        e("ds_read_b128 %s, v11 offset:%d" % (vr(O + 4 * p), p * 2560))
    for p in (1, 3, 5, 7):
        e("s_waitcnt lgkmcnt(%d)" % (7 - p))
        for i in range(4):
            e("v_add_f32 v%d, v%d, v%d" % (O + 4 * (p - 1) + i, O + 4 * (p - 1) + i, O + 4 * p + i))
    for i in range(4):
        e("v_add_f32 v%d, v%d, v%d" % (O + i, O + i, O + 8 + i))
        e("v_add_f32 v%d, v%d, v%d" % (O + 16 + i, O + 16 + i, O + 24 + i))
    for i in range(4):
        e("v_add_f32 v%d, v%d, v%d" % (O + i, O + i, O + 16 + i))
    ypack(O)
    e("buffer_store_dwordx4 %s, v10, %s, %s offen sc1" % (vr(O), srd(SRD_WS), S_IT))
    lab("L_h10")
    e("s_mov_b64 exec, -1")
    stamp(8)
    e("s_cmp_ge_u32 s2, %d" % NCONS)
    e("s_cbranch_scc1 L_hend")
    ypoll(["buffer_load_dwordx4 v[12:15], v87, %s, %s offen sc1" % (srd(SRD_WS), S_C),
           "buffer_load_dwordx4 v[16:19], v87, %s, %s offen offset:1024 sc1" % (srd(SRD_WS), S_C)], [(12, 76), (16, 80)], 20, 0)
    for i in range(4):
        e("v_add_f32 v%d, v%d, v%d" % (12 + i, 12 + i, 16 + i))
    e("s_lshl_b32 %s, %s, 7" % (S_T0, S_W))
    e("v_add_u32 v86, %s, v86" % S_T0)
    red8(12)
    e("ds_write_b32 v86, v12 offset:%d" % L_R)
    e("v_lshlrev_b32 v12, 2, v0")
    e("s_waitcnt lgkmcnt(0)")
    e("s_barrier")
    e("s_cmp_lg_u32 %s, 3" % S_W)
    e("s_cbranch_scc1 L_hend")
    e("s_mov_b32 exec_hi, 0")
    for w in range(4):
        e("ds_read_b32 v%d, v12 offset:%d" % (8 + w, L_R + w * 128))
    mk_srd(SRD_X, "s36", "s37", 5120)
    e("s_and_b32 s5, s2, 3")
    e("s_mul_i32 %s, s5, 1280" % S_T0)
    e("s_lshr_b32 %s, s2, 2" % S_T1)
    e("s_lshl_b32 %s, %s, 6" % (S_T1, S_T1))
    e("s_add_u32 %s, %s, %s" % (S_T0, S_T0, S_T1))
    e("v_lshlrev_b32 v12, 1, v0")
    e("s_waitcnt lgkmcnt(0)")
    e("v_add_f32 v8, v8, v9"); e("v_add_f32 v10, v10, v11")
    e("v_add_f32 v8, v8, v10")
    bf16r(8)
    e("v_mul_f32 v8, v%d, v8" % V_G)
    bf16r(8)
    e("v_add_f32 v8, v8, v%d" % V_FB)
    e("v_cvt_pk_bf16_f32 v8, v8, v8")
    e("buffer_store_short v8, v12, %s, %s offen" % (srd(SRD_X), S_T0))
    lab("L_hend")
    stamp(9)
    stamps_out(4)


def main():
    ref = open("cdna_kernels/%s.s.ref" % NAME).read().split("\n")
    head = []
    for ln in ref:
        if ln.startswith("; @launch"):
            break
        head.append(ln)
    out = head + ["; @launch grid=(%d,1,1) block=(512,1,1) lds=%d" % (NWG, LDS_BYTES)]
    out += ['.amdgcn_target "amdgcn-amd-amdhsa--gfx950"', ".text", ".globl " + KNAME, ".p2align 8",
            ".type %s,@function" % KNAME, KNAME + ":"]
    e("s_cmp_ge_u32 s2, %d" % NWG)
    e("s_cbranch_scc1 L_end")
    e("s_load_dwordx16 s[16:31], s[0:1], 0")
    e("s_load_dwordx8 s[32:39], s[0:1], 64")
    e("s_load_dwordx2 s[40:41], s[0:1], 96")
    e("v_lshrrev_b32 v1, 6, v0")
    e("v_and_b32 v0, 63, v0")
    e("s_mov_b32 s72, 0")
    e("v_readfirstlane_b32 %s, v1" % S_W)
    e("s_and_b32 s4, s2, 7")
    e("s_lshr_b32 s5, s2, 3")
    e("s_and_b32 %s, s5, 3" % S_H)
    e("s_lshl_b32 %s, %s, 3" % (S_H, S_H))
    e("s_add_u32 %s, %s, s4" % (S_H, S_H))
    e("s_lshr_b32 %s, s5, 2" % S_B)
    e("s_and_b32 %s, %s, 3" % (S_B, S_B))
    e("s_lshr_b32 %s, s5, 4" % S_HALF)
    e("s_lshl_b32 %s, %s, 5" % (S_BH, S_B))
    e("s_add_u32 %s, %s, %s" % (S_BH, S_BH, S_H))
    if TS:
        for i in range(NSTAMP): e("s_mov_b32 s%d, 0" % (76 + 2 * i))
    e("s_cmp_ge_u32 %s, 4" % S_W)
    e("s_cbranch_scc1 L_helper")
    streamer()
    helper()
    lab("L_end")
    e("s_endpgm")
    lab("L_code_end")
    out += L
    out += ['.section .rodata,"a"', ".p2align 6", ".amdhsa_kernel " + KNAME,
            "  .amdhsa_next_free_vgpr 256", "  .amdhsa_next_free_sgpr %d" % (96 if TS else 80), "  .amdhsa_accum_offset 256",
            "  .amdhsa_group_segment_fixed_size 0", "  .amdhsa_kernarg_size 104",
            "  .amdhsa_user_sgpr_count 2", "  .amdhsa_user_sgpr_kernarg_segment_ptr 1",
            "  .amdhsa_system_sgpr_workgroup_id_x 1", "  .amdhsa_float_denorm_mode_32 3",
            ".end_amdhsa_kernel", ""]
    open(OUT, "w").write("\n".join(out))

main()
```

```python
import sys

NAME = "gated_mix__mha_block_cached__glu_gated_bilinear__decode"
KNAME = NAME + "_kernel"
TS = "--ts" in sys.argv
XP = [a[2:] for a in sys.argv if a.startswith("--")]
OUT = [a for a in sys.argv[1:] if not a.startswith("--")]
OUT = OUT[0] if OUT else "cdna_kernels/%s.s" % NAME
def xpv(name, default):
    for a in XP:
        if a.startswith(name + "="): return int(a.split("=")[1])
    return default

NWG, NCONS, NF2 = 256, 80, 180
NWARM = 3
Y_OFF = 0
F_OFF = 0xA0000
QX_OFF = 0xD0000
GX_OFF = 0xF0000
RC_OFF = 0x10C000
CT_OFF = 0x110000
WS_USED = 0x130000
WS_BASE = xpv("wsmb", 0) << 20
DBG_WS = 8 << 20
WS_REC = (WS_USED if not TS else (64 << 20))
D = xpv("d", 16)
C0 = xpv("c0", 12)
WO_WIN = xpv("wowin", 4)
NB = 8
CTL = "ctl" in XP
XK = [0, xpv("xk1", 1), xpv("xk2", 2)]
XV = [0, xpv("xv1", 1), xpv("xv2", 2)]
T1, T2 = xpv("t1", 3), xpv("t2", 1)
MB0, MST = xpv("mb0", 2), xpv("mst", 1)
MBL = xpv("mbl", 11)
V_ONE, V_FLAG, S_FLAG = 40, 41, "s69"
assert D % 4 == 0 and 4 <= D <= 16

P_ROW = 64 * NB + 16
P_WAVE = 4 * P_ROW
L_QB = 8448
L_OP = 8704
L_ML = 10752
L_CNT = 10784
L_SC = 10816
L_R = 10880
L_HT = 11904
L_WQ = 12800
L_X0 = 33280
L_WF = 38400
L_YP = L_WF
L_X1 = 58880
LDS_BYTES = 64000
assert 4 * P_WAVE <= L_QB

L = []
def e(s): L.append("    " + s)
def lab(s): L.append(s + ":")
def cmt(s): L.append("    ; " + s)
def vr(a, n=4): return "v[%d:%d]" % (a, a + n - 1)

S_W, S_H, S_B, S_HALF, S_BH = "s3", "s6", "s7", "s8", "s9"
S_OFF, S_IT, S_T0, S_T1, S_A = "s10", "s11", "s12", "s13", "s14"
S_C, S_I = "s15", "s74"
SRD_S, SRD_W, SRD_WS, SRD_DBG, SRD_X = 44, 48, 52, 56, 60
S_TG = 64
S_P = 68
def srd(n): return "s[%d:%d]" % (n, n + 3)
def mk_srd(n, lo, hi, nrec):
    e("s_mov_b32 s%d, %s" % (n, lo))
    e("s_mov_b32 s%d, %s" % (n + 1, hi))
    e("s_mov_b32 s%d, 0x%x" % (n + 2, nrec))
    e("s_mov_b32 s%d, 0x00020000" % (n + 3))
def mk_ws():
    if WS_BASE:
        e("s_add_u32 s%d, s40, 0x%x" % (SRD_WS, WS_BASE))
        e("s_addc_u32 s%d, s41, 0" % (SRD_WS + 1))
        e("s_mov_b32 s%d, 0x%x" % (SRD_WS + 2, WS_USED))
        e("s_mov_b32 s%d, 0x00020000" % (SRD_WS + 3))
    else:
        mk_srd(SRD_WS, "s40", "s41", WS_USED)

BUF = 64
WREG = 96
def B(i): return BUF + 4 * i
def W(i): return WREG + 4 * i

LOG2E = "0x3fb8aa3b"
SCALE = "0x3db504f3"
MFMA = "v_mfma_f32_16x16x32_bf16"
TAGX = "0x9e3779b9"

def sel_pv(dst, t):
    a, b, c = t, t + 1, t + 2
    e("v_mov_b32 v%d, 0x100" % a)
    e("v_mov_b32 v%d, 0x302" % b)
    e("v_and_b32 v%d, 8, v0" % c)
    e("v_cmp_ne_u32 vcc, 0, v%d" % c)
    e("s_nop 1")
    e("v_cndmask_b32 v%d, v%d, v%d, vcc" % (a, a, b))
    e("v_or_b32 v%d, 0x0c0c0000, v%d" % (b, a))
    e("v_lshlrev_b32 v%d, 16, v%d" % (a, a))
    e("v_or_b32 v%d, 0x0c0c, v%d" % (a, a))
    e("v_and_b32 v%d, 1, v0" % c)
    e("v_cmp_ne_u32 vcc, 0, v%d" % c)
    e("s_nop 1")
    e("v_cndmask_b32 v%d, v%d, v%d, vcc" % (a, b, a))
    e("v_mov_b32 v%d, 0x0c0c0c0c" % b)
    e("v_bfe_u32 v%d, v0, 1, 2" % c)
    for i in range(4):
        e("v_cmp_eq_u32 vcc, %d, v%d" % (i, c))
        e("s_nop 1")
        e("v_cndmask_b32 v%d, v%d, v%d, vcc" % (dst + i, b, a))

def allreduce64(op, v, t):
    for r in (8, 4, 2, 1):
        e("s_nop 1")
        e("v_%s_f32_dpp v%d, v%d, v%d row_ror:%d row_mask:0xf bank_mask:0xf" % (op, v, v, v, r))
    for sw in ("16", "32"):
        e("v_mov_b32 v%d, v%d" % (t, v))
        e("s_nop 1")
        e("v_permlane%s_swap_b32 v%d, v%d" % (sw, v, t))
        e("s_nop 1")
        e("v_%s_f32 v%d, v%d, v%d" % (op, v, v, t))

def allreduce4(op, v):
    for m in ("quad_perm:[1,0,3,2]", "quad_perm:[2,3,0,1]"):
        e("s_nop 1")
        e("v_%s_f32_dpp v%d, v%d, v%d %s row_mask:0xf bank_mask:0xf" % (op, v, v, v, m))

def bf16r(v):
    e("v_cvt_pk_bf16_f32 v%d, v%d, v%d" % (v, v, v))
    e("v_lshlrev_b32 v%d, 16, v%d" % (v, v))

def hilo_pack(a, b, t):
    e("v_cvt_pk_bf16_f32 v%d, v%d, v%d" % (t, a, b))
    e("v_lshlrev_b32 v%d, 16, v%d" % (t + 1, t))
    e("v_and_b32 v%d, 0xffff0000, v%d" % (t + 2, t))
    e("v_sub_f32 v%d, v%d, v%d" % (t + 1, a, t + 1))
    e("v_sub_f32 v%d, v%d, v%d" % (t + 2, b, t + 2))
    e("v_cvt_pk_bf16_f32 v%d, v%d, v%d" % (t + 1, t + 1, t + 2))
    e("v_perm_b32 v%d, v%d, v%d, %s" % (a, t + 1, t, S_T0))
    e("v_perm_b32 v%d, v%d, v%d, %s" % (b, t + 1, t, S_T1))

def stream_load(t):
    e("buffer_load_dwordx4 %s, v1, %s, %s offen nt" % (vr(B(t)), srd(SRD_S), S_OFF))
    e("s_add_u32 %s, %s, 0x1000" % (S_OFF, S_OFF))

NSTAMP = 10
def stamp(i):
    if not TS: return
    e("s_memrealtime s[%d:%d]" % (76 + 2 * i, 77 + 2 * i))
    e("s_waitcnt lgkmcnt(0)")

def stamps_out(w8off):
    if not TS: return
    e("s_mov_b64 exec, 1")
    mk_srd(SRD_WS, "s40", "s41", 64 << 20)
    e("s_lshl_b32 s12, s2, 3")
    e("s_add_u32 s12, s12, %s" % S_W)
    e("s_add_u32 s12, s12, %d" % w8off)
    e("s_lshl_b32 s12, s12, 6")
    e("s_add_u32 s12, s12, 0x%x" % DBG_WS)
    for i in range(NSTAMP):
        e("v_mov_b32 v5, s%d" % (76 + 2 * i))
        e("buffer_store_dword v5, off, %s, s12 offset:%d" % (srd(SRD_WS), 4 * i))
    e("s_getreg_b32 s13, hwreg(HW_REG_XCC_ID)")
    e("v_mov_b32 v5, s13")
    e("buffer_store_dword v5, off, %s, s12 offset:56" % srd(SRD_WS))
    e("s_getreg_b32 s13, hwreg(HW_REG_HW_ID)")
    e("v_mov_b32 v5, s13")
    e("buffer_store_dword v5, off, %s, s12 offset:60" % srd(SRD_WS))

SPIN_MAX = 400000
def spin_guard(exit_lbl):
    e("s_add_u32 s72, s72, 1")
    e("s_cmp_gt_u32 s72, %d" % SPIN_MAX)
    e("s_cbranch_scc1 %s" % exit_lbl)

NLAB = [0]
def newlab(p):
    NLAB[0] += 1
    return "L_%s%d" % (p, NLAB[0])

def lds_wait(off, target, vt, va, sleep=1):
    l0, l1 = newlab("lw"), newlab("lw")
    lab(l0)
    e("ds_read_b32 v%d, v%d offset:%d" % (vt, va, L_CNT + off))
    e("s_waitcnt lgkmcnt(0)")
    e("v_readfirstlane_b32 %s, v%d" % (S_T0, vt))
    e("s_cmp_ge_u32 %s, %s" % (S_T0, target))
    e("s_cbranch_scc1 %s" % l1)
    spin_guard(l1)
    e("s_sleep %d" % sleep)
    e("s_branch %s" % l0)
    lab(l1)

def lds_signal(off, vt, va):
    e("v_mov_b32 v%d, 1" % vt)
    e("s_mov_b64 exec, 1")
    e("ds_add_u32 v%d, v%d offset:%d" % (va, vt, L_CNT + off))
    e("s_mov_b64 exec, -1")

def prog_add():
    e("s_mov_b64 exec, 1")
    e("ds_add_u32 v30, v%d offset:%d" % (V_ONE, L_CNT + 12))
    e("s_mov_b64 exec, -1")

def k_body(b0, waits, loads, pre=None, ctl=False):
    P = [8, 9, 10, 11]; Y0, Y1, Z, T, S, TMP = 12, 13, 14, 15, 16, 17
    if ctl: e("ds_read_b32 v%d, v30 offset:%d" % (V_FLAG, L_CNT + 16))
    for G in range(4):
        ld = list(loads[G])
        def nxt():
            if ld: stream_load(ld.pop(0))
        e("s_waitcnt vmcnt(%d)" % waits[G])
        for k in range(4):
            for u in range(4):
                c = "0" if k == 0 else "v%d" % P[u]
                e("v_dot2_f32_bf16 v%d, v%d, v%d, %s" % (P[u], B(b0 + 4 * G + u) + k, 4 + k, c))
        if pre and pre.get(G): pre[G]()
        e("v_add_f32_dpp v%d, v%d, v%d row_ror:8 row_mask:0xf bank_mask:0x3" % (Y0, P[0], P[0]))
        e("v_add_f32_dpp v%d, v%d, v%d row_ror:8 row_mask:0xf bank_mask:0xc" % (Y0, P[1], P[1]))
        e("v_add_f32_dpp v%d, v%d, v%d row_ror:8 row_mask:0xf bank_mask:0x3" % (Y1, P[2], P[2]))
        e("v_add_f32_dpp v%d, v%d, v%d row_ror:8 row_mask:0xf bank_mask:0xc" % (Y1, P[3], P[3]))
        nxt()
        if len(loads[G]) < 1: e("s_nop 1")
        e("v_add_f32_dpp v%d, v%d, v%d row_half_mirror row_mask:0xf bank_mask:0x5" % (Z, Y0, Y0))
        e("v_add_f32_dpp v%d, v%d, v%d row_half_mirror row_mask:0xf bank_mask:0xa" % (Z, Y1, Y1))
        nxt()
        if len(loads[G]) < 2: e("s_nop 1")
        e("v_add_f32_dpp v%d, v%d, v%d quad_perm:[1,0,3,2] row_mask:0xf bank_mask:0xf" % (Z, Z, Z))
        nxt()
        if len(loads[G]) < 3: e("s_nop 1")
        d = S if G == 0 else T
        e("v_add_f32_dpp v%d, v%d, v%d quad_perm:[2,3,0,1] row_mask:0xf bank_mask:0xf" % (d, Z, Z))
        nxt()
        assert not ld
        if G:
            e("v_cndmask_b32 v%d, v%d, v%d, s[%d:%d]" % (S, S, T, 60 + 2 * G, 61 + 2 * G))
    e("v_cvt_pk_bf16_f32 v%d, v%d, v%d" % (TMP, S, S))
    e("v_lshlrev_b32 v%d, 16, v%d" % (TMP, TMP))
    e("v_mul_f32 v%d, %s, v%d" % (TMP, SCALE, TMP))
    bf16r(TMP)
    e("s_add_u32 %s, %s, 1" % (S_IT, S_IT))
    e("v_max_f32 v3, v3, v%d" % TMP)
    if ctl:
        e("s_waitcnt lgkmcnt(0)")
        e("v_readfirstlane_b32 %s, v%d" % (S_FLAG, V_FLAG))
    e("ds_write_b32 v2, v%d" % TMP)
    e("v_add_u32 v2, 64, v2")
    if ctl: prog_add()

def v_body(x=0):
    A, ACC = 8, 20
    PB = [12, 16]
    for G in range(4):
        e("s_waitcnt lgkmcnt(0)")
        if CTL and G == 3: e("v_readfirstlane_b32 %s, v%d" % (S_FLAG, V_FLAG))
        e("ds_read_b128 %s, v2 offset:%d" % (vr(PB[(G + 1) & 1]), (G + 1) * 16))
        if CTL and G == 2: e("ds_read_b32 v%d, v30 offset:%d" % (V_FLAG, L_CNT + 16))
        for u in range(4):
            t = 4 * G + u
            p = PB[G & 1] + u
            for i in range(4):
                e("v_perm_b32 v%d, v%d, v%d, v%d" % (A + i, p, p, 4 + i))
            e("s_waitcnt vmcnt(%d)" % (D - 1 - x))
            e("s_nop 0")
            e("%s %s, %s, %s, %s" % (MFMA, vr(ACC), vr(A), vr(B(t)), vr(ACC)))
            stream_load((t + D) % 16)
    e("s_add_u32 %s, %s, 1" % (S_IT, S_IT))
    e("v_add_u32 v2, 64, v2")
    if CTL: prog_add()

def streamer():
    cmt("---- streaming waves")
    e("s_lshl_b32 %s, %s, 20" % (S_T0, S_BH))
    e("s_lshl_b32 %s, %s, 19" % (S_T1, S_HALF))
    e("s_add_u32 %s, %s, %s" % (S_T0, S_T0, S_T1))
    e("s_lshl_b32 %s, %s, 10" % (S_T1, S_W))
    e("v_lshlrev_b32 v1, 4, v0")
    e("v_add_u32 v1, %s, v1" % S_T1)
    e("s_mov_b32 s%d, 0x%x" % (SRD_S + 2, NB << 16))
    e("s_mov_b32 s%d, 0x00020000" % (SRD_S + 3))
    e("s_mov_b32 %s, 0" % S_OFF)
    e("s_waitcnt lgkmcnt(0)")
    stamp(0)
    e("s_add_u32 s%d, s18, %s" % (SRD_S, S_T0))
    e("s_addc_u32 s%d, s19, 0" % (SRD_S + 1))
    e("s_add_u32 s42, s20, %s" % S_T0)
    e("s_addc_u32 s43, s21, 0")
    PRE = min(xpv("pre", 4), C0)
    for t in range(PRE):
        stream_load(t)
    e("s_barrier")
    for t in range(PRE, C0):
        stream_load(t)
    for i, m in enumerate((0x22222222, 0x44444444, 0x88888888)):
        e("s_mov_b32 s%d, 0x%x" % (62 + 2 * i, m)); e("s_mov_b32 s%d, 0x%x" % (63 + 2 * i, m))
    e("v_lshrrev_b32 v24, 4, v0")
    e("v_and_b32 v25, 15, v0")
    e("v_lshlrev_b32 v25, 4, v25")
    e("v_mul_u32_u24 v2, %d, v24" % P_ROW)
    e("s_mul_i32 %s, %s, %d" % (S_T0, S_W, P_WAVE))
    e("v_add_u32 v28, %s, v2" % S_T0)
    e("v_and_b32 v26, 3, v0")
    e("v_lshlrev_b32 v26, 4, v26")
    e("v_bfe_u32 v27, v0, 2, 1")
    e("v_lshl_add_u32 v26, v27, 3, v26")
    e("v_bfe_u32 v27, v0, 3, 1")
    e("v_lshl_add_u32 v26, v27, 2, v26")
    e("v_add_u32 v2, v28, v26")
    e("v_mov_b32 v29, v2")
    e("v_mov_b32 v3, 0xff800000")
    e("v_mov_b32 v30, 0")
    e("v_mov_b32 v%d, 1" % V_ONE)
    e("s_mov_b32 %s, 0" % S_FLAG)
    e("s_mov_b32 %s, 0" % S_IT)
    for t in range(C0, 48):
        e("s_waitcnt vmcnt(%d)" % (C0 - 1))
        stream_load(t)
    stamp(1)
    lds_wait(4, "1", 31, 30)
    e("ds_read_b128 v[4:7], v25 offset:%d" % L_QB)
    e("s_waitcnt lgkmcnt(0)")
    stamp(2)
    iss = 0
    for th in range(3):
        waits, loads = [], []
        for G in range(4):
            g = 4 * th + G
            waits.append(44 - 4 * g + iss)
            n = (g + 1) * D // 12 - g * D // 12
            loads.append(list(range(iss, iss + n))); iss += n
        k_body(16 * th, waits, loads)
    assert iss == D
    def switch():
        e("s_cmp_eq_u32 %s, %d" % (S_IT, NB - 1))
        e("s_cselect_b32 s%d, s42, s%d" % (SRD_S, SRD_S))
        e("s_cselect_b32 s%d, s43, s%d" % (SRD_S + 1, SRD_S + 1))
        e("s_cselect_b32 %s, 0, %s" % (S_OFF, S_OFF))
    def loops(pfx, body):
        if not CTL:
            lab(pfx + "0")
            body(0)
            e("s_cmp_lg_u32 %s, %d" % (S_IT, NB))
            e("s_cbranch_scc1 %s0" % pfx)
            return
        e("s_branch %sn" % pfx)
        for lv in (2, 1, 0):
            lab(pfx + str(lv))
            body(lv)
            if lv: e("s_branch %sc" % pfx)
        lab(pfx + "c")
        e("s_cmp_eq_u32 %s, %d" % (S_IT, NB))
        e("s_cbranch_scc1 %sd" % pfx)
        lab(pfx + "n")
        e("s_cmp_eq_u32 %s, 0" % S_FLAG)
        e("s_cbranch_scc1 %s0" % pfx)
        e("s_cmp_eq_u32 %s, 1" % S_FLAG)
        e("s_cbranch_scc1 %s1" % pfx)
        e("s_branch %s2" % pfx)
        lab(pfx + "d")
    loops("L_k", lambda lv: k_body(0, [D - 4 - XK[lv]] * 4, [[(4 * G + u + D) % 16 for u in range(4)] for G in range(4)], {(16 - D) // 4: switch}, CTL))
    stamp(3)
    for k in range(NB):
        e("ds_read_b32 v%d, v29 offset:%d" % (32 + k, 64 * k))
    allreduce64("max", 3, 16)
    e("s_mov_b32 %s, 0x05040100" % S_T0)
    e("s_mov_b32 %s, 0x07060302" % S_T1)
    e("s_waitcnt lgkmcnt(0)")
    for k in range(NB):
        e("v_sub_f32 v%d, v%d, v3" % (32 + k, 32 + k))
    for k in range(NB):
        e("v_mul_f32 v%d, %s, v%d" % (32 + k, LOG2E, 32 + k))
    for k in range(NB):
        e("v_exp_f32 v%d, v%d" % (32 + k, 32 + k))
    e("s_nop 0")
    e("v_add_f32 v24, v32, v33")
    for k in range(2, NB):
        e("v_add_f32 v24, v24, v%d" % (32 + k))
    for k in range(NB // 2):
        hilo_pack(32 + 2 * k, 33 + 2 * k, 16)
    for k in range(NB):
        e("ds_write_b32 v29, v%d offset:%d" % (32 + k, 64 * k))
    e("v_mov_b32 v2, v28")
    e("ds_read_b128 %s, v2" % vr(12))
    allreduce64("add", 24, 20)
    sel_pv(4, 8)
    e("v_mov_b32 v25, v24")
    e("v_mov_b32 v24, v3")
    e("s_lshl_b32 %s, %s, 3" % (S_T0, S_W))
    e("v_mov_b32 v26, %s" % S_T0)
    e("s_mov_b64 exec, 1")
    e("ds_write_b64 v26, v[24:25] offset:%d" % L_ML)
    e("s_mov_b64 exec, -1")
    lds_signal(0, 27, 30)
    for i in range(4):
        e("v_mov_b32 v%d, 0" % (20 + i))
    e("s_mov_b32 %s, 0" % S_IT)
    e("v_and_b32 v26, 31, v0")
    e("v_and_b32 v27, 15, v26")
    e("v_lshlrev_b32 v27, 5, v27")
    e("v_lshrrev_b32 v26, 4, v26")
    e("v_lshl_add_u32 v27, v26, 4, v27")
    e("v_lshrrev_b32 v26, 5, v0")
    e("s_lshl_b32 %s, %s, 9" % (S_T0, S_W))
    e("s_add_u32 %s, %s, %d" % (S_T0, S_T0, L_OP))
    e("v_lshl_add_u32 v28, v26, 2, v27")
    e("v_add_u32 v28, %s, v28" % S_T0)
    stamp(4)
    loops("L_v", lambda lv: v_body(XV[lv]))
    stamp(5)
    ACC = 20
    e("s_nop 4")
    e("v_permlane32_swap_b32 v%d, v%d" % (ACC, ACC + 1))
    e("v_permlane32_swap_b32 v%d, v%d" % (ACC + 2, ACC + 3))
    e("s_nop 1")
    e("v_add_f32 v%d, v%d, v%d" % (ACC, ACC, ACC + 1))
    e("v_add_f32 v%d, v%d, v%d" % (ACC + 2, ACC + 2, ACC + 3))
    e("ds_write_b32 v28, v%d" % ACC)
    e("ds_write_b32 v28, v%d offset:8" % (ACC + 2))
    e("s_waitcnt lgkmcnt(0)")
    e("s_barrier")
    stamps_out(0)
    e("s_endpgm")

VZ = 95
V_G, V_FB, V_M10 = 91, 92, 93

def tpoll(loads, grans, sleep, ex="-1"):
    l0, l1 = newlab("tp"), newlab("tp")
    lab(l0)
    for x in loads: e(x)
    e("s_waitcnt vmcnt(0)")
    for g, t0, t1 in grans:
        e("v_xor_b32 v%d, v%d, v%d" % (g + 2, g + 2, t0))
        e("v_xor_b32 v%d, v%d, v%d" % (g + 3, g + 3, t1))
    g0 = grans[0][0]
    e("v_or_b32 v%d, v%d, v%d" % (g0 + 2, g0 + 2, g0 + 3))
    for g, _, _ in grans[1:]:
        e("v_or3_b32 v%d, v%d, v%d, v%d" % (g0 + 2, g0 + 2, g + 2, g + 3))
    e("v_cmp_ne_u32 vcc, 0, v%d" % (g0 + 2))
    e("s_cbranch_vccz %s" % l1)
    spin_guard(l1)
    e("s_mov_b64 exec, vcc")
    if sleep: e("s_sleep %d" % sleep)
    e("s_branch %s" % l0)
    lab(l1)
    e("s_mov_b64 exec, %s" % ex)

def ypoll(loads, grans, t, sleep, ex="-1"):
    l0, l1 = newlab("yp"), newlab("yp")
    lab(l0)
    for x in loads: e(x)
    e("s_waitcnt vmcnt(0)")
    first = True
    for g, tg in grans:
        for i in range(0, 4, 2):
            if first:
                e("v_xor_b32 v%d, s%d, v%d" % (t, S_TG + i, g + i))
                e("v_xor_b32 v%d, s%d, v%d" % (t + 1, S_TG + i + 1, g + i + 1))
                e("v_or_b32 v%d, v%d, v%d" % (t, t, t + 1)); first = False
            else:
                e("v_xor_b32 v%d, s%d, v%d" % (t + 1, S_TG + i, g + i))
                e("v_xor_b32 v%d, s%d, v%d" % (t + 2, S_TG + i + 1, g + i + 1))
                e("v_or3_b32 v%d, v%d, v%d, v%d" % (t, t, t + 1, t + 2))
    e("v_and_b32 v%d, 0x3ff, v%d" % (t, t))
    e("v_cmp_ne_u32 vcc, 0, v%d" % t)
    e("s_cbranch_vccz %s" % l1)
    spin_guard(l1)
    e("s_mov_b64 exec, vcc")
    if sleep: e("s_sleep %d" % sleep)
    e("s_branch %s" % l0)
    lab(l1)
    e("s_mov_b64 exec, %s" % ex)

def nonce_fetch(regs_offs):
    l0, l1 = newlab("nf"), newlab("nf")
    lab(l0)
    for d, o in regs_offs:
        e("buffer_load_dword v%d, v%d, %s, 0 offen sc1" % (d, o, srd(SRD_DBG)))
    e("s_waitcnt vmcnt(0)")
    ds = [d for d, _ in regs_offs]
    e("v_min_u32 v94, v%d, v%d" % (ds[0], ds[-1]))
    for d in ds[1:-1]:
        e("v_min_u32 v94, v94, v%d" % d)
    e("v_cmp_eq_u32 vcc, 0, v94")
    e("s_cbranch_vccz %s" % l1)
    spin_guard(l1)
    e("s_sleep 16")
    e("s_branch %s" % l0)
    lab(l1)

def head_off(dst, h):
    e("v_and_b32 v%d, 15, v%d" % (dst, h))
    e("v_lshrrev_b32 v%d, 4, v%d" % (h, h))
    e("v_lshlrev_b32 v%d, 2, v%d" % (dst, dst))
    e("v_lshl_add_u32 v%d, v%d, 7, v%d" % (dst, h, dst))

def vtags(n):
    e("v_lshrrev_b32 v%d, 10, v%d" % (n + 1, n))
    e("v_lshrrev_b32 v%d, 20, v%d" % (n + 2, n))
    e("v_not_b32 v%d, v%d" % (n + 3, n))
    e("v_alignbit_b32 v%d, v%d, v%d, 30" % (n + 3, n + 3, n))

def stags():
    e("s_mov_b32 s%d, %s" % (S_TG, S_T0))
    e("s_lshr_b32 s%d, %s, 10" % (S_TG + 1, S_T0))
    e("s_lshr_b32 s%d, %s, 20" % (S_TG + 2, S_T0))
    e("s_not_b32 s%d, %s" % (S_TG + 3, S_T0))
    e("s_lshl_b32 s%d, s%d, 2" % (S_TG + 3, S_TG + 3))
    e("s_lshr_b32 %s, %s, 30" % (S_T0, S_T0))
    e("s_or_b32 s%d, s%d, %s" % (S_TG + 3, S_TG + 3, S_T0))

def ypack(r):
    for i in range(4):
        e("v_add_u32 v%d, 0x200, v%d" % (r + i, r + i))
    for i in range(4):
        e("v_bfi_b32 v%d, v%d, s%d, v%d" % (r + i, V_M10, S_TG + i, r + i))

def red8(a):
    e("s_nop 1")
    e("v_permlane32_swap_b32 v%d, v%d" % (a, a + 1))
    e("v_permlane32_swap_b32 v%d, v%d" % (a + 2, a + 3))
    e("s_nop 1")
    e("v_add_f32 v%d, v%d, v%d" % (a, a, a + 1))
    e("v_add_f32 v%d, v%d, v%d" % (a + 2, a + 2, a + 3))
    e("s_nop 1")
    e("v_permlane16_swap_b32 v%d, v%d" % (a, a + 2))
    e("s_nop 1")
    e("v_add_f32 v%d, v%d, v%d" % (a, a, a + 2))
    e("s_nop 1")
    e("v_add_f32_dpp v%d, v%d, v%d row_ror:8 row_mask:0xf bank_mask:0xf" % (a, a, a))

def helper():
    lab("L_helper")
    e("s_setprio 3")
    e("s_memrealtime s[4:5]")
    e("s_sub_u32 %s, %s, 4" % (S_W, S_W))
    e("s_lshl_b32 %s, %s, 1" % (S_I, S_B))
    e("s_add_u32 %s, %s, %s" % (S_I, S_I, S_HALF))
    e("v_lshrrev_b32 v24, 4, v0")
    e("v_and_b32 v25, 15, v0")
    e("s_lshl_b32 %s, %s, 6" % (S_T0, S_W))
    e("v_add_u32 v1, %s, v0" % S_T0)
    e("v_lshlrev_b32 v2, 4, v0")
    e("v_mov_b32 v%d, 0" % VZ)
    e("v_mov_b32 v%d, 0x3ff" % V_M10)
    e("s_cmp_ge_u32 %s, 2" % S_W)
    e("s_cbranch_scc1 L_h23")
    S_STR, S_COL, S_PUB, S_BS = "s68", "s69", "s70", "s71"
    e("s_and_b32 s73, s2, 7")
    e("s_lshr_b32 s75, s2, 3")
    e("s_mul_i32 %s, s73, 7" % S_T0)
    e("s_lshr_b32 %s, s75, 2" % S_T1)
    e("s_add_u32 %s, %s, %s" % (S_T0, S_T0, S_T1))
    e("s_cmp_lt_u32 s75, 28")
    e("s_cselect_b32 %s, %s, 99" % (S_C, S_T0))
    if "noffn" in XP or "noh1" in XP: e("s_mov_b32 %s, 99" % S_C)
    e("s_cmp_ge_u32 %s, 27" % S_T0)
    e("s_cselect_b32 %s, 27, 0" % S_T1)
    e("s_cselect_b32 %s, 1, 0" % S_A)
    e("s_sub_u32 %s, %s, %s" % (S_T0, S_T0, S_T1))
    e("s_lshl_b32 %s, %s, 1" % (S_T0, S_T0))
    e("s_and_b32 %s, s75, 1" % S_T1)
    e("s_add_u32 %s, %s, %s" % (S_T0, S_T0, S_T1))
    e("s_bfe_u32 %s, s75, 0x10001" % S_IT)
    e("s_lshl_b32 %s, %s, 6" % (S_COL, S_T0))
    e("s_lshl_b32 %s, %s, 9" % (S_T0, S_T0))
    e("s_mul_i32 %s, %s, 55296" % (S_PUB, S_A))
    e("s_add_u32 %s, %s, %s" % (S_PUB, S_PUB, S_T0))
    e("s_mul_i32 %s, %s, 27648" % (S_T0, S_IT))
    e("s_add_u32 %s, %s, %s" % (S_PUB, S_PUB, S_T0))
    e("s_add_u32 %s, %s, 0x%x" % (S_PUB, S_PUB, GX_OFF))
    e("s_lshl_b32 %s, %s, 2" % (S_T0, S_H))
    e("s_and_b32 %s, %s, 3" % (S_T1, S_I))
    e("s_add_u32 %s, %s, %s" % (S_T0, S_T0, S_T1))
    e("s_lshl_b32 %s, %s, 6" % (S_T1, S_T0))
    e("s_lshl_b32 s73, %s, 12" % S_H)
    e("s_lshl_b32 s75, %s, 9" % S_I)
    e("s_add_u32 s73, s73, s75")
    e("s_add_u32 s73, s73, 0x%x" % QX_OFF)
    e("s_lshr_b32 s75, %s, 2" % S_I)
    e("s_cmp_eq_u32 %s, 0" % S_W)
    e("s_cselect_b32 %s, %s, %s" % (S_COL, S_T1, S_COL))
    e("s_cselect_b32 %s, s73, %s" % (S_PUB, S_PUB))
    e("s_cselect_b32 %s, 0, %s" % (S_C, S_C))
    e("s_cselect_b32 %s, s75, %s" % (S_IT, S_IT))
    e("s_mul_i32 %s, %s, %d" % (S_STR, S_W, 8192 - 3456))
    e("s_sub_u32 %s, 8192, %s" % (S_STR, S_STR))
    e("s_mul_i32 s73, %s, %d" % (S_W, L_WF - L_WQ))
    e("s_add_u32 s75, s73, %d" % L_X0)
    e("s_add_u32 s73, s73, %d" % L_WQ)
    assert L_WF - L_WQ == L_X1 - L_X0
    e("s_mul_i32 %s, %s, 320" % (S_T0, S_IT))
    e("s_mul_i32 %s, %s, %s" % (S_T0, S_T0, S_STR))
    e("s_add_u32 %s, %s, %s" % (S_COL, S_COL, S_T0))
    e("v_lshrrev_b32 v26, 2, v0")
    e("v_mul_u32_u24 v26, %s, v26" % S_STR)
    e("v_and_b32 v27, 3, v0")
    e("v_lshl_add_u32 v26, v27, 4, v26")
    e("v_add_u32 v26, %s, v26" % S_COL)
    e("s_mul_i32 s%d, %s, 640" % (SRD_W + 2, S_STR))
    e("s_mov_b32 s%d, 0x00020000" % (SRD_W + 3))
    e("s_lshl_b32 %s, %s, 4" % (S_STR, S_STR))
    e("s_cmp_ge_u32 %s, 54" % S_C)
    e("s_cbranch_scc1 L_hb1")
    e("s_waitcnt lgkmcnt(0)")
    stamp(0)
    mk_srd(SRD_X, "s16", "s17", 5120)
    mk_srd(SRD_DBG, "s38", "s39", 256)
    e("s_cmp_lg_u32 %s, 0" % S_A)
    e("s_cselect_b32 s%d, s30, s28" % SRD_W)
    e("s_cselect_b32 s%d, s31, s29" % (SRD_W + 1))
    e("s_cmp_lg_u32 %s, 0" % S_W)
    e("s_cbranch_scc1 L_h1a")
    e("s_mov_b32 s%d, s22" % SRD_W)
    e("s_mov_b32 s%d, s23" % (SRD_W + 1))
    e("s_or_b32 s4, s4, 1")
    e("s_cmp_lg_u32 s2, 0")
    e("s_cbranch_scc1 L_h1a")
    e("v_mov_b32 v60, s4")
    e("s_mov_b64 exec, 1")
    e("buffer_store_dword v60, off, %s, 0 sc1" % srd(SRD_DBG))
    e("s_mov_b64 exec, -1")
    lab("L_h1a")
    e("s_mov_b32 m0, s75")
    e("s_mov_b32 %s, 0" % S_OFF)
    for k in range(4):
        e("buffer_load_dwordx4 v2, %s, 0 offen offset:%d lds" % (srd(SRD_X), 1024 * k))
    e("s_add_u32 m0, s75, 0x1000")
    e("s_mov_b32 %s, 0x1000" % S_T1)
    e("buffer_load_dwordx4 v2, %s, %s offen lds" % (srd(SRD_X), S_T1))
    e("s_mov_b32 m0, s73")
    e("s_nop 0")
    for t in range(20):
        e("buffer_load_dwordx4 v26, %s, %s offen nt lds" % (srd(SRD_W), S_OFF))
        if t < 19:
            e("s_add_u32 m0, m0, 0x400")
            e("s_add_u32 %s, %s, %s" % (S_OFF, S_OFF, S_STR))
    e("s_barrier")
    mk_ws()
    e("v_lshrrev_b32 v28, 2, v25")
    e("v_lshlrev_b32 v28, 6, v28")
    e("v_lshl_add_u32 v28, v24, 9, v28")
    e("v_lshl_add_u32 v28, v27, 3, v28")
    e("v_add_u32 v28, s73, v28")
    e("v_mul_u32_u24 v29, 1280, v27")
    e("v_lshl_add_u32 v29, v24, 4, v29")
    e("s_mul_i32 %s, %s, 640" % (S_T0, S_IT))
    e("s_add_u32 %s, %s, s75" % (S_T0, S_T0))
    e("v_add_u32 v29, %s, v29" % S_T0)
    e("v_lshlrev_b32 v30, 7, v27")
    e("v_lshl_add_u32 v30, v24, 4, v30")
    e("v_bfe_u32 v31, v0, 2, 1")
    e("v_lshl_add_u32 v30, v31, 6, v30")
    XF, WFR, ACC = 96, [176, 192], 32
    e("s_waitcnt vmcnt(20)")
    NK = xpv("nk", 1)
    for s in range(10):
        e("ds_read_b128 %s, v29 offset:%d" % (vr(XF + 4 * s), 64 * s))
    def mm(k):
        for s2 in range(2):
            s = 2 * k + s2
            for ct in range(2):
                e("%s %s, %s, %s, %s" % (MFMA, vr(ACC + 4 * ct), vr(WFR[k & 1] + 8 * s2 + 4 * ct), vr(XF + 4 * s), "0" if s == 0 else vr(ACC + 4 * ct)))
    for k in range(5):
        e("s_waitcnt vmcnt(%d)" % (16 - 4 * k + (1 if k > NK else 0)))
        if k == NK: e("buffer_load_dword v60, off, %s, 0 sc1" % srd(SRD_DBG))
        for s2 in range(2):
            s = 2 * k + s2
            for ct in range(2):
                r = WFR[k & 1] + 8 * s2 + 4 * ct
                e("ds_read_b64_tr_b16 %s, v28 offset:%d" % (vr(r, 2), 2048 * s + 32 * ct))
                e("ds_read_b64_tr_b16 %s, v28 offset:%d" % (vr(r + 2, 2), 2048 * s + 32 * ct + 256))
        if k:
            e("s_waitcnt lgkmcnt(8)")
            mm(k - 1)
    e("s_waitcnt lgkmcnt(0)")
    mm(4)
    lab("L_nw")
    e("s_waitcnt vmcnt(0)")
    e("v_readfirstlane_b32 %s, v60" % S_T0)
    e("s_cmp_lg_u32 %s, 0" % S_T0)
    e("s_cbranch_scc1 L_ng")
    spin_guard("L_ng")
    e("s_sleep 4")
    e("buffer_load_dword v60, off, %s, 0 sc1" % srd(SRD_DBG))
    e("s_branch L_nw")
    lab("L_ng")
    e("ds_write_b32 v%d, v60 offset:%d" % (VZ, L_CNT + 8))
    stags()
    e("s_nop 1")
    for i in range(4):
        e("v_mov_b32_dpp v%d, v%d quad_perm:[0,1,2,3] row_mask:0xf bank_mask:0x2" % (ACC + i, ACC + 4 + i))
    ypack(ACC)
    e("s_mov_b32 exec_lo, 0x00ff00ff")
    e("s_mov_b32 exec_hi, 0x00ff00ff")
    if "noqx" in XP:
        e("s_cmp_eq_u32 %s, 0" % S_W)
        e("s_cbranch_scc1 L_noqx")
    if "noh1pub" in XP:
        e("s_cmp_eq_u32 %s, 1" % S_W)
        e("s_cbranch_scc1 L_noqx")
    e("buffer_store_dwordx4 v[32:35], v30, %s, %s offen sc1" % (srd(SRD_WS), S_PUB))
    if "noqx" in XP or "noh1pub" in XP: lab("L_noqx")
    e("s_mov_b64 exec, -1")
    stamp(1)
    e("s_cmp_lg_u32 %s, 0" % S_W)
    e("s_cbranch_scc1 L_wo")
    e("s_lshl_b32 %s, %s, 5" % (S_OFF, S_H))
    e("s_add_u32 %s, %s, %s" % (S_OFF, S_OFF, S_B))
    e("s_lshl_b32 %s, %s, 7" % (S_OFF, S_OFF))
    e("s_add_u32 %s, %s, 0x%x" % (S_OFF, S_OFF, QX_OFF))
    e("v_lshrrev_b32 v48, 3, v0")
    e("v_lshlrev_b32 v48, 9, v48")
    e("v_and_b32 v3, 7, v0")
    e("v_lshl_add_u32 v48, v3, 4, v48")
    e("v_and_b32 v3, 31, v0")
    e("v_lshlrev_b32 v3, 3, v3")
    e("v_lshrrev_b32 v47, 5, v0")
    e("v_lshl_add_u32 v3, v47, 1, v3")
    if "noqx" not in XP: ypoll(["buffer_load_dwordx4 v[40:43], v48, %s, %s offen sc1" % (srd(SRD_WS), S_OFF)], [(40, 36)], 44, xpv("qsl", 0))
    else:
        for i in range(4): e("v_mov_b32 v%d, 0" % (40 + i))
    for i in range(4):
        e("v_and_b32 v%d, 0xfffffc00, v%d" % (40 + i, 40 + i))
    e("s_nop 0")
    e("v_permlane32_swap_b32 v40, v41")
    e("v_permlane32_swap_b32 v42, v43")
    e("s_nop 1")
    e("v_add_f32 v40, v40, v41")
    e("v_add_f32 v42, v42, v43")
    e("v_cvt_pk_bf16_f32 v40, v40, v42")
    e("ds_write_b16 v3, v40 offset:%d" % L_QB)
    e("ds_write_b16_d16_hi v3, v40 offset:%d" % (L_QB + 4))
    e("v_mov_b32 v40, 1")
    e("s_waitcnt lgkmcnt(0)")
    e("ds_write_b32 v%d, v40 offset:%d" % (VZ, L_CNT + 4))
    stamp(2)
    e("s_branch L_wo")

    lab("L_h23")
    e("s_cmp_eq_u32 %s, 2" % S_W)
    e("s_cbranch_scc1 L_hb1")
    for i in range(4):
        e("v_mov_b32 v%d, 0" % (44 + i))
    e("ds_write_b128 v%d, v[44:47] offset:%d" % (VZ, L_CNT))
    e("ds_write_b128 v%d, v[44:47] offset:%d" % (VZ, L_CNT + 16))
    lab("L_hb1")
    e("s_waitcnt lgkmcnt(0)")
    stamp(0)
    e("s_barrier")
    mk_ws()
    mk_srd(SRD_DBG, "s38", "s39", 256)
    e("s_cmp_eq_u32 %s, 2" % S_W)
    e("s_cbranch_scc1 L_h2")
    e("s_cmp_lg_u32 %s, 3" % S_W)
    e("s_cbranch_scc1 L_wo")
    if CTL:
        e("s_and_b32 %s, s2, 7" % S_T0)
        e("s_cmp_lg_u32 %s, 0" % S_T0)
        e("s_cbranch_scc1 L_nci")
        e("s_lshl_b32 %s, s2, 5" % S_T0)
        e("s_add_u32 %s, %s, 0x%x" % (S_T0, S_T0, CT_OFF))
        e("v_lshlrev_b32 v28, 13, v0")
        e("s_mov_b64 exec, 0xffff")
        e("buffer_store_dword v%d, v28, %s, %s offen sc1" % (VZ, srd(SRD_WS), S_T0))
        e("s_mov_b64 exec, -1")
        lab("L_nci")
    lds_wait(4, "1", 94, VZ, 4)
    if "nowarm" not in XP:
        e("s_getpc_b64 s[4:5]")
        lab("L_pc")
        e("s_sub_u32 s4, s4, L_pc-%s" % KNAME)
        e("s_subb_u32 s5, s5, 0")
        e("v_lshlrev_b32 v28, 7, v0")
        for i in range(NWARM):
            e("v_min_u32 v27, L_code_end-%s-4, v28" % KNAME)
            e("global_load_dword v89, v27, s[4:5]")
            e("v_add_u32 v28, 0x2000, v28")
    e("s_cmp_ge_u32 s2, %d" % NCONS)
    e("s_cbranch_scc1 L_wo")
    e("s_and_b32 s5, s2, 3")
    mk_srd(SRD_X, "s16", "s17", 5120)
    mk_srd(SRD_W, "s34", "s35", 1280)
    e("v_lshlrev_b32 v3, 2, v0")
    e("s_mul_i32 %s, s5, 1280" % S_T0)
    for k in range(5):
        e("buffer_load_dword v%d, v3, %s, %s offen offset:%d" % (64 + k, srd(SRD_X), S_T0, 256 * k))
        e("buffer_load_dword v%d, v3, %s, 0 offen offset:%d" % (72 + k, srd(SRD_W), 256 * k))
    e("s_waitcnt vmcnt(0)")
    G = V_G
    e("v_mov_b32 v%d, 0" % G)
    for k in range(5):
        e("v_lshlrev_b32 v80, 16, v%d" % (64 + k))
        e("v_and_b32 v81, 0xffff0000, v%d" % (64 + k))
        e("v_lshlrev_b32 v82, 16, v%d" % (72 + k))
        e("v_and_b32 v83, 0xffff0000, v%d" % (72 + k))
        e("v_mul_f32 v80, v80, v82")
        e("v_mul_f32 v81, v81, v83")
        e("v_cvt_pk_bf16_f32 v80, v80, v81")
        e("v_lshlrev_b32 v81, 16, v80")
        e("v_and_b32 v80, 0xffff0000, v80")
        e("v_add_f32 v%d, v%d, v81" % (G, G))
        e("v_add_f32 v%d, v%d, v80" % (G, G))
    allreduce64("add", G, 80)
    bf16r(G)
    e("v_mul_f32 v%d, 0xbfb8aa3b, v%d" % (G, G))
    e("v_exp_f32 v%d, v%d" % (G, G))
    e("s_nop 0")
    e("v_add_f32 v%d, 1.0, v%d" % (G, G))
    e("v_rcp_f32 v%d, v%d" % (G, G))
    e("s_nop 0")
    bf16r(G)
    e("s_branch L_wo")

    lab("L_h2")
    e("s_cmp_lt_u32 s2, %d" % (NWG - NF2 if "noffn" not in XP and "noh2" not in XP else 1000))
    e("s_cbranch_scc1 L_wo")
    S_RG, S_CB = "s68", "s69"
    e("s_sub_u32 %s, 255, s2" % S_T0)
    e("s_mul_i32 %s, %s, 205" % (S_RG, S_T0))
    e("s_lshr_b32 %s, %s, 11" % (S_RG, S_RG))
    e("s_mul_i32 %s, %s, 10" % (S_T1, S_RG))
    e("s_sub_u32 %s, %s, %s" % (S_CB, S_T0, S_T1))
    e("v_lshrrev_b32 v26, 3, v0")
    e("v_mul_u32_u24 v26, 1280, v26")
    e("v_and_b32 v27, 7, v0")
    e("v_lshl_add_u32 v26, v27, 4, v26")
    e("s_mul_i32 %s, %s, %d" % (S_OFF, S_RG, 96 * 1280))
    e("s_lshl_b32 %s, %s, 7" % (S_T0, S_CB))
    e("s_add_u32 %s, %s, %s" % (S_OFF, S_OFF, S_T0))
    mk_srd(SRD_W, "s32", "s33", 1728 * 1280)
    e("v_cmp_le_u32 vcc, 24, v0")
    e("v_mov_b32 v28, 24")
    e("v_mov_b32 v29, 128")
    e("v_cndmask_b32 v28, 0, v28, vcc")
    e("v_cndmask_b32 v29, 0, v29, vcc")
    e("v_sub_u32 v28, v0, v28")
    e("v_min_u32 v28, 23, v28")
    e("v_and_b32 v31, 7, v28")
    e("v_lshl_add_u32 v29, v31, 4, v29")
    e("v_lshrrev_b32 v31, 3, v28")
    e("v_lshl_add_u32 v29, v31, 9, v29")
    e("v_mov_b32 v30, 192")
    e("v_cndmask_b32 v30, 0, v30, vcc")
    e("v_lshl_add_u32 v30, v28, 3, v30")
    e("s_mul_i32 %s, %s, 1536" % (S_IT, S_RG))
    e("s_add_u32 %s, %s, 0x%x" % (S_IT, S_IT, GX_OFF))
    e("s_add_u32 s70, %s, 27648" % S_IT)
    e("s_add_u32 s71, %s, 55296" % S_IT)
    e("s_add_u32 s73, %s, %d" % (S_IT, 55296 + 27648))
    lds_wait(4, "1", 94, VZ, 4)
    e("s_mov_b32 m0, %d" % L_WQ)
    e("s_nop 0")
    for t in range(12):
        e("buffer_load_dwordx4 v26, %s, %s offen nt lds" % (srd(SRD_W), S_OFF))
        if t < 11:
            e("s_add_u32 m0, m0, 0x400")
            e("s_add_u32 %s, %s, %d" % (S_OFF, S_OFF, 8 * 1280))
    e("ds_read_b32 v94, v%d offset:%d" % (VZ, L_CNT + 8))
    e("s_waitcnt lgkmcnt(0)")
    e("v_readfirstlane_b32 %s, v94" % S_T0)
    stags()
    e("s_mov_b32 exec_hi, 0xffff")
    e("s_mov_b64 s[4:5], exec")
    SO = [S_IT, "s70", "s71", "s73"]
    if "noh2poll" not in XP: ypoll(["buffer_load_dwordx4 %s, v29, %s, %s offen offset:%d sc1" % (vr(40 + 16 * bb + 4 * k), srd(SRD_WS), SO[k], 256 * bb) for bb in range(2) for k in range(4)],
          [(40 + 16 * bb + 4 * k, 72 + 4 * k) for bb in range(2) for k in range(4)], 31, 16, "s[4:5]")
    for r in range(40, 72):
        e("v_and_b32 v%d, 0xfffffc00, v%d" % (r, r))
    for bb in range(2):
        g = 40 + 16 * bb
        for i in range(4):
            e("v_add_f32 v%d, v%d, v%d" % (g + i, g + i, g + 4 + i))
            e("v_add_f32 v%d, v%d, v%d" % (g + 8 + i, g + 8 + i, g + 12 + i))
        for k in range(2):
            e("v_cvt_pk_bf16_f32 v%d, v%d, v%d" % (g + 4 + k, g + 2 * k, g + 2 * k + 1))
            e("v_cvt_pk_bf16_f32 v%d, v%d, v%d" % (g + 12 + k, g + 8 + 2 * k, g + 8 + 2 * k + 1))
        for k in range(2):
            e("v_lshlrev_b32 v31, 16, v%d" % (g + 4 + k))
            e("v_and_b32 v32, 0xffff0000, v%d" % (g + 4 + k))
            e("v_lshlrev_b32 v33, 16, v%d" % (g + 12 + k))
            e("v_and_b32 v34, 0xffff0000, v%d" % (g + 12 + k))
            e("v_mul_f32 v31, v31, v33")
            e("v_mul_f32 v32, v32, v34")
            e("v_cvt_pk_bf16_f32 v%d, v31, v32" % (g + k))
        e("ds_write_b64 v30, %s offset:%d" % (vr(g, 2), L_HT + 384 * bb))
    e("s_mov_b64 exec, -1")
    stamp(3)
    e("v_lshlrev_b32 v28, 10, v24")
    e("v_lshrrev_b32 v29, 2, v25")
    e("v_lshl_add_u32 v28, v29, 7, v28")
    e("v_and_b32 v29, 3, v0")
    e("v_lshl_add_u32 v28, v29, 3, v28")
    e("v_mul_u32_u24 v29, 192, v29")
    e("v_lshl_add_u32 v29, v24, 4, v29")
    e("s_waitcnt lgkmcnt(0)")
    HF, WF, AC = 96, 112, 160
    for s in range(3):
        e("ds_read_b128 %s, v29 offset:%d" % (vr(HF + 4 * s), L_HT + 64 * s))
    for s in range(3):
        for nt in range(4):
            r = WF + 16 * s + 4 * nt
            e("ds_read_b64_tr_b16 %s, v28 offset:%d" % (vr(r, 2), L_WQ + 4096 * s + 32 * nt))
            e("ds_read_b64_tr_b16 %s, v28 offset:%d" % (vr(r + 2, 2), L_WQ + 4096 * s + 32 * nt + 512))
    e("v_bfe_u32 v30, v0, 3, 1")
    e("v_lshlrev_b32 v30, 2, v30")
    e("v_and_b32 v31, 3, v0")
    e("v_add_u32 v30, v30, v31")
    e("v_lshlrev_b32 v30, 7, v30")
    e("v_bfe_u32 v31, v0, 2, 1")
    e("v_lshl_add_u32 v30, v31, 6, v30")
    e("v_lshl_add_u32 v30, v24, 4, v30")
    e("s_sub_u32 %s, 255, s2" % S_OFF)
    e("s_lshl_b32 %s, %s, 10" % (S_OFF, S_OFF))
    e("s_add_u32 %s, %s, 0x%x" % (S_OFF, S_OFF, F_OFF))
    e("s_waitcnt lgkmcnt(0)")
    for s in range(3):
        for nt in range(4):
            e("%s %s, %s, %s, %s" % (MFMA, vr(AC + 4 * nt), vr(WF + 16 * s + 4 * nt), vr(HF + 4 * s), "0" if s == 0 else vr(AC + 4 * nt)))
    e("s_nop 7")
    e("s_nop 3")
    for nt in range(1, 4):
        for i in range(4):
            e("v_mov_b32_dpp v%d, v%d row_shr:%d row_mask:0xf bank_mask:0x%x" % (AC + i, AC + 4 * nt + i, 4 * nt, 1 << nt))
    ypack(AC)
    if "noh2st" not in XP: e("buffer_store_dwordx4 %s, v30, %s, %s offen sc1" % (vr(AC), srd(SRD_WS), S_OFF))
    e("s_waitcnt vmcnt(0)")
    stamp(4)

    lab("L_wo")
    e("v_lshlrev_b32 v25, 4, v25")
    e("s_lshl_b32 %s, %s, 7" % (S_T0, S_H))
    e("s_lshl_b32 %s, %s, 5" % (S_T1, S_W))
    e("s_add_u32 %s, %s, %s" % (S_T0, S_T0, S_T1))
    e("s_mul_i32 %s, %s, 1280" % (S_T0, S_T0))
    e("v_mul_u32_u24 v27, 0x%x, v24" % (8 * 1280))
    e("v_add3_u32 v27, v27, v25, %s" % S_T0)
    mk_srd(SRD_W, "s24", "s25", 4096 * 1280)
    e("s_mov_b32 %s, 0" % S_T1)
    lds_wait(4, "1", 94, VZ, 4)
    CW = xpv("cwin", 12)
    if CTL:
        e("s_cmp_eq_u32 %s, 1" % S_W)
        e("s_cselect_b64 vcc, -1, 0")
    for g in range(0 if "nowo" in XP else 8):
        for cb in range(5):
            if g * 5 + cb >= WO_WIN:
                if CTL:
                    if g * 5 + cb >= CW: e("s_waitcnt vmcnt(%d)" % (CW - 1))
                    e("s_cbranch_vccnz 1")
                e("s_waitcnt vmcnt(%d)" % (WO_WIN - 1))
            e("buffer_load_dwordx4 %s, v27, %s, %s offen offset:%d nt" % (vr(W(g * 5 + cb)), srd(SRD_W), S_T1, cb * 256))
        if g < 7: e("s_add_u32 %s, %s, 1280" % (S_T1, S_T1))
    e("ds_read_b32 v94, v%d offset:%d" % (VZ, L_CNT + 8))
    sel_pv(4, 28)
    e("v_and_b32 v26, 31, v0")
    e("v_and_b32 v27, 15, v26")
    e("v_lshlrev_b32 v27, 5, v27")
    e("v_lshrrev_b32 v26, 4, v26")
    e("v_lshl_add_u32 v27, v26, 4, v27")
    e("v_lshrrev_b32 v26, 5, v0")
    e("s_mul_i32 %s, %s, 5120" % (S_T0, S_W))
    e("s_add_u32 %s, %s, %d" % (S_T0, S_T0, L_YP))
    e("v_mul_u32_u24 v8, 2560, v26")
    e("v_add3_u32 v8, v8, v27, %s" % S_T0)
    e("v_lshlrev_b32 v9, 5, v24")
    e("s_lshl_b32 %s, %s, 7" % (S_T0, S_W))
    e("s_add_u32 %s, %s, %d" % (S_T0, S_T0, L_OP))
    e("v_add_u32 v9, %s, v9" % S_T0)
    e("v_lshlrev_b32 v10, 4, v1")
    e("v_lshlrev_b32 v11, 4, v1")
    e("v_add_u32 v11, 0x%x, v11" % L_YP)
    e("s_waitcnt lgkmcnt(0)")
    e("v_readfirstlane_b32 %s, v94" % S_T0)
    e("v_mov_b32 v62, v94")
    e("v_xor_b32 v63, %s, v94" % TAGX)
    stags()
    e("s_lshl_b32 %s, %s, 1" % (S_IT, S_BH))
    e("s_add_u32 %s, %s, %s" % (S_IT, S_IT, S_HALF))
    e("s_mul_i32 %s, %s, 2560" % (S_IT, S_IT))
    e("s_and_b32 %s, s2, 3" % S_C)
    e("s_lshl_b32 %s, %s, 2" % (S_C, S_C))
    e("s_add_u32 %s, %s, %s" % (S_C, S_C, S_W))
    e("s_mul_i32 %s, %s, %d" % (S_C, S_C, 16 * 2560))
    e("s_lshr_b32 %s, s2, 2" % S_T1)
    e("s_lshl_b32 %s, %s, 7" % (S_T1, S_T1))
    e("s_add_u32 %s, %s, %s" % (S_C, S_C, S_T1))
    e("s_add_u32 %s, %s, %d" % (S_A, S_C, 8 * 2560))
    e("v_and_b32 v86, 7, v0")
    e("v_lshlrev_b32 v86, 4, v86")
    e("v_bfe_u32 v87, v0, 4, 1")
    e("v_lshl_add_u32 v86, v87, 3, v86")
    e("v_lshrrev_b32 v87, 5, v0")
    e("v_lshl_add_u32 v86, v87, 2, v86")
    e("v_lshrrev_b32 v87, 3, v0")
    e("v_mul_u32_u24 v87, 2560, v87")
    e("v_and_b32 v28, 7, v0")
    e("v_lshl_add_u32 v87, v28, 4, v87")
    e("s_waitcnt vmcnt(0)")
    stamp(5)
    e("s_cmp_ge_u32 s2, %d" % NCONS)
    e("s_cbranch_scc1 L_nc")
    e("s_cmp_lg_u32 %s, 3" % S_W)
    e("s_cbranch_scc1 L_nc")
    e("s_lshr_b32 %s, s2, 3" % S_T1)
    e("v_lshrrev_b32 v30, 3, v0")
    e("v_and_b32 v29, 7, v0")
    e("v_lshlrev_b32 v29, 4, v29")
    for k in range(3):
        e("v_add_u32 v31, %d, v30" % (8 * k))
        if k == 2: e("v_min_u32 v31, 17, v31")
        e("v_mul_u32_u24 v31, 10240, v31")
        e("v_add_u32 v%d, v31, v29" % (36 + k))
    e("s_lshl_b32 %s, s2, 7" % S_OFF)
    e("s_add_u32 %s, %s, 0x%x" % (S_OFF, S_OFF, F_OFF))
    lds_wait(0, "1", 94, VZ, 16)
    if "noffn" not in XP and "noh3poll" not in XP: ypoll(["buffer_load_dwordx4 %s, v%d, %s, %s offen sc1" % (vr(40 + 4 * k), 36 + k, srd(SRD_WS), S_OFF) for k in range(3)],
          [(40, 64), (44, 68), (48, 72)], 52, 32)
    e("v_cmp_gt_u32 vcc, 16, v0")
    for i in range(4):
        e("v_add_f32 v%d, v%d, v%d" % (40 + i, 40 + i, 44 + i))
    for i in range(4):
        e("v_cndmask_b32 v%d, 0, v%d, vcc" % (48 + i, 48 + i))
    for i in range(4):
        e("v_add_f32 v%d, v%d, v%d" % (40 + i, 40 + i, 48 + i))
    red8(40)
    e("ds_write_b32 v86, v40 offset:%d" % (L_R + 512))
    e("v_lshlrev_b32 v30, 2, v0")
    e("v_and_b32 v30, 127, v30")
    e("v_sub_f32 v31, 1.0, v%d" % V_G)
    bf16r(31)
    e("s_waitcnt lgkmcnt(0)")
    e("ds_read_b32 v%d, v30 offset:%d" % (V_FB, L_R + 512))
    e("s_waitcnt lgkmcnt(0)")
    bf16r(V_FB)
    e("v_mul_f32 v%d, v31, v%d" % (V_FB, V_FB))
    bf16r(V_FB)
    lab("L_nc")
    if CTL:
        e("s_cmp_lg_u32 %s, 1" % S_W)
        e("s_cbranch_scc1 L_nctl")
        e("s_lshr_b32 %s, s2, 3" % S_OFF)
        e("s_lshl_b32 %s, %s, 8" % (S_OFF, S_OFF))
        e("s_add_u32 %s, %s, 0x%x" % (S_OFF, S_OFF, CT_OFF))
        e("s_mov_b32 s68, %d" % (4 * MB0))
        lab("L_ctl")
        lds_wait(12, "s68", 94, VZ, xpv("csl", 8))
        e("v_mov_b32 v40, 1")
        e("s_mov_b64 exec, 1")
        e("buffer_atomic_add v40, off, %s, %s sc0 sc1" % (srd(SRD_WS), S_OFF))
        e("s_waitcnt vmcnt(0)")
        e("v_readfirstlane_b32 %s, v40" % S_T0)
        e("s_cmp_lt_u32 %s, %d" % (S_T0, T1))
        e("s_cselect_b32 %s, 1, 0" % S_T1)
        e("s_cmp_lt_u32 %s, %d" % (S_T0, T2))
        e("s_cselect_b32 %s, 2, %s" % (S_T1, S_T1))
        e("v_mov_b32 v40, %s" % S_T1)
        e("ds_write_b32 v%d, v40 offset:%d" % (VZ, L_CNT + 16))
        e("s_mov_b64 exec, -1")
        e("s_add_u32 s68, s68, %d" % (4 * MST))
        e("s_add_u32 %s, %s, 0x2000" % (S_OFF, S_OFF))
        e("s_cmp_le_u32 s68, %d" % (4 * MBL))
        e("s_cbranch_scc1 L_ctl")
        lab("L_nctl")
    e("s_cmp_lg_u32 %s, 0" % S_W)
    e("s_cbranch_scc1 L_h9")
    e("v_and_b32 v12, 3, v0")
    e("v_lshlrev_b32 v13, 2, v12")
    e("v_lshlrev_b32 v12, 3, v12")
    e("s_and_b32 %s, s2, 127" % S_OFF)
    e("s_lshl_b32 %s, %s, 7" % (S_OFF, S_OFF))
    e("s_add_u32 %s, %s, 0x%x" % (S_OFF, S_OFF, RC_OFF))
    e("s_lshl_b32 %s, %s, 6" % (S_T1, S_HALF))
    e("s_add_u32 s68, %s, %s" % (S_OFF, S_T1))
    e("s_xor_b32 s69, s68, 64")
    lds_wait(0, "4", 94, VZ, 8)
    e("ds_read_b64 v[14:15], v12 offset:%d" % L_ML)
    e("s_waitcnt lgkmcnt(0)")
    e("v_mov_b32 v60, v14")
    allreduce4("max", 60)
    e("v_sub_f32 v16, v14, v60")
    e("v_mul_f32 v16, %s, v16" % LOG2E)
    e("v_exp_f32 v16, v16")
    e("s_nop 0")
    e("v_mul_f32 v61, v16, v15")
    allreduce4("add", 61)
    e("s_mov_b64 exec, 1")
    if "nopair" not in XP: e("buffer_store_dwordx4 v[60:63], off, %s, s68 sc1" % srd(SRD_WS))
    e("s_mov_b64 exec, -1")
    stamp(6)
    if "nopair" not in XP: tpoll(["buffer_load_dwordx4 v[40:43], off, %s, s69 sc1" % srd(SRD_WS)], [(40, 62, 63)], xpv("rsl", 32))
    e("v_max_f32 v17, v60, v40")
    e("v_sub_f32 v60, v60, v17")
    e("v_sub_f32 v40, v40, v17")
    e("v_sub_f32 v14, v14, v17")
    e("v_mul_f32 v60, %s, v60" % LOG2E)
    e("v_mul_f32 v40, %s, v40" % LOG2E)
    e("v_mul_f32 v14, %s, v14" % LOG2E)
    e("v_exp_f32 v60, v60")
    e("v_exp_f32 v40, v40")
    e("v_exp_f32 v14, v14")
    e("v_mul_f32 v61, v60, v61")
    e("v_fmac_f32 v61, v40, v41")
    e("v_rcp_f32 v61, v61")
    e("s_nop 0")
    e("v_mul_f32 v14, v14, v61")
    e("ds_write_b32 v13, v14 offset:%d" % L_SC)
    e("s_waitcnt lgkmcnt(0)")
    lab("L_h9")
    e("s_mov_b32 %s, 0x05040100" % S_T0)
    e("s_mov_b32 %s, 0x07060302" % S_T1)
    stamp(7)
    e("s_barrier")
    O = 32
    e("ds_read_b128 v[64:67], v%d offset:%d" % (VZ, L_SC))
    for w in range(4):
        e("ds_read_b128 %s, v9 offset:%d" % (vr(O + 8 * w), w * 512))
        e("ds_read_b128 %s, v9 offset:%d" % (vr(O + 8 * w + 4), w * 512 + 16))
    e("s_waitcnt lgkmcnt(6)")
    for i in range(8):
        e("v_mul_f32 v%d, v64, v%d" % (O + i, O + i))
    for w in range(1, 4):
        e("s_waitcnt lgkmcnt(%d)" % (6 - 2 * w))
        for i in range(8):
            e("v_fmac_f32 v%d, v%d, v%d" % (O + i, 64 + w, O + 8 * w + i))
    for k in range(4):
        hilo_pack(O + 2 * k, O + 2 * k + 1, O + 8 + 3 * k)
    AB = [64, 68]
    YA = 12
    def perms(g):
        for i in range(4):
            e("v_perm_b32 v%d, v%d, v%d, v%d" % (AB[g & 1] + i, O + g, O + g, 4 + i))
    perms(0)
    e("s_nop 1")
    for g in range(8):
        for cb in range(5):
            e("%s %s, %s, %s, %s" % (MFMA, vr(YA + 4 * cb), vr(AB[g & 1]), vr(W(g * 5 + cb)), "0" if g == 0 else vr(YA + 4 * cb)))
            if cb == 0 and g < 7: perms(g + 1)
    e("v_cmp_gt_u32 vcc, 160, v1")
    e("s_nop 7")
    for cb in range(5):
        e("ds_write_b128 v8, %s offset:%d" % (vr(YA + 4 * cb), cb * 512))
    e("s_waitcnt lgkmcnt(0)")
    e("s_barrier")
    e("s_and_saveexec_b64 s[70:71], vcc")
    e("s_cbranch_execz L_h10")
    for p in range(8):
        e("ds_read_b128 %s, v11 offset:%d" % (vr(O + 4 * p), p * 2560))
    for p in (1, 3, 5, 7):
        e("s_waitcnt lgkmcnt(%d)" % (7 - p))
        for i in range(4):
            e("v_add_f32 v%d, v%d, v%d" % (O + 4 * (p - 1) + i, O + 4 * (p - 1) + i, O + 4 * p + i))
    for i in range(4):
        e("v_add_f32 v%d, v%d, v%d" % (O + i, O + i, O + 8 + i))
        e("v_add_f32 v%d, v%d, v%d" % (O + 16 + i, O + 16 + i, O + 24 + i))
    for i in range(4):
        e("v_add_f32 v%d, v%d, v%d" % (O + i, O + i, O + 16 + i))
    ypack(O)
    e("buffer_store_dwordx4 %s, v10, %s, %s offen sc1" % (vr(O), srd(SRD_WS), S_IT))
    lab("L_h10")
    e("s_mov_b64 exec, -1")
    stamp(8)
    e("s_cmp_ge_u32 s2, %d" % NCONS)
    e("s_cbranch_scc1 L_hend")
    ypoll(["buffer_load_dwordx4 v[12:15], v87, %s, %s offen sc1" % (srd(SRD_WS), S_C),
           "buffer_load_dwordx4 v[16:19], v87, %s, %s offen sc1" % (srd(SRD_WS), S_A)], [(12, 76), (16, 80)], 20, 0)
    for i in range(4):
        e("v_add_f32 v%d, v%d, v%d" % (12 + i, 12 + i, 16 + i))
    e("s_lshl_b32 %s, %s, 7" % (S_T0, S_W))
    e("v_add_u32 v86, %s, v86" % S_T0)
    red8(12)
    e("ds_write_b32 v86, v12 offset:%d" % L_R)
    e("v_lshlrev_b32 v12, 2, v0")
    e("s_waitcnt lgkmcnt(0)")
    e("s_barrier")
    e("s_cmp_lg_u32 %s, 3" % S_W)
    e("s_cbranch_scc1 L_hend")
    e("s_mov_b32 exec_hi, 0")
    for w in range(4):
        e("ds_read_b32 v%d, v12 offset:%d" % (8 + w, L_R + w * 128))
    mk_srd(SRD_X, "s36", "s37", 5120)
    e("s_and_b32 s5, s2, 3")
    e("s_mul_i32 %s, s5, 1280" % S_T0)
    e("s_lshr_b32 %s, s2, 2" % S_T1)
    e("s_lshl_b32 %s, %s, 6" % (S_T1, S_T1))
    e("s_add_u32 %s, %s, %s" % (S_T0, S_T0, S_T1))
    e("v_lshlrev_b32 v12, 1, v0")
    e("s_waitcnt lgkmcnt(0)")
    e("v_add_f32 v8, v8, v9"); e("v_add_f32 v10, v10, v11")
    e("v_add_f32 v8, v8, v10")
    bf16r(8)
    e("v_mul_f32 v8, v%d, v8" % V_G)
    bf16r(8)
    e("v_add_f32 v8, v8, v%d" % V_FB)
    e("v_cvt_pk_bf16_f32 v8, v8, v8")
    e("buffer_store_short v8, v12, %s, %s offen" % (srd(SRD_X), S_T0))
    lab("L_hend")
    stamp(9)
    stamps_out(4)


def main():
    ref = open("cdna_kernels/%s.s.ref" % NAME).read().split("\n")
    head = []
    for ln in ref:
        if ln.startswith("; @launch"):
            break
        head.append(ln)
    out = head + ["; @launch grid=(%d,1,1) block=(512,1,1) lds=%d" % (NWG, LDS_BYTES)]
    out += ['.amdgcn_target "amdgcn-amd-amdhsa--gfx950"', ".text", ".globl " + KNAME, ".p2align 8",
            ".type %s,@function" % KNAME, KNAME + ":"]
    e("s_cmp_ge_u32 s2, %d" % NWG)
    e("s_cbranch_scc1 L_end")
    e("s_load_dwordx16 s[16:31], s[0:1], 0")
    e("s_load_dwordx8 s[32:39], s[0:1], 64")
    e("s_load_dwordx2 s[40:41], s[0:1], 96")
    e("v_lshrrev_b32 v1, 6, v0")
    e("v_and_b32 v0, 63, v0")
    e("s_mov_b32 s72, 0")
    e("v_readfirstlane_b32 %s, v1" % S_W)
    e("s_and_b32 s4, s2, 7")
    e("s_lshr_b32 s5, s2, 3")
    e("s_and_b32 %s, s5, 3" % S_H)
    e("s_lshl_b32 %s, %s, 3" % (S_H, S_H))
    e("s_add_u32 %s, %s, s4" % (S_H, S_H))
    e("s_lshr_b32 %s, s5, 2" % S_B)
    e("s_and_b32 %s, %s, 3" % (S_B, S_B))
    e("s_lshr_b32 %s, s5, 4" % S_HALF)
    e("s_lshl_b32 %s, %s, 5" % (S_BH, S_B))
    e("s_add_u32 %s, %s, %s" % (S_BH, S_BH, S_H))
    if TS:
        for i in range(NSTAMP): e("s_mov_b32 s%d, 0" % (76 + 2 * i))
    e("s_cmp_ge_u32 %s, 4" % S_W)
    e("s_cbranch_scc1 L_helper")
    streamer()
    helper()
    lab("L_end")
    e("s_endpgm")
    lab("L_code_end")
    out += L
    out += ['.section .rodata,"a"', ".p2align 6", ".amdhsa_kernel " + KNAME,
            "  .amdhsa_next_free_vgpr 256", "  .amdhsa_next_free_sgpr %d" % (96 if TS else 80), "  .amdhsa_accum_offset 256",
            "  .amdhsa_group_segment_fixed_size 0", "  .amdhsa_kernarg_size 104",
            "  .amdhsa_user_sgpr_count 2", "  .amdhsa_user_sgpr_kernarg_segment_ptr 1",
            "  .amdhsa_system_sgpr_workgroup_id_x 1", "  .amdhsa_float_denorm_mode_32 3",
            ".end_amdhsa_kernel", ""]
    open(OUT, "w").write("\n".join(out))

main()
```

```python
import sys

NAME = "gated_mix__mha_block_cached__glu_gated_bilinear__decode"
KNAME = NAME + "_kernel"
TS = "--ts" in sys.argv
XP = [a[2:] for a in sys.argv if a.startswith("--")]
OUT = [a for a in sys.argv[1:] if not a.startswith("--")]
OUT = OUT[0] if OUT else "cdna_kernels/%s.s" % NAME
def xpv(name, default):
    for a in XP:
        if a.startswith(name + "="): return int(a.split("=")[1])
    return default

NWG, NCONS, NF2 = 256, 80, 180
NWARM = 3
Y_OFF = 0
F_OFF = 0xA0000
QX_OFF = 0xD0000
GX_OFF = 0xF0000
RC_OFF = 0x10C000
CT_OFF = 0x110000
WS_USED = 0x130000
WS_BASE = xpv("wsmb", 0) << 20
DBG_WS = 8 << 20
WS_REC = (WS_USED if not TS else (64 << 20))
D = xpv("d", 8)
C0 = xpv("c0", 12)
WO_WIN = xpv("wowin", 3)
NB = 8
FC = "nofc" not in XP
XK = [0, xpv("xk1", 1), xpv("xk2", 2)]
XV = [0, xpv("xv1", 2), xpv("xv2", 4)]
KDL, DLT = xpv("kdl", 250), xpv("dlt", 221)
TH1, TH2 = xpv("th1", 0), xpv("th2", 60)
CA, CC = xpv("ca", 1), xpv("cc", 0)
def sched(n): return (min(n, 5) - 1) * KDL + max(n - 5, 0) * DLT
V_ONE, V_FLAG, S_FLAG = 40, 41, "s69"
assert D % 4 == 0 and 4 <= D <= 16

P_ROW = 64 * NB + 16
P_WAVE = 4 * P_ROW
L_QB = 8448
L_OP = 8704
L_ML = 10752
L_CNT = 10784
L_SC = 10816
L_R = 10880
L_HT = 11904
L_WQ = 12800
L_X0 = 33280
L_WF = 38400
L_YP = L_WF
L_X1 = 58880
LDS_BYTES = 64000
assert 4 * P_WAVE <= L_QB

L = []
def e(s): L.append("    " + s)
def lab(s): L.append(s + ":")
def cmt(s): L.append("    ; " + s)
def vr(a, n=4): return "v[%d:%d]" % (a, a + n - 1)

S_W, S_H, S_B, S_HALF, S_BH = "s3", "s6", "s7", "s8", "s9"
S_OFF, S_IT, S_T0, S_T1, S_A = "s10", "s11", "s12", "s13", "s14"
S_C, S_I = "s15", "s74"
SRD_S, SRD_W, SRD_WS, SRD_DBG, SRD_X = 44, 48, 52, 56, 60
S_TG = 64
S_P = 68
def srd(n): return "s[%d:%d]" % (n, n + 3)
def mk_srd(n, lo, hi, nrec):
    e("s_mov_b32 s%d, %s" % (n, lo))
    e("s_mov_b32 s%d, %s" % (n + 1, hi))
    e("s_mov_b32 s%d, 0x%x" % (n + 2, nrec))
    e("s_mov_b32 s%d, 0x00020000" % (n + 3))
def mk_ws():
    if WS_BASE:
        e("s_add_u32 s%d, s40, 0x%x" % (SRD_WS, WS_BASE))
        e("s_addc_u32 s%d, s41, 0" % (SRD_WS + 1))
        e("s_mov_b32 s%d, 0x%x" % (SRD_WS + 2, WS_USED))
        e("s_mov_b32 s%d, 0x00020000" % (SRD_WS + 3))
    else:
        mk_srd(SRD_WS, "s40", "s41", WS_USED)

BUF = 64
WREG = 96
def B(i): return BUF + 4 * i
def W(i): return WREG + 4 * i

LOG2E = "0x3fb8aa3b"
SCALE = "0x3db504f3"
MFMA = "v_mfma_f32_16x16x32_bf16"
TAGX = "0x9e3779b9"

def sel_pv(dst, t):
    a, b, c = t, t + 1, t + 2
    e("v_mov_b32 v%d, 0x100" % a)
    e("v_mov_b32 v%d, 0x302" % b)
    e("v_and_b32 v%d, 8, v0" % c)
    e("v_cmp_ne_u32 vcc, 0, v%d" % c)
    e("s_nop 1")
    e("v_cndmask_b32 v%d, v%d, v%d, vcc" % (a, a, b))
    e("v_or_b32 v%d, 0x0c0c0000, v%d" % (b, a))
    e("v_lshlrev_b32 v%d, 16, v%d" % (a, a))
    e("v_or_b32 v%d, 0x0c0c, v%d" % (a, a))
    e("v_and_b32 v%d, 1, v0" % c)
    e("v_cmp_ne_u32 vcc, 0, v%d" % c)
    e("s_nop 1")
    e("v_cndmask_b32 v%d, v%d, v%d, vcc" % (a, b, a))
    e("v_mov_b32 v%d, 0x0c0c0c0c" % b)
    e("v_bfe_u32 v%d, v0, 1, 2" % c)
    for i in range(4):
        e("v_cmp_eq_u32 vcc, %d, v%d" % (i, c))
        e("s_nop 1")
        e("v_cndmask_b32 v%d, v%d, v%d, vcc" % (dst + i, b, a))

def allreduce64(op, v, t):
    for r in (8, 4, 2, 1):
        e("s_nop 1")
        e("v_%s_f32_dpp v%d, v%d, v%d row_ror:%d row_mask:0xf bank_mask:0xf" % (op, v, v, v, r))
    for sw in ("16", "32"):
        e("v_mov_b32 v%d, v%d" % (t, v))
        e("s_nop 1")
        e("v_permlane%s_swap_b32 v%d, v%d" % (sw, v, t))
        e("s_nop 1")
        e("v_%s_f32 v%d, v%d, v%d" % (op, v, v, t))

def allreduce4(op, v):
    for m in ("quad_perm:[1,0,3,2]", "quad_perm:[2,3,0,1]"):
        e("s_nop 1")
        e("v_%s_f32_dpp v%d, v%d, v%d %s row_mask:0xf bank_mask:0xf" % (op, v, v, v, m))

def bf16r(v):
    e("v_cvt_pk_bf16_f32 v%d, v%d, v%d" % (v, v, v))
    e("v_lshlrev_b32 v%d, 16, v%d" % (v, v))

def hilo_pack(a, b, t):
    e("v_cvt_pk_bf16_f32 v%d, v%d, v%d" % (t, a, b))
    e("v_lshlrev_b32 v%d, 16, v%d" % (t + 1, t))
    e("v_and_b32 v%d, 0xffff0000, v%d" % (t + 2, t))
    e("v_sub_f32 v%d, v%d, v%d" % (t + 1, a, t + 1))
    e("v_sub_f32 v%d, v%d, v%d" % (t + 2, b, t + 2))
    e("v_cvt_pk_bf16_f32 v%d, v%d, v%d" % (t + 1, t + 1, t + 2))
    e("v_perm_b32 v%d, v%d, v%d, %s" % (a, t + 1, t, S_T0))
    e("v_perm_b32 v%d, v%d, v%d, %s" % (b, t + 1, t, S_T1))

def stream_load(t):
    e("buffer_load_dwordx4 %s, v1, %s, %s offen nt" % (vr(B(t)), srd(SRD_S), S_OFF))
    e("s_add_u32 %s, %s, 0x1000" % (S_OFF, S_OFF))

NSTAMP = 10
def stamp(i):
    if not TS: return
    e("s_memrealtime s[%d:%d]" % (76 + 2 * i, 77 + 2 * i))
    e("s_waitcnt lgkmcnt(0)")

def stamps_out(w8off):
    if not TS: return
    e("s_mov_b64 exec, 1")
    mk_srd(SRD_WS, "s40", "s41", 64 << 20)
    e("s_lshl_b32 s12, s2, 3")
    e("s_add_u32 s12, s12, %s" % S_W)
    e("s_add_u32 s12, s12, %d" % w8off)
    e("s_lshl_b32 s12, s12, 6")
    e("s_add_u32 s12, s12, 0x%x" % DBG_WS)
    for i in range(NSTAMP):
        e("v_mov_b32 v5, s%d" % (76 + 2 * i))
        e("buffer_store_dword v5, off, %s, s12 offset:%d" % (srd(SRD_WS), 4 * i))
    e("s_getreg_b32 s13, hwreg(HW_REG_XCC_ID)")
    e("v_mov_b32 v5, s13")
    e("buffer_store_dword v5, off, %s, s12 offset:56" % srd(SRD_WS))
    e("s_getreg_b32 s13, hwreg(HW_REG_HW_ID)")
    e("v_mov_b32 v5, s13")
    e("buffer_store_dword v5, off, %s, s12 offset:60" % srd(SRD_WS))

SPIN_MAX = 400000
def spin_guard(exit_lbl):
    e("s_add_u32 s72, s72, 1")
    e("s_cmp_gt_u32 s72, %d" % SPIN_MAX)
    e("s_cbranch_scc1 %s" % exit_lbl)

NLAB = [0]
def newlab(p):
    NLAB[0] += 1
    return "L_%s%d" % (p, NLAB[0])

def lds_wait(off, target, vt, va, sleep=1):
    l0, l1 = newlab("lw"), newlab("lw")
    lab(l0)
    e("ds_read_b32 v%d, v%d offset:%d" % (vt, va, L_CNT + off))
    e("s_waitcnt lgkmcnt(0)")
    e("v_readfirstlane_b32 %s, v%d" % (S_T0, vt))
    e("s_cmp_ge_u32 %s, %s" % (S_T0, target))
    e("s_cbranch_scc1 %s" % l1)
    spin_guard(l1)
    e("s_sleep %d" % sleep)
    e("s_branch %s" % l0)
    lab(l1)

def lds_signal(off, vt, va):
    e("v_mov_b32 v%d, 1" % vt)
    e("s_mov_b64 exec, 1")
    e("ds_add_u32 v%d, v%d offset:%d" % (va, vt, L_CNT + off))
    e("s_mov_b64 exec, -1")

def fc_end(dl):
    e("s_memrealtime s[70:71]")
    e("s_mov_b64 exec, 1")
    e("ds_add_u32 v30, v%d offset:%d" % (V_ONE, L_CNT + 12))
    e("s_mov_b64 exec, -1")
    e("s_waitcnt lgkmcnt(0)")
    e("v_readfirstlane_b32 s71, v%d" % V_FLAG)
    e("s_sub_u32 s70, s68, s70")
    e("s_add_u32 s70, s70, s71")
    e("s_add_u32 s68, s68, %s" % dl)
    e("s_cmp_gt_i32 s70, %d" % TH1)
    e("s_cselect_b32 %s, 1, 0" % S_FLAG)
    e("s_cmp_gt_i32 s70, %d" % TH2)
    e("s_cselect_b32 %s, 2, %s" % (S_FLAG, S_FLAG))
    e("s_cmp_eq_u32 s71, 0")
    e("s_cselect_b32 %s, 0, %s" % (S_FLAG, S_FLAG))

def k_body(b0, waits, loads, pre=None, steady=False):
    P = [8, 9, 10, 11]; Y0, Y1, Z, T, S, TMP = 12, 13, 14, 15, 16, 17
    for G in range(4):
        ld = list(loads[G])
        def nxt():
            if ld: stream_load(ld.pop(0))
        e("s_waitcnt vmcnt(%d)" % waits[G])
        for k in range(4):
            for u in range(4):
                c = "0" if k == 0 else "v%d" % P[u]
                e("v_dot2_f32_bf16 v%d, v%d, v%d, %s" % (P[u], B(b0 + 4 * G + u) + k, 4 + k, c))
        if pre and pre.get(G): pre[G]()
        e("v_add_f32_dpp v%d, v%d, v%d row_ror:8 row_mask:0xf bank_mask:0x3" % (Y0, P[0], P[0]))
        e("v_add_f32_dpp v%d, v%d, v%d row_ror:8 row_mask:0xf bank_mask:0xc" % (Y0, P[1], P[1]))
        e("v_add_f32_dpp v%d, v%d, v%d row_ror:8 row_mask:0xf bank_mask:0x3" % (Y1, P[2], P[2]))
        e("v_add_f32_dpp v%d, v%d, v%d row_ror:8 row_mask:0xf bank_mask:0xc" % (Y1, P[3], P[3]))
        nxt()
        if len(loads[G]) < 1: e("s_nop 1")
        e("v_add_f32_dpp v%d, v%d, v%d row_half_mirror row_mask:0xf bank_mask:0x5" % (Z, Y0, Y0))
        e("v_add_f32_dpp v%d, v%d, v%d row_half_mirror row_mask:0xf bank_mask:0xa" % (Z, Y1, Y1))
        nxt()
        if len(loads[G]) < 2: e("s_nop 1")
        e("v_add_f32_dpp v%d, v%d, v%d quad_perm:[1,0,3,2] row_mask:0xf bank_mask:0xf" % (Z, Z, Z))
        nxt()
        if len(loads[G]) < 3: e("s_nop 1")
        d = S if G == 0 else T
        e("v_add_f32_dpp v%d, v%d, v%d quad_perm:[2,3,0,1] row_mask:0xf bank_mask:0xf" % (d, Z, Z))
        nxt()
        assert not ld
        if G:
            e("v_cndmask_b32 v%d, v%d, v%d, s[%d:%d]" % (S, S, T, 60 + 2 * G, 61 + 2 * G))
    e("v_cvt_pk_bf16_f32 v%d, v%d, v%d" % (TMP, S, S))
    e("v_lshlrev_b32 v%d, 16, v%d" % (TMP, TMP))
    e("v_mul_f32 v%d, %s, v%d" % (TMP, SCALE, TMP))
    bf16r(TMP)
    e("s_add_u32 %s, %s, 1" % (S_IT, S_IT))
    e("v_max_f32 v3, v3, v%d" % TMP)
    if FC and steady: e("ds_read_b32 v%d, v30 offset:%d" % (V_FLAG, L_CNT + 20))
    e("ds_write_b32 v2, v%d" % TMP)
    e("v_add_u32 v2, 64, v2")
    if FC and steady:
        fc_end(str(KDL))

def v_body(x=0):
    A, ACC = 8, 20
    PB = [12, 16]
    for G in range(4):
        e("s_waitcnt lgkmcnt(0)")
        e("ds_read_b128 %s, v2 offset:%d" % (vr(PB[(G + 1) & 1]), (G + 1) * 16))
        if FC and G == 3: e("ds_read_b32 v%d, v30 offset:%d" % (V_FLAG, L_CNT + 20))
        for u in range(4):
            t = 4 * G + u
            p = PB[G & 1] + u
            for i in range(4):
                e("v_perm_b32 v%d, v%d, v%d, v%d" % (A + i, p, p, 4 + i))
            e("s_waitcnt vmcnt(%d)" % (D - 1 - x))
            e("s_nop 0")
            e("%s %s, %s, %s, %s" % (MFMA, vr(ACC), vr(A), vr(B(t)), vr(ACC)))
            stream_load((t + D) % 16)
    e("s_add_u32 %s, %s, 1" % (S_IT, S_IT))
    e("v_add_u32 v2, 64, v2")
    if FC: fc_end(str(DLT))

def streamer():
    cmt("---- streaming waves")
    e("s_lshl_b32 %s, %s, 20" % (S_T0, S_BH))
    e("s_lshl_b32 %s, %s, 19" % (S_T1, S_HALF))
    e("s_add_u32 %s, %s, %s" % (S_T0, S_T0, S_T1))
    e("s_lshl_b32 %s, %s, 10" % (S_T1, S_W))
    e("v_lshlrev_b32 v1, 4, v0")
    e("v_add_u32 v1, %s, v1" % S_T1)
    e("s_mov_b32 s%d, 0x%x" % (SRD_S + 2, NB << 16))
    e("s_mov_b32 s%d, 0x00020000" % (SRD_S + 3))
    e("s_mov_b32 %s, 0" % S_OFF)
    e("s_waitcnt lgkmcnt(0)")
    stamp(0)
    e("s_add_u32 s%d, s18, %s" % (SRD_S, S_T0))
    e("s_addc_u32 s%d, s19, 0" % (SRD_S + 1))
    e("s_add_u32 s42, s20, %s" % S_T0)
    e("s_addc_u32 s43, s21, 0")
    PRE = min(xpv("pre", 4), C0)
    for t in range(PRE):
        stream_load(t)
    e("s_barrier")
    for t in range(PRE, C0):
        stream_load(t)
    for i, m in enumerate((0x22222222, 0x44444444, 0x88888888)):
        e("s_mov_b32 s%d, 0x%x" % (62 + 2 * i, m)); e("s_mov_b32 s%d, 0x%x" % (63 + 2 * i, m))
    e("v_lshrrev_b32 v24, 4, v0")
    e("v_and_b32 v25, 15, v0")
    e("v_lshlrev_b32 v25, 4, v25")
    e("v_mul_u32_u24 v2, %d, v24" % P_ROW)
    e("s_mul_i32 %s, %s, %d" % (S_T0, S_W, P_WAVE))
    e("v_add_u32 v28, %s, v2" % S_T0)
    e("v_and_b32 v26, 3, v0")
    e("v_lshlrev_b32 v26, 4, v26")
    e("v_bfe_u32 v27, v0, 2, 1")
    e("v_lshl_add_u32 v26, v27, 3, v26")
    e("v_bfe_u32 v27, v0, 3, 1")
    e("v_lshl_add_u32 v26, v27, 2, v26")
    e("v_add_u32 v2, v28, v26")
    e("v_mov_b32 v29, v2")
    e("v_mov_b32 v3, 0xff800000")
    e("v_mov_b32 v30, 0")
    e("v_mov_b32 v%d, 1" % V_ONE)
    e("s_mov_b32 %s, 0" % S_FLAG)
    e("s_mov_b32 s68, 0")
    e("s_mov_b32 %s, 0" % S_IT)
    for t in range(C0, 48):
        e("s_waitcnt vmcnt(%d)" % (C0 - 1))
        stream_load(t)
    stamp(1)
    lds_wait(4, "1", 31, 30)
    e("ds_read_b128 v[4:7], v25 offset:%d" % L_QB)
    e("s_waitcnt lgkmcnt(0)")
    stamp(2)
    iss = 0
    for th in range(3):
        waits, loads = [], []
        for G in range(4):
            g = 4 * th + G
            waits.append(44 - 4 * g + iss)
            n = (g + 1) * D // 12 - g * D // 12
            loads.append(list(range(iss, iss + n))); iss += n
        k_body(16 * th, waits, loads)
    assert iss == D
    def switch():
        e("s_cmp_eq_u32 %s, %d" % (S_IT, NB - 1))
        e("s_cselect_b32 s%d, s42, s%d" % (SRD_S, SRD_S))
        e("s_cselect_b32 s%d, s43, s%d" % (SRD_S + 1, SRD_S + 1))
        e("s_cselect_b32 %s, 0, %s" % (S_OFF, S_OFF))
    def loops(pfx, body):
        if not FC:
            lab(pfx + "0")
            body(0)
            e("s_cmp_lg_u32 %s, %d" % (S_IT, NB))
            e("s_cbranch_scc1 %s0" % pfx)
            return
        e("s_branch %sn" % pfx)
        for lv in (2, 1, 0):
            lab(pfx + str(lv))
            body(lv)
            if lv: e("s_branch %sc" % pfx)
        lab(pfx + "c")
        e("s_cmp_eq_u32 %s, %d" % (S_IT, NB))
        e("s_cbranch_scc1 %sd" % pfx)
        lab(pfx + "n")
        e("s_cmp_eq_u32 %s, 0" % S_FLAG)
        e("s_cbranch_scc1 %s0" % pfx)
        e("s_cmp_eq_u32 %s, 1" % S_FLAG)
        e("s_cbranch_scc1 %s1" % pfx)
        e("s_branch %s2" % pfx)
        lab(pfx + "d")
    loops("L_k", lambda lv: k_body(0, [D - 4 - XK[lv]] * 4, [[(4 * G + u + D) % 16 for u in range(4)] for G in range(4)], {(16 - D) // 4: switch}, True))
    stamp(3)
    for k in range(NB):
        e("ds_read_b32 v%d, v29 offset:%d" % (32 + k, 64 * k))
    allreduce64("max", 3, 16)
    e("s_mov_b32 %s, 0x05040100" % S_T0)
    e("s_mov_b32 %s, 0x07060302" % S_T1)
    e("s_waitcnt lgkmcnt(0)")
    for k in range(NB):
        e("v_sub_f32 v%d, v%d, v3" % (32 + k, 32 + k))
    for k in range(NB):
        e("v_mul_f32 v%d, %s, v%d" % (32 + k, LOG2E, 32 + k))
    for k in range(NB):
        e("v_exp_f32 v%d, v%d" % (32 + k, 32 + k))
    e("s_nop 0")
    e("v_add_f32 v24, v32, v33")
    for k in range(2, NB):
        e("v_add_f32 v24, v24, v%d" % (32 + k))
    for k in range(NB // 2):
        hilo_pack(32 + 2 * k, 33 + 2 * k, 16)
    for k in range(NB):
        e("ds_write_b32 v29, v%d offset:%d" % (32 + k, 64 * k))
    e("v_mov_b32 v2, v28")
    e("ds_read_b128 %s, v2" % vr(12))
    allreduce64("add", 24, 20)
    sel_pv(4, 8)
    e("v_mov_b32 v25, v24")
    e("v_mov_b32 v24, v3")
    e("s_lshl_b32 %s, %s, 3" % (S_T0, S_W))
    e("v_mov_b32 v26, %s" % S_T0)
    e("s_mov_b64 exec, 1")
    e("ds_write_b64 v26, v[24:25] offset:%d" % L_ML)
    e("s_mov_b64 exec, -1")
    lds_signal(0, 27, 30)
    for i in range(4):
        e("v_mov_b32 v%d, 0" % (20 + i))
    e("s_mov_b32 %s, 0" % S_IT)
    e("v_and_b32 v26, 31, v0")
    e("v_and_b32 v27, 15, v26")
    e("v_lshlrev_b32 v27, 5, v27")
    e("v_lshrrev_b32 v26, 4, v26")
    e("v_lshl_add_u32 v27, v26, 4, v27")
    e("v_lshrrev_b32 v26, 5, v0")
    e("s_lshl_b32 %s, %s, 9" % (S_T0, S_W))
    e("s_add_u32 %s, %s, %d" % (S_T0, S_T0, L_OP))
    e("v_lshl_add_u32 v28, v26, 2, v27")
    e("v_add_u32 v28, %s, v28" % S_T0)
    stamp(4)
    if FC: e("s_mov_b32 s68, %d" % sched(6))
    loops("L_v", lambda lv: v_body(XV[lv]))
    stamp(5)
    ACC = 20
    e("s_nop 4")
    e("v_permlane32_swap_b32 v%d, v%d" % (ACC, ACC + 1))
    e("v_permlane32_swap_b32 v%d, v%d" % (ACC + 2, ACC + 3))
    e("s_nop 1")
    e("v_add_f32 v%d, v%d, v%d" % (ACC, ACC, ACC + 1))
    e("v_add_f32 v%d, v%d, v%d" % (ACC + 2, ACC + 2, ACC + 3))
    e("ds_write_b32 v28, v%d" % ACC)
    e("ds_write_b32 v28, v%d offset:8" % (ACC + 2))
    e("s_waitcnt lgkmcnt(0)")
    e("s_barrier")
    stamps_out(0)
    e("s_endpgm")

VZ = 95
V_G, V_FB, V_M10 = 91, 92, 93

def tpoll(loads, grans, sleep, ex="-1"):
    l0, l1 = newlab("tp"), newlab("tp")
    lab(l0)
    for x in loads: e(x)
    e("s_waitcnt vmcnt(0)")
    for g, t0, t1 in grans:
        e("v_xor_b32 v%d, v%d, v%d" % (g + 2, g + 2, t0))
        e("v_xor_b32 v%d, v%d, v%d" % (g + 3, g + 3, t1))
    g0 = grans[0][0]
    e("v_or_b32 v%d, v%d, v%d" % (g0 + 2, g0 + 2, g0 + 3))
    for g, _, _ in grans[1:]:
        e("v_or3_b32 v%d, v%d, v%d, v%d" % (g0 + 2, g0 + 2, g + 2, g + 3))
    e("v_cmp_ne_u32 vcc, 0, v%d" % (g0 + 2))
    e("s_cbranch_vccz %s" % l1)
    spin_guard(l1)
    e("s_mov_b64 exec, vcc")
    if sleep: e("s_sleep %d" % sleep)
    e("s_branch %s" % l0)
    lab(l1)
    e("s_mov_b64 exec, %s" % ex)

def ypoll(loads, grans, t, sleep, ex="-1"):
    l0, l1 = newlab("yp"), newlab("yp")
    lab(l0)
    for x in loads: e(x)
    e("s_waitcnt vmcnt(0)")
    first = True
    for g, tg in grans:
        for i in range(0, 4, 2):
            if first:
                e("v_xor_b32 v%d, s%d, v%d" % (t, S_TG + i, g + i))
                e("v_xor_b32 v%d, s%d, v%d" % (t + 1, S_TG + i + 1, g + i + 1))
                e("v_or_b32 v%d, v%d, v%d" % (t, t, t + 1)); first = False
            else:
                e("v_xor_b32 v%d, s%d, v%d" % (t + 1, S_TG + i, g + i))
                e("v_xor_b32 v%d, s%d, v%d" % (t + 2, S_TG + i + 1, g + i + 1))
                e("v_or3_b32 v%d, v%d, v%d, v%d" % (t, t, t + 1, t + 2))
    e("v_and_b32 v%d, 0x3ff, v%d" % (t, t))
    e("v_cmp_ne_u32 vcc, 0, v%d" % t)
    e("s_cbranch_vccz %s" % l1)
    spin_guard(l1)
    e("s_mov_b64 exec, vcc")
    if sleep: e("s_sleep %d" % sleep)
    e("s_branch %s" % l0)
    lab(l1)
    e("s_mov_b64 exec, %s" % ex)

def nonce_fetch(regs_offs):
    l0, l1 = newlab("nf"), newlab("nf")
    lab(l0)
    for d, o in regs_offs:
        e("buffer_load_dword v%d, v%d, %s, 0 offen sc1" % (d, o, srd(SRD_DBG)))
    e("s_waitcnt vmcnt(0)")
    ds = [d for d, _ in regs_offs]
    e("v_min_u32 v94, v%d, v%d" % (ds[0], ds[-1]))
    for d in ds[1:-1]:
        e("v_min_u32 v94, v94, v%d" % d)
    e("v_cmp_eq_u32 vcc, 0, v94")
    e("s_cbranch_vccz %s" % l1)
    spin_guard(l1)
    e("s_sleep 16")
    e("s_branch %s" % l0)
    lab(l1)

def head_off(dst, h):
    e("v_and_b32 v%d, 15, v%d" % (dst, h))
    e("v_lshrrev_b32 v%d, 4, v%d" % (h, h))
    e("v_lshlrev_b32 v%d, 2, v%d" % (dst, dst))
    e("v_lshl_add_u32 v%d, v%d, 7, v%d" % (dst, h, dst))

def vtags(n):
    e("v_lshrrev_b32 v%d, 10, v%d" % (n + 1, n))
    e("v_lshrrev_b32 v%d, 20, v%d" % (n + 2, n))
    e("v_not_b32 v%d, v%d" % (n + 3, n))
    e("v_alignbit_b32 v%d, v%d, v%d, 30" % (n + 3, n + 3, n))

def stags():
    e("s_mov_b32 s%d, %s" % (S_TG, S_T0))
    e("s_lshr_b32 s%d, %s, 10" % (S_TG + 1, S_T0))
    e("s_lshr_b32 s%d, %s, 20" % (S_TG + 2, S_T0))
    e("s_not_b32 s%d, %s" % (S_TG + 3, S_T0))
    e("s_lshl_b32 s%d, s%d, 2" % (S_TG + 3, S_TG + 3))
    e("s_lshr_b32 %s, %s, 30" % (S_T0, S_T0))
    e("s_or_b32 s%d, s%d, %s" % (S_TG + 3, S_TG + 3, S_T0))

def ypack(r):
    for i in range(4):
        e("v_add_u32 v%d, 0x200, v%d" % (r + i, r + i))
    for i in range(4):
        e("v_bfi_b32 v%d, v%d, s%d, v%d" % (r + i, V_M10, S_TG + i, r + i))

def red8(a):
    e("s_nop 1")
    e("v_permlane32_swap_b32 v%d, v%d" % (a, a + 1))
    e("v_permlane32_swap_b32 v%d, v%d" % (a + 2, a + 3))
    e("s_nop 1")
    e("v_add_f32 v%d, v%d, v%d" % (a, a, a + 1))
    e("v_add_f32 v%d, v%d, v%d" % (a + 2, a + 2, a + 3))
    e("s_nop 1")
    e("v_permlane16_swap_b32 v%d, v%d" % (a, a + 2))
    e("s_nop 1")
    e("v_add_f32 v%d, v%d, v%d" % (a, a, a + 2))
    e("s_nop 1")
    e("v_add_f32_dpp v%d, v%d, v%d row_ror:8 row_mask:0xf bank_mask:0xf" % (a, a, a))

def census(area, stride_lg, body, sleep):
    e("v_lshrrev_b32 v48, 1, v0")
    e("v_mul_u32_u24 v49, 5, v48")
    e("s_lshr_b32 %s, s2, 3" % S_T1)
    e("s_add_u32 %s, %s, 3" % (S_T1, S_T1))
    e("v_add_u32 v49, %s, v49" % S_T1)
    e("v_and_b32 v49, 15, v49")
    e("v_lshl_add_u32 v48, v49, 3, v48")
    e("v_lshlrev_b32 v48, 7, v48")
    e("v_and_b32 v49, 1, v0")
    e("v_lshl_add_u32 v48, v49, 6, v48")
    e("s_mov_b32 %s, 0x%x" % (S_OFF, area))
    e("s_mov_b64 exec, 0xffff")
    tpoll(["buffer_load_dwordx4 v[40:43], v48, %s, %s offen sc1" % (srd(SRD_WS), S_OFF)], [(40, 62, 63)], sleep, "-1")
    e("v_subrev_u32 v40, s4, v40")
    e("v_cvt_f32_i32 v40, v40")
    for r in (8, 4, 2, 1):
        e("s_nop 1")
        e("v_add_f32_dpp v40, v40, v40 row_ror:%d row_mask:0xf bank_mask:0xf" % r)
    e("v_mul_f32 v40, 0.0625, v40")
    e("v_cvt_i32_f32 v40, v40")
    e("s_sub_u32 s4, s4, %d" % sched(body))
    e("v_add_u32 v40, s4, v40")
    e("v_or_b32 v40, 1, v40")
    e("s_mov_b64 exec, 1")
    e("ds_write_b32 v%d, v40 offset:%d" % (VZ, L_CNT + 20))
    e("s_mov_b64 exec, -1")

def sample(rnd, body):
    area = CT_OFF + rnd * 0x4000
    e("s_and_b32 %s, s2, 127" % S_OFF)
    e("s_lshl_b32 %s, %s, 1" % (S_OFF, S_OFF))
    e("s_add_u32 %s, %s, %s" % (S_OFF, S_OFF, S_HALF))
    e("s_lshl_b32 %s, %s, 6" % (S_OFF, S_OFF))
    e("s_add_u32 %s, %s, 0x%x" % (S_OFF, S_OFF, area))
    lds_wait(12, str(4 * body), 94, VZ, 4)
    e("s_memrealtime s[4:5]")
    e("s_waitcnt lgkmcnt(0)")
    e("v_mov_b32 v60, s4")
    e("v_mov_b32 v61, s4")
    e("s_mov_b64 exec, 1")
    e("buffer_store_dwordx4 v[60:63], off, %s, %s sc1" % (srd(SRD_WS), S_OFF))
    e("s_mov_b64 exec, -1")
    e("s_sleep %d" % xpv("tsl", 48))
    census(area, 6, body, xpv("tsl", 48))

def helper():
    lab("L_helper")
    e("s_setprio 3")
    e("s_memrealtime s[4:5]")
    e("s_sub_u32 %s, %s, 4" % (S_W, S_W))
    e("s_lshl_b32 %s, %s, 1" % (S_I, S_B))
    e("s_add_u32 %s, %s, %s" % (S_I, S_I, S_HALF))
    e("v_lshrrev_b32 v24, 4, v0")
    e("v_and_b32 v25, 15, v0")
    e("s_lshl_b32 %s, %s, 6" % (S_T0, S_W))
    e("v_add_u32 v1, %s, v0" % S_T0)
    e("v_lshlrev_b32 v2, 4, v0")
    e("v_mov_b32 v%d, 0" % VZ)
    e("v_mov_b32 v%d, 0x3ff" % V_M10)
    e("s_cmp_ge_u32 %s, 2" % S_W)
    e("s_cbranch_scc1 L_h23")
    S_STR, S_COL, S_PUB, S_BS = "s68", "s69", "s70", "s71"
    e("s_and_b32 s73, s2, 7")
    e("s_lshr_b32 s75, s2, 3")
    e("s_mul_i32 %s, s73, 7" % S_T0)
    e("s_lshr_b32 %s, s75, 2" % S_T1)
    e("s_add_u32 %s, %s, %s" % (S_T0, S_T0, S_T1))
    e("s_cmp_lt_u32 s75, 28")
    e("s_cselect_b32 %s, %s, 99" % (S_C, S_T0))
    if "noffn" in XP or "noh1" in XP: e("s_mov_b32 %s, 99" % S_C)
    e("s_cmp_ge_u32 %s, 27" % S_T0)
    e("s_cselect_b32 %s, 27, 0" % S_T1)
    e("s_cselect_b32 %s, 1, 0" % S_A)
    e("s_sub_u32 %s, %s, %s" % (S_T0, S_T0, S_T1))
    e("s_lshl_b32 %s, %s, 1" % (S_T0, S_T0))
    e("s_and_b32 %s, s75, 1" % S_T1)
    e("s_add_u32 %s, %s, %s" % (S_T0, S_T0, S_T1))
    e("s_bfe_u32 %s, s75, 0x10001" % S_IT)
    e("s_lshl_b32 %s, %s, 6" % (S_COL, S_T0))
    e("s_lshl_b32 %s, %s, 9" % (S_T0, S_T0))
    e("s_mul_i32 %s, %s, 55296" % (S_PUB, S_A))
    e("s_add_u32 %s, %s, %s" % (S_PUB, S_PUB, S_T0))
    e("s_mul_i32 %s, %s, 27648" % (S_T0, S_IT))
    e("s_add_u32 %s, %s, %s" % (S_PUB, S_PUB, S_T0))
    e("s_add_u32 %s, %s, 0x%x" % (S_PUB, S_PUB, GX_OFF))
    e("s_lshl_b32 %s, %s, 2" % (S_T0, S_H))
    e("s_and_b32 %s, %s, 3" % (S_T1, S_I))
    e("s_add_u32 %s, %s, %s" % (S_T0, S_T0, S_T1))
    e("s_lshl_b32 %s, %s, 6" % (S_T1, S_T0))
    e("s_lshl_b32 s73, %s, 12" % S_H)
    e("s_lshl_b32 s75, %s, 9" % S_I)
    e("s_add_u32 s73, s73, s75")
    e("s_add_u32 s73, s73, 0x%x" % QX_OFF)
    e("s_lshr_b32 s75, %s, 2" % S_I)
    e("s_cmp_eq_u32 %s, 0" % S_W)
    e("s_cselect_b32 %s, %s, %s" % (S_COL, S_T1, S_COL))
    e("s_cselect_b32 %s, s73, %s" % (S_PUB, S_PUB))
    e("s_cselect_b32 %s, 0, %s" % (S_C, S_C))
    e("s_cselect_b32 %s, s75, %s" % (S_IT, S_IT))
    e("s_mul_i32 %s, %s, %d" % (S_STR, S_W, 8192 - 3456))
    e("s_sub_u32 %s, 8192, %s" % (S_STR, S_STR))
    e("s_mul_i32 s73, %s, %d" % (S_W, L_WF - L_WQ))
    e("s_add_u32 s75, s73, %d" % L_X0)
    e("s_add_u32 s73, s73, %d" % L_WQ)
    assert L_WF - L_WQ == L_X1 - L_X0
    e("s_mul_i32 %s, %s, 320" % (S_T0, S_IT))
    e("s_mul_i32 %s, %s, %s" % (S_T0, S_T0, S_STR))
    e("s_add_u32 %s, %s, %s" % (S_COL, S_COL, S_T0))
    e("v_lshrrev_b32 v26, 2, v0")
    e("v_mul_u32_u24 v26, %s, v26" % S_STR)
    e("v_and_b32 v27, 3, v0")
    e("v_lshl_add_u32 v26, v27, 4, v26")
    e("v_add_u32 v26, %s, v26" % S_COL)
    e("s_mul_i32 s%d, %s, 640" % (SRD_W + 2, S_STR))
    e("s_mov_b32 s%d, 0x00020000" % (SRD_W + 3))
    e("s_lshl_b32 %s, %s, 4" % (S_STR, S_STR))
    e("s_cmp_ge_u32 %s, 54" % S_C)
    e("s_cbranch_scc1 L_hb1")
    e("s_waitcnt lgkmcnt(0)")
    stamp(0)
    mk_srd(SRD_X, "s16", "s17", 5120)
    mk_srd(SRD_DBG, "s38", "s39", 256)
    e("s_cmp_lg_u32 %s, 0" % S_A)
    e("s_cselect_b32 s%d, s30, s28" % SRD_W)
    e("s_cselect_b32 s%d, s31, s29" % (SRD_W + 1))
    e("s_cmp_lg_u32 %s, 0" % S_W)
    e("s_cbranch_scc1 L_h1a")
    e("s_mov_b32 s%d, s22" % SRD_W)
    e("s_mov_b32 s%d, s23" % (SRD_W + 1))
    e("s_or_b32 s4, s4, 1")
    e("s_cmp_lg_u32 s2, 0")
    e("s_cbranch_scc1 L_h1a")
    e("v_mov_b32 v60, s4")
    e("v_lshlrev_b32 v61, 7, v0")
    e("s_mov_b64 exec, 3")
    e("buffer_store_dword v60, v61, %s, 0 offen sc1" % srd(SRD_DBG))
    e("s_mov_b64 exec, -1")
    lab("L_h1a")
    e("s_mov_b32 m0, s75")
    e("s_mov_b32 %s, 0" % S_OFF)
    for k in range(4):
        e("buffer_load_dwordx4 v2, %s, 0 offen offset:%d lds" % (srd(SRD_X), 1024 * k))
    e("s_add_u32 m0, s75, 0x1000")
    e("s_mov_b32 %s, 0x1000" % S_T1)
    e("buffer_load_dwordx4 v2, %s, %s offen lds" % (srd(SRD_X), S_T1))
    e("s_mov_b32 m0, s73")
    e("s_nop 0")
    for t in range(20):
        e("buffer_load_dwordx4 v26, %s, %s offen nt lds" % (srd(SRD_W), S_OFF))
        if t < 19:
            e("s_add_u32 m0, m0, 0x400")
            e("s_add_u32 %s, %s, %s" % (S_OFF, S_OFF, S_STR))
    e("s_barrier")
    mk_ws()
    e("v_lshrrev_b32 v28, 2, v25")
    e("v_lshlrev_b32 v28, 6, v28")
    e("v_lshl_add_u32 v28, v24, 9, v28")
    e("v_lshl_add_u32 v28, v27, 3, v28")
    e("v_add_u32 v28, s73, v28")
    e("v_mul_u32_u24 v29, 1280, v27")
    e("v_lshl_add_u32 v29, v24, 4, v29")
    e("s_mul_i32 %s, %s, 640" % (S_T0, S_IT))
    e("s_add_u32 %s, %s, s75" % (S_T0, S_T0))
    e("v_add_u32 v29, %s, v29" % S_T0)
    e("v_lshlrev_b32 v30, 7, v27")
    e("v_lshl_add_u32 v30, v24, 4, v30")
    e("v_bfe_u32 v31, v0, 2, 1")
    e("v_lshl_add_u32 v30, v31, 6, v30")
    XF, WFR, ACC = 96, [176, 192], 32
    e("s_waitcnt vmcnt(20)")
    NK = xpv("nk", 1)
    for s in range(10):
        e("ds_read_b128 %s, v29 offset:%d" % (vr(XF + 4 * s), 64 * s))
    def mm(k):
        for s2 in range(2):
            s = 2 * k + s2
            for ct in range(2):
                e("%s %s, %s, %s, %s" % (MFMA, vr(ACC + 4 * ct), vr(WFR[k & 1] + 8 * s2 + 4 * ct), vr(XF + 4 * s), "0" if s == 0 else vr(ACC + 4 * ct)))
    for k in range(5):
        e("s_waitcnt vmcnt(%d)" % (16 - 4 * k + (1 if k > NK else 0)))
        if k == NK:
            e("s_lshl_b32 s5, %s, 7" % S_W)
            e("buffer_load_dword v60, off, %s, s5 sc1" % srd(SRD_DBG))
        for s2 in range(2):
            s = 2 * k + s2
            for ct in range(2):
                r = WFR[k & 1] + 8 * s2 + 4 * ct
                e("ds_read_b64_tr_b16 %s, v28 offset:%d" % (vr(r, 2), 2048 * s + 32 * ct))
                e("ds_read_b64_tr_b16 %s, v28 offset:%d" % (vr(r + 2, 2), 2048 * s + 32 * ct + 256))
        if k:
            e("s_waitcnt lgkmcnt(8)")
            mm(k - 1)
    e("s_waitcnt lgkmcnt(0)")
    mm(4)
    lab("L_nw")
    e("s_waitcnt vmcnt(0)")
    e("v_readfirstlane_b32 %s, v60" % S_T0)
    e("s_cmp_lg_u32 %s, 0" % S_T0)
    e("s_cbranch_scc1 L_ng")
    spin_guard("L_ng")
    e("s_sleep 4")
    e("buffer_load_dword v60, off, %s, 0 sc1" % srd(SRD_DBG))
    e("s_branch L_nw")
    lab("L_ng")
    e("ds_write_b32 v%d, v60 offset:%d" % (VZ, L_CNT + 8))
    stags()
    e("s_nop 1")
    for i in range(4):
        e("v_mov_b32_dpp v%d, v%d quad_perm:[0,1,2,3] row_mask:0xf bank_mask:0x2" % (ACC + i, ACC + 4 + i))
    ypack(ACC)
    e("s_mov_b32 exec_lo, 0x00ff00ff")
    e("s_mov_b32 exec_hi, 0x00ff00ff")
    if "noqx" in XP:
        e("s_cmp_eq_u32 %s, 0" % S_W)
        e("s_cbranch_scc1 L_noqx")
    if "noh1pub" in XP:
        e("s_cmp_eq_u32 %s, 1" % S_W)
        e("s_cbranch_scc1 L_noqx")
    e("buffer_store_dwordx4 v[32:35], v30, %s, %s offen sc1" % (srd(SRD_WS), S_PUB))
    if "noqx" in XP or "noh1pub" in XP: lab("L_noqx")
    e("s_mov_b64 exec, -1")
    stamp(1)
    e("s_cmp_lg_u32 %s, 0" % S_W)
    e("s_cbranch_scc1 L_wo")
    e("s_lshl_b32 %s, %s, 5" % (S_OFF, S_H))
    e("s_add_u32 %s, %s, %s" % (S_OFF, S_OFF, S_B))
    e("s_lshl_b32 %s, %s, 7" % (S_OFF, S_OFF))
    e("s_add_u32 %s, %s, 0x%x" % (S_OFF, S_OFF, QX_OFF))
    e("v_lshrrev_b32 v48, 3, v0")
    e("v_lshlrev_b32 v48, 9, v48")
    e("v_and_b32 v3, 7, v0")
    e("v_lshl_add_u32 v48, v3, 4, v48")
    e("v_and_b32 v3, 31, v0")
    e("v_lshlrev_b32 v3, 3, v3")
    e("v_lshrrev_b32 v47, 5, v0")
    e("v_lshl_add_u32 v3, v47, 1, v3")
    if "noqx" not in XP: ypoll(["buffer_load_dwordx4 v[40:43], v48, %s, %s offen sc1" % (srd(SRD_WS), S_OFF)], [(40, 36)], 44, xpv("qsl", 0))
    else:
        for i in range(4): e("v_mov_b32 v%d, 0" % (40 + i))
    for i in range(4):
        e("v_and_b32 v%d, 0xfffffc00, v%d" % (40 + i, 40 + i))
    e("s_nop 0")
    e("v_permlane32_swap_b32 v40, v41")
    e("v_permlane32_swap_b32 v42, v43")
    e("s_nop 1")
    e("v_add_f32 v40, v40, v41")
    e("v_add_f32 v42, v42, v43")
    e("v_cvt_pk_bf16_f32 v40, v40, v42")
    e("ds_write_b16 v3, v40 offset:%d" % L_QB)
    e("ds_write_b16_d16_hi v3, v40 offset:%d" % (L_QB + 4))
    e("v_mov_b32 v40, 1")
    e("s_waitcnt lgkmcnt(0)")
    e("ds_write_b32 v%d, v40 offset:%d" % (VZ, L_CNT + 4))
    stamp(2)
    e("s_branch L_wo")

    lab("L_h23")
    e("s_cmp_eq_u32 %s, 2" % S_W)
    e("s_cbranch_scc1 L_hb1")
    for i in range(4):
        e("v_mov_b32 v%d, 0" % (44 + i))
    e("ds_write_b128 v%d, v[44:47] offset:%d" % (VZ, L_CNT))
    e("ds_write_b128 v%d, v[44:47] offset:%d" % (VZ, L_CNT + 16))
    lab("L_hb1")
    e("s_waitcnt lgkmcnt(0)")
    stamp(0)
    e("s_barrier")
    mk_ws()
    mk_srd(SRD_DBG, "s38", "s39", 256)
    e("s_cmp_eq_u32 %s, 2" % S_W)
    e("s_cbranch_scc1 L_h2")
    e("s_cmp_lg_u32 %s, 3" % S_W)
    e("s_cbranch_scc1 L_wo")
    lds_wait(4, "1", 94, VZ, 4)
    if "nowarm" not in XP:
        e("s_getpc_b64 s[4:5]")
        lab("L_pc")
        e("s_sub_u32 s4, s4, L_pc-%s" % KNAME)
        e("s_subb_u32 s5, s5, 0")
        e("v_lshlrev_b32 v28, 7, v0")
        for i in range(NWARM):
            e("v_min_u32 v27, L_code_end-%s-4, v28" % KNAME)
            e("global_load_dword v89, v27, s[4:5]")
            e("v_add_u32 v28, 0x2000, v28")
    e("s_cmp_ge_u32 s2, %d" % NCONS)
    e("s_cbranch_scc1 L_h3c")
    e("s_and_b32 s5, s2, 3")
    mk_srd(SRD_X, "s16", "s17", 5120)
    mk_srd(SRD_W, "s34", "s35", 1280)
    e("v_lshlrev_b32 v3, 2, v0")
    e("s_mul_i32 %s, s5, 1280" % S_T0)
    for k in range(5):
        e("buffer_load_dword v%d, v3, %s, %s offen offset:%d" % (64 + k, srd(SRD_X), S_T0, 256 * k))
        e("buffer_load_dword v%d, v3, %s, 0 offen offset:%d" % (72 + k, srd(SRD_W), 256 * k))
    e("s_waitcnt vmcnt(0)")
    G = V_G
    e("v_mov_b32 v%d, 0" % G)
    for k in range(5):
        e("v_lshlrev_b32 v80, 16, v%d" % (64 + k))
        e("v_and_b32 v81, 0xffff0000, v%d" % (64 + k))
        e("v_lshlrev_b32 v82, 16, v%d" % (72 + k))
        e("v_and_b32 v83, 0xffff0000, v%d" % (72 + k))
        e("v_mul_f32 v80, v80, v82")
        e("v_mul_f32 v81, v81, v83")
        e("v_cvt_pk_bf16_f32 v80, v80, v81")
        e("v_lshlrev_b32 v81, 16, v80")
        e("v_and_b32 v80, 0xffff0000, v80")
        e("v_add_f32 v%d, v%d, v81" % (G, G))
        e("v_add_f32 v%d, v%d, v80" % (G, G))
    allreduce64("add", G, 80)
    bf16r(G)
    e("v_mul_f32 v%d, 0xbfb8aa3b, v%d" % (G, G))
    e("v_exp_f32 v%d, v%d" % (G, G))
    e("s_nop 0")
    e("v_add_f32 v%d, 1.0, v%d" % (G, G))
    e("v_rcp_f32 v%d, v%d" % (G, G))
    e("s_nop 0")
    bf16r(G)
    lab("L_h3c")
    if FC and CA:
        e("ds_read_b32 v62, v%d offset:%d" % (VZ, L_CNT + 8))
        e("s_waitcnt lgkmcnt(0)")
        e("v_xor_b32 v63, %s, v62" % TAGX)
        sample(0, CA)
    e("s_branch L_wo")

    lab("L_h2")
    e("s_cmp_lt_u32 s2, %d" % (NWG - NF2 if "noffn" not in XP and "noh2" not in XP else 1000))
    e("s_cbranch_scc1 L_wo")
    S_RG, S_CB = "s68", "s69"
    e("s_sub_u32 %s, 255, s2" % S_T0)
    e("s_mul_i32 %s, %s, 205" % (S_RG, S_T0))
    e("s_lshr_b32 %s, %s, 11" % (S_RG, S_RG))
    e("s_mul_i32 %s, %s, 10" % (S_T1, S_RG))
    e("s_sub_u32 %s, %s, %s" % (S_CB, S_T0, S_T1))
    e("v_lshrrev_b32 v26, 3, v0")
    e("v_mul_u32_u24 v26, 1280, v26")
    e("v_and_b32 v27, 7, v0")
    e("v_lshl_add_u32 v26, v27, 4, v26")
    e("s_mul_i32 %s, %s, %d" % (S_OFF, S_RG, 96 * 1280))
    e("s_lshl_b32 %s, %s, 7" % (S_T0, S_CB))
    e("s_add_u32 %s, %s, %s" % (S_OFF, S_OFF, S_T0))
    mk_srd(SRD_W, "s32", "s33", 1728 * 1280)
    e("v_cmp_le_u32 vcc, 24, v0")
    e("v_mov_b32 v28, 24")
    e("v_mov_b32 v29, 128")
    e("v_cndmask_b32 v28, 0, v28, vcc")
    e("v_cndmask_b32 v29, 0, v29, vcc")
    e("v_sub_u32 v28, v0, v28")
    e("v_min_u32 v28, 23, v28")
    e("v_and_b32 v31, 7, v28")
    e("v_lshl_add_u32 v29, v31, 4, v29")
    e("v_lshrrev_b32 v31, 3, v28")
    e("v_lshl_add_u32 v29, v31, 9, v29")
    e("v_mov_b32 v30, 192")
    e("v_cndmask_b32 v30, 0, v30, vcc")
    e("v_lshl_add_u32 v30, v28, 3, v30")
    e("s_mul_i32 %s, %s, 1536" % (S_IT, S_RG))
    e("s_add_u32 %s, %s, 0x%x" % (S_IT, S_IT, GX_OFF))
    e("s_add_u32 s70, %s, 27648" % S_IT)
    e("s_add_u32 s71, %s, 55296" % S_IT)
    e("s_add_u32 s73, %s, %d" % (S_IT, 55296 + 27648))
    lds_wait(4, "1", 94, VZ, 4)
    e("s_mov_b32 m0, %d" % L_WQ)
    e("s_nop 0")
    for t in range(12):
        e("buffer_load_dwordx4 v26, %s, %s offen nt lds" % (srd(SRD_W), S_OFF))
        if t < 11:
            e("s_add_u32 m0, m0, 0x400")
            e("s_add_u32 %s, %s, %d" % (S_OFF, S_OFF, 8 * 1280))
    e("ds_read_b32 v94, v%d offset:%d" % (VZ, L_CNT + 8))
    e("s_waitcnt lgkmcnt(0)")
    e("v_readfirstlane_b32 %s, v94" % S_T0)
    stags()
    e("s_mov_b32 exec_hi, 0xffff")
    e("s_mov_b64 s[4:5], exec")
    SO = [S_IT, "s70", "s71", "s73"]
    if "noh2poll" not in XP: ypoll(["buffer_load_dwordx4 %s, v29, %s, %s offen offset:%d sc1" % (vr(40 + 16 * bb + 4 * k), srd(SRD_WS), SO[k], 256 * bb) for bb in range(2) for k in range(4)],
          [(40 + 16 * bb + 4 * k, 72 + 4 * k) for bb in range(2) for k in range(4)], 31, 16, "s[4:5]")
    for r in range(40, 72):
        e("v_and_b32 v%d, 0xfffffc00, v%d" % (r, r))
    for bb in range(2):
        g = 40 + 16 * bb
        for i in range(4):
            e("v_add_f32 v%d, v%d, v%d" % (g + i, g + i, g + 4 + i))
            e("v_add_f32 v%d, v%d, v%d" % (g + 8 + i, g + 8 + i, g + 12 + i))
        for k in range(2):
            e("v_cvt_pk_bf16_f32 v%d, v%d, v%d" % (g + 4 + k, g + 2 * k, g + 2 * k + 1))
            e("v_cvt_pk_bf16_f32 v%d, v%d, v%d" % (g + 12 + k, g + 8 + 2 * k, g + 8 + 2 * k + 1))
        for k in range(2):
            e("v_lshlrev_b32 v31, 16, v%d" % (g + 4 + k))
            e("v_and_b32 v32, 0xffff0000, v%d" % (g + 4 + k))
            e("v_lshlrev_b32 v33, 16, v%d" % (g + 12 + k))
            e("v_and_b32 v34, 0xffff0000, v%d" % (g + 12 + k))
            e("v_mul_f32 v31, v31, v33")
            e("v_mul_f32 v32, v32, v34")
            e("v_cvt_pk_bf16_f32 v%d, v31, v32" % (g + k))
        e("ds_write_b64 v30, %s offset:%d" % (vr(g, 2), L_HT + 384 * bb))
    e("s_mov_b64 exec, -1")
    stamp(3)
    e("v_lshlrev_b32 v28, 10, v24")
    e("v_lshrrev_b32 v29, 2, v25")
    e("v_lshl_add_u32 v28, v29, 7, v28")
    e("v_and_b32 v29, 3, v0")
    e("v_lshl_add_u32 v28, v29, 3, v28")
    e("v_mul_u32_u24 v29, 192, v29")
    e("v_lshl_add_u32 v29, v24, 4, v29")
    e("s_waitcnt lgkmcnt(0)")
    HF, WF, AC = 96, 112, 160
    for s in range(3):
        e("ds_read_b128 %s, v29 offset:%d" % (vr(HF + 4 * s), L_HT + 64 * s))
    for s in range(3):
        for nt in range(4):
            r = WF + 16 * s + 4 * nt
            e("ds_read_b64_tr_b16 %s, v28 offset:%d" % (vr(r, 2), L_WQ + 4096 * s + 32 * nt))
            e("ds_read_b64_tr_b16 %s, v28 offset:%d" % (vr(r + 2, 2), L_WQ + 4096 * s + 32 * nt + 512))
    e("v_bfe_u32 v30, v0, 3, 1")
    e("v_lshlrev_b32 v30, 2, v30")
    e("v_and_b32 v31, 3, v0")
    e("v_add_u32 v30, v30, v31")
    e("v_lshlrev_b32 v30, 7, v30")
    e("v_bfe_u32 v31, v0, 2, 1")
    e("v_lshl_add_u32 v30, v31, 6, v30")
    e("v_lshl_add_u32 v30, v24, 4, v30")
    e("s_sub_u32 %s, 255, s2" % S_OFF)
    e("s_lshl_b32 %s, %s, 10" % (S_OFF, S_OFF))
    e("s_add_u32 %s, %s, 0x%x" % (S_OFF, S_OFF, F_OFF))
    e("s_waitcnt lgkmcnt(0)")
    for s in range(3):
        for nt in range(4):
            e("%s %s, %s, %s, %s" % (MFMA, vr(AC + 4 * nt), vr(WF + 16 * s + 4 * nt), vr(HF + 4 * s), "0" if s == 0 else vr(AC + 4 * nt)))
    e("s_nop 7")
    e("s_nop 3")
    for nt in range(1, 4):
        for i in range(4):
            e("v_mov_b32_dpp v%d, v%d row_shr:%d row_mask:0xf bank_mask:0x%x" % (AC + i, AC + 4 * nt + i, 4 * nt, 1 << nt))
    ypack(AC)
    if "noh2st" not in XP: e("buffer_store_dwordx4 %s, v30, %s, %s offen sc1" % (vr(AC), srd(SRD_WS), S_OFF))
    e("s_waitcnt vmcnt(0)")
    stamp(4)

    lab("L_wo")
    e("v_lshlrev_b32 v25, 4, v25")
    e("s_lshl_b32 %s, %s, 7" % (S_T0, S_H))
    e("s_lshl_b32 %s, %s, 5" % (S_T1, S_W))
    e("s_add_u32 %s, %s, %s" % (S_T0, S_T0, S_T1))
    e("s_mul_i32 %s, %s, 1280" % (S_T0, S_T0))
    e("v_mul_u32_u24 v27, 0x%x, v24" % (8 * 1280))
    e("v_add3_u32 v27, v27, v25, %s" % S_T0)
    mk_srd(SRD_W, "s24", "s25", 4096 * 1280)
    e("s_mov_b32 %s, 0" % S_T1)
    lds_wait(4, "1", 94, VZ, 4)
    for g in range(0 if "nowo" in XP else 8):
        for cb in range(5):
            if g * 5 + cb >= WO_WIN: e("s_waitcnt vmcnt(%d)" % (WO_WIN - 1))
            e("buffer_load_dwordx4 %s, v27, %s, %s offen offset:%d nt" % (vr(W(g * 5 + cb)), srd(SRD_W), S_T1, cb * 256))
        if g < 7: e("s_add_u32 %s, %s, 1280" % (S_T1, S_T1))
    e("ds_read_b32 v94, v%d offset:%d" % (VZ, L_CNT + 8))
    sel_pv(4, 28)
    e("v_and_b32 v26, 31, v0")
    e("v_and_b32 v27, 15, v26")
    e("v_lshlrev_b32 v27, 5, v27")
    e("v_lshrrev_b32 v26, 4, v26")
    e("v_lshl_add_u32 v27, v26, 4, v27")
    e("v_lshrrev_b32 v26, 5, v0")
    e("s_mul_i32 %s, %s, 5120" % (S_T0, S_W))
    e("s_add_u32 %s, %s, %d" % (S_T0, S_T0, L_YP))
    e("v_mul_u32_u24 v8, 2560, v26")
    e("v_add3_u32 v8, v8, v27, %s" % S_T0)
    e("v_lshlrev_b32 v9, 5, v24")
    e("s_lshl_b32 %s, %s, 7" % (S_T0, S_W))
    e("s_add_u32 %s, %s, %d" % (S_T0, S_T0, L_OP))
    e("v_add_u32 v9, %s, v9" % S_T0)
    e("v_lshlrev_b32 v10, 4, v1")
    e("v_lshlrev_b32 v11, 4, v1")
    e("v_add_u32 v11, 0x%x, v11" % L_YP)
    e("s_waitcnt lgkmcnt(0)")
    e("v_readfirstlane_b32 %s, v94" % S_T0)
    e("v_mov_b32 v62, v94")
    e("v_xor_b32 v63, %s, v94" % TAGX)
    stags()
    e("s_lshl_b32 %s, %s, 1" % (S_IT, S_BH))
    e("s_add_u32 %s, %s, %s" % (S_IT, S_IT, S_HALF))
    e("s_mul_i32 %s, %s, 2560" % (S_IT, S_IT))
    e("s_and_b32 %s, s2, 3" % S_C)
    e("s_lshl_b32 %s, %s, 2" % (S_C, S_C))
    e("s_add_u32 %s, %s, %s" % (S_C, S_C, S_W))
    e("s_mul_i32 %s, %s, %d" % (S_C, S_C, 16 * 2560))
    e("s_lshr_b32 %s, s2, 2" % S_T1)
    e("s_lshl_b32 %s, %s, 7" % (S_T1, S_T1))
    e("s_add_u32 %s, %s, %s" % (S_C, S_C, S_T1))
    e("s_add_u32 %s, %s, %d" % (S_A, S_C, 8 * 2560))
    e("v_and_b32 v86, 7, v0")
    e("v_lshlrev_b32 v86, 4, v86")
    e("v_bfe_u32 v87, v0, 4, 1")
    e("v_lshl_add_u32 v86, v87, 3, v86")
    e("v_lshrrev_b32 v87, 5, v0")
    e("v_lshl_add_u32 v86, v87, 2, v86")
    e("v_lshrrev_b32 v87, 3, v0")
    e("v_mul_u32_u24 v87, 2560, v87")
    e("v_and_b32 v28, 7, v0")
    e("v_lshl_add_u32 v87, v28, 4, v87")
    e("s_waitcnt vmcnt(0)")
    stamp(5)
    e("s_cmp_ge_u32 s2, %d" % NCONS)
    e("s_cbranch_scc1 L_nc")
    e("s_cmp_lg_u32 %s, 3" % S_W)
    e("s_cbranch_scc1 L_nc")
    e("s_lshr_b32 %s, s2, 3" % S_T1)
    e("v_lshrrev_b32 v30, 3, v0")
    e("v_and_b32 v29, 7, v0")
    e("v_lshlrev_b32 v29, 4, v29")
    for k in range(3):
        e("v_add_u32 v31, %d, v30" % (8 * k))
        if k == 2: e("v_min_u32 v31, 17, v31")
        e("v_mul_u32_u24 v31, 10240, v31")
        e("v_add_u32 v%d, v31, v29" % (36 + k))
    e("s_lshl_b32 %s, s2, 7" % S_OFF)
    e("s_add_u32 %s, %s, 0x%x" % (S_OFF, S_OFF, F_OFF))
    lds_wait(0, "1", 94, VZ, 16)
    if "noffn" not in XP and "noh3poll" not in XP: ypoll(["buffer_load_dwordx4 %s, v%d, %s, %s offen sc1" % (vr(40 + 4 * k), 36 + k, srd(SRD_WS), S_OFF) for k in range(3)],
          [(40, 64), (44, 68), (48, 72)], 52, 32)
    e("v_cmp_gt_u32 vcc, 16, v0")
    for i in range(4):
        e("v_add_f32 v%d, v%d, v%d" % (40 + i, 40 + i, 44 + i))
    for i in range(4):
        e("v_cndmask_b32 v%d, 0, v%d, vcc" % (48 + i, 48 + i))
    for i in range(4):
        e("v_add_f32 v%d, v%d, v%d" % (40 + i, 40 + i, 48 + i))
    red8(40)
    e("ds_write_b32 v86, v40 offset:%d" % (L_R + 512))
    e("v_lshlrev_b32 v30, 2, v0")
    e("v_and_b32 v30, 127, v30")
    e("v_sub_f32 v31, 1.0, v%d" % V_G)
    bf16r(31)
    e("s_waitcnt lgkmcnt(0)")
    e("ds_read_b32 v%d, v30 offset:%d" % (V_FB, L_R + 512))
    e("s_waitcnt lgkmcnt(0)")
    bf16r(V_FB)
    e("v_mul_f32 v%d, v31, v%d" % (V_FB, V_FB))
    bf16r(V_FB)
    lab("L_nc")
    if FC and CC:
        e("s_cmp_lg_u32 %s, 1" % S_W)
        e("s_cbranch_scc1 L_nctl")
        sample(1, CC)
        lab("L_nctl")
    e("s_cmp_lg_u32 %s, 0" % S_W)
    e("s_cbranch_scc1 L_h9")
    e("v_and_b32 v12, 3, v0")
    e("v_lshlrev_b32 v13, 2, v12")
    e("v_lshlrev_b32 v12, 3, v12")
    e("s_and_b32 %s, s2, 127" % S_OFF)
    e("s_lshl_b32 %s, %s, 7" % (S_OFF, S_OFF))
    e("s_add_u32 %s, %s, 0x%x" % (S_OFF, S_OFF, RC_OFF))
    e("s_lshl_b32 %s, %s, 6" % (S_T1, S_HALF))
    e("s_add_u32 s68, %s, %s" % (S_OFF, S_T1))
    e("s_xor_b32 s69, s68, 64")
    lds_wait(0, "4", 94, VZ, 8 if not FC else 4)
    if FC: e("s_memrealtime s[4:5]")
    e("ds_read_b64 v[14:15], v12 offset:%d" % L_ML)
    e("s_waitcnt lgkmcnt(0)")
    e("v_mov_b32 v60, v14")
    allreduce4("max", 60)
    e("v_sub_f32 v16, v14, v60")
    e("v_mul_f32 v16, %s, v16" % LOG2E)
    e("v_exp_f32 v16, v16")
    e("s_nop 0")
    e("v_mul_f32 v61, v16, v15")
    allreduce4("add", 61)
    if FC:
        e("v_mov_b32 v44, v60")
        e("v_mov_b32 v45, v61")
        e("v_mov_b32 v46, v62")
        e("v_mov_b32 v47, v63")
        e("s_mov_b64 exec, 2")
        e("v_mov_b32 v44, s4")
        e("s_mov_b64 exec, 3")
        e("buffer_store_dwordx4 v[44:47], v2, %s, s68 offen sc1" % srd(SRD_WS))
    else:
        e("s_mov_b64 exec, 1")
        if "nopair" not in XP: e("buffer_store_dwordx4 v[60:63], off, %s, s68 sc1" % srd(SRD_WS))
    e("s_mov_b64 exec, -1")
    stamp(6)
    if "nopair" not in XP: tpoll(["buffer_load_dwordx4 v[40:43], off, %s, s69 sc1" % srd(SRD_WS)], [(40, 62, 63)], xpv("rsl", 32))
    e("v_max_f32 v17, v60, v40")
    e("v_sub_f32 v60, v60, v17")
    e("v_sub_f32 v40, v40, v17")
    e("v_sub_f32 v14, v14, v17")
    e("v_mul_f32 v60, %s, v60" % LOG2E)
    e("v_mul_f32 v40, %s, v40" % LOG2E)
    e("v_mul_f32 v14, %s, v14" % LOG2E)
    e("v_exp_f32 v60, v60")
    e("v_exp_f32 v40, v40")
    e("v_exp_f32 v14, v14")
    e("v_mul_f32 v61, v60, v61")
    e("v_fmac_f32 v61, v40, v41")
    e("v_rcp_f32 v61, v61")
    e("s_nop 0")
    e("v_mul_f32 v14, v14, v61")
    e("ds_write_b32 v13, v14 offset:%d" % L_SC)
    if FC: census(RC_OFF + 16, 6, 5, xpv("tsl", 48))
    e("s_waitcnt lgkmcnt(0)")
    lab("L_h9")
    e("s_mov_b32 %s, 0x05040100" % S_T0)
    e("s_mov_b32 %s, 0x07060302" % S_T1)
    stamp(7)
    e("s_barrier")
    O = 32
    e("ds_read_b128 v[64:67], v%d offset:%d" % (VZ, L_SC))
    for w in range(4):
        e("ds_read_b128 %s, v9 offset:%d" % (vr(O + 8 * w), w * 512))
        e("ds_read_b128 %s, v9 offset:%d" % (vr(O + 8 * w + 4), w * 512 + 16))
    e("s_waitcnt lgkmcnt(6)")
    for i in range(8):
        e("v_mul_f32 v%d, v64, v%d" % (O + i, O + i))
    for w in range(1, 4):
        e("s_waitcnt lgkmcnt(%d)" % (6 - 2 * w))
        for i in range(8):
            e("v_fmac_f32 v%d, v%d, v%d" % (O + i, 64 + w, O + 8 * w + i))
    for k in range(4):
        hilo_pack(O + 2 * k, O + 2 * k + 1, O + 8 + 3 * k)
    AB = [64, 68]
    YA = 12
    def perms(g):
        for i in range(4):
            e("v_perm_b32 v%d, v%d, v%d, v%d" % (AB[g & 1] + i, O + g, O + g, 4 + i))
    perms(0)
    e("s_nop 1")
    for g in range(8):
        for cb in range(5):
            e("%s %s, %s, %s, %s" % (MFMA, vr(YA + 4 * cb), vr(AB[g & 1]), vr(W(g * 5 + cb)), "0" if g == 0 else vr(YA + 4 * cb)))
            if cb == 0 and g < 7: perms(g + 1)
    e("v_cmp_gt_u32 vcc, 160, v1")
    e("s_nop 7")
    for cb in range(5):
        e("ds_write_b128 v8, %s offset:%d" % (vr(YA + 4 * cb), cb * 512))
    e("s_waitcnt lgkmcnt(0)")
    e("s_barrier")
    e("s_and_saveexec_b64 s[70:71], vcc")
    e("s_cbranch_execz L_h10")
    for p in range(8):
        e("ds_read_b128 %s, v11 offset:%d" % (vr(O + 4 * p), p * 2560))
    for p in (1, 3, 5, 7):
        e("s_waitcnt lgkmcnt(%d)" % (7 - p))
        for i in range(4):
            e("v_add_f32 v%d, v%d, v%d" % (O + 4 * (p - 1) + i, O + 4 * (p - 1) + i, O + 4 * p + i))
    for i in range(4):
        e("v_add_f32 v%d, v%d, v%d" % (O + i, O + i, O + 8 + i))
        e("v_add_f32 v%d, v%d, v%d" % (O + 16 + i, O + 16 + i, O + 24 + i))
    for i in range(4):
        e("v_add_f32 v%d, v%d, v%d" % (O + i, O + i, O + 16 + i))
    ypack(O)
    e("buffer_store_dwordx4 %s, v10, %s, %s offen sc1" % (vr(O), srd(SRD_WS), S_IT))
    lab("L_h10")
    e("s_mov_b64 exec, -1")
    stamp(8)
    e("s_cmp_ge_u32 s2, %d" % NCONS)
    e("s_cbranch_scc1 L_hend")
    if xpv("yd", 0): e("s_sleep %d" % xpv("yd", 0))
    ypoll(["buffer_load_dwordx4 v[12:15], v87, %s, %s offen sc1" % (srd(SRD_WS), S_C),
           "buffer_load_dwordx4 v[16:19], v87, %s, %s offen sc1" % (srd(SRD_WS), S_A)], [(12, 76), (16, 80)], 20, xpv("ysl", 0))
    for i in range(4):
        e("v_add_f32 v%d, v%d, v%d" % (12 + i, 12 + i, 16 + i))
    e("s_lshl_b32 %s, %s, 7" % (S_T0, S_W))
    e("v_add_u32 v86, %s, v86" % S_T0)
    red8(12)
    e("ds_write_b32 v86, v12 offset:%d" % L_R)
    e("v_lshlrev_b32 v12, 2, v0")
    e("s_waitcnt lgkmcnt(0)")
    e("s_barrier")
    e("s_cmp_lg_u32 %s, 3" % S_W)
    e("s_cbranch_scc1 L_hend")
    e("s_mov_b32 exec_hi, 0")
    for w in range(4):
        e("ds_read_b32 v%d, v12 offset:%d" % (8 + w, L_R + w * 128))
    mk_srd(SRD_X, "s36", "s37", 5120)
    e("s_and_b32 s5, s2, 3")
    e("s_mul_i32 %s, s5, 1280" % S_T0)
    e("s_lshr_b32 %s, s2, 2" % S_T1)
    e("s_lshl_b32 %s, %s, 6" % (S_T1, S_T1))
    e("s_add_u32 %s, %s, %s" % (S_T0, S_T0, S_T1))
    e("v_lshlrev_b32 v12, 1, v0")
    e("s_waitcnt lgkmcnt(0)")
    e("v_add_f32 v8, v8, v9"); e("v_add_f32 v10, v10, v11")
    e("v_add_f32 v8, v8, v10")
    bf16r(8)
    e("v_mul_f32 v8, v%d, v8" % V_G)
    bf16r(8)
    e("v_add_f32 v8, v8, v%d" % V_FB)
    e("v_cvt_pk_bf16_f32 v8, v8, v8")
    e("buffer_store_short v8, v12, %s, %s offen" % (srd(SRD_X), S_T0))
    lab("L_hend")
    stamp(9)
    stamps_out(4)


def main():
    ref = open("cdna_kernels/%s.s.ref" % NAME).read().split("\n")
    head = []
    for ln in ref:
        if ln.startswith("; @launch"):
            break
        head.append(ln)
    out = head + ["; @launch grid=(%d,1,1) block=(512,1,1) lds=%d" % (NWG, LDS_BYTES)]
    out += ['.amdgcn_target "amdgcn-amd-amdhsa--gfx950"', ".text", ".globl " + KNAME, ".p2align 8",
            ".type %s,@function" % KNAME, KNAME + ":"]
    e("s_cmp_ge_u32 s2, %d" % NWG)
    e("s_cbranch_scc1 L_end")
    e("s_load_dwordx16 s[16:31], s[0:1], 0")
    e("s_load_dwordx8 s[32:39], s[0:1], 64")
    e("s_load_dwordx2 s[40:41], s[0:1], 96")
    e("v_lshrrev_b32 v1, 6, v0")
    e("v_and_b32 v0, 63, v0")
    e("s_mov_b32 s72, 0")
    e("v_readfirstlane_b32 %s, v1" % S_W)
    e("s_and_b32 s4, s2, 7")
    e("s_lshr_b32 s5, s2, 3")
    e("s_and_b32 %s, s5, 3" % S_H)
    e("s_lshl_b32 %s, %s, 3" % (S_H, S_H))
    e("s_add_u32 %s, %s, s4" % (S_H, S_H))
    e("s_lshr_b32 %s, s5, 2" % S_B)
    e("s_and_b32 %s, %s, 3" % (S_B, S_B))
    e("s_lshr_b32 %s, s5, 4" % S_HALF)
    e("s_lshl_b32 %s, %s, 5" % (S_BH, S_B))
    e("s_add_u32 %s, %s, %s" % (S_BH, S_BH, S_H))
    if TS:
        for i in range(NSTAMP): e("s_mov_b32 s%d, 0" % (76 + 2 * i))
    e("s_cmp_ge_u32 %s, 4" % S_W)
    e("s_cbranch_scc1 L_helper")
    streamer()
    helper()
    lab("L_end")
    e("s_endpgm")
    lab("L_code_end")
    out += L
    out += ['.section .rodata,"a"', ".p2align 6", ".amdhsa_kernel " + KNAME,
            "  .amdhsa_next_free_vgpr 256", "  .amdhsa_next_free_sgpr %d" % (96 if TS else 80), "  .amdhsa_accum_offset 256",
            "  .amdhsa_group_segment_fixed_size 0", "  .amdhsa_kernarg_size 104",
            "  .amdhsa_user_sgpr_count 2", "  .amdhsa_user_sgpr_kernarg_segment_ptr 1",
            "  .amdhsa_system_sgpr_workgroup_id_x 1", "  .amdhsa_float_denorm_mode_32 3",
            ".end_amdhsa_kernel", ""]
    open(OUT, "w").write("\n".join(out))

main()
```

```python
import sys

NAME = "gated_mix__mha_block_cached__glu_gated_bilinear__decode"
KNAME = NAME + "_kernel"
TS = "--ts" in sys.argv
XP = [a[2:] for a in sys.argv if a.startswith("--")]
OUT = [a for a in sys.argv[1:] if not a.startswith("--")]
OUT = OUT[0] if OUT else "cdna_kernels/%s.s" % NAME
def xpv(name, default):
    for a in XP:
        if a.startswith(name + "="): return int(a.split("=")[1])
    return default

NWG, NCONS, NF2 = 256, 80, 180
NWARM = 3
Y_OFF = 0
F_OFF = 0xA0000
QX_OFF = 0xD0000
GX_OFF = 0xF0000
RC_OFF = 0x10C000
CT_OFF = 0x110000
WS_USED = 0x130000
WS_BASE = xpv("wsmb", 0) << 20
DBG_WS = 8 << 20
WS_REC = (WS_USED if not TS else (64 << 20))
D = xpv("d", 8)
C0 = xpv("c0", 12)
WO_WIN = xpv("wowin", 3)
NB = 8
FC = "nofc" not in XP
XK = [0, xpv("xk1", 1), xpv("xk2", 2)]
XV = [0, xpv("xv1", 2), xpv("xv2", 4)]
KDL, DLT = xpv("kdl", 250), xpv("dlt", 221)
TH1, TH2 = xpv("th1", 0), xpv("th2", 60)
CA, CC = xpv("ca", 1), xpv("cc", 0)
def sched(n): return (min(n, 5) - 1) * KDL + max(n - 5, 0) * DLT
V_ONE, V_FLAG, S_FLAG = 40, 41, "s69"
assert D % 4 == 0 and 4 <= D <= 16

P_ROW = 64 * NB + 16
P_WAVE = 4 * P_ROW
L_QB = 8448
L_OP = 8704
OA_ROW = 272
L_ML = 10880
L_CNT = 10912
L_SC = 10944
L_R = 11008
L_HT = 11904
L_WQ = 12800
L_X0 = 33280
L_WF = 38400
L_X1 = 58880
L_WO = 64000
LDS_BYTES = L_WO + 40960
assert 4 * P_WAVE <= L_QB

L = []
def e(s): L.append("    " + s)
def lab(s): L.append(s + ":")
def cmt(s): L.append("    ; " + s)
def vr(a, n=4): return "v[%d:%d]" % (a, a + n - 1)

S_W, S_H, S_B, S_HALF, S_BH = "s3", "s6", "s7", "s8", "s9"
S_OFF, S_IT, S_T0, S_T1, S_A = "s10", "s11", "s12", "s13", "s14"
S_C, S_I = "s15", "s74"
SRD_S, SRD_W, SRD_WS, SRD_DBG, SRD_X = 44, 48, 52, 56, 60
S_TG = 64
S_P = 68
def srd(n): return "s[%d:%d]" % (n, n + 3)
def mk_srd(n, lo, hi, nrec):
    e("s_mov_b32 s%d, %s" % (n, lo))
    e("s_mov_b32 s%d, %s" % (n + 1, hi))
    e("s_mov_b32 s%d, 0x%x" % (n + 2, nrec))
    e("s_mov_b32 s%d, 0x00020000" % (n + 3))
def mk_ws():
    if WS_BASE:
        e("s_add_u32 s%d, s40, 0x%x" % (SRD_WS, WS_BASE))
        e("s_addc_u32 s%d, s41, 0" % (SRD_WS + 1))
        e("s_mov_b32 s%d, 0x%x" % (SRD_WS + 2, WS_USED))
        e("s_mov_b32 s%d, 0x00020000" % (SRD_WS + 3))
    else:
        mk_srd(SRD_WS, "s40", "s41", WS_USED)

BUF = 64
WREG = 96
def B(i): return BUF + 4 * i
def W(i): return WREG + 4 * i

LOG2E = "0x3fb8aa3b"
SCALE = "0x3db504f3"
MFMA = "v_mfma_f32_16x16x32_bf16"
TAGX = "0x9e3779b9"

def sel_pv(dst, t):
    a, b, c = t, t + 1, t + 2
    e("v_mov_b32 v%d, 0x100" % a)
    e("v_mov_b32 v%d, 0x302" % b)
    e("v_and_b32 v%d, 8, v0" % c)
    e("v_cmp_ne_u32 vcc, 0, v%d" % c)
    e("s_nop 1")
    e("v_cndmask_b32 v%d, v%d, v%d, vcc" % (a, a, b))
    e("v_or_b32 v%d, 0x0c0c0000, v%d" % (b, a))
    e("v_lshlrev_b32 v%d, 16, v%d" % (a, a))
    e("v_or_b32 v%d, 0x0c0c, v%d" % (a, a))
    e("v_and_b32 v%d, 1, v0" % c)
    e("v_cmp_ne_u32 vcc, 0, v%d" % c)
    e("s_nop 1")
    e("v_cndmask_b32 v%d, v%d, v%d, vcc" % (a, b, a))
    e("v_mov_b32 v%d, 0x0c0c0c0c" % b)
    e("v_bfe_u32 v%d, v0, 1, 2" % c)
    for i in range(4):
        e("v_cmp_eq_u32 vcc, %d, v%d" % (i, c))
        e("s_nop 1")
        e("v_cndmask_b32 v%d, v%d, v%d, vcc" % (dst + i, b, a))

def allreduce64(op, v, t):
    for r in (8, 4, 2, 1):
        e("s_nop 1")
        e("v_%s_f32_dpp v%d, v%d, v%d row_ror:%d row_mask:0xf bank_mask:0xf" % (op, v, v, v, r))
    for sw in ("16", "32"):
        e("v_mov_b32 v%d, v%d" % (t, v))
        e("s_nop 1")
        e("v_permlane%s_swap_b32 v%d, v%d" % (sw, v, t))
        e("s_nop 1")
        e("v_%s_f32 v%d, v%d, v%d" % (op, v, v, t))

def allreduce4(op, v):
    for m in ("quad_perm:[1,0,3,2]", "quad_perm:[2,3,0,1]"):
        e("s_nop 1")
        e("v_%s_f32_dpp v%d, v%d, v%d %s row_mask:0xf bank_mask:0xf" % (op, v, v, v, m))

def bf16r(v):
    e("v_cvt_pk_bf16_f32 v%d, v%d, v%d" % (v, v, v))
    e("v_lshlrev_b32 v%d, 16, v%d" % (v, v))

def hilo_pack(a, b, t):
    e("v_cvt_pk_bf16_f32 v%d, v%d, v%d" % (t, a, b))
    e("v_lshlrev_b32 v%d, 16, v%d" % (t + 1, t))
    e("v_and_b32 v%d, 0xffff0000, v%d" % (t + 2, t))
    e("v_sub_f32 v%d, v%d, v%d" % (t + 1, a, t + 1))
    e("v_sub_f32 v%d, v%d, v%d" % (t + 2, b, t + 2))
    e("v_cvt_pk_bf16_f32 v%d, v%d, v%d" % (t + 1, t + 1, t + 2))
    e("v_perm_b32 v%d, v%d, v%d, %s" % (a, t + 1, t, S_T0))
    e("v_perm_b32 v%d, v%d, v%d, %s" % (b, t + 1, t, S_T1))

def stream_load(t):
    e("buffer_load_dwordx4 %s, v1, %s, %s offen nt" % (vr(B(t)), srd(SRD_S), S_OFF))
    e("s_add_u32 %s, %s, 0x1000" % (S_OFF, S_OFF))

NSTAMP = 10
def stamp(i):
    if not TS: return
    e("s_memrealtime s[%d:%d]" % (76 + 2 * i, 77 + 2 * i))
    e("s_waitcnt lgkmcnt(0)")

def stamps_out(w8off):
    if not TS: return
    e("s_mov_b64 exec, 1")
    mk_srd(SRD_WS, "s40", "s41", 64 << 20)
    e("s_lshl_b32 s12, s2, 3")
    e("s_add_u32 s12, s12, %s" % S_W)
    e("s_add_u32 s12, s12, %d" % w8off)
    e("s_lshl_b32 s12, s12, 6")
    e("s_add_u32 s12, s12, 0x%x" % DBG_WS)
    for i in range(NSTAMP):
        e("v_mov_b32 v5, s%d" % (76 + 2 * i))
        e("buffer_store_dword v5, off, %s, s12 offset:%d" % (srd(SRD_WS), 4 * i))
    e("s_getreg_b32 s13, hwreg(HW_REG_XCC_ID)")
    e("v_mov_b32 v5, s13")
    e("buffer_store_dword v5, off, %s, s12 offset:56" % srd(SRD_WS))
    e("s_getreg_b32 s13, hwreg(HW_REG_HW_ID)")
    e("v_mov_b32 v5, s13")
    e("buffer_store_dword v5, off, %s, s12 offset:60" % srd(SRD_WS))

SPIN_MAX = 400000
def spin_guard(exit_lbl):
    e("s_add_u32 s72, s72, 1")
    e("s_cmp_gt_u32 s72, %d" % SPIN_MAX)
    e("s_cbranch_scc1 %s" % exit_lbl)

NLAB = [0]
def newlab(p):
    NLAB[0] += 1
    return "L_%s%d" % (p, NLAB[0])

def lds_wait(off, target, vt, va, sleep=1):
    l0, l1 = newlab("lw"), newlab("lw")
    lab(l0)
    e("ds_read_b32 v%d, v%d offset:%d" % (vt, va, L_CNT + off))
    e("s_waitcnt lgkmcnt(0)")
    e("v_readfirstlane_b32 %s, v%d" % (S_T0, vt))
    e("s_cmp_ge_u32 %s, %s" % (S_T0, target))
    e("s_cbranch_scc1 %s" % l1)
    spin_guard(l1)
    e("s_sleep %d" % sleep)
    e("s_branch %s" % l0)
    lab(l1)

def lds_signal(off, vt, va):
    e("v_mov_b32 v%d, 1" % vt)
    e("s_mov_b64 exec, 1")
    e("ds_add_u32 v%d, v%d offset:%d" % (va, vt, L_CNT + off))
    e("s_mov_b64 exec, -1")

def fc_end(dl):
    e("s_memrealtime s[70:71]")
    e("s_mov_b64 exec, 1")
    e("ds_add_u32 v30, v%d offset:%d" % (V_ONE, L_CNT + 12))
    e("s_mov_b64 exec, -1")
    e("s_waitcnt lgkmcnt(0)")
    e("v_readfirstlane_b32 s71, v%d" % V_FLAG)
    e("s_sub_u32 s70, s68, s70")
    e("s_add_u32 s70, s70, s71")
    e("s_add_u32 s68, s68, %s" % dl)
    e("s_cmp_gt_i32 s70, %d" % TH1)
    e("s_cselect_b32 %s, 1, 0" % S_FLAG)
    e("s_cmp_gt_i32 s70, %d" % TH2)
    e("s_cselect_b32 %s, 2, %s" % (S_FLAG, S_FLAG))
    e("s_cmp_eq_u32 s71, 0")
    e("s_cselect_b32 %s, 0, %s" % (S_FLAG, S_FLAG))

def k_body(b0, waits, loads, pre=None, steady=False):
    P = [8, 9, 10, 11]; Y0, Y1, Z, T, S, TMP = 12, 13, 14, 15, 16, 17
    for G in range(4):
        ld = list(loads[G])
        def nxt():
            if ld: stream_load(ld.pop(0))
        e("s_waitcnt vmcnt(%d)" % waits[G])
        for k in range(4):
            for u in range(4):
                c = "0" if k == 0 else "v%d" % P[u]
                e("v_dot2_f32_bf16 v%d, v%d, v%d, %s" % (P[u], B(b0 + 4 * G + u) + k, 4 + k, c))
        if pre and pre.get(G): pre[G]()
        e("v_add_f32_dpp v%d, v%d, v%d row_ror:8 row_mask:0xf bank_mask:0x3" % (Y0, P[0], P[0]))
        e("v_add_f32_dpp v%d, v%d, v%d row_ror:8 row_mask:0xf bank_mask:0xc" % (Y0, P[1], P[1]))
        e("v_add_f32_dpp v%d, v%d, v%d row_ror:8 row_mask:0xf bank_mask:0x3" % (Y1, P[2], P[2]))
        e("v_add_f32_dpp v%d, v%d, v%d row_ror:8 row_mask:0xf bank_mask:0xc" % (Y1, P[3], P[3]))
        nxt()
        if len(loads[G]) < 1: e("s_nop 1")
        e("v_add_f32_dpp v%d, v%d, v%d row_half_mirror row_mask:0xf bank_mask:0x5" % (Z, Y0, Y0))
        e("v_add_f32_dpp v%d, v%d, v%d row_half_mirror row_mask:0xf bank_mask:0xa" % (Z, Y1, Y1))
        nxt()
        if len(loads[G]) < 2: e("s_nop 1")
        e("v_add_f32_dpp v%d, v%d, v%d quad_perm:[1,0,3,2] row_mask:0xf bank_mask:0xf" % (Z, Z, Z))
        nxt()
        if len(loads[G]) < 3: e("s_nop 1")
        d = S if G == 0 else T
        e("v_add_f32_dpp v%d, v%d, v%d quad_perm:[2,3,0,1] row_mask:0xf bank_mask:0xf" % (d, Z, Z))
        nxt()
        assert not ld
        if G:
            e("v_cndmask_b32 v%d, v%d, v%d, s[%d:%d]" % (S, S, T, 60 + 2 * G, 61 + 2 * G))
    e("v_cvt_pk_bf16_f32 v%d, v%d, v%d" % (TMP, S, S))
    e("v_lshlrev_b32 v%d, 16, v%d" % (TMP, TMP))
    e("v_mul_f32 v%d, %s, v%d" % (TMP, SCALE, TMP))
    bf16r(TMP)
    e("s_add_u32 %s, %s, 1" % (S_IT, S_IT))
    e("v_max_f32 v3, v3, v%d" % TMP)
    if FC and steady: e("ds_read_b32 v%d, v30 offset:%d" % (V_FLAG, L_CNT + 20))
    e("ds_write_b32 v2, v%d" % TMP)
    e("v_add_u32 v2, 64, v2")
    if FC and steady:
        fc_end(str(KDL))

def v_body(x=0):
    A, ACC = 8, 20
    PB = [12, 16]
    for G in range(4):
        e("s_waitcnt lgkmcnt(0)")
        e("ds_read_b128 %s, v2 offset:%d" % (vr(PB[(G + 1) & 1]), (G + 1) * 16))
        if FC and G == 3: e("ds_read_b32 v%d, v30 offset:%d" % (V_FLAG, L_CNT + 20))
        for u in range(4):
            t = 4 * G + u
            p = PB[G & 1] + u
            for i in range(4):
                e("v_perm_b32 v%d, v%d, v%d, v%d" % (A + i, p, p, 4 + i))
            e("s_waitcnt vmcnt(%d)" % (D - 1 - x))
            e("s_nop 0")
            e("%s %s, %s, %s, %s" % (MFMA, vr(ACC), vr(A), vr(B(t)), vr(ACC)))
            stream_load((t + D) % 16)
    e("s_add_u32 %s, %s, 1" % (S_IT, S_IT))
    e("v_add_u32 v2, 64, v2")
    if FC: fc_end(str(DLT))

def streamer():
    cmt("---- streaming waves")
    e("s_lshl_b32 %s, %s, 20" % (S_T0, S_BH))
    e("s_lshl_b32 %s, %s, 19" % (S_T1, S_HALF))
    e("s_add_u32 %s, %s, %s" % (S_T0, S_T0, S_T1))
    e("s_lshl_b32 %s, %s, 10" % (S_T1, S_W))
    e("v_lshlrev_b32 v1, 4, v0")
    e("v_add_u32 v1, %s, v1" % S_T1)
    e("s_mov_b32 s%d, 0x%x" % (SRD_S + 2, NB << 16))
    e("s_mov_b32 s%d, 0x00020000" % (SRD_S + 3))
    e("s_mov_b32 %s, 0" % S_OFF)
    e("s_waitcnt lgkmcnt(0)")
    stamp(0)
    e("s_add_u32 s%d, s18, %s" % (SRD_S, S_T0))
    e("s_addc_u32 s%d, s19, 0" % (SRD_S + 1))
    e("s_add_u32 s42, s20, %s" % S_T0)
    e("s_addc_u32 s43, s21, 0")
    PRE = min(xpv("pre", 4), C0)
    for t in range(PRE):
        stream_load(t)
    e("s_barrier")
    for t in range(PRE, C0):
        stream_load(t)
    for i, m in enumerate((0x22222222, 0x44444444, 0x88888888)):
        e("s_mov_b32 s%d, 0x%x" % (62 + 2 * i, m)); e("s_mov_b32 s%d, 0x%x" % (63 + 2 * i, m))
    e("v_lshrrev_b32 v24, 4, v0")
    e("v_and_b32 v25, 15, v0")
    e("v_lshlrev_b32 v25, 4, v25")
    e("v_mul_u32_u24 v2, %d, v24" % P_ROW)
    e("s_mul_i32 %s, %s, %d" % (S_T0, S_W, P_WAVE))
    e("v_add_u32 v28, %s, v2" % S_T0)
    e("v_and_b32 v26, 3, v0")
    e("v_lshlrev_b32 v26, 4, v26")
    e("v_bfe_u32 v27, v0, 2, 1")
    e("v_lshl_add_u32 v26, v27, 3, v26")
    e("v_bfe_u32 v27, v0, 3, 1")
    e("v_lshl_add_u32 v26, v27, 2, v26")
    e("v_add_u32 v2, v28, v26")
    e("v_mov_b32 v29, v2")
    e("v_mov_b32 v3, 0xff800000")
    e("v_mov_b32 v30, 0")
    e("v_mov_b32 v%d, 1" % V_ONE)
    e("s_mov_b32 %s, 0" % S_FLAG)
    e("s_mov_b32 s68, 0")
    e("s_mov_b32 %s, 0" % S_IT)
    for t in range(C0, 48):
        e("s_waitcnt vmcnt(%d)" % (C0 - 1))
        stream_load(t)
    stamp(1)
    lds_wait(4, "1", 31, 30)
    e("ds_read_b128 v[4:7], v25 offset:%d" % L_QB)
    e("s_waitcnt lgkmcnt(0)")
    stamp(2)
    iss = 0
    for th in range(3):
        waits, loads = [], []
        for G in range(4):
            g = 4 * th + G
            waits.append(44 - 4 * g + iss)
            n = (g + 1) * D // 12 - g * D // 12
            loads.append(list(range(iss, iss + n))); iss += n
        k_body(16 * th, waits, loads)
    assert iss == D
    def switch():
        e("s_cmp_eq_u32 %s, %d" % (S_IT, NB - 1))
        e("s_cselect_b32 s%d, s42, s%d" % (SRD_S, SRD_S))
        e("s_cselect_b32 s%d, s43, s%d" % (SRD_S + 1, SRD_S + 1))
        e("s_cselect_b32 %s, 0, %s" % (S_OFF, S_OFF))
    def loops(pfx, body):
        if not FC:
            lab(pfx + "0")
            body(0)
            e("s_cmp_lg_u32 %s, %d" % (S_IT, NB))
            e("s_cbranch_scc1 %s0" % pfx)
            return
        e("s_branch %sn" % pfx)
        for lv in (2, 1, 0):
            lab(pfx + str(lv))
            body(lv)
            if lv: e("s_branch %sc" % pfx)
        lab(pfx + "c")
        e("s_cmp_eq_u32 %s, %d" % (S_IT, NB))
        e("s_cbranch_scc1 %sd" % pfx)
        lab(pfx + "n")
        e("s_cmp_eq_u32 %s, 0" % S_FLAG)
        e("s_cbranch_scc1 %s0" % pfx)
        e("s_cmp_eq_u32 %s, 1" % S_FLAG)
        e("s_cbranch_scc1 %s1" % pfx)
        e("s_branch %s2" % pfx)
        lab(pfx + "d")
    loops("L_k", lambda lv: k_body(0, [D - 4 - XK[lv]] * 4, [[(4 * G + u + D) % 16 for u in range(4)] for G in range(4)], {(16 - D) // 4: switch}, True))
    stamp(3)
    for k in range(NB):
        e("ds_read_b32 v%d, v29 offset:%d" % (32 + k, 64 * k))
    allreduce64("max", 3, 16)
    e("s_mov_b32 %s, 0x05040100" % S_T0)
    e("s_mov_b32 %s, 0x07060302" % S_T1)
    e("s_waitcnt lgkmcnt(0)")
    for k in range(NB):
        e("v_sub_f32 v%d, v%d, v3" % (32 + k, 32 + k))
    for k in range(NB):
        e("v_mul_f32 v%d, %s, v%d" % (32 + k, LOG2E, 32 + k))
    for k in range(NB):
        e("v_exp_f32 v%d, v%d" % (32 + k, 32 + k))
    e("s_nop 0")
    e("v_add_f32 v24, v32, v33")
    for k in range(2, NB):
        e("v_add_f32 v24, v24, v%d" % (32 + k))
    for k in range(NB // 2):
        hilo_pack(32 + 2 * k, 33 + 2 * k, 16)
    for k in range(NB):
        e("ds_write_b32 v29, v%d offset:%d" % (32 + k, 64 * k))
    e("v_mov_b32 v2, v28")
    e("ds_read_b128 %s, v2" % vr(12))
    allreduce64("add", 24, 20)
    sel_pv(4, 8)
    e("v_mov_b32 v25, v24")
    e("v_mov_b32 v24, v3")
    e("s_lshl_b32 %s, %s, 3" % (S_T0, S_W))
    e("v_mov_b32 v26, %s" % S_T0)
    e("s_mov_b64 exec, 1")
    e("ds_write_b64 v26, v[24:25] offset:%d" % L_ML)
    e("s_mov_b64 exec, -1")
    lds_signal(0, 27, 30)
    for i in range(4):
        e("v_mov_b32 v%d, 0" % (20 + i))
    e("s_mov_b32 %s, 0" % S_IT)
    e("v_bfe_u32 v26, v0, 2, 2")
    e("v_lshlrev_b32 v27, 6, v26")
    e("v_and_b32 v26, 1, v0")
    e("v_lshl_add_u32 v27, v26, 5, v27")
    e("v_bfe_u32 v26, v0, 4, 1")
    e("v_lshl_add_u32 v27, v26, 4, v27")
    e("v_bfe_u32 v26, v0, 1, 1")
    e("v_lshl_add_u32 v27, v26, 3, v27")
    e("v_lshrrev_b32 v26, 5, v0")
    e("s_mul_i32 %s, %s, %d" % (S_T0, S_W, 2 * OA_ROW))
    e("s_add_u32 %s, %s, %d" % (S_T0, S_T0, L_OP))
    e("v_lshl_add_u32 v28, v26, 2, v27")
    e("v_add_u32 v28, %s, v28" % S_T0)
    stamp(4)
    if FC: e("s_mov_b32 s68, %d" % sched(6))
    loops("L_v", lambda lv: v_body(XV[lv]))
    stamp(5)
    ACC = 20
    e("s_nop 4")
    e("v_permlane32_swap_b32 v%d, v%d" % (ACC, ACC + 2))
    e("v_permlane32_swap_b32 v%d, v%d" % (ACC + 1, ACC + 3))
    e("s_nop 0")
    e("v_add_f32 v%d, v%d, v%d" % (ACC, ACC, ACC + 2))
    e("v_add_f32 v%d, v%d, v%d" % (ACC + 1, ACC + 1, ACC + 3))
    e("v_cvt_pk_bf16_f32 v8, v%d, v%d" % (ACC, ACC + 1))
    e("ds_write_b32 v28, v8")
    e("v_lshlrev_b32 v9, 16, v8")
    e("v_and_b32 v10, 0xffff0000, v8")
    e("v_sub_f32 v9, v%d, v9" % ACC)
    e("v_sub_f32 v10, v%d, v10" % (ACC + 1))
    e("v_cvt_pk_bf16_f32 v9, v9, v10")
    e("ds_write_b32 v28, v9 offset:%d" % OA_ROW)
    e("s_waitcnt lgkmcnt(0)")
    e("s_barrier")
    stamps_out(0)
    e("s_endpgm")

VZ = 95
V_G, V_FB, V_M10 = 91, 92, 93

def tpoll(loads, grans, sleep, ex="-1"):
    l0, l1 = newlab("tp"), newlab("tp")
    lab(l0)
    for x in loads: e(x)
    e("s_waitcnt vmcnt(0)")
    for g, t0, t1 in grans:
        e("v_xor_b32 v%d, v%d, v%d" % (g + 2, g + 2, t0))
        e("v_xor_b32 v%d, v%d, v%d" % (g + 3, g + 3, t1))
    g0 = grans[0][0]
    e("v_or_b32 v%d, v%d, v%d" % (g0 + 2, g0 + 2, g0 + 3))
    for g, _, _ in grans[1:]:
        e("v_or3_b32 v%d, v%d, v%d, v%d" % (g0 + 2, g0 + 2, g + 2, g + 3))
    e("v_cmp_ne_u32 vcc, 0, v%d" % (g0 + 2))
    e("s_cbranch_vccz %s" % l1)
    spin_guard(l1)
    e("s_mov_b64 exec, vcc")
    if sleep: e("s_sleep %d" % sleep)
    e("s_branch %s" % l0)
    lab(l1)
    e("s_mov_b64 exec, %s" % ex)

def ypoll(loads, grans, t, sleep, ex="-1"):
    l0, l1 = newlab("yp"), newlab("yp")
    lab(l0)
    for x in loads: e(x)
    e("s_waitcnt vmcnt(0)")
    first = True
    for g, tg in grans:
        for i in range(0, 4, 2):
            if first:
                e("v_xor_b32 v%d, s%d, v%d" % (t, S_TG + i, g + i))
                e("v_xor_b32 v%d, s%d, v%d" % (t + 1, S_TG + i + 1, g + i + 1))
                e("v_or_b32 v%d, v%d, v%d" % (t, t, t + 1)); first = False
            else:
                e("v_xor_b32 v%d, s%d, v%d" % (t + 1, S_TG + i, g + i))
                e("v_xor_b32 v%d, s%d, v%d" % (t + 2, S_TG + i + 1, g + i + 1))
                e("v_or3_b32 v%d, v%d, v%d, v%d" % (t, t, t + 1, t + 2))
    e("v_and_b32 v%d, 0x3ff, v%d" % (t, t))
    e("v_cmp_ne_u32 vcc, 0, v%d" % t)
    e("s_cbranch_vccz %s" % l1)
    spin_guard(l1)
    e("s_mov_b64 exec, vcc")
    if sleep: e("s_sleep %d" % sleep)
    e("s_branch %s" % l0)
    lab(l1)
    e("s_mov_b64 exec, %s" % ex)

def nonce_fetch(regs_offs):
    l0, l1 = newlab("nf"), newlab("nf")
    lab(l0)
    for d, o in regs_offs:
        e("buffer_load_dword v%d, v%d, %s, 0 offen sc1" % (d, o, srd(SRD_DBG)))
    e("s_waitcnt vmcnt(0)")
    ds = [d for d, _ in regs_offs]
    e("v_min_u32 v94, v%d, v%d" % (ds[0], ds[-1]))
    for d in ds[1:-1]:
        e("v_min_u32 v94, v94, v%d" % d)
    e("v_cmp_eq_u32 vcc, 0, v94")
    e("s_cbranch_vccz %s" % l1)
    spin_guard(l1)
    e("s_sleep 16")
    e("s_branch %s" % l0)
    lab(l1)

def head_off(dst, h):
    e("v_and_b32 v%d, 15, v%d" % (dst, h))
    e("v_lshrrev_b32 v%d, 4, v%d" % (h, h))
    e("v_lshlrev_b32 v%d, 2, v%d" % (dst, dst))
    e("v_lshl_add_u32 v%d, v%d, 7, v%d" % (dst, h, dst))

def vtags(n):
    e("v_lshrrev_b32 v%d, 10, v%d" % (n + 1, n))
    e("v_lshrrev_b32 v%d, 20, v%d" % (n + 2, n))
    e("v_not_b32 v%d, v%d" % (n + 3, n))
    e("v_alignbit_b32 v%d, v%d, v%d, 30" % (n + 3, n + 3, n))

def stags():
    e("s_mov_b32 s%d, %s" % (S_TG, S_T0))
    e("s_lshr_b32 s%d, %s, 10" % (S_TG + 1, S_T0))
    e("s_lshr_b32 s%d, %s, 20" % (S_TG + 2, S_T0))
    e("s_not_b32 s%d, %s" % (S_TG + 3, S_T0))
    e("s_lshl_b32 s%d, s%d, 2" % (S_TG + 3, S_TG + 3))
    e("s_lshr_b32 %s, %s, 30" % (S_T0, S_T0))
    e("s_or_b32 s%d, s%d, %s" % (S_TG + 3, S_TG + 3, S_T0))

def ypack(r):
    for i in range(4):
        e("v_add_u32 v%d, 0x200, v%d" % (r + i, r + i))
    for i in range(4):
        e("v_bfi_b32 v%d, v%d, s%d, v%d" % (r + i, V_M10, S_TG + i, r + i))

def red8(a):
    e("s_nop 1")
    e("v_permlane32_swap_b32 v%d, v%d" % (a, a + 1))
    e("v_permlane32_swap_b32 v%d, v%d" % (a + 2, a + 3))
    e("s_nop 1")
    e("v_add_f32 v%d, v%d, v%d" % (a, a, a + 1))
    e("v_add_f32 v%d, v%d, v%d" % (a + 2, a + 2, a + 3))
    e("s_nop 1")
    e("v_permlane16_swap_b32 v%d, v%d" % (a, a + 2))
    e("s_nop 1")
    e("v_add_f32 v%d, v%d, v%d" % (a, a, a + 2))
    e("s_nop 1")
    e("v_add_f32_dpp v%d, v%d, v%d row_ror:8 row_mask:0xf bank_mask:0xf" % (a, a, a))

def census(area, stride_lg, body, sleep):
    e("v_lshrrev_b32 v48, 1, v0")
    e("v_mul_u32_u24 v49, 5, v48")
    e("s_lshr_b32 %s, s2, 3" % S_T1)
    e("s_add_u32 %s, %s, 3" % (S_T1, S_T1))
    e("v_add_u32 v49, %s, v49" % S_T1)
    e("v_and_b32 v49, 15, v49")
    e("v_lshl_add_u32 v48, v49, 3, v48")
    e("v_lshlrev_b32 v48, 7, v48")
    e("v_and_b32 v49, 1, v0")
    e("v_lshl_add_u32 v48, v49, 6, v48")
    e("s_mov_b32 %s, 0x%x" % (S_OFF, area))
    e("s_mov_b64 exec, 0xffff")
    tpoll(["buffer_load_dwordx4 v[40:43], v48, %s, %s offen sc1" % (srd(SRD_WS), S_OFF)], [(40, 62, 63)], sleep, "-1")
    e("v_subrev_u32 v40, s4, v40")
    e("v_cvt_f32_i32 v40, v40")
    for r in (8, 4, 2, 1):
        e("s_nop 1")
        e("v_add_f32_dpp v40, v40, v40 row_ror:%d row_mask:0xf bank_mask:0xf" % r)
    e("v_mul_f32 v40, 0.0625, v40")
    e("v_cvt_i32_f32 v40, v40")
    e("s_sub_u32 s4, s4, %d" % sched(body))
    e("v_add_u32 v40, s4, v40")
    e("v_or_b32 v40, 1, v40")
    e("s_mov_b64 exec, 1")
    e("ds_write_b32 v%d, v40 offset:%d" % (VZ, L_CNT + 20))
    e("s_mov_b64 exec, -1")

def sample(rnd, body):
    area = CT_OFF + rnd * 0x4000
    e("s_and_b32 %s, s2, 127" % S_OFF)
    e("s_lshl_b32 %s, %s, 1" % (S_OFF, S_OFF))
    e("s_add_u32 %s, %s, %s" % (S_OFF, S_OFF, S_HALF))
    e("s_lshl_b32 %s, %s, 6" % (S_OFF, S_OFF))
    e("s_add_u32 %s, %s, 0x%x" % (S_OFF, S_OFF, area))
    lds_wait(12, str(4 * body), 94, VZ, 4)
    e("s_memrealtime s[4:5]")
    e("s_waitcnt lgkmcnt(0)")
    e("v_mov_b32 v60, s4")
    e("v_mov_b32 v61, s4")
    e("s_mov_b64 exec, 1")
    e("buffer_store_dwordx4 v[60:63], off, %s, %s sc1" % (srd(SRD_WS), S_OFF))
    e("s_mov_b64 exec, -1")
    e("s_sleep %d" % xpv("tsl", 48))
    census(area, 6, body, xpv("tsl", 48))

def helper():
    lab("L_helper")
    e("s_setprio 3")
    e("s_memrealtime s[4:5]")
    e("s_sub_u32 %s, %s, 4" % (S_W, S_W))
    e("s_lshl_b32 %s, %s, 1" % (S_I, S_B))
    e("s_add_u32 %s, %s, %s" % (S_I, S_I, S_HALF))
    e("v_lshrrev_b32 v24, 4, v0")
    e("v_and_b32 v25, 15, v0")
    e("s_lshl_b32 %s, %s, 6" % (S_T0, S_W))
    e("v_add_u32 v1, %s, v0" % S_T0)
    e("v_lshlrev_b32 v2, 4, v0")
    e("v_mov_b32 v%d, 0" % VZ)
    e("v_mov_b32 v%d, 0x3ff" % V_M10)
    e("s_cmp_ge_u32 %s, 2" % S_W)
    e("s_cbranch_scc1 L_h23")
    S_STR, S_COL, S_PUB, S_BS = "s68", "s69", "s70", "s71"
    e("s_and_b32 s73, s2, 7")
    e("s_lshr_b32 s75, s2, 3")
    e("s_mul_i32 %s, s73, 7" % S_T0)
    e("s_lshr_b32 %s, s75, 2" % S_T1)
    e("s_add_u32 %s, %s, %s" % (S_T0, S_T0, S_T1))
    e("s_cmp_lt_u32 s75, 28")
    e("s_cselect_b32 %s, %s, 99" % (S_C, S_T0))
    if "noffn" in XP or "noh1" in XP: e("s_mov_b32 %s, 99" % S_C)
    e("s_cmp_ge_u32 %s, 27" % S_T0)
    e("s_cselect_b32 %s, 27, 0" % S_T1)
    e("s_cselect_b32 %s, 1, 0" % S_A)
    e("s_sub_u32 %s, %s, %s" % (S_T0, S_T0, S_T1))
    e("s_lshl_b32 %s, %s, 1" % (S_T0, S_T0))
    e("s_and_b32 %s, s75, 1" % S_T1)
    e("s_add_u32 %s, %s, %s" % (S_T0, S_T0, S_T1))
    e("s_bfe_u32 %s, s75, 0x10001" % S_IT)
    e("s_lshl_b32 %s, %s, 6" % (S_COL, S_T0))
    e("s_lshl_b32 %s, %s, 9" % (S_T0, S_T0))
    e("s_mul_i32 %s, %s, 55296" % (S_PUB, S_A))
    e("s_add_u32 %s, %s, %s" % (S_PUB, S_PUB, S_T0))
    e("s_mul_i32 %s, %s, 27648" % (S_T0, S_IT))
    e("s_add_u32 %s, %s, %s" % (S_PUB, S_PUB, S_T0))
    e("s_add_u32 %s, %s, 0x%x" % (S_PUB, S_PUB, GX_OFF))
    e("s_lshl_b32 %s, %s, 2" % (S_T0, S_H))
    e("s_and_b32 %s, %s, 3" % (S_T1, S_I))
    e("s_add_u32 %s, %s, %s" % (S_T0, S_T0, S_T1))
    e("s_lshl_b32 %s, %s, 6" % (S_T1, S_T0))
    e("s_lshl_b32 s73, %s, 12" % S_H)
    e("s_lshl_b32 s75, %s, 9" % S_I)
    e("s_add_u32 s73, s73, s75")
    e("s_add_u32 s73, s73, 0x%x" % QX_OFF)
    e("s_lshr_b32 s75, %s, 2" % S_I)
    e("s_cmp_eq_u32 %s, 0" % S_W)
    e("s_cselect_b32 %s, %s, %s" % (S_COL, S_T1, S_COL))
    e("s_cselect_b32 %s, s73, %s" % (S_PUB, S_PUB))
    e("s_cselect_b32 %s, 0, %s" % (S_C, S_C))
    e("s_cselect_b32 %s, s75, %s" % (S_IT, S_IT))
    e("s_mul_i32 %s, %s, %d" % (S_STR, S_W, 8192 - 3456))
    e("s_sub_u32 %s, 8192, %s" % (S_STR, S_STR))
    e("s_mul_i32 s73, %s, %d" % (S_W, L_WF - L_WQ))
    e("s_add_u32 s75, s73, %d" % L_X0)
    e("s_add_u32 s73, s73, %d" % L_WQ)
    assert L_WF - L_WQ == L_X1 - L_X0
    e("s_mul_i32 %s, %s, 320" % (S_T0, S_IT))
    e("s_mul_i32 %s, %s, %s" % (S_T0, S_T0, S_STR))
    e("s_add_u32 %s, %s, %s" % (S_COL, S_COL, S_T0))
    e("v_lshrrev_b32 v26, 2, v0")
    e("v_mul_u32_u24 v26, %s, v26" % S_STR)
    e("v_and_b32 v27, 3, v0")
    e("v_lshl_add_u32 v26, v27, 4, v26")
    e("v_add_u32 v26, %s, v26" % S_COL)
    e("s_mul_i32 s%d, %s, 640" % (SRD_W + 2, S_STR))
    e("s_mov_b32 s%d, 0x00020000" % (SRD_W + 3))
    e("s_lshl_b32 %s, %s, 4" % (S_STR, S_STR))
    e("s_cmp_ge_u32 %s, 54" % S_C)
    e("s_cbranch_scc1 L_hb1")
    e("s_waitcnt lgkmcnt(0)")
    stamp(0)
    mk_srd(SRD_X, "s16", "s17", 5120)
    mk_srd(SRD_DBG, "s38", "s39", 256)
    e("s_cmp_lg_u32 %s, 0" % S_A)
    e("s_cselect_b32 s%d, s30, s28" % SRD_W)
    e("s_cselect_b32 s%d, s31, s29" % (SRD_W + 1))
    e("s_cmp_lg_u32 %s, 0" % S_W)
    e("s_cbranch_scc1 L_h1a")
    e("s_mov_b32 s%d, s22" % SRD_W)
    e("s_mov_b32 s%d, s23" % (SRD_W + 1))
    e("s_or_b32 s4, s4, 1")
    e("s_cmp_lg_u32 s2, 0")
    e("s_cbranch_scc1 L_h1a")
    e("v_mov_b32 v60, s4")
    e("v_lshlrev_b32 v61, 7, v0")
    e("s_mov_b64 exec, 3")
    e("buffer_store_dword v60, v61, %s, 0 offen sc1" % srd(SRD_DBG))
    e("s_mov_b64 exec, -1")
    lab("L_h1a")
    e("s_mov_b32 m0, s75")
    e("s_mov_b32 %s, 0" % S_OFF)
    for k in range(4):
        e("buffer_load_dwordx4 v2, %s, 0 offen offset:%d lds" % (srd(SRD_X), 1024 * k))
    e("s_add_u32 m0, s75, 0x1000")
    e("s_mov_b32 %s, 0x1000" % S_T1)
    e("buffer_load_dwordx4 v2, %s, %s offen lds" % (srd(SRD_X), S_T1))
    e("s_mov_b32 m0, s73")
    e("s_nop 0")
    for t in range(20):
        e("buffer_load_dwordx4 v26, %s, %s offen nt lds" % (srd(SRD_W), S_OFF))
        if t < 19:
            e("s_add_u32 m0, m0, 0x400")
            e("s_add_u32 %s, %s, %s" % (S_OFF, S_OFF, S_STR))
    e("s_barrier")
    mk_ws()
    e("v_lshrrev_b32 v28, 2, v25")
    e("v_lshlrev_b32 v28, 6, v28")
    e("v_lshl_add_u32 v28, v24, 9, v28")
    e("v_lshl_add_u32 v28, v27, 3, v28")
    e("v_add_u32 v28, s73, v28")
    e("v_mul_u32_u24 v29, 1280, v27")
    e("v_lshl_add_u32 v29, v24, 4, v29")
    e("s_mul_i32 %s, %s, 640" % (S_T0, S_IT))
    e("s_add_u32 %s, %s, s75" % (S_T0, S_T0))
    e("v_add_u32 v29, %s, v29" % S_T0)
    e("v_lshlrev_b32 v30, 7, v27")
    e("v_lshl_add_u32 v30, v24, 4, v30")
    e("v_bfe_u32 v31, v0, 2, 1")
    e("v_lshl_add_u32 v30, v31, 6, v30")
    XF, WFR, ACC = 96, [176, 192], 32
    e("s_waitcnt vmcnt(20)")
    NK = xpv("nk", 1)
    for s in range(10):
        e("ds_read_b128 %s, v29 offset:%d" % (vr(XF + 4 * s), 64 * s))
    def mm(k):
        for s2 in range(2):
            s = 2 * k + s2
            for ct in range(2):
                e("%s %s, %s, %s, %s" % (MFMA, vr(ACC + 4 * ct), vr(WFR[k & 1] + 8 * s2 + 4 * ct), vr(XF + 4 * s), "0" if s == 0 else vr(ACC + 4 * ct)))
    for k in range(5):
        e("s_waitcnt vmcnt(%d)" % (16 - 4 * k + (1 if k > NK else 0)))
        if k == NK:
            e("s_lshl_b32 s5, %s, 7" % S_W)
            e("buffer_load_dword v60, off, %s, s5 sc1" % srd(SRD_DBG))
        for s2 in range(2):
            s = 2 * k + s2
            for ct in range(2):
                r = WFR[k & 1] + 8 * s2 + 4 * ct
                e("ds_read_b64_tr_b16 %s, v28 offset:%d" % (vr(r, 2), 2048 * s + 32 * ct))
                e("ds_read_b64_tr_b16 %s, v28 offset:%d" % (vr(r + 2, 2), 2048 * s + 32 * ct + 256))
        if k:
            e("s_waitcnt lgkmcnt(8)")
            mm(k - 1)
    e("s_waitcnt lgkmcnt(0)")
    mm(4)
    lab("L_nw")
    e("s_waitcnt vmcnt(0)")
    e("v_readfirstlane_b32 %s, v60" % S_T0)
    e("s_cmp_lg_u32 %s, 0" % S_T0)
    e("s_cbranch_scc1 L_ng")
    spin_guard("L_ng")
    e("s_sleep 4")
    e("buffer_load_dword v60, off, %s, 0 sc1" % srd(SRD_DBG))
    e("s_branch L_nw")
    lab("L_ng")
    e("ds_write_b32 v%d, v60 offset:%d" % (VZ, L_CNT + 8))
    stags()
    e("s_nop 1")
    for i in range(4):
        e("v_mov_b32_dpp v%d, v%d quad_perm:[0,1,2,3] row_mask:0xf bank_mask:0x2" % (ACC + i, ACC + 4 + i))
    ypack(ACC)
    e("s_mov_b32 exec_lo, 0x00ff00ff")
    e("s_mov_b32 exec_hi, 0x00ff00ff")
    if "noqx" in XP:
        e("s_cmp_eq_u32 %s, 0" % S_W)
        e("s_cbranch_scc1 L_noqx")
    if "noh1pub" in XP:
        e("s_cmp_eq_u32 %s, 1" % S_W)
        e("s_cbranch_scc1 L_noqx")
    e("buffer_store_dwordx4 v[32:35], v30, %s, %s offen sc1" % (srd(SRD_WS), S_PUB))
    if "noqx" in XP or "noh1pub" in XP: lab("L_noqx")
    e("s_mov_b64 exec, -1")
    stamp(1)
    e("s_cmp_lg_u32 %s, 0" % S_W)
    e("s_cbranch_scc1 L_wo")
    e("s_lshl_b32 %s, %s, 5" % (S_OFF, S_H))
    e("s_add_u32 %s, %s, %s" % (S_OFF, S_OFF, S_B))
    e("s_lshl_b32 %s, %s, 7" % (S_OFF, S_OFF))
    e("s_add_u32 %s, %s, 0x%x" % (S_OFF, S_OFF, QX_OFF))
    e("v_lshrrev_b32 v48, 3, v0")
    e("v_lshlrev_b32 v48, 9, v48")
    e("v_and_b32 v3, 7, v0")
    e("v_lshl_add_u32 v48, v3, 4, v48")
    e("v_and_b32 v3, 31, v0")
    e("v_lshlrev_b32 v3, 3, v3")
    e("v_lshrrev_b32 v47, 5, v0")
    e("v_lshl_add_u32 v3, v47, 1, v3")
    if "noqx" not in XP: ypoll(["buffer_load_dwordx4 v[40:43], v48, %s, %s offen sc1" % (srd(SRD_WS), S_OFF)], [(40, 36)], 44, xpv("qsl", 0))
    else:
        for i in range(4): e("v_mov_b32 v%d, 0" % (40 + i))
    for i in range(4):
        e("v_and_b32 v%d, 0xfffffc00, v%d" % (40 + i, 40 + i))
    e("s_nop 0")
    e("v_permlane32_swap_b32 v40, v41")
    e("v_permlane32_swap_b32 v42, v43")
    e("s_nop 1")
    e("v_add_f32 v40, v40, v41")
    e("v_add_f32 v42, v42, v43")
    e("v_cvt_pk_bf16_f32 v40, v40, v42")
    e("ds_write_b16 v3, v40 offset:%d" % L_QB)
    e("ds_write_b16_d16_hi v3, v40 offset:%d" % (L_QB + 4))
    e("v_mov_b32 v40, 1")
    e("s_waitcnt lgkmcnt(0)")
    e("ds_write_b32 v%d, v40 offset:%d" % (VZ, L_CNT + 4))
    stamp(2)
    e("s_branch L_wo")

    lab("L_h23")
    e("s_cmp_eq_u32 %s, 2" % S_W)
    e("s_cbranch_scc1 L_hb1")
    for i in range(4):
        e("v_mov_b32 v%d, 0" % (44 + i))
    e("ds_write_b128 v%d, v[44:47] offset:%d" % (VZ, L_CNT))
    e("ds_write_b128 v%d, v[44:47] offset:%d" % (VZ, L_CNT + 16))
    lab("L_hb1")
    e("s_waitcnt lgkmcnt(0)")
    stamp(0)
    e("s_barrier")
    mk_ws()
    mk_srd(SRD_DBG, "s38", "s39", 256)
    e("s_cmp_eq_u32 %s, 2" % S_W)
    e("s_cbranch_scc1 L_h2")
    e("s_cmp_lg_u32 %s, 3" % S_W)
    e("s_cbranch_scc1 L_wo")
    lds_wait(4, "1", 94, VZ, 4)
    if "nowarm" not in XP:
        e("s_getpc_b64 s[4:5]")
        lab("L_pc")
        e("s_sub_u32 s4, s4, L_pc-%s" % KNAME)
        e("s_subb_u32 s5, s5, 0")
        e("v_lshlrev_b32 v28, 7, v0")
        for i in range(NWARM):
            e("v_min_u32 v27, L_code_end-%s-4, v28" % KNAME)
            e("global_load_dword v89, v27, s[4:5]")
            e("v_add_u32 v28, 0x2000, v28")
    e("s_cmp_ge_u32 s2, %d" % NCONS)
    e("s_cbranch_scc1 L_h3c")
    e("s_and_b32 s5, s2, 3")
    mk_srd(SRD_X, "s16", "s17", 5120)
    mk_srd(SRD_W, "s34", "s35", 1280)
    e("v_lshlrev_b32 v3, 2, v0")
    e("s_mul_i32 %s, s5, 1280" % S_T0)
    for k in range(5):
        e("buffer_load_dword v%d, v3, %s, %s offen offset:%d" % (64 + k, srd(SRD_X), S_T0, 256 * k))
        e("buffer_load_dword v%d, v3, %s, 0 offen offset:%d" % (72 + k, srd(SRD_W), 256 * k))
    e("s_waitcnt vmcnt(0)")
    G = V_G
    e("v_mov_b32 v%d, 0" % G)
    for k in range(5):
        e("v_lshlrev_b32 v80, 16, v%d" % (64 + k))
        e("v_and_b32 v81, 0xffff0000, v%d" % (64 + k))
        e("v_lshlrev_b32 v82, 16, v%d" % (72 + k))
        e("v_and_b32 v83, 0xffff0000, v%d" % (72 + k))
        e("v_mul_f32 v80, v80, v82")
        e("v_mul_f32 v81, v81, v83")
        e("v_cvt_pk_bf16_f32 v80, v80, v81")
        e("v_lshlrev_b32 v81, 16, v80")
        e("v_and_b32 v80, 0xffff0000, v80")
        e("v_add_f32 v%d, v%d, v81" % (G, G))
        e("v_add_f32 v%d, v%d, v80" % (G, G))
    allreduce64("add", G, 80)
    bf16r(G)
    e("v_mul_f32 v%d, 0xbfb8aa3b, v%d" % (G, G))
    e("v_exp_f32 v%d, v%d" % (G, G))
    e("s_nop 0")
    e("v_add_f32 v%d, 1.0, v%d" % (G, G))
    e("v_rcp_f32 v%d, v%d" % (G, G))
    e("s_nop 0")
    bf16r(G)
    lab("L_h3c")
    if FC and CA:
        e("ds_read_b32 v62, v%d offset:%d" % (VZ, L_CNT + 8))
        e("s_waitcnt lgkmcnt(0)")
        e("v_xor_b32 v63, %s, v62" % TAGX)
        sample(0, CA)
    e("s_branch L_wo")

    lab("L_h2")
    e("s_cmp_lt_u32 s2, %d" % (NWG - NF2 if "noffn" not in XP and "noh2" not in XP else 1000))
    e("s_cbranch_scc1 L_wo")
    S_RG, S_CB = "s68", "s69"
    e("s_sub_u32 %s, 255, s2" % S_T0)
    e("s_mul_i32 %s, %s, 205" % (S_RG, S_T0))
    e("s_lshr_b32 %s, %s, 11" % (S_RG, S_RG))
    e("s_mul_i32 %s, %s, 10" % (S_T1, S_RG))
    e("s_sub_u32 %s, %s, %s" % (S_CB, S_T0, S_T1))
    e("v_lshrrev_b32 v26, 3, v0")
    e("v_mul_u32_u24 v26, 1280, v26")
    e("v_and_b32 v27, 7, v0")
    e("v_lshl_add_u32 v26, v27, 4, v26")
    e("s_mul_i32 %s, %s, %d" % (S_OFF, S_RG, 96 * 1280))
    e("s_lshl_b32 %s, %s, 7" % (S_T0, S_CB))
    e("s_add_u32 %s, %s, %s" % (S_OFF, S_OFF, S_T0))
    mk_srd(SRD_W, "s32", "s33", 1728 * 1280)
    e("v_cmp_le_u32 vcc, 24, v0")
    e("v_mov_b32 v28, 24")
    e("v_mov_b32 v29, 128")
    e("v_cndmask_b32 v28, 0, v28, vcc")
    e("v_cndmask_b32 v29, 0, v29, vcc")
    e("v_sub_u32 v28, v0, v28")
    e("v_min_u32 v28, 23, v28")
    e("v_and_b32 v31, 7, v28")
    e("v_lshl_add_u32 v29, v31, 4, v29")
    e("v_lshrrev_b32 v31, 3, v28")
    e("v_lshl_add_u32 v29, v31, 9, v29")
    e("v_mov_b32 v30, 192")
    e("v_cndmask_b32 v30, 0, v30, vcc")
    e("v_lshl_add_u32 v30, v28, 3, v30")
    e("s_mul_i32 %s, %s, 1536" % (S_IT, S_RG))
    e("s_add_u32 %s, %s, 0x%x" % (S_IT, S_IT, GX_OFF))
    e("s_add_u32 s70, %s, 27648" % S_IT)
    e("s_add_u32 s71, %s, 55296" % S_IT)
    e("s_add_u32 s73, %s, %d" % (S_IT, 55296 + 27648))
    lds_wait(4, "1", 94, VZ, 4)
    e("s_mov_b32 m0, %d" % L_WQ)
    e("s_nop 0")
    for t in range(12):
        e("buffer_load_dwordx4 v26, %s, %s offen nt lds" % (srd(SRD_W), S_OFF))
        if t < 11:
            e("s_add_u32 m0, m0, 0x400")
            e("s_add_u32 %s, %s, %d" % (S_OFF, S_OFF, 8 * 1280))
    e("ds_read_b32 v94, v%d offset:%d" % (VZ, L_CNT + 8))
    e("s_waitcnt lgkmcnt(0)")
    e("v_readfirstlane_b32 %s, v94" % S_T0)
    stags()
    e("s_mov_b32 exec_hi, 0xffff")
    e("s_mov_b64 s[4:5], exec")
    SO = [S_IT, "s70", "s71", "s73"]
    if "noh2poll" not in XP: ypoll(["buffer_load_dwordx4 %s, v29, %s, %s offen offset:%d sc1" % (vr(40 + 16 * bb + 4 * k), srd(SRD_WS), SO[k], 256 * bb) for bb in range(2) for k in range(4)],
          [(40 + 16 * bb + 4 * k, 72 + 4 * k) for bb in range(2) for k in range(4)], 31, 16, "s[4:5]")
    for r in range(40, 72):
        e("v_and_b32 v%d, 0xfffffc00, v%d" % (r, r))
    for bb in range(2):
        g = 40 + 16 * bb
        for i in range(4):
            e("v_add_f32 v%d, v%d, v%d" % (g + i, g + i, g + 4 + i))
            e("v_add_f32 v%d, v%d, v%d" % (g + 8 + i, g + 8 + i, g + 12 + i))
        for k in range(2):
            e("v_cvt_pk_bf16_f32 v%d, v%d, v%d" % (g + 4 + k, g + 2 * k, g + 2 * k + 1))
            e("v_cvt_pk_bf16_f32 v%d, v%d, v%d" % (g + 12 + k, g + 8 + 2 * k, g + 8 + 2 * k + 1))
        for k in range(2):
            e("v_lshlrev_b32 v31, 16, v%d" % (g + 4 + k))
            e("v_and_b32 v32, 0xffff0000, v%d" % (g + 4 + k))
            e("v_lshlrev_b32 v33, 16, v%d" % (g + 12 + k))
            e("v_and_b32 v34, 0xffff0000, v%d" % (g + 12 + k))
            e("v_mul_f32 v31, v31, v33")
            e("v_mul_f32 v32, v32, v34")
            e("v_cvt_pk_bf16_f32 v%d, v31, v32" % (g + k))
        e("ds_write_b64 v30, %s offset:%d" % (vr(g, 2), L_HT + 384 * bb))
    e("s_mov_b64 exec, -1")
    stamp(3)
    e("v_lshlrev_b32 v28, 10, v24")
    e("v_lshrrev_b32 v29, 2, v25")
    e("v_lshl_add_u32 v28, v29, 7, v28")
    e("v_and_b32 v29, 3, v0")
    e("v_lshl_add_u32 v28, v29, 3, v28")
    e("v_mul_u32_u24 v29, 192, v29")
    e("v_lshl_add_u32 v29, v24, 4, v29")
    e("s_waitcnt lgkmcnt(0)")
    HF, WF, AC = 96, 112, 160
    for s in range(3):
        e("ds_read_b128 %s, v29 offset:%d" % (vr(HF + 4 * s), L_HT + 64 * s))
    for s in range(3):
        for nt in range(4):
            r = WF + 16 * s + 4 * nt
            e("ds_read_b64_tr_b16 %s, v28 offset:%d" % (vr(r, 2), L_WQ + 4096 * s + 32 * nt))
            e("ds_read_b64_tr_b16 %s, v28 offset:%d" % (vr(r + 2, 2), L_WQ + 4096 * s + 32 * nt + 512))
    e("v_bfe_u32 v30, v0, 3, 1")
    e("v_lshlrev_b32 v30, 2, v30")
    e("v_and_b32 v31, 3, v0")
    e("v_add_u32 v30, v30, v31")
    e("v_lshlrev_b32 v30, 7, v30")
    e("v_bfe_u32 v31, v0, 2, 1")
    e("v_lshl_add_u32 v30, v31, 6, v30")
    e("v_lshl_add_u32 v30, v24, 4, v30")
    e("s_sub_u32 %s, 255, s2" % S_OFF)
    e("s_lshl_b32 %s, %s, 10" % (S_OFF, S_OFF))
    e("s_add_u32 %s, %s, 0x%x" % (S_OFF, S_OFF, F_OFF))
    e("s_waitcnt lgkmcnt(0)")
    for s in range(3):
        for nt in range(4):
            e("%s %s, %s, %s, %s" % (MFMA, vr(AC + 4 * nt), vr(WF + 16 * s + 4 * nt), vr(HF + 4 * s), "0" if s == 0 else vr(AC + 4 * nt)))
    e("s_nop 7")
    e("s_nop 3")
    for nt in range(1, 4):
        for i in range(4):
            e("v_mov_b32_dpp v%d, v%d row_shr:%d row_mask:0xf bank_mask:0x%x" % (AC + i, AC + 4 * nt + i, 4 * nt, 1 << nt))
    ypack(AC)
    if "noh2st" not in XP: e("buffer_store_dwordx4 %s, v30, %s, %s offen sc1" % (vr(AC), srd(SRD_WS), S_OFF))
    e("s_waitcnt vmcnt(0)")
    stamp(4)

    lab("L_wo")
    e("s_mul_i32 %s, %s, %d" % (S_T0, S_H, 128 * 1280))
    e("s_mul_i32 %s, %s, 320" % (S_T1, S_W))
    e("s_add_u32 %s, %s, %s" % (S_T0, S_T0, S_T1))
    for t5 in range(5):
        e("v_add_u32 v26, %d, v0" % (64 * t5))
        e("v_mul_u32_u24 v27, 3277, v26")
        e("v_lshrrev_b32 v27, 16, v27")
        e("v_mul_u32_u24 v28, 20, v27")
        e("v_sub_u32 v26, v26, v28")
        e("v_mul_u32_u24 v27, 1280, v27")
        e("v_lshl_add_u32 v27, v26, 4, v27")
        e("v_add_u32 v%d, %s, v27" % (80 + t5, S_T0))
    e("s_mul_i32 s68, %s, 10240" % S_W)
    e("s_add_u32 s68, s68, %d" % L_WO)
    e("v_lshrrev_b32 v26, 2, v0")
    e("v_mul_u32_u24 v26, 320, v26")
    e("v_and_b32 v27, 3, v0")
    e("v_lshl_add_u32 v26, v27, 3, v26")
    e("v_add_u32 v26, s68, v26")
    mk_srd(SRD_W, "s24", "s25", 4096 * 1280)
    e("s_mov_b32 %s, 0" % S_T1)
    lds_wait(4, "1", 94, VZ, 4)
    def trread(hc):
        for t in range(10):
            e("ds_read_b64_tr_b16 %s, v26 offset:%d" % (vr(W(4 * t + (hc >> 1)) + 2 * (hc & 1), 2), (hc & 1) * 5120 + 32 * t))
        e("s_waitcnt lgkmcnt(0)")
    assert WO_WIN <= 6
    if "nowo" not in XP:
        done = 0
        for q in range(40):
            hc, t5 = divmod(q, 5)
            e("s_add_u32 m0, s68, %d" % ((hc & 1) * 5120 + t5 * 1024))
            if q >= WO_WIN: e("s_waitcnt vmcnt(%d)" % (WO_WIN - 1))
            else: e("s_nop 0")
            if 5 * done + 4 + WO_WIN == q:
                trread(done); done += 1
            e("buffer_load_dwordx4 v%d, %s, %s offen nt lds" % (80 + t5, srd(SRD_W), S_T1))
            if t5 == 4 and q < 39: e("s_add_u32 %s, %s, %d" % (S_T1, S_T1, 16 * 1280))
        while done < 8:
            e("s_waitcnt vmcnt(%d)" % (35 - 5 * done))
            trread(done); done += 1
    e("ds_read_b32 v94, v%d offset:%d" % (VZ, L_CNT + 8))
    e("v_and_b32 v26, 3, v0")
    e("v_bfe_u32 v27, v0, 2, 1")
    e("v_lshl_add_u32 v26, v26, 1, v27")
    e("v_mul_u32_u24 v9, %d, v26" % OA_ROW)
    e("v_lshl_add_u32 v9, v24, 4, v9")
    e("s_mul_i32 %s, %s, 640" % (S_T0, S_W))
    e("v_lshlrev_b32 v10, 2, v0")
    e("v_add_u32 v10, %s, v10" % S_T0)
    e("s_waitcnt lgkmcnt(0)")
    e("v_readfirstlane_b32 %s, v94" % S_T0)
    e("v_mov_b32 v62, v94")
    e("v_xor_b32 v63, %s, v94" % TAGX)
    stags()
    e("v_and_b32 v26, 3, v0")
    e("v_mov_b32 v11, s%d" % S_TG)
    for i in range(1, 4):
        e("v_mov_b32 v27, s%d" % (S_TG + i))
        e("v_cmp_eq_u32 vcc, %d, v26" % i)
        e("s_nop 1")
        e("v_cndmask_b32 v11, v11, v27, vcc")
    e("s_lshl_b32 %s, %s, 1" % (S_IT, S_BH))
    e("s_add_u32 %s, %s, %s" % (S_IT, S_IT, S_HALF))
    e("s_mul_i32 %s, %s, 2560" % (S_IT, S_IT))
    e("s_and_b32 %s, s2, 3" % S_C)
    e("s_lshl_b32 %s, %s, 2" % (S_C, S_C))
    e("s_add_u32 %s, %s, %s" % (S_C, S_C, S_W))
    e("s_mul_i32 %s, %s, %d" % (S_C, S_C, 16 * 2560))
    e("s_lshr_b32 %s, s2, 2" % S_T1)
    e("s_lshl_b32 %s, %s, 7" % (S_T1, S_T1))
    e("s_add_u32 %s, %s, %s" % (S_C, S_C, S_T1))
    e("s_add_u32 %s, %s, %d" % (S_A, S_C, 8 * 2560))
    e("v_and_b32 v86, 7, v0")
    e("v_lshlrev_b32 v86, 4, v86")
    e("v_bfe_u32 v87, v0, 4, 1")
    e("v_lshl_add_u32 v86, v87, 3, v86")
    e("v_lshrrev_b32 v87, 5, v0")
    e("v_lshl_add_u32 v86, v87, 2, v86")
    e("v_lshrrev_b32 v87, 3, v0")
    e("v_mul_u32_u24 v87, 2560, v87")
    e("v_and_b32 v28, 7, v0")
    e("v_lshl_add_u32 v87, v28, 4, v87")
    e("s_waitcnt vmcnt(0)")
    stamp(5)
    e("s_cmp_ge_u32 s2, %d" % NCONS)
    e("s_cbranch_scc1 L_nc")
    e("s_cmp_lg_u32 %s, 3" % S_W)
    e("s_cbranch_scc1 L_nc")
    e("s_lshr_b32 %s, s2, 3" % S_T1)
    e("v_lshrrev_b32 v30, 3, v0")
    e("v_and_b32 v29, 7, v0")
    e("v_lshlrev_b32 v29, 4, v29")
    for k in range(3):
        e("v_add_u32 v31, %d, v30" % (8 * k))
        if k == 2: e("v_min_u32 v31, 17, v31")
        e("v_mul_u32_u24 v31, 10240, v31")
        e("v_add_u32 v%d, v31, v29" % (36 + k))
    e("s_lshl_b32 %s, s2, 7" % S_OFF)
    e("s_add_u32 %s, %s, 0x%x" % (S_OFF, S_OFF, F_OFF))
    lds_wait(0, "1", 94, VZ, 16)
    if "noffn" not in XP and "noh3poll" not in XP: ypoll(["buffer_load_dwordx4 %s, v%d, %s, %s offen sc1" % (vr(40 + 4 * k), 36 + k, srd(SRD_WS), S_OFF) for k in range(3)],
          [(40, 64), (44, 68), (48, 72)], 52, 32)
    e("v_cmp_gt_u32 vcc, 16, v0")
    for i in range(4):
        e("v_add_f32 v%d, v%d, v%d" % (40 + i, 40 + i, 44 + i))
    for i in range(4):
        e("v_cndmask_b32 v%d, 0, v%d, vcc" % (48 + i, 48 + i))
    for i in range(4):
        e("v_add_f32 v%d, v%d, v%d" % (40 + i, 40 + i, 48 + i))
    red8(40)
    e("ds_write_b32 v86, v40 offset:%d" % (L_R + 512))
    e("v_lshlrev_b32 v30, 2, v0")
    e("v_and_b32 v30, 127, v30")
    e("v_sub_f32 v31, 1.0, v%d" % V_G)
    bf16r(31)
    e("s_waitcnt lgkmcnt(0)")
    e("ds_read_b32 v%d, v30 offset:%d" % (V_FB, L_R + 512))
    e("s_waitcnt lgkmcnt(0)")
    bf16r(V_FB)
    e("v_mul_f32 v%d, v31, v%d" % (V_FB, V_FB))
    bf16r(V_FB)
    lab("L_nc")
    if FC and CC:
        e("s_cmp_lg_u32 %s, 1" % S_W)
        e("s_cbranch_scc1 L_nctl")
        sample(1, CC)
        lab("L_nctl")
    e("s_cmp_lg_u32 %s, 0" % S_W)
    e("s_cbranch_scc1 L_h9")
    e("v_and_b32 v12, 3, v0")
    e("v_lshlrev_b32 v13, 2, v12")
    e("v_lshlrev_b32 v12, 3, v12")
    e("s_and_b32 %s, s2, 127" % S_OFF)
    e("s_lshl_b32 %s, %s, 7" % (S_OFF, S_OFF))
    e("s_add_u32 %s, %s, 0x%x" % (S_OFF, S_OFF, RC_OFF))
    e("s_lshl_b32 %s, %s, 6" % (S_T1, S_HALF))
    e("s_add_u32 s68, %s, %s" % (S_OFF, S_T1))
    e("s_xor_b32 s69, s68, 64")
    lds_wait(0, "4", 94, VZ, 8 if not FC else 4)
    if FC: e("s_memrealtime s[4:5]")
    e("ds_read_b64 v[14:15], v12 offset:%d" % L_ML)
    e("s_waitcnt lgkmcnt(0)")
    e("v_mov_b32 v60, v14")
    allreduce4("max", 60)
    e("v_sub_f32 v16, v14, v60")
    e("v_mul_f32 v16, %s, v16" % LOG2E)
    e("v_exp_f32 v16, v16")
    e("s_nop 0")
    e("v_mul_f32 v61, v16, v15")
    allreduce4("add", 61)
    if FC:
        e("v_mov_b32 v44, v60")
        e("v_mov_b32 v45, v61")
        e("v_mov_b32 v46, v62")
        e("v_mov_b32 v47, v63")
        e("s_mov_b64 exec, 2")
        e("v_mov_b32 v44, s4")
        e("s_mov_b64 exec, 3")
        e("buffer_store_dwordx4 v[44:47], v2, %s, s68 offen sc1" % srd(SRD_WS))
    else:
        e("s_mov_b64 exec, 1")
        if "nopair" not in XP: e("buffer_store_dwordx4 v[60:63], off, %s, s68 sc1" % srd(SRD_WS))
    e("s_mov_b64 exec, -1")
    stamp(6)
    if "nopair" not in XP: tpoll(["buffer_load_dwordx4 v[40:43], off, %s, s69 sc1" % srd(SRD_WS)], [(40, 62, 63)], xpv("rsl", 32))
    e("v_max_f32 v17, v60, v40")
    e("v_sub_f32 v60, v60, v17")
    e("v_sub_f32 v40, v40, v17")
    e("v_sub_f32 v14, v14, v17")
    e("v_mul_f32 v60, %s, v60" % LOG2E)
    e("v_mul_f32 v40, %s, v40" % LOG2E)
    e("v_mul_f32 v14, %s, v14" % LOG2E)
    e("v_exp_f32 v60, v60")
    e("v_exp_f32 v40, v40")
    e("v_exp_f32 v14, v14")
    e("v_mul_f32 v61, v60, v61")
    e("v_fmac_f32 v61, v40, v41")
    e("v_rcp_f32 v61, v61")
    e("s_nop 0")
    e("v_mul_f32 v14, v14, v61")
    e("ds_write_b32 v13, v14 offset:%d" % L_SC)
    if FC: census(RC_OFF + 16, 6, 5, xpv("tsl", 48))
    e("s_waitcnt lgkmcnt(0)")
    lab("L_h9")
    stamp(7)
    e("s_barrier")
    AF, DT, SC = 12, 32, 72
    for s4 in range(4):
        e("ds_read_b128 %s, v9 offset:%d" % (vr(AF + 4 * s4), L_OP + 64 * s4))
    e("ds_read_b128 %s, v%d offset:%d" % (vr(SC), VZ, L_SC))
    ops = []
    pos = [0]
    def em(x): e(x); pos[0] += 1
    def drain(n):
        k = 0
        while ops and k < n:
            x, rdy = ops[0]
            r = rdy() if callable(rdy) else rdy
            if r > pos[0]: break
            ops.pop(0); em(x); k += 1
            mark[x] = pos[0]
    mark = {}
    def after(x, d): return lambda: mark[x] + d
    def ystore(r, off, half):
        a = "v_add_u32 v%d, 0x200, v%d" % (r, r)
        return a
    last = {}
    for t in range(10):
        d = DT + 4 * t
        for s4 in range(4):
            if t == 0: e("s_waitcnt lgkmcnt(%d)" % (4 - s4))
            if t == 2 and s4 == 0: e("s_waitcnt lgkmcnt(0)")
            em("%s %s, %s, %s, %s" % (MFMA, vr(d), vr(AF + 4 * s4), vr(W(4 * t + s4)), "0" if s4 == 0 else vr(d)))
            rdy = pos[0] + 8
            drain(3)
        ops.append(("v_mul_f32 v%d, v%d, v%d" % (d, SC, d), rdy))
        for i in range(1, 4):
            x = "v_fmac_f32 v%d, v%d, v%d" % (d, SC + i, d + i)
            ops.append((x, rdy))
        last[t] = x
        if t & 1:
            a, b = d - 4, d
            x = "v_permlane16_swap_b32 v%d, v%d" % (a, b)
            ops.append((x, after(last[t], 2)))
            y = "v_add_f32 v%d, v%d, v%d" % (a, a, b)
            ops.append((y, after(x, 1)))
            last[t] = y
            fin = None
            if t & 3 == 3:
                x = "v_permlane32_swap_b32 v%d, v%d" % (d - 12, d - 4)
                ops.append((x, after(y, 2)))
                fin = (d - 12, x, 1)
            elif t == 9:
                fin = (a, y, 0)
            if fin:
                r, x, dd = fin
                y = "v_add_u32 v%d, 0x200, v%d" % (r, r)
                ops.append((y, after(x, dd)))
                z = "v_bfi_b32 v%d, v%d, v11, v%d" % (r, V_M10, r)
                ops.append((z, 0))
                if t == 9: ops.append(("s_mov_b32 exec_hi, 0", 0))
                ops.append(("buffer_store_dword v%d, v10, %s, %s offen offset:%d sc1" % (r, srd(SRD_WS), S_IT, 256 * (t >> 2)), 0))
    while ops:
        n = len(ops)
        drain(100)
        if len(ops) == n:
            x, rdy = ops[0]
            r = rdy() if callable(rdy) else rdy
            e("s_nop %d" % (r - pos[0] - 1)); pos[0] = r
    e("s_mov_b64 exec, -1")
    stamp(8)
    e("s_cmp_ge_u32 s2, %d" % NCONS)
    e("s_cbranch_scc1 L_hend")
    NS = xpv("ns", 3)
    if NS == 0:
        ypoll(["buffer_load_dwordx4 v[12:15], v87, %s, %s offen sc1" % (srd(SRD_WS), S_C),
               "buffer_load_dwordx4 v[16:19], v87, %s, %s offen sc1" % (srd(SRD_WS), S_A)], [(12, 76), (16, 80)], 20, xpv("ysl", 0))
        for i in range(4):
            e("v_add_f32 v%d, v%d, v%d" % (12 + i, 12 + i, 16 + i))
    else:
        def pl(k):
            e("buffer_load_dwordx4 %s, v87, %s, %s offen sc1" % (vr(32 + 8 * k), srd(SRD_WS), S_C))
            e("buffer_load_dwordx4 %s, v87, %s, %s offen sc1" % (vr(36 + 8 * k), srd(SRD_WS), S_A))
        for k in range(NS):
            pl(k)
            if k < NS - 1: e("s_sleep %d" % xpv("yg", 6))
        lab("L_yp")
        for k in range(NS):
            g = 32 + 8 * k
            e("s_waitcnt vmcnt(%d)" % (2 * (NS - 1)))
            e("v_xor_b32 v20, s%d, v%d" % (S_TG, g))
            e("v_xor_b32 v21, s%d, v%d" % (S_TG + 1, g + 1))
            e("v_or_b32 v20, v20, v21")
            for i in range(2, 8, 2):
                e("v_xor_b32 v21, s%d, v%d" % (S_TG + (i & 3), g + i))
                e("v_xor_b32 v22, s%d, v%d" % (S_TG + (i & 3) + 1, g + i + 1))
                e("v_or3_b32 v20, v20, v21, v22")
            e("v_and_b32 v20, 0x3ff, v20")
            e("v_cmp_ne_u32 vcc, 0, v20")
            e("s_andn2_b64 exec, exec, vcc")
            for i in range(4):
                e("v_add_f32 v%d, v%d, v%d" % (12 + i, g + i, g + 4 + i))
            e("s_mov_b64 exec, vcc")
            e("s_cbranch_execz L_ypd")
            pl(k)
        spin_guard("L_ypd")
        e("s_branch L_yp")
        lab("L_ypd")
        e("s_mov_b64 exec, -1")
    e("s_lshl_b32 %s, %s, 7" % (S_T0, S_W))
    e("v_add_u32 v86, %s, v86" % S_T0)
    red8(12)
    e("ds_write_b32 v86, v12 offset:%d" % L_R)
    e("v_lshlrev_b32 v12, 2, v0")
    e("s_waitcnt lgkmcnt(0)")
    e("s_barrier")
    e("s_cmp_lg_u32 %s, 3" % S_W)
    e("s_cbranch_scc1 L_hend")
    e("s_mov_b32 exec_hi, 0")
    for w in range(4):
        e("ds_read_b32 v%d, v12 offset:%d" % (8 + w, L_R + w * 128))
    mk_srd(SRD_X, "s36", "s37", 5120)
    e("s_and_b32 s5, s2, 3")
    e("s_mul_i32 %s, s5, 1280" % S_T0)
    e("s_lshr_b32 %s, s2, 2" % S_T1)
    e("s_lshl_b32 %s, %s, 6" % (S_T1, S_T1))
    e("s_add_u32 %s, %s, %s" % (S_T0, S_T0, S_T1))
    e("v_lshlrev_b32 v12, 1, v0")
    e("s_waitcnt lgkmcnt(0)")
    e("v_add_f32 v8, v8, v9"); e("v_add_f32 v10, v10, v11")
    e("v_add_f32 v8, v8, v10")
    bf16r(8)
    e("v_mul_f32 v8, v%d, v8" % V_G)
    bf16r(8)
    e("v_add_f32 v8, v8, v%d" % V_FB)
    e("v_cvt_pk_bf16_f32 v8, v8, v8")
    e("buffer_store_short v8, v12, %s, %s offen" % (srd(SRD_X), S_T0))
    lab("L_hend")
    stamp(9)
    stamps_out(4)


def main():
    ref = open("cdna_kernels/%s.s.ref" % NAME).read().split("\n")
    head = []
    for ln in ref:
        if ln.startswith("; @launch"):
            break
        head.append(ln)
    out = head + ["; @launch grid=(%d,1,1) block=(512,1,1) lds=%d" % (NWG, LDS_BYTES)]
    out += ['.amdgcn_target "amdgcn-amd-amdhsa--gfx950"', ".text", ".globl " + KNAME, ".p2align 8",
            ".type %s,@function" % KNAME, KNAME + ":"]
    e("s_cmp_ge_u32 s2, %d" % NWG)
    e("s_cbranch_scc1 L_end")
    e("s_load_dwordx16 s[16:31], s[0:1], 0")
    e("s_load_dwordx8 s[32:39], s[0:1], 64")
    e("s_load_dwordx2 s[40:41], s[0:1], 96")
    e("v_lshrrev_b32 v1, 6, v0")
    e("v_and_b32 v0, 63, v0")
    e("s_mov_b32 s72, 0")
    e("v_readfirstlane_b32 %s, v1" % S_W)
    e("s_and_b32 s4, s2, 7")
    e("s_lshr_b32 s5, s2, 3")
    e("s_and_b32 %s, s5, 3" % S_H)
    e("s_lshl_b32 %s, %s, 3" % (S_H, S_H))
    e("s_add_u32 %s, %s, s4" % (S_H, S_H))
    e("s_lshr_b32 %s, s5, 2" % S_B)
    e("s_and_b32 %s, %s, 3" % (S_B, S_B))
    e("s_lshr_b32 %s, s5, 4" % S_HALF)
    e("s_lshl_b32 %s, %s, 5" % (S_BH, S_B))
    e("s_add_u32 %s, %s, %s" % (S_BH, S_BH, S_H))
    if TS:
        for i in range(NSTAMP): e("s_mov_b32 s%d, 0" % (76 + 2 * i))
    e("s_cmp_ge_u32 %s, 4" % S_W)
    e("s_cbranch_scc1 L_helper")
    streamer()
    helper()
    lab("L_end")
    e("s_endpgm")
    lab("L_code_end")
    out += L
    out += ['.section .rodata,"a"', ".p2align 6", ".amdhsa_kernel " + KNAME,
            "  .amdhsa_next_free_vgpr 256", "  .amdhsa_next_free_sgpr %d" % (96 if TS else 80), "  .amdhsa_accum_offset 256",
            "  .amdhsa_group_segment_fixed_size 0", "  .amdhsa_kernarg_size 104",
            "  .amdhsa_user_sgpr_count 2", "  .amdhsa_user_sgpr_kernarg_segment_ptr 1",
            "  .amdhsa_system_sgpr_workgroup_id_x 1", "  .amdhsa_float_denorm_mode_32 3",
            ".end_amdhsa_kernel", ""]
    open(OUT, "w").write("\n".join(out))

main()
```

```python
import sys

NAME = "gated_mix__mha_block_cached__glu_gated_bilinear__decode"
KNAME = NAME + "_kernel"
TS = "--ts" in sys.argv
XP = [a[2:] for a in sys.argv if a.startswith("--")]
OUT = [a for a in sys.argv[1:] if not a.startswith("--")]
OUT = OUT[0] if OUT else "cdna_kernels/%s.s" % NAME
def xpv(name, default):
    for a in XP:
        if a.startswith(name + "="): return int(a.split("=")[1])
    return default

NWG, NCONS, NF2 = 256, 80, 180
NWARM = 3
Y_OFF = 0
F_OFF = 0xA0000
QX_OFF = 0xD0000
GX_OFF = 0xF0000
RC_OFF = 0x10C000
CT_OFF = 0x110000
WS_USED = 0x130000
WS_BASE = xpv("wsmb", 0) << 20
DBG_WS = 8 << 20
WS_REC = (WS_USED if not TS else (64 << 20))
D = xpv("d", 8)
C0 = xpv("c0", 12)
WO_WIN = xpv("wowin", 3)
NB = 8
FC = "nofc" not in XP
XK = [0, xpv("xk1", 1), xpv("xk2", 2)]
XV = [0, xpv("xv1", 2), xpv("xv2", 4)]
KDL, DLT = xpv("kdl", 250), xpv("dlt", 221)
TH1, TH2 = xpv("th1", 0), xpv("th2", 60)
CA, CC = xpv("ca", 1), xpv("cc", 0)
def sched(n): return (min(n, 5) - 1) * KDL + max(n - 5, 0) * DLT
V_ONE, V_FLAG, S_FLAG = 40, 41, "s69"
DRY = "dry" in XP and FC
assert D % 4 == 0 and 4 <= D <= 16

P_ROW = 64 * NB + 16
P_WAVE = 4 * P_ROW
L_QB = 8448
L_OP = 8704
OA_ROW = 272
L_ML = 10880
L_CNT = 10912
L_SC = 10944
L_R = 11008
L_HT = 11904
L_WQ = 12800
L_X0 = 33280
L_WF = 38400
L_X1 = 58880
L_WO = 64000
LDS_BYTES = L_WO + 40960
assert 4 * P_WAVE <= L_QB

L = []
def e(s): L.append("    " + s)
def lab(s): L.append(s + ":")
def cmt(s): L.append("    ; " + s)
def vr(a, n=4): return "v[%d:%d]" % (a, a + n - 1)

S_W, S_H, S_B, S_HALF, S_BH = "s3", "s6", "s7", "s8", "s9"
S_OFF, S_IT, S_T0, S_T1, S_A = "s10", "s11", "s12", "s13", "s14"
S_C, S_I = "s15", "s74"
SRD_S, SRD_W, SRD_WS, SRD_DBG, SRD_X = 44, 48, 52, 56, 60
S_TG = 64
S_P = 68
def srd(n): return "s[%d:%d]" % (n, n + 3)
def mk_srd(n, lo, hi, nrec):
    e("s_mov_b32 s%d, %s" % (n, lo))
    e("s_mov_b32 s%d, %s" % (n + 1, hi))
    e("s_mov_b32 s%d, 0x%x" % (n + 2, nrec))
    e("s_mov_b32 s%d, 0x00020000" % (n + 3))
def mk_ws():
    if WS_BASE:
        e("s_add_u32 s%d, s40, 0x%x" % (SRD_WS, WS_BASE))
        e("s_addc_u32 s%d, s41, 0" % (SRD_WS + 1))
        e("s_mov_b32 s%d, 0x%x" % (SRD_WS + 2, WS_USED))
        e("s_mov_b32 s%d, 0x00020000" % (SRD_WS + 3))
    else:
        mk_srd(SRD_WS, "s40", "s41", WS_USED)

BUF = 64
WREG = 96
def B(i): return BUF + 4 * i
def W(i): return WREG + 4 * i

LOG2E = "0x3fb8aa3b"
SCALE = "0x3db504f3"
MFMA = "v_mfma_f32_16x16x32_bf16"
TAGX = "0x9e3779b9"

def sel_pv(dst, t):
    a, b, c = t, t + 1, t + 2
    e("v_mov_b32 v%d, 0x100" % a)
    e("v_mov_b32 v%d, 0x302" % b)
    e("v_and_b32 v%d, 8, v0" % c)
    e("v_cmp_ne_u32 vcc, 0, v%d" % c)
    e("s_nop 1")
    e("v_cndmask_b32 v%d, v%d, v%d, vcc" % (a, a, b))
    e("v_or_b32 v%d, 0x0c0c0000, v%d" % (b, a))
    e("v_lshlrev_b32 v%d, 16, v%d" % (a, a))
    e("v_or_b32 v%d, 0x0c0c, v%d" % (a, a))
    e("v_and_b32 v%d, 1, v0" % c)
    e("v_cmp_ne_u32 vcc, 0, v%d" % c)
    e("s_nop 1")
    e("v_cndmask_b32 v%d, v%d, v%d, vcc" % (a, b, a))
    e("v_mov_b32 v%d, 0x0c0c0c0c" % b)
    e("v_bfe_u32 v%d, v0, 1, 2" % c)
    for i in range(4):
        e("v_cmp_eq_u32 vcc, %d, v%d" % (i, c))
        e("s_nop 1")
        e("v_cndmask_b32 v%d, v%d, v%d, vcc" % (dst + i, b, a))

def allreduce64(op, v, t):
    for r in (8, 4, 2, 1):
        e("s_nop 1")
        e("v_%s_f32_dpp v%d, v%d, v%d row_ror:%d row_mask:0xf bank_mask:0xf" % (op, v, v, v, r))
    for sw in ("16", "32"):
        e("v_mov_b32 v%d, v%d" % (t, v))
        e("s_nop 1")
        e("v_permlane%s_swap_b32 v%d, v%d" % (sw, v, t))
        e("s_nop 1")
        e("v_%s_f32 v%d, v%d, v%d" % (op, v, v, t))

def allreduce4(op, v):
    for m in ("quad_perm:[1,0,3,2]", "quad_perm:[2,3,0,1]"):
        e("s_nop 1")
        e("v_%s_f32_dpp v%d, v%d, v%d %s row_mask:0xf bank_mask:0xf" % (op, v, v, v, m))

def bf16r(v):
    e("v_cvt_pk_bf16_f32 v%d, v%d, v%d" % (v, v, v))
    e("v_lshlrev_b32 v%d, 16, v%d" % (v, v))

def hilo_pack(a, b, t):
    e("v_cvt_pk_bf16_f32 v%d, v%d, v%d" % (t, a, b))
    e("v_lshlrev_b32 v%d, 16, v%d" % (t + 1, t))
    e("v_and_b32 v%d, 0xffff0000, v%d" % (t + 2, t))
    e("v_sub_f32 v%d, v%d, v%d" % (t + 1, a, t + 1))
    e("v_sub_f32 v%d, v%d, v%d" % (t + 2, b, t + 2))
    e("v_cvt_pk_bf16_f32 v%d, v%d, v%d" % (t + 1, t + 1, t + 2))
    e("v_perm_b32 v%d, v%d, v%d, %s" % (a, t + 1, t, S_T0))
    e("v_perm_b32 v%d, v%d, v%d, %s" % (b, t + 1, t, S_T1))

def stream_load(t):
    e("buffer_load_dwordx4 %s, v1, %s, %s offen nt" % (vr(B(t)), srd(SRD_S), S_OFF))
    e("s_add_u32 %s, %s, 0x1000" % (S_OFF, S_OFF))

NSTAMP = 10
def stamp(i):
    if not TS: return
    e("s_memrealtime s[%d:%d]" % (76 + 2 * i, 77 + 2 * i))
    e("s_waitcnt lgkmcnt(0)")

def stamps_out(w8off):
    if not TS: return
    e("s_mov_b64 exec, 1")
    mk_srd(SRD_WS, "s40", "s41", 64 << 20)
    e("s_lshl_b32 s12, s2, 3")
    e("s_add_u32 s12, s12, %s" % S_W)
    e("s_add_u32 s12, s12, %d" % w8off)
    e("s_lshl_b32 s12, s12, 6")
    e("s_add_u32 s12, s12, 0x%x" % DBG_WS)
    for i in range(NSTAMP):
        e("v_mov_b32 v5, s%d" % (76 + 2 * i))
        e("buffer_store_dword v5, off, %s, s12 offset:%d" % (srd(SRD_WS), 4 * i))
    e("s_getreg_b32 s13, hwreg(HW_REG_XCC_ID)")
    e("v_mov_b32 v5, s13")
    e("buffer_store_dword v5, off, %s, s12 offset:56" % srd(SRD_WS))
    e("s_getreg_b32 s13, hwreg(HW_REG_HW_ID)")
    e("v_mov_b32 v5, s13")
    e("buffer_store_dword v5, off, %s, s12 offset:60" % srd(SRD_WS))

SPIN_MAX = 400000
def spin_guard(exit_lbl):
    e("s_add_u32 s72, s72, 1")
    e("s_cmp_gt_u32 s72, %d" % SPIN_MAX)
    e("s_cbranch_scc1 %s" % exit_lbl)

NLAB = [0]
def newlab(p):
    NLAB[0] += 1
    return "L_%s%d" % (p, NLAB[0])

def lds_wait(off, target, vt, va, sleep=1):
    l0, l1 = newlab("lw"), newlab("lw")
    lab(l0)
    e("ds_read_b32 v%d, v%d offset:%d" % (vt, va, L_CNT + off))
    e("s_waitcnt lgkmcnt(0)")
    e("v_readfirstlane_b32 %s, v%d" % (S_T0, vt))
    e("s_cmp_ge_u32 %s, %s" % (S_T0, target))
    e("s_cbranch_scc1 %s" % l1)
    spin_guard(l1)
    e("s_sleep %d" % sleep)
    e("s_branch %s" % l0)
    lab(l1)

def lds_signal(off, vt, va):
    e("v_mov_b32 v%d, 1" % vt)
    e("s_mov_b64 exec, 1")
    e("ds_add_u32 v%d, v%d offset:%d" % (va, vt, L_CNT + off))
    e("s_mov_b64 exec, -1")

def fc_end(dl):
    e("s_memrealtime s[70:71]")
    e("s_mov_b64 exec, 1")
    e("ds_add_u32 v30, v%d offset:%d" % (V_ONE, L_CNT + 12))
    e("s_mov_b64 exec, -1")
    e("s_waitcnt lgkmcnt(0)")
    e("v_readfirstlane_b32 s71, v%d" % V_FLAG)
    e("s_sub_u32 s70, s68, s70")
    e("s_add_u32 s70, s70, s71")
    e("s_add_u32 s68, s68, %s" % dl)
    e("s_cmp_gt_i32 s70, %d" % TH1)
    e("s_cselect_b32 %s, 1, 0" % S_FLAG)
    e("s_cmp_gt_i32 s70, %d" % TH2)
    e("s_cselect_b32 %s, 2, %s" % (S_FLAG, S_FLAG))
    e("s_cmp_eq_u32 s71, 0")
    e("s_cselect_b32 %s, 0, %s" % (S_FLAG, S_FLAG))

def k_body(b0, waits, loads, pre=None, steady=False):
    P = [8, 9, 10, 11]; Y0, Y1, Z, T, S, TMP = 12, 13, 14, 15, 16, 17
    for G in range(4):
        ld = list(loads[G])
        def nxt():
            if ld: stream_load(ld.pop(0))
        e("s_waitcnt vmcnt(%d)" % waits[G])
        for k in range(4):
            for u in range(4):
                c = "0" if k == 0 else "v%d" % P[u]
                e("v_dot2_f32_bf16 v%d, v%d, v%d, %s" % (P[u], B(b0 + 4 * G + u) + k, 4 + k, c))
        if pre and pre.get(G): pre[G]()
        e("v_add_f32_dpp v%d, v%d, v%d row_ror:8 row_mask:0xf bank_mask:0x3" % (Y0, P[0], P[0]))
        e("v_add_f32_dpp v%d, v%d, v%d row_ror:8 row_mask:0xf bank_mask:0xc" % (Y0, P[1], P[1]))
        e("v_add_f32_dpp v%d, v%d, v%d row_ror:8 row_mask:0xf bank_mask:0x3" % (Y1, P[2], P[2]))
        e("v_add_f32_dpp v%d, v%d, v%d row_ror:8 row_mask:0xf bank_mask:0xc" % (Y1, P[3], P[3]))
        nxt()
        if len(loads[G]) < 1: e("s_nop 1")
        e("v_add_f32_dpp v%d, v%d, v%d row_half_mirror row_mask:0xf bank_mask:0x5" % (Z, Y0, Y0))
        e("v_add_f32_dpp v%d, v%d, v%d row_half_mirror row_mask:0xf bank_mask:0xa" % (Z, Y1, Y1))
        nxt()
        if len(loads[G]) < 2: e("s_nop 1")
        e("v_add_f32_dpp v%d, v%d, v%d quad_perm:[1,0,3,2] row_mask:0xf bank_mask:0xf" % (Z, Z, Z))
        nxt()
        if len(loads[G]) < 3: e("s_nop 1")
        d = S if G == 0 else T
        e("v_add_f32_dpp v%d, v%d, v%d quad_perm:[2,3,0,1] row_mask:0xf bank_mask:0xf" % (d, Z, Z))
        nxt()
        assert not ld
        if G:
            e("v_cndmask_b32 v%d, v%d, v%d, s[%d:%d]" % (S, S, T, 60 + 2 * G, 61 + 2 * G))
    e("v_cvt_pk_bf16_f32 v%d, v%d, v%d" % (TMP, S, S))
    e("v_lshlrev_b32 v%d, 16, v%d" % (TMP, TMP))
    e("v_mul_f32 v%d, %s, v%d" % (TMP, SCALE, TMP))
    bf16r(TMP)
    e("s_add_u32 %s, %s, 1" % (S_IT, S_IT))
    e("v_max_f32 v3, v3, v%d" % TMP)
    if FC and steady: e("ds_read_b32 v%d, v30 offset:%d" % (V_FLAG, L_CNT + 20))
    e("ds_write_b32 v2, v%d" % TMP)
    e("v_add_u32 v2, 64, v2")
    if FC and steady:
        fc_end(str(KDL))

def v_body(x=0):
    A, ACC = 8, 20
    PB = [12, 16]
    for G in range(4):
        e("s_waitcnt lgkmcnt(0)")
        e("ds_read_b128 %s, v2 offset:%d" % (vr(PB[(G + 1) & 1]), (G + 1) * 16))
        if FC and G == 3: e("ds_read_b32 v%d, v30 offset:%d" % (V_FLAG, L_CNT + 20))
        for u in range(4):
            t = 4 * G + u
            p = PB[G & 1] + u
            for i in range(4):
                e("v_perm_b32 v%d, v%d, v%d, v%d" % (A + i, p, p, 4 + i))
            e("s_waitcnt vmcnt(%d)" % (D - 1 - x))
            e("s_nop 0")
            e("%s %s, %s, %s, %s" % (MFMA, vr(ACC), vr(A), vr(B(t)), vr(ACC)))
            stream_load((t + D) % 16)
    e("s_add_u32 %s, %s, 1" % (S_IT, S_IT))
    if FC and "nolast" not in XP:
        e("s_cmp_eq_u32 %s, %d" % (S_IT, NB))
        e("s_cbranch_scc1 L_vd")
    e("v_add_u32 v2, 64, v2")
    if FC: fc_end(str(DLT))

def streamer():
    cmt("---- streaming waves")
    e("s_lshl_b32 %s, %s, 20" % (S_T0, S_BH))
    e("s_lshl_b32 %s, %s, 19" % (S_T1, S_HALF))
    e("s_add_u32 %s, %s, %s" % (S_T0, S_T0, S_T1))
    e("s_lshl_b32 %s, %s, 10" % (S_T1, S_W))
    e("v_lshlrev_b32 v1, 4, v0")
    e("v_add_u32 v1, %s, v1" % S_T1)
    e("s_mov_b32 s%d, 0x%x" % (SRD_S + 2, NB << 16))
    e("s_mov_b32 s%d, 0x00020000" % (SRD_S + 3))
    e("s_mov_b32 %s, 0" % S_OFF)
    e("s_waitcnt lgkmcnt(0)")
    stamp(0)
    e("s_add_u32 s%d, s18, %s" % (SRD_S, S_T0))
    e("s_addc_u32 s%d, s19, 0" % (SRD_S + 1))
    e("s_add_u32 s42, s20, %s" % S_T0)
    e("s_addc_u32 s43, s21, 0")
    PRE = min(xpv("pre", 4), C0)
    for t in range(PRE):
        stream_load(t)
    e("s_barrier")
    for t in range(PRE, C0):
        stream_load(t)
    for i, m in enumerate((0x22222222, 0x44444444, 0x88888888)):
        e("s_mov_b32 s%d, 0x%x" % (62 + 2 * i, m)); e("s_mov_b32 s%d, 0x%x" % (63 + 2 * i, m))
    e("v_lshrrev_b32 v24, 4, v0")
    e("v_and_b32 v25, 15, v0")
    e("v_lshlrev_b32 v25, 4, v25")
    e("v_mul_u32_u24 v2, %d, v24" % P_ROW)
    e("s_mul_i32 %s, %s, %d" % (S_T0, S_W, P_WAVE))
    e("v_add_u32 v28, %s, v2" % S_T0)
    e("v_and_b32 v26, 3, v0")
    e("v_lshlrev_b32 v26, 4, v26")
    e("v_bfe_u32 v27, v0, 2, 1")
    e("v_lshl_add_u32 v26, v27, 3, v26")
    e("v_bfe_u32 v27, v0, 3, 1")
    e("v_lshl_add_u32 v26, v27, 2, v26")
    e("v_add_u32 v2, v28, v26")
    e("v_mov_b32 v29, v2")
    e("v_mov_b32 v3, 0xff800000")
    e("v_mov_b32 v30, 0")
    e("v_mov_b32 v%d, 1" % V_ONE)
    e("s_mov_b32 %s, 0" % S_FLAG)
    e("s_mov_b32 s68, 0")
    e("s_mov_b32 %s, 0" % S_IT)
    for t in range(C0, 48):
        e("s_waitcnt vmcnt(%d)" % (C0 - 1))
        stream_load(t)
    stamp(1)
    lds_wait(4, "1", 31, 30)
    e("ds_read_b128 v[4:7], v25 offset:%d" % L_QB)
    e("s_waitcnt lgkmcnt(0)")
    stamp(2)
    iss = 0
    for th in range(3):
        waits, loads = [], []
        for G in range(4):
            g = 4 * th + G
            waits.append(44 - 4 * g + iss)
            n = (g + 1) * D // 12 - g * D // 12
            loads.append(list(range(iss, iss + n))); iss += n
        k_body(16 * th, waits, loads)
    assert iss == D
    def switch():
        e("s_cmp_eq_u32 %s, %d" % (S_IT, NB - 1))
        e("s_cselect_b32 s%d, s42, s%d" % (SRD_S, SRD_S))
        e("s_cselect_b32 s%d, s43, s%d" % (SRD_S + 1, SRD_S + 1))
        e("s_cselect_b32 %s, 0, %s" % (S_OFF, S_OFF))
    def loops(pfx, body):
        if not FC:
            lab(pfx + "0")
            body(0)
            e("s_cmp_lg_u32 %s, %d" % (S_IT, NB))
            e("s_cbranch_scc1 %s0" % pfx)
            return
        e("s_branch %sn" % pfx)
        for lv in (2, 1, 0):
            lab(pfx + str(lv))
            body(lv)
            if lv: e("s_branch %sc" % pfx)
        lab(pfx + "c")
        e("s_cmp_eq_u32 %s, %d" % (S_IT, NB))
        e("s_cbranch_scc1 %sd" % pfx)
        lab(pfx + "n")
        e("s_cmp_eq_u32 %s, 0" % S_FLAG)
        e("s_cbranch_scc1 %s0" % pfx)
        e("s_cmp_eq_u32 %s, 1" % S_FLAG)
        e("s_cbranch_scc1 %s1" % pfx)
        e("s_branch %s2" % pfx)
        lab(pfx + "d")
    loops("L_k", lambda lv: k_body(0, [D - 4 - XK[lv]] * 4, [[(4 * G + u + D) % 16 for u in range(4)] for G in range(4)], {(16 - D) // 4: switch}, True))
    stamp(3)
    for k in range(NB):
        e("ds_read_b32 v%d, v29 offset:%d" % (32 + k, 64 * k))
    allreduce64("max", 3, 16)
    e("s_mov_b32 %s, 0x05040100" % S_T0)
    e("s_mov_b32 %s, 0x07060302" % S_T1)
    e("s_waitcnt lgkmcnt(0)")
    for k in range(NB):
        e("v_sub_f32 v%d, v%d, v3" % (32 + k, 32 + k))
    for k in range(NB):
        e("v_mul_f32 v%d, %s, v%d" % (32 + k, LOG2E, 32 + k))
    for k in range(NB):
        e("v_exp_f32 v%d, v%d" % (32 + k, 32 + k))
    e("s_nop 0")
    e("v_add_f32 v24, v32, v33")
    for k in range(2, NB):
        e("v_add_f32 v24, v24, v%d" % (32 + k))
    for k in range(NB // 2):
        hilo_pack(32 + 2 * k, 33 + 2 * k, 16)
    for k in range(NB):
        e("ds_write_b32 v29, v%d offset:%d" % (32 + k, 64 * k))
    e("v_mov_b32 v2, v28")
    e("ds_read_b128 %s, v2" % vr(12))
    allreduce64("add", 24, 20)
    sel_pv(4, 8)
    e("v_mov_b32 v25, v24")
    e("v_mov_b32 v24, v3")
    e("s_lshl_b32 %s, %s, 3" % (S_T0, S_W))
    e("v_mov_b32 v26, %s" % S_T0)
    e("s_mov_b64 exec, 1")
    e("ds_write_b64 v26, v[24:25] offset:%d" % L_ML)
    e("s_mov_b64 exec, -1")
    lds_signal(0, 27, 30)
    for i in range(4):
        e("v_mov_b32 v%d, 0" % (20 + i))
    e("s_mov_b32 %s, 0" % S_IT)
    e("v_bfe_u32 v26, v0, 2, 2")
    e("v_lshlrev_b32 v27, 6, v26")
    e("v_and_b32 v26, 1, v0")
    e("v_lshl_add_u32 v27, v26, 5, v27")
    e("v_bfe_u32 v26, v0, 4, 1")
    e("v_lshl_add_u32 v27, v26, 4, v27")
    e("v_bfe_u32 v26, v0, 1, 1")
    e("v_lshl_add_u32 v27, v26, 3, v27")
    e("v_lshrrev_b32 v26, 5, v0")
    e("s_mul_i32 %s, %s, %d" % (S_T0, S_W, 2 * OA_ROW))
    e("s_add_u32 %s, %s, %d" % (S_T0, S_T0, L_OP))
    e("v_lshl_add_u32 v28, v26, 2, v27")
    e("v_add_u32 v28, %s, v28" % S_T0)
    stamp(4)
    if FC: e("s_mov_b32 s68, %d" % sched(6))
    loops("L_v", lambda lv: v_body(XV[lv]))
    stamp(5)
    ACC = 20
    lab("L_send")
    e("s_nop 4")
    e("v_permlane32_swap_b32 v%d, v%d" % (ACC, ACC + 2))
    e("v_permlane32_swap_b32 v%d, v%d" % (ACC + 1, ACC + 3))
    e("s_nop 0")
    e("v_add_f32 v%d, v%d, v%d" % (ACC, ACC, ACC + 2))
    e("v_add_f32 v%d, v%d, v%d" % (ACC + 1, ACC + 1, ACC + 3))
    e("v_cvt_pk_bf16_f32 v12, v%d, v%d" % (ACC, ACC + 1))
    e("ds_write_b32 v28, v12")
    e("v_lshlrev_b32 v13, 16, v12")
    e("v_and_b32 v14, 0xffff0000, v12")
    e("v_sub_f32 v13, v%d, v13" % ACC)
    e("v_sub_f32 v14, v%d, v14" % (ACC + 1))
    e("v_cvt_pk_bf16_f32 v13, v13, v14")
    e("ds_write_b32 v28, v13 offset:%d" % OA_ROW)
    e("s_waitcnt lgkmcnt(0)")
    if DRY: e("s_cbranch_scc0 L_tail")
    e("s_barrier")
    stamps_out(0)
    e("s_endpgm")

VZ = 95
V_G, V_FB, V_M10 = 91, 92, 93

def tpoll(loads, grans, sleep, ex="-1"):
    l0, l1 = newlab("tp"), newlab("tp")
    lab(l0)
    for x in loads: e(x)
    e("s_waitcnt vmcnt(0)")
    for g, t0, t1 in grans:
        e("v_xor_b32 v%d, v%d, v%d" % (g + 2, g + 2, t0))
        e("v_xor_b32 v%d, v%d, v%d" % (g + 3, g + 3, t1))
    g0 = grans[0][0]
    e("v_or_b32 v%d, v%d, v%d" % (g0 + 2, g0 + 2, g0 + 3))
    for g, _, _ in grans[1:]:
        e("v_or3_b32 v%d, v%d, v%d, v%d" % (g0 + 2, g0 + 2, g + 2, g + 3))
    e("v_cmp_ne_u32 vcc, 0, v%d" % (g0 + 2))
    e("s_cbranch_vccz %s" % l1)
    spin_guard(l1)
    e("s_mov_b64 exec, vcc")
    if sleep: e("s_sleep %d" % sleep)
    e("s_branch %s" % l0)
    lab(l1)
    e("s_mov_b64 exec, %s" % ex)

def ypoll(loads, grans, t, sleep, ex="-1"):
    l0, l1 = newlab("yp"), newlab("yp")
    lab(l0)
    for x in loads: e(x)
    e("s_waitcnt vmcnt(0)")
    first = True
    for g, tg in grans:
        for i in range(0, 4, 2):
            if first:
                e("v_xor_b32 v%d, s%d, v%d" % (t, S_TG + i, g + i))
                e("v_xor_b32 v%d, s%d, v%d" % (t + 1, S_TG + i + 1, g + i + 1))
                e("v_or_b32 v%d, v%d, v%d" % (t, t, t + 1)); first = False
            else:
                e("v_xor_b32 v%d, s%d, v%d" % (t + 1, S_TG + i, g + i))
                e("v_xor_b32 v%d, s%d, v%d" % (t + 2, S_TG + i + 1, g + i + 1))
                e("v_or3_b32 v%d, v%d, v%d, v%d" % (t, t, t + 1, t + 2))
    e("v_and_b32 v%d, 0x3ff, v%d" % (t, t))
    e("v_cmp_ne_u32 vcc, 0, v%d" % t)
    e("s_cbranch_vccz %s" % l1)
    spin_guard(l1)
    e("s_mov_b64 exec, vcc")
    if sleep: e("s_sleep %d" % sleep)
    e("s_branch %s" % l0)
    lab(l1)
    e("s_mov_b64 exec, %s" % ex)

def nonce_fetch(regs_offs):
    l0, l1 = newlab("nf"), newlab("nf")
    lab(l0)
    for d, o in regs_offs:
        e("buffer_load_dword v%d, v%d, %s, 0 offen sc1" % (d, o, srd(SRD_DBG)))
    e("s_waitcnt vmcnt(0)")
    ds = [d for d, _ in regs_offs]
    e("v_min_u32 v94, v%d, v%d" % (ds[0], ds[-1]))
    for d in ds[1:-1]:
        e("v_min_u32 v94, v94, v%d" % d)
    e("v_cmp_eq_u32 vcc, 0, v94")
    e("s_cbranch_vccz %s" % l1)
    spin_guard(l1)
    e("s_sleep 16")
    e("s_branch %s" % l0)
    lab(l1)

def head_off(dst, h):
    e("v_and_b32 v%d, 15, v%d" % (dst, h))
    e("v_lshrrev_b32 v%d, 4, v%d" % (h, h))
    e("v_lshlrev_b32 v%d, 2, v%d" % (dst, dst))
    e("v_lshl_add_u32 v%d, v%d, 7, v%d" % (dst, h, dst))

def vtags(n):
    e("v_lshrrev_b32 v%d, 10, v%d" % (n + 1, n))
    e("v_lshrrev_b32 v%d, 20, v%d" % (n + 2, n))
    e("v_not_b32 v%d, v%d" % (n + 3, n))
    e("v_alignbit_b32 v%d, v%d, v%d, 30" % (n + 3, n + 3, n))

def stags():
    e("s_mov_b32 s%d, %s" % (S_TG, S_T0))
    e("s_lshr_b32 s%d, %s, 10" % (S_TG + 1, S_T0))
    e("s_lshr_b32 s%d, %s, 20" % (S_TG + 2, S_T0))
    e("s_not_b32 s%d, %s" % (S_TG + 3, S_T0))
    e("s_lshl_b32 s%d, s%d, 2" % (S_TG + 3, S_TG + 3))
    e("s_lshr_b32 %s, %s, 30" % (S_T0, S_T0))
    e("s_or_b32 s%d, s%d, %s" % (S_TG + 3, S_TG + 3, S_T0))

def ypack(r):
    for i in range(4):
        e("v_add_u32 v%d, 0x200, v%d" % (r + i, r + i))
    for i in range(4):
        e("v_bfi_b32 v%d, v%d, s%d, v%d" % (r + i, V_M10, S_TG + i, r + i))

def red8(a):
    e("s_nop 1")
    e("v_permlane32_swap_b32 v%d, v%d" % (a, a + 1))
    e("v_permlane32_swap_b32 v%d, v%d" % (a + 2, a + 3))
    e("s_nop 1")
    e("v_add_f32 v%d, v%d, v%d" % (a, a, a + 1))
    e("v_add_f32 v%d, v%d, v%d" % (a + 2, a + 2, a + 3))
    e("s_nop 1")
    e("v_permlane16_swap_b32 v%d, v%d" % (a, a + 2))
    e("s_nop 1")
    e("v_add_f32 v%d, v%d, v%d" % (a, a, a + 2))
    e("s_nop 1")
    e("v_add_f32_dpp v%d, v%d, v%d row_ror:8 row_mask:0xf bank_mask:0xf" % (a, a, a))

def census(area, stride_lg, body, sleep):
    e("v_lshrrev_b32 v48, 1, v0")
    e("v_mul_u32_u24 v49, 5, v48")
    e("s_lshr_b32 %s, s2, 3" % S_T1)
    e("s_add_u32 %s, %s, 3" % (S_T1, S_T1))
    e("v_add_u32 v49, %s, v49" % S_T1)
    e("v_and_b32 v49, 15, v49")
    e("v_lshl_add_u32 v48, v49, 3, v48")
    e("v_lshlrev_b32 v48, 7, v48")
    e("v_and_b32 v49, 1, v0")
    e("v_lshl_add_u32 v48, v49, 6, v48")
    e("s_mov_b32 %s, 0x%x" % (S_OFF, area))
    e("s_mov_b64 exec, 0xffff")
    tpoll(["buffer_load_dwordx4 v[40:43], v48, %s, %s offen sc1" % (srd(SRD_WS), S_OFF)], [(40, 62, 63)], sleep, "-1")
    e("v_subrev_u32 v40, s4, v40")
    e("v_cvt_f32_i32 v40, v40")
    for r in (8, 4, 2, 1):
        e("s_nop 1")
        e("v_add_f32_dpp v40, v40, v40 row_ror:%d row_mask:0xf bank_mask:0xf" % r)
    e("v_mul_f32 v40, 0.0625, v40")
    e("v_cvt_i32_f32 v40, v40")
    e("s_sub_u32 s4, s4, %d" % sched(body))
    e("v_add_u32 v40, s4, v40")
    e("v_or_b32 v40, 1, v40")
    e("s_mov_b64 exec, 1")
    e("ds_write_b32 v%d, v40 offset:%d" % (VZ, L_CNT + 20))
    e("s_mov_b64 exec, -1")

def sample(rnd, body):
    area = CT_OFF + rnd * 0x4000
    e("s_and_b32 %s, s2, 127" % S_OFF)
    e("s_lshl_b32 %s, %s, 1" % (S_OFF, S_OFF))
    e("s_add_u32 %s, %s, %s" % (S_OFF, S_OFF, S_HALF))
    e("s_lshl_b32 %s, %s, 6" % (S_OFF, S_OFF))
    e("s_add_u32 %s, %s, 0x%x" % (S_OFF, S_OFF, area))
    lds_wait(12, str(4 * body), 94, VZ, 4)
    e("s_memrealtime s[4:5]")
    e("s_waitcnt lgkmcnt(0)")
    e("v_mov_b32 v60, s4")
    e("v_mov_b32 v61, s4")
    e("s_mov_b64 exec, 1")
    e("buffer_store_dwordx4 v[60:63], off, %s, %s sc1" % (srd(SRD_WS), S_OFF))
    e("s_mov_b64 exec, -1")
    e("s_sleep %d" % xpv("tsl", 48))
    census(area, 6, body, xpv("tsl", 48))

def helper():
    lab("L_helper")
    e("s_setprio 3")
    e("s_memrealtime s[4:5]")
    e("s_sub_u32 %s, %s, 4" % (S_W, S_W))
    e("s_lshl_b32 %s, %s, 1" % (S_I, S_B))
    e("s_add_u32 %s, %s, %s" % (S_I, S_I, S_HALF))
    e("v_lshrrev_b32 v24, 4, v0")
    e("v_and_b32 v25, 15, v0")
    e("s_lshl_b32 %s, %s, 6" % (S_T0, S_W))
    e("v_add_u32 v1, %s, v0" % S_T0)
    e("v_lshlrev_b32 v2, 4, v0")
    e("v_mov_b32 v%d, 0" % VZ)
    e("v_mov_b32 v%d, 0x3ff" % V_M10)
    e("s_cmp_ge_u32 %s, 2" % S_W)
    e("s_cbranch_scc1 L_h23")
    S_STR, S_COL, S_PUB, S_BS = "s68", "s69", "s70", "s71"
    e("s_and_b32 s73, s2, 7")
    e("s_lshr_b32 s75, s2, 3")
    e("s_mul_i32 %s, s73, 7" % S_T0)
    e("s_lshr_b32 %s, s75, 2" % S_T1)
    e("s_add_u32 %s, %s, %s" % (S_T0, S_T0, S_T1))
    e("s_cmp_lt_u32 s75, 28")
    e("s_cselect_b32 %s, %s, 99" % (S_C, S_T0))
    if "noffn" in XP or "noh1" in XP: e("s_mov_b32 %s, 99" % S_C)
    e("s_cmp_ge_u32 %s, 27" % S_T0)
    e("s_cselect_b32 %s, 27, 0" % S_T1)
    e("s_cselect_b32 %s, 1, 0" % S_A)
    e("s_sub_u32 %s, %s, %s" % (S_T0, S_T0, S_T1))
    e("s_lshl_b32 %s, %s, 1" % (S_T0, S_T0))
    e("s_and_b32 %s, s75, 1" % S_T1)
    e("s_add_u32 %s, %s, %s" % (S_T0, S_T0, S_T1))
    e("s_bfe_u32 %s, s75, 0x10001" % S_IT)
    e("s_lshl_b32 %s, %s, 6" % (S_COL, S_T0))
    e("s_lshl_b32 %s, %s, 9" % (S_T0, S_T0))
    e("s_mul_i32 %s, %s, 55296" % (S_PUB, S_A))
    e("s_add_u32 %s, %s, %s" % (S_PUB, S_PUB, S_T0))
    e("s_mul_i32 %s, %s, 27648" % (S_T0, S_IT))
    e("s_add_u32 %s, %s, %s" % (S_PUB, S_PUB, S_T0))
    e("s_add_u32 %s, %s, 0x%x" % (S_PUB, S_PUB, GX_OFF))
    e("s_lshl_b32 %s, %s, 2" % (S_T0, S_H))
    e("s_and_b32 %s, %s, 3" % (S_T1, S_I))
    e("s_add_u32 %s, %s, %s" % (S_T0, S_T0, S_T1))
    e("s_lshl_b32 %s, %s, 6" % (S_T1, S_T0))
    e("s_lshl_b32 s73, %s, 12" % S_H)
    e("s_lshl_b32 s75, %s, 9" % S_I)
    e("s_add_u32 s73, s73, s75")
    e("s_add_u32 s73, s73, 0x%x" % QX_OFF)
    e("s_lshr_b32 s75, %s, 2" % S_I)
    e("s_cmp_eq_u32 %s, 0" % S_W)
    e("s_cselect_b32 %s, %s, %s" % (S_COL, S_T1, S_COL))
    e("s_cselect_b32 %s, s73, %s" % (S_PUB, S_PUB))
    e("s_cselect_b32 %s, 0, %s" % (S_C, S_C))
    e("s_cselect_b32 %s, s75, %s" % (S_IT, S_IT))
    e("s_mul_i32 %s, %s, %d" % (S_STR, S_W, 8192 - 3456))
    e("s_sub_u32 %s, 8192, %s" % (S_STR, S_STR))
    e("s_mul_i32 s73, %s, %d" % (S_W, L_WF - L_WQ))
    e("s_add_u32 s75, s73, %d" % L_X0)
    e("s_add_u32 s73, s73, %d" % L_WQ)
    assert L_WF - L_WQ == L_X1 - L_X0
    e("s_mul_i32 %s, %s, 320" % (S_T0, S_IT))
    e("s_mul_i32 %s, %s, %s" % (S_T0, S_T0, S_STR))
    e("s_add_u32 %s, %s, %s" % (S_COL, S_COL, S_T0))
    e("v_lshrrev_b32 v26, 2, v0")
    e("v_mul_u32_u24 v26, %s, v26" % S_STR)
    e("v_and_b32 v27, 3, v0")
    e("v_lshl_add_u32 v26, v27, 4, v26")
    e("v_add_u32 v26, %s, v26" % S_COL)
    e("s_mul_i32 s%d, %s, 640" % (SRD_W + 2, S_STR))
    e("s_mov_b32 s%d, 0x00020000" % (SRD_W + 3))
    e("s_lshl_b32 %s, %s, 4" % (S_STR, S_STR))
    e("s_cmp_ge_u32 %s, 54" % S_C)
    e("s_cbranch_scc1 L_hb1")
    e("s_waitcnt lgkmcnt(0)")
    stamp(0)
    mk_srd(SRD_X, "s16", "s17", 5120)
    mk_srd(SRD_DBG, "s38", "s39", 256)
    e("s_cmp_lg_u32 %s, 0" % S_A)
    e("s_cselect_b32 s%d, s30, s28" % SRD_W)
    e("s_cselect_b32 s%d, s31, s29" % (SRD_W + 1))
    e("s_cmp_lg_u32 %s, 0" % S_W)
    e("s_cbranch_scc1 L_h1a")
    e("s_mov_b32 s%d, s22" % SRD_W)
    e("s_mov_b32 s%d, s23" % (SRD_W + 1))
    e("s_or_b32 s4, s4, 1")
    e("s_cmp_lg_u32 s2, 0")
    e("s_cbranch_scc1 L_h1a")
    e("v_mov_b32 v60, s4")
    e("v_lshlrev_b32 v61, 7, v0")
    e("s_mov_b64 exec, 3")
    e("buffer_store_dword v60, v61, %s, 0 offen sc1" % srd(SRD_DBG))
    e("s_mov_b64 exec, -1")
    lab("L_h1a")
    e("s_mov_b32 m0, s75")
    e("s_mov_b32 %s, 0" % S_OFF)
    for k in range(4):
        e("buffer_load_dwordx4 v2, %s, 0 offen offset:%d lds" % (srd(SRD_X), 1024 * k))
    e("s_add_u32 m0, s75, 0x1000")
    e("s_mov_b32 %s, 0x1000" % S_T1)
    e("buffer_load_dwordx4 v2, %s, %s offen lds" % (srd(SRD_X), S_T1))
    e("s_mov_b32 m0, s73")
    e("s_nop 0")
    for t in range(20):
        e("buffer_load_dwordx4 v26, %s, %s offen nt lds" % (srd(SRD_W), S_OFF))
        if t < 19:
            e("s_add_u32 m0, m0, 0x400")
            e("s_add_u32 %s, %s, %s" % (S_OFF, S_OFF, S_STR))
    e("s_barrier")
    mk_ws()
    e("v_lshrrev_b32 v28, 2, v25")
    e("v_lshlrev_b32 v28, 6, v28")
    e("v_lshl_add_u32 v28, v24, 9, v28")
    e("v_lshl_add_u32 v28, v27, 3, v28")
    e("v_add_u32 v28, s73, v28")
    e("v_mul_u32_u24 v29, 1280, v27")
    e("v_lshl_add_u32 v29, v24, 4, v29")
    e("s_mul_i32 %s, %s, 640" % (S_T0, S_IT))
    e("s_add_u32 %s, %s, s75" % (S_T0, S_T0))
    e("v_add_u32 v29, %s, v29" % S_T0)
    e("v_lshlrev_b32 v30, 7, v27")
    e("v_lshl_add_u32 v30, v24, 4, v30")
    e("v_bfe_u32 v31, v0, 2, 1")
    e("v_lshl_add_u32 v30, v31, 6, v30")
    XF, WFR, ACC = 96, [176, 192], 32
    e("s_waitcnt vmcnt(20)")
    NK = xpv("nk", 1)
    for s in range(10):
        e("ds_read_b128 %s, v29 offset:%d" % (vr(XF + 4 * s), 64 * s))
    def mm(k):
        for s2 in range(2):
            s = 2 * k + s2
            for ct in range(2):
                e("%s %s, %s, %s, %s" % (MFMA, vr(ACC + 4 * ct), vr(WFR[k & 1] + 8 * s2 + 4 * ct), vr(XF + 4 * s), "0" if s == 0 else vr(ACC + 4 * ct)))
    for k in range(5):
        e("s_waitcnt vmcnt(%d)" % (16 - 4 * k + (1 if k > NK else 0)))
        if k == NK:
            e("s_lshl_b32 s5, %s, 7" % S_W)
            e("buffer_load_dword v60, off, %s, s5 sc1" % srd(SRD_DBG))
        for s2 in range(2):
            s = 2 * k + s2
            for ct in range(2):
                r = WFR[k & 1] + 8 * s2 + 4 * ct
                e("ds_read_b64_tr_b16 %s, v28 offset:%d" % (vr(r, 2), 2048 * s + 32 * ct))
                e("ds_read_b64_tr_b16 %s, v28 offset:%d" % (vr(r + 2, 2), 2048 * s + 32 * ct + 256))
        if k:
            e("s_waitcnt lgkmcnt(8)")
            mm(k - 1)
    e("s_waitcnt lgkmcnt(0)")
    mm(4)
    lab("L_nw")
    e("s_waitcnt vmcnt(0)")
    e("v_readfirstlane_b32 %s, v60" % S_T0)
    e("s_cmp_lg_u32 %s, 0" % S_T0)
    e("s_cbranch_scc1 L_ng")
    spin_guard("L_ng")
    e("s_sleep 4")
    e("buffer_load_dword v60, off, %s, 0 sc1" % srd(SRD_DBG))
    e("s_branch L_nw")
    lab("L_ng")
    e("ds_write_b32 v%d, v60 offset:%d" % (VZ, L_CNT + 8))
    stags()
    e("s_nop 1")
    for i in range(4):
        e("v_mov_b32_dpp v%d, v%d quad_perm:[0,1,2,3] row_mask:0xf bank_mask:0x2" % (ACC + i, ACC + 4 + i))
    ypack(ACC)
    e("s_mov_b32 exec_lo, 0x00ff00ff")
    e("s_mov_b32 exec_hi, 0x00ff00ff")
    if "noqx" in XP:
        e("s_cmp_eq_u32 %s, 0" % S_W)
        e("s_cbranch_scc1 L_noqx")
    if "noh1pub" in XP:
        e("s_cmp_eq_u32 %s, 1" % S_W)
        e("s_cbranch_scc1 L_noqx")
    e("buffer_store_dwordx4 v[32:35], v30, %s, %s offen sc1" % (srd(SRD_WS), S_PUB))
    if "noqx" in XP or "noh1pub" in XP: lab("L_noqx")
    e("s_mov_b64 exec, -1")
    stamp(1)
    e("s_cmp_lg_u32 %s, 0" % S_W)
    e("s_cbranch_scc1 L_wo")
    e("s_lshl_b32 %s, %s, 5" % (S_OFF, S_H))
    e("s_add_u32 %s, %s, %s" % (S_OFF, S_OFF, S_B))
    e("s_lshl_b32 %s, %s, 7" % (S_OFF, S_OFF))
    e("s_add_u32 %s, %s, 0x%x" % (S_OFF, S_OFF, QX_OFF))
    e("v_lshrrev_b32 v48, 3, v0")
    e("v_lshlrev_b32 v48, 9, v48")
    e("v_and_b32 v3, 7, v0")
    e("v_lshl_add_u32 v48, v3, 4, v48")
    e("v_and_b32 v3, 31, v0")
    e("v_lshlrev_b32 v3, 3, v3")
    e("v_lshrrev_b32 v47, 5, v0")
    e("v_lshl_add_u32 v3, v47, 1, v3")
    if "noqx" not in XP: ypoll(["buffer_load_dwordx4 v[40:43], v48, %s, %s offen sc1" % (srd(SRD_WS), S_OFF)], [(40, 36)], 44, xpv("qsl", 0))
    else:
        for i in range(4): e("v_mov_b32 v%d, 0" % (40 + i))
    for i in range(4):
        e("v_and_b32 v%d, 0xfffffc00, v%d" % (40 + i, 40 + i))
    e("s_nop 0")
    e("v_permlane32_swap_b32 v40, v41")
    e("v_permlane32_swap_b32 v42, v43")
    e("s_nop 1")
    e("v_add_f32 v40, v40, v41")
    e("v_add_f32 v42, v42, v43")
    e("v_cvt_pk_bf16_f32 v40, v40, v42")
    e("ds_write_b16 v3, v40 offset:%d" % L_QB)
    e("ds_write_b16_d16_hi v3, v40 offset:%d" % (L_QB + 4))
    e("v_mov_b32 v40, 1")
    e("s_waitcnt lgkmcnt(0)")
    e("ds_write_b32 v%d, v40 offset:%d" % (VZ, L_CNT + 4))
    stamp(2)
    e("s_branch L_wo")

    lab("L_h23")
    e("s_cmp_eq_u32 %s, 2" % S_W)
    e("s_cbranch_scc1 L_hb1")
    for i in range(4):
        e("v_mov_b32 v%d, 0" % (44 + i))
    e("ds_write_b128 v%d, v[44:47] offset:%d" % (VZ, L_CNT))
    e("ds_write_b128 v%d, v[44:47] offset:%d" % (VZ, L_CNT + 16))
    lab("L_hb1")
    e("s_waitcnt lgkmcnt(0)")
    stamp(0)
    e("s_barrier")
    mk_ws()
    mk_srd(SRD_DBG, "s38", "s39", 256)
    e("s_cmp_eq_u32 %s, 2" % S_W)
    e("s_cbranch_scc1 L_h2")
    e("s_cmp_lg_u32 %s, 3" % S_W)
    e("s_cbranch_scc1 L_wo")
    lds_wait(4, "1", 94, VZ, 4)
    if "nowarm" not in XP:
        e("s_getpc_b64 s[4:5]")
        lab("L_pc")
        e("s_sub_u32 s4, s4, L_pc-%s" % KNAME)
        e("s_subb_u32 s5, s5, 0")
        e("v_lshlrev_b32 v28, 7, v0")
        for i in range(NWARM):
            e("v_min_u32 v27, L_code_end-%s-4, v28" % KNAME)
            e("global_load_dword v89, v27, s[4:5]")
            e("v_add_u32 v28, 0x2000, v28")
    e("s_cmp_ge_u32 s2, %d" % NCONS)
    e("s_cbranch_scc1 L_h3c")
    e("s_and_b32 s5, s2, 3")
    mk_srd(SRD_X, "s16", "s17", 5120)
    mk_srd(SRD_W, "s34", "s35", 1280)
    e("v_lshlrev_b32 v3, 2, v0")
    e("s_mul_i32 %s, s5, 1280" % S_T0)
    for k in range(5):
        e("buffer_load_dword v%d, v3, %s, %s offen offset:%d" % (64 + k, srd(SRD_X), S_T0, 256 * k))
        e("buffer_load_dword v%d, v3, %s, 0 offen offset:%d" % (72 + k, srd(SRD_W), 256 * k))
    e("s_waitcnt vmcnt(0)")
    G = V_G
    e("v_mov_b32 v%d, 0" % G)
    for k in range(5):
        e("v_lshlrev_b32 v80, 16, v%d" % (64 + k))
        e("v_and_b32 v81, 0xffff0000, v%d" % (64 + k))
        e("v_lshlrev_b32 v82, 16, v%d" % (72 + k))
        e("v_and_b32 v83, 0xffff0000, v%d" % (72 + k))
        e("v_mul_f32 v80, v80, v82")
        e("v_mul_f32 v81, v81, v83")
        e("v_cvt_pk_bf16_f32 v80, v80, v81")
        e("v_lshlrev_b32 v81, 16, v80")
        e("v_and_b32 v80, 0xffff0000, v80")
        e("v_add_f32 v%d, v%d, v81" % (G, G))
        e("v_add_f32 v%d, v%d, v80" % (G, G))
    allreduce64("add", G, 80)
    bf16r(G)
    e("v_mul_f32 v%d, 0xbfb8aa3b, v%d" % (G, G))
    e("v_exp_f32 v%d, v%d" % (G, G))
    e("s_nop 0")
    e("v_add_f32 v%d, 1.0, v%d" % (G, G))
    e("v_rcp_f32 v%d, v%d" % (G, G))
    e("s_nop 0")
    bf16r(G)
    lab("L_h3c")
    if FC and CA:
        e("ds_read_b32 v62, v%d offset:%d" % (VZ, L_CNT + 8))
        e("s_waitcnt lgkmcnt(0)")
        e("v_xor_b32 v63, %s, v62" % TAGX)
        sample(0, CA)
    e("s_branch L_wo")

    lab("L_h2")
    e("s_cmp_lt_u32 s2, %d" % (NWG - NF2 if "noffn" not in XP and "noh2" not in XP else 1000))
    e("s_cbranch_scc1 L_wo")
    S_RG, S_CB = "s68", "s69"
    e("s_sub_u32 %s, 255, s2" % S_T0)
    e("s_mul_i32 %s, %s, 205" % (S_RG, S_T0))
    e("s_lshr_b32 %s, %s, 11" % (S_RG, S_RG))
    e("s_mul_i32 %s, %s, 10" % (S_T1, S_RG))
    e("s_sub_u32 %s, %s, %s" % (S_CB, S_T0, S_T1))
    e("v_lshrrev_b32 v26, 3, v0")
    e("v_mul_u32_u24 v26, 1280, v26")
    e("v_and_b32 v27, 7, v0")
    e("v_lshl_add_u32 v26, v27, 4, v26")
    e("s_mul_i32 %s, %s, %d" % (S_OFF, S_RG, 96 * 1280))
    e("s_lshl_b32 %s, %s, 7" % (S_T0, S_CB))
    e("s_add_u32 %s, %s, %s" % (S_OFF, S_OFF, S_T0))
    mk_srd(SRD_W, "s32", "s33", 1728 * 1280)
    e("v_cmp_le_u32 vcc, 24, v0")
    e("v_mov_b32 v28, 24")
    e("v_mov_b32 v29, 128")
    e("v_cndmask_b32 v28, 0, v28, vcc")
    e("v_cndmask_b32 v29, 0, v29, vcc")
    e("v_sub_u32 v28, v0, v28")
    e("v_min_u32 v28, 23, v28")
    e("v_and_b32 v31, 7, v28")
    e("v_lshl_add_u32 v29, v31, 4, v29")
    e("v_lshrrev_b32 v31, 3, v28")
    e("v_lshl_add_u32 v29, v31, 9, v29")
    e("v_mov_b32 v30, 192")
    e("v_cndmask_b32 v30, 0, v30, vcc")
    e("v_lshl_add_u32 v30, v28, 3, v30")
    e("s_mul_i32 %s, %s, 1536" % (S_IT, S_RG))
    e("s_add_u32 %s, %s, 0x%x" % (S_IT, S_IT, GX_OFF))
    e("s_add_u32 s70, %s, 27648" % S_IT)
    e("s_add_u32 s71, %s, 55296" % S_IT)
    e("s_add_u32 s73, %s, %d" % (S_IT, 55296 + 27648))
    lds_wait(4, "1", 94, VZ, 4)
    e("s_mov_b32 m0, %d" % L_WQ)
    e("s_nop 0")
    for t in range(12):
        e("buffer_load_dwordx4 v26, %s, %s offen nt lds" % (srd(SRD_W), S_OFF))
        if t < 11:
            e("s_add_u32 m0, m0, 0x400")
            e("s_add_u32 %s, %s, %d" % (S_OFF, S_OFF, 8 * 1280))
    e("ds_read_b32 v94, v%d offset:%d" % (VZ, L_CNT + 8))
    e("s_waitcnt lgkmcnt(0)")
    e("v_readfirstlane_b32 %s, v94" % S_T0)
    stags()
    e("s_mov_b32 exec_hi, 0xffff")
    e("s_mov_b64 s[4:5], exec")
    SO = [S_IT, "s70", "s71", "s73"]
    if "noh2poll" not in XP: ypoll(["buffer_load_dwordx4 %s, v29, %s, %s offen offset:%d sc1" % (vr(40 + 16 * bb + 4 * k), srd(SRD_WS), SO[k], 256 * bb) for bb in range(2) for k in range(4)],
          [(40 + 16 * bb + 4 * k, 72 + 4 * k) for bb in range(2) for k in range(4)], 31, 16, "s[4:5]")
    for r in range(40, 72):
        e("v_and_b32 v%d, 0xfffffc00, v%d" % (r, r))
    for bb in range(2):
        g = 40 + 16 * bb
        for i in range(4):
            e("v_add_f32 v%d, v%d, v%d" % (g + i, g + i, g + 4 + i))
            e("v_add_f32 v%d, v%d, v%d" % (g + 8 + i, g + 8 + i, g + 12 + i))
        for k in range(2):
            e("v_cvt_pk_bf16_f32 v%d, v%d, v%d" % (g + 4 + k, g + 2 * k, g + 2 * k + 1))
            e("v_cvt_pk_bf16_f32 v%d, v%d, v%d" % (g + 12 + k, g + 8 + 2 * k, g + 8 + 2 * k + 1))
        for k in range(2):
            e("v_lshlrev_b32 v31, 16, v%d" % (g + 4 + k))
            e("v_and_b32 v32, 0xffff0000, v%d" % (g + 4 + k))
            e("v_lshlrev_b32 v33, 16, v%d" % (g + 12 + k))
            e("v_and_b32 v34, 0xffff0000, v%d" % (g + 12 + k))
            e("v_mul_f32 v31, v31, v33")
            e("v_mul_f32 v32, v32, v34")
            e("v_cvt_pk_bf16_f32 v%d, v31, v32" % (g + k))
        e("ds_write_b64 v30, %s offset:%d" % (vr(g, 2), L_HT + 384 * bb))
    e("s_mov_b64 exec, -1")
    stamp(3)
    e("v_lshlrev_b32 v28, 10, v24")
    e("v_lshrrev_b32 v29, 2, v25")
    e("v_lshl_add_u32 v28, v29, 7, v28")
    e("v_and_b32 v29, 3, v0")
    e("v_lshl_add_u32 v28, v29, 3, v28")
    e("v_mul_u32_u24 v29, 192, v29")
    e("v_lshl_add_u32 v29, v24, 4, v29")
    e("s_waitcnt lgkmcnt(0)")
    HF, WF, AC = 96, 112, 160
    for s in range(3):
        e("ds_read_b128 %s, v29 offset:%d" % (vr(HF + 4 * s), L_HT + 64 * s))
    for s in range(3):
        for nt in range(4):
            r = WF + 16 * s + 4 * nt
            e("ds_read_b64_tr_b16 %s, v28 offset:%d" % (vr(r, 2), L_WQ + 4096 * s + 32 * nt))
            e("ds_read_b64_tr_b16 %s, v28 offset:%d" % (vr(r + 2, 2), L_WQ + 4096 * s + 32 * nt + 512))
    e("v_bfe_u32 v30, v0, 3, 1")
    e("v_lshlrev_b32 v30, 2, v30")
    e("v_and_b32 v31, 3, v0")
    e("v_add_u32 v30, v30, v31")
    e("v_lshlrev_b32 v30, 7, v30")
    e("v_bfe_u32 v31, v0, 2, 1")
    e("v_lshl_add_u32 v30, v31, 6, v30")
    e("v_lshl_add_u32 v30, v24, 4, v30")
    e("s_sub_u32 %s, 255, s2" % S_OFF)
    e("s_lshl_b32 %s, %s, 10" % (S_OFF, S_OFF))
    e("s_add_u32 %s, %s, 0x%x" % (S_OFF, S_OFF, F_OFF))
    e("s_waitcnt lgkmcnt(0)")
    for s in range(3):
        for nt in range(4):
            e("%s %s, %s, %s, %s" % (MFMA, vr(AC + 4 * nt), vr(WF + 16 * s + 4 * nt), vr(HF + 4 * s), "0" if s == 0 else vr(AC + 4 * nt)))
    e("s_nop 7")
    e("s_nop 3")
    for nt in range(1, 4):
        for i in range(4):
            e("v_mov_b32_dpp v%d, v%d row_shr:%d row_mask:0xf bank_mask:0x%x" % (AC + i, AC + 4 * nt + i, 4 * nt, 1 << nt))
    ypack(AC)
    if "noh2st" not in XP: e("buffer_store_dwordx4 %s, v30, %s, %s offen sc1" % (vr(AC), srd(SRD_WS), S_OFF))
    e("s_waitcnt vmcnt(0)")
    stamp(4)

    lab("L_wo")
    e("s_mul_i32 %s, %s, %d" % (S_T0, S_H, 128 * 1280))
    e("s_mul_i32 %s, %s, 320" % (S_T1, S_W))
    e("s_add_u32 %s, %s, %s" % (S_T0, S_T0, S_T1))
    for t5 in range(5):
        e("v_add_u32 v26, %d, v0" % (64 * t5))
        e("v_mul_u32_u24 v27, 3277, v26")
        e("v_lshrrev_b32 v27, 16, v27")
        e("v_mul_u32_u24 v28, 20, v27")
        e("v_sub_u32 v26, v26, v28")
        e("v_mul_u32_u24 v27, 1280, v27")
        e("v_lshl_add_u32 v27, v26, 4, v27")
        e("v_add_u32 v%d, %s, v27" % (80 + t5, S_T0))
    e("s_mul_i32 s68, %s, 10240" % S_W)
    e("s_add_u32 s68, s68, %d" % L_WO)
    e("v_lshrrev_b32 v26, 2, v0")
    e("v_mul_u32_u24 v26, 320, v26")
    e("v_and_b32 v27, 3, v0")
    e("v_lshl_add_u32 v26, v27, 3, v26")
    e("v_add_u32 v26, s68, v26")
    mk_srd(SRD_W, "s24", "s25", 4096 * 1280)
    e("s_mov_b32 %s, 0" % S_T1)
    lds_wait(4, "1", 94, VZ, 4)
    def trread(hc):
        for t in range(10):
            e("ds_read_b64_tr_b16 %s, v26 offset:%d" % (vr(W(4 * t + (hc >> 1)) + 2 * (hc & 1), 2), (hc & 1) * 5120 + 32 * t))
        e("s_waitcnt lgkmcnt(0)")
    assert WO_WIN <= 6
    if "nowo" not in XP:
        done = 0
        for q in range(40):
            hc, t5 = divmod(q, 5)
            e("s_add_u32 m0, s68, %d" % ((hc & 1) * 5120 + t5 * 1024))
            if q >= WO_WIN: e("s_waitcnt vmcnt(%d)" % (WO_WIN - 1))
            else: e("s_nop 0")
            if 5 * done + 4 + WO_WIN == q:
                trread(done); done += 1
            e("buffer_load_dwordx4 v%d, %s, %s offen nt lds" % (80 + t5, srd(SRD_W), S_T1))
            if t5 == 4 and q < 39: e("s_add_u32 %s, %s, %d" % (S_T1, S_T1, 16 * 1280))
        while done < 8:
            e("s_waitcnt vmcnt(%d)" % (35 - 5 * done))
            trread(done); done += 1
    e("ds_read_b32 v94, v%d offset:%d" % (VZ, L_CNT + 8))
    e("v_and_b32 v26, 3, v0")
    e("v_bfe_u32 v27, v0, 2, 1")
    e("v_lshl_add_u32 v26, v26, 1, v27")
    e("v_mul_u32_u24 v9, %d, v26" % OA_ROW)
    e("v_lshl_add_u32 v9, v24, 4, v9")
    e("s_mul_i32 %s, %s, 640" % (S_T0, S_W))
    e("v_lshlrev_b32 v10, 2, v0")
    e("v_add_u32 v10, %s, v10" % S_T0)
    e("s_waitcnt lgkmcnt(0)")
    e("v_readfirstlane_b32 %s, v94" % S_T0)
    e("v_mov_b32 v62, v94")
    e("v_xor_b32 v63, %s, v94" % TAGX)
    stags()
    e("v_and_b32 v26, 3, v0")
    e("v_mov_b32 v11, s%d" % S_TG)
    for i in range(1, 4):
        e("v_mov_b32 v27, s%d" % (S_TG + i))
        e("v_cmp_eq_u32 vcc, %d, v26" % i)
        e("s_nop 1")
        e("v_cndmask_b32 v11, v11, v27, vcc")
    e("s_lshl_b32 %s, %s, 1" % (S_IT, S_BH))
    e("s_add_u32 %s, %s, %s" % (S_IT, S_IT, S_HALF))
    e("s_mul_i32 %s, %s, 2560" % (S_IT, S_IT))
    e("s_and_b32 %s, s2, 3" % S_C)
    e("s_lshl_b32 %s, %s, 2" % (S_C, S_C))
    e("s_add_u32 %s, %s, %s" % (S_C, S_C, S_W))
    e("s_mul_i32 %s, %s, %d" % (S_C, S_C, 16 * 2560))
    e("s_lshr_b32 %s, s2, 2" % S_T1)
    e("s_lshl_b32 %s, %s, 7" % (S_T1, S_T1))
    e("s_add_u32 %s, %s, %s" % (S_C, S_C, S_T1))
    e("s_add_u32 %s, %s, %d" % (S_A, S_C, 8 * 2560))
    e("v_and_b32 v86, 7, v0")
    e("v_lshlrev_b32 v86, 4, v86")
    e("v_bfe_u32 v87, v0, 4, 1")
    e("v_lshl_add_u32 v86, v87, 3, v86")
    e("v_lshrrev_b32 v87, 5, v0")
    e("v_lshl_add_u32 v86, v87, 2, v86")
    e("v_lshrrev_b32 v87, 3, v0")
    e("v_mul_u32_u24 v87, 2560, v87")
    e("v_and_b32 v28, 7, v0")
    e("v_lshl_add_u32 v87, v28, 4, v87")
    e("s_waitcnt vmcnt(0)")
    stamp(5)
    e("s_cmp_ge_u32 s2, %d" % NCONS)
    e("s_cbranch_scc1 L_nc")
    e("s_cmp_lg_u32 %s, 3" % S_W)
    e("s_cbranch_scc1 L_nc")
    e("s_lshr_b32 %s, s2, 3" % S_T1)
    e("v_lshrrev_b32 v30, 3, v0")
    e("v_and_b32 v29, 7, v0")
    e("v_lshlrev_b32 v29, 4, v29")
    for k in range(3):
        e("v_add_u32 v31, %d, v30" % (8 * k))
        if k == 2: e("v_min_u32 v31, 17, v31")
        e("v_mul_u32_u24 v31, 10240, v31")
        e("v_add_u32 v%d, v31, v29" % (36 + k))
    e("s_lshl_b32 %s, s2, 7" % S_OFF)
    e("s_add_u32 %s, %s, 0x%x" % (S_OFF, S_OFF, F_OFF))
    lds_wait(0, "1", 94, VZ, 16)
    if "noffn" not in XP and "noh3poll" not in XP: ypoll(["buffer_load_dwordx4 %s, v%d, %s, %s offen sc1" % (vr(40 + 4 * k), 36 + k, srd(SRD_WS), S_OFF) for k in range(3)],
          [(40, 64), (44, 68), (48, 72)], 52, 32)
    e("v_cmp_gt_u32 vcc, 16, v0")
    for i in range(4):
        e("v_add_f32 v%d, v%d, v%d" % (40 + i, 40 + i, 44 + i))
    for i in range(4):
        e("v_cndmask_b32 v%d, 0, v%d, vcc" % (48 + i, 48 + i))
    for i in range(4):
        e("v_add_f32 v%d, v%d, v%d" % (40 + i, 40 + i, 48 + i))
    red8(40)
    e("ds_write_b32 v86, v40 offset:%d" % (L_R + 512))
    e("v_lshlrev_b32 v30, 2, v0")
    e("v_and_b32 v30, 127, v30")
    e("v_sub_f32 v31, 1.0, v%d" % V_G)
    bf16r(31)
    e("s_waitcnt lgkmcnt(0)")
    e("ds_read_b32 v%d, v30 offset:%d" % (V_FB, L_R + 512))
    e("s_waitcnt lgkmcnt(0)")
    bf16r(V_FB)
    e("v_mul_f32 v%d, v31, v%d" % (V_FB, V_FB))
    bf16r(V_FB)
    lab("L_nc")
    if FC and CC:
        e("s_cmp_lg_u32 %s, 1" % S_W)
        e("s_cbranch_scc1 L_nctl")
        sample(1, CC)
        lab("L_nctl")
    e("s_cmp_lg_u32 %s, 0" % S_W)
    e("s_cbranch_scc1 L_h9")
    e("v_and_b32 v12, 3, v0")
    e("v_lshlrev_b32 v13, 2, v12")
    e("v_lshlrev_b32 v12, 3, v12")
    e("s_and_b32 %s, s2, 127" % S_OFF)
    e("s_lshl_b32 %s, %s, 7" % (S_OFF, S_OFF))
    e("s_add_u32 %s, %s, 0x%x" % (S_OFF, S_OFF, RC_OFF))
    e("s_lshl_b32 %s, %s, 6" % (S_T1, S_HALF))
    e("s_add_u32 s68, %s, %s" % (S_OFF, S_T1))
    e("s_xor_b32 s69, s68, 64")
    lds_wait(0, "4", 94, VZ, 8 if not FC else 4)
    if FC: e("s_memrealtime s[4:5]")
    e("ds_read_b64 v[14:15], v12 offset:%d" % L_ML)
    e("s_waitcnt lgkmcnt(0)")
    e("v_mov_b32 v60, v14")
    allreduce4("max", 60)
    e("v_sub_f32 v16, v14, v60")
    e("v_mul_f32 v16, %s, v16" % LOG2E)
    e("v_exp_f32 v16, v16")
    e("s_nop 0")
    e("v_mul_f32 v61, v16, v15")
    allreduce4("add", 61)
    if FC:
        e("v_mov_b32 v44, v60")
        e("v_mov_b32 v45, v61")
        e("v_mov_b32 v46, v62")
        e("v_mov_b32 v47, v63")
        e("s_mov_b64 exec, 2")
        e("v_mov_b32 v44, s4")
        e("s_mov_b64 exec, 3")
        e("buffer_store_dwordx4 v[44:47], v2, %s, s68 offen sc1" % srd(SRD_WS))
    else:
        e("s_mov_b64 exec, 1")
        if "nopair" not in XP: e("buffer_store_dwordx4 v[60:63], off, %s, s68 sc1" % srd(SRD_WS))
    e("s_mov_b64 exec, -1")
    stamp(6)
    if "nopair" not in XP: tpoll(["buffer_load_dwordx4 v[40:43], off, %s, s69 sc1" % srd(SRD_WS)], [(40, 62, 63)], xpv("rsl", 32))
    e("v_max_f32 v17, v60, v40")
    e("v_sub_f32 v60, v60, v17")
    e("v_sub_f32 v40, v40, v17")
    e("v_sub_f32 v14, v14, v17")
    e("v_mul_f32 v60, %s, v60" % LOG2E)
    e("v_mul_f32 v40, %s, v40" % LOG2E)
    e("v_mul_f32 v14, %s, v14" % LOG2E)
    e("v_exp_f32 v60, v60")
    e("v_exp_f32 v40, v40")
    e("v_exp_f32 v14, v14")
    e("v_mul_f32 v61, v60, v61")
    e("v_fmac_f32 v61, v40, v41")
    e("v_rcp_f32 v61, v61")
    e("s_nop 0")
    e("v_mul_f32 v14, v14, v61")
    e("ds_write_b32 v13, v14 offset:%d" % L_SC)
    if FC: census(RC_OFF + 16, 6, 5, xpv("tsl", 48))
    e("s_waitcnt lgkmcnt(0)")
    lab("L_h9")
    stamp(7)
    e("s_lshl_b32 %s, %s, 7" % (S_T0, S_W))
    e("v_add_u32 v86, %s, v86" % S_T0)
    if DRY:
        e("s_mul_i32 s68, %s, 10240" % S_W)
        e("s_add_u32 s68, s68, %d" % L_WO)
        e("v_lshlrev_b32 v28, 2, v0")
        e("v_add_u32 v28, s68, v28")
        e("s_mov_b32 s73, 1")
        e("s_mov_b32 s72, %d" % SPIN_MAX)
        e("s_cmp_eq_u32 s73, 0")
        e("s_branch L_send")
        lab("L_tail")
        e("s_cmp_lg_u32 s73, 0")
        e("s_cbranch_scc1 L_nb")
    e("s_barrier")
    if DRY: lab("L_nb")
    AF, DT, SC = 12, 32, 72
    POL = {0: "sc1", 1: "sc0 sc1", 2: "sc1 nt", 3: "sc0 sc1 nt"}
    YST, YLD = POL[xpv("yst", 0)], POL[xpv("yld", 0)]
    for s4 in range(4):
        e("ds_read_b128 %s, v9 offset:%d" % (vr(AF + 4 * s4), L_OP + 64 * s4))
    e("ds_read_b128 %s, v%d offset:%d" % (vr(SC), VZ, L_SC))
    ops = []
    pos = [0]
    def em(x): e(x); pos[0] += 1
    def drain(n):
        k = 0
        while ops and k < n:
            x, rdy = ops[0]
            r = rdy() if callable(rdy) else rdy
            if r > pos[0]: break
            ops.pop(0); em(x); k += 1
            mark[x] = pos[0]
    mark = {}
    def after(x, d): return lambda: mark[x] + d
    def ystore(r, off, half):
        a = "v_add_u32 v%d, 0x200, v%d" % (r, r)
        return a
    last = {}
    for t in range(10):
        d = DT + 4 * t
        for s4 in range(4):
            if t == 0: e("s_waitcnt lgkmcnt(%d)" % (4 - s4))
            if t == 2 and s4 == 0: e("s_waitcnt lgkmcnt(0)")
            em("%s %s, %s, %s, %s" % (MFMA, vr(d), vr(AF + 4 * s4), vr(W(4 * t + s4)), "0" if s4 == 0 else vr(d)))
            rdy = pos[0] + 8
            drain(3)
        ops.append(("v_mul_f32 v%d, v%d, v%d" % (d, SC, d), rdy))
        for i in range(1, 4):
            x = "v_fmac_f32 v%d, v%d, v%d" % (d, SC + i, d + i)
            ops.append((x, rdy))
        last[t] = x
        if t & 1:
            a, b = d - 4, d
            x = "v_permlane16_swap_b32 v%d, v%d" % (a, b)
            ops.append((x, after(last[t], 2)))
            y = "v_add_f32 v%d, v%d, v%d" % (a, a, b)
            ops.append((y, after(x, 1)))
            last[t] = y
            fin = None
            if t & 3 == 3:
                x = "v_permlane32_swap_b32 v%d, v%d" % (d - 12, d - 4)
                ops.append((x, after(y, 2)))
                fin = (d - 12, x, 1)
            elif t == 9:
                fin = (a, y, 0)
            if fin:
                r, x, dd = fin
                y = "v_add_u32 v%d, 0x200, v%d" % (r, r)
                ops.append((y, after(x, dd)))
                z = "v_bfi_b32 v%d, v%d, v11, v%d" % (r, V_M10, r)
                ops.append((z, 0))
                if t == 9: ops.append(("s_mov_b32 exec_hi, 0", 0))
                if DRY: ops.append(("s_cbranch_scc1 L_ns%d" % t, 0))
                ops.append(("buffer_store_dword v%d, v10, %s, %s offen offset:%d %s%s" % (r, srd(SRD_WS), S_IT, 256 * (t >> 2), YST, "\nL_ns%d:" % t if DRY else ""), 0))
    while ops:
        n = len(ops)
        drain(100)
        if len(ops) == n:
            x, rdy = ops[0]
            r = rdy() if callable(rdy) else rdy
            e("s_nop %d" % (r - pos[0] - 1)); pos[0] = r
    e("s_mov_b64 exec, -1")
    stamp(8)
    e("s_cmp_ge_u32 s2, %d" % NCONS)
    e("s_cbranch_scc1 L_hend")
    NS = xpv("ns", 3)
    if NS == 0:
        ypoll(["buffer_load_dwordx4 v[12:15], v87, %s, %s offen sc1" % (srd(SRD_WS), S_C),
               "buffer_load_dwordx4 v[16:19], v87, %s, %s offen sc1" % (srd(SRD_WS), S_A)], [(12, 76), (16, 80)], 20, xpv("ysl", 0))
        for i in range(4):
            e("v_add_f32 v%d, v%d, v%d" % (12 + i, 12 + i, 16 + i))
    else:
        def pl(k):
            e("buffer_load_dwordx4 %s, v87, %s, %s offen %s" % (vr(32 + 8 * k), srd(SRD_WS), S_C, YLD))
            e("buffer_load_dwordx4 %s, v87, %s, %s offen %s" % (vr(36 + 8 * k), srd(SRD_WS), S_A, YLD))
        if DRY:
            e("s_cmp_lg_u32 s73, 0")
            e("s_cselect_b64 exec, 1, -1")
        for k in range(NS):
            pl(k)
            if k < NS - 1: e("s_sleep %d" % xpv("yg", 6))
        lab("L_yp")
        for k in range(NS):
            g = 32 + 8 * k
            e("s_waitcnt vmcnt(%d)" % (2 * (NS - 1)))
            e("v_xor_b32 v20, s%d, v%d" % (S_TG, g))
            e("v_xor_b32 v21, s%d, v%d" % (S_TG + 1, g + 1))
            e("v_or_b32 v20, v20, v21")
            for i in range(2, 8, 2):
                e("v_xor_b32 v21, s%d, v%d" % (S_TG + (i & 3), g + i))
                e("v_xor_b32 v22, s%d, v%d" % (S_TG + (i & 3) + 1, g + i + 1))
                e("v_or3_b32 v20, v20, v21, v22")
            e("v_and_b32 v20, 0x3ff, v20")
            e("v_cmp_ne_u32 vcc, 0, v20")
            e("s_andn2_b64 exec, exec, vcc")
            for i in range(4):
                e("v_add_f32 v%d, v%d, v%d" % (12 + i, g + i, g + 4 + i))
            e("s_mov_b64 exec, vcc")
            e("s_cbranch_execz L_ypd")
            pl(k)
        spin_guard("L_ypd")
        e("s_branch L_yp")
        lab("L_ypd")
        e("s_mov_b64 exec, -1")
    red8(12)
    e("ds_write_b32 v86, v12 offset:%d" % L_R)
    e("v_lshlrev_b32 v12, 2, v0")
    e("s_waitcnt lgkmcnt(0)")
    if DRY:
        e("s_cmp_lg_u32 s73, 0")
        e("s_cbranch_scc1 L_nb2")
    e("s_barrier")
    if DRY: lab("L_nb2")
    e("s_cmp_lg_u32 %s, 3" % S_W)
    e("s_cbranch_scc1 L_hend")
    e("s_mov_b32 exec_hi, 0")
    for w in range(4):
        e("ds_read_b32 v%d, v12 offset:%d" % (24 + w, L_R + w * 128))
    mk_srd(SRD_X, "s36", "s37", 5120)
    e("s_and_b32 s5, s2, 3")
    e("s_mul_i32 %s, s5, 1280" % S_T0)
    e("s_lshr_b32 %s, s2, 2" % S_T1)
    e("s_lshl_b32 %s, %s, 6" % (S_T1, S_T1))
    e("s_add_u32 %s, %s, %s" % (S_T0, S_T0, S_T1))
    e("v_lshlrev_b32 v12, 1, v0")
    if DRY: e("s_cmp_lg_u32 s73, 0")
    e("s_waitcnt lgkmcnt(0)")
    e("v_add_f32 v24, v24, v25"); e("v_add_f32 v26, v26, v27")
    e("v_add_f32 v24, v24, v26")
    bf16r(24)
    e("v_mul_f32 v24, v%d, v24" % V_G)
    bf16r(24)
    e("v_add_f32 v24, v24, v%d" % V_FB)
    e("v_cvt_pk_bf16_f32 v24, v24, v24")
    if DRY: e("s_cbranch_scc1 L_hend")
    e("buffer_store_short v24, v12, %s, %s offen" % (srd(SRD_X), S_T0))
    lab("L_hend")
    if DRY:
        e("s_cmp_eq_u32 s73, 0")
        e("s_cbranch_scc1 L_hfin")
        e("s_mov_b32 s73, 0")
        e("s_mov_b32 s72, 0")
        e("s_mov_b64 exec, -1")
        e("s_branch L_tail")
        lab("L_hfin")
    stamp(9)
    stamps_out(4)


def main():
    ref = open("cdna_kernels/%s.s.ref" % NAME).read().split("\n")
    head = []
    for ln in ref:
        if ln.startswith("; @launch"):
            break
        head.append(ln)
    out = head + ["; @launch grid=(%d,1,1) block=(512,1,1) lds=%d" % (NWG, LDS_BYTES)]
    out += ['.amdgcn_target "amdgcn-amd-amdhsa--gfx950"', ".text", ".globl " + KNAME, ".p2align 8",
            ".type %s,@function" % KNAME, KNAME + ":"]
    e("s_cmp_ge_u32 s2, %d" % NWG)
    e("s_cbranch_scc1 L_end")
    e("s_load_dwordx16 s[16:31], s[0:1], 0")
    e("s_load_dwordx8 s[32:39], s[0:1], 64")
    e("s_load_dwordx2 s[40:41], s[0:1], 96")
    e("v_lshrrev_b32 v1, 6, v0")
    e("v_and_b32 v0, 63, v0")
    e("s_mov_b32 s72, 0")
    e("v_readfirstlane_b32 %s, v1" % S_W)
    e("s_and_b32 s4, s2, 7")
    e("s_lshr_b32 s5, s2, 3")
    e("s_and_b32 %s, s5, 3" % S_H)
    e("s_lshl_b32 %s, %s, 3" % (S_H, S_H))
    e("s_add_u32 %s, %s, s4" % (S_H, S_H))
    e("s_lshr_b32 %s, s5, 2" % S_B)
    e("s_and_b32 %s, %s, 3" % (S_B, S_B))
    e("s_lshr_b32 %s, s5, 4" % S_HALF)
    e("s_lshl_b32 %s, %s, 5" % (S_BH, S_B))
    e("s_add_u32 %s, %s, %s" % (S_BH, S_BH, S_H))
    if TS:
        for i in range(NSTAMP): e("s_mov_b32 s%d, 0" % (76 + 2 * i))
    e("s_cmp_ge_u32 %s, 4" % S_W)
    e("s_cbranch_scc1 L_helper")
    streamer()
    helper()
    lab("L_end")
    e("s_endpgm")
    lab("L_code_end")
    out += L
    out += ['.section .rodata,"a"', ".p2align 6", ".amdhsa_kernel " + KNAME,
            "  .amdhsa_next_free_vgpr 256", "  .amdhsa_next_free_sgpr %d" % (96 if TS else 80), "  .amdhsa_accum_offset 256",
            "  .amdhsa_group_segment_fixed_size 0", "  .amdhsa_kernarg_size 104",
            "  .amdhsa_user_sgpr_count 2", "  .amdhsa_user_sgpr_kernarg_segment_ptr 1",
            "  .amdhsa_system_sgpr_workgroup_id_x 1", "  .amdhsa_float_denorm_mode_32 3",
            ".end_amdhsa_kernel", ""]
    open(OUT, "w").write("\n".join(out))

main()
```

```python
import sys

NAME = "gated_mix__mha_block_cached__glu_gated_bilinear__decode"
KNAME = NAME + "_kernel"
TS = "--ts" in sys.argv
XP = [a[2:] for a in sys.argv if a.startswith("--")]
OUT = [a for a in sys.argv[1:] if not a.startswith("--")]
OUT = OUT[0] if OUT else "cdna_kernels/%s.s" % NAME
def xpv(name, default):
    for a in XP:
        if a.startswith(name + "="): return int(a.split("=")[1])
    return default

NWG, NCONS, NF2 = 256, 80, 180
NWARM = 3
Y_OFF = 0
F_OFF = 0xA0000
QX_OFF = 0xD0000
GX_OFF = 0xF0000
RC_OFF = 0x10C000
CT_OFF = 0x110000
WS_USED = 0x130000
WS_BASE = xpv("wsmb", 0) << 20
DBG_WS = 8 << 20
WS_REC = (WS_USED if not TS else (64 << 20))
D = xpv("d", 8)
C0 = xpv("c0", 12)
WO_WIN = xpv("wowin", 3)
NB = 8
FC = "nofc" not in XP
XK = [0, xpv("xk1", 1), xpv("xk2", 2)]
XV = [0, xpv("xv1", 2), xpv("xv2", 4)]
KDL, DLT = xpv("kdl", 250), xpv("dlt", 223)
TH1, TH2 = xpv("th1", 0), xpv("th2", 60)
CA = xpv("ca", 1)
CC = [7, 9, 11]
for a in XP:
    if a.startswith("cc="): CC = [int(x) for x in a[3:].split(",") if int(x)]
def sched(n): return (min(n, 5) - 1) * KDL + max(n - 5, 0) * DLT
V_ONE, V_FLAG, S_FLAG = 40, 41, "s69"
DRY = "dry" in XP and FC
assert D % 4 == 0 and 4 <= D <= 16

P_ROW = 64 * NB + 16
P_WAVE = 4 * P_ROW
L_QB = 8448
L_OP = 8704
OA_ROW = 272
L_ML = 10880
L_CNT = 10912
L_SC = 10944
L_R = 11008
L_HT = 11904
L_WQ = 12800
L_X0 = 33280
L_WF = 38400
L_X1 = 58880
L_WO = 64000
LDS_BYTES = L_WO + 40960
assert 4 * P_WAVE <= L_QB

L = []
def e(s): L.append("    " + s)
def lab(s): L.append(s + ":")
def cmt(s): L.append("    ; " + s)
def vr(a, n=4): return "v[%d:%d]" % (a, a + n - 1)

S_W, S_H, S_B, S_HALF, S_BH = "s3", "s6", "s7", "s8", "s9"
S_OFF, S_IT, S_T0, S_T1, S_A = "s10", "s11", "s12", "s13", "s14"
S_C, S_I = "s15", "s74"
SRD_S, SRD_W, SRD_WS, SRD_DBG, SRD_X = 44, 48, 52, 56, 60
S_TG = 64
S_P = 68
def srd(n): return "s[%d:%d]" % (n, n + 3)
def mk_srd(n, lo, hi, nrec):
    e("s_mov_b32 s%d, %s" % (n, lo))
    e("s_mov_b32 s%d, %s" % (n + 1, hi))
    e("s_mov_b32 s%d, 0x%x" % (n + 2, nrec))
    e("s_mov_b32 s%d, 0x00020000" % (n + 3))
def mk_ws():
    if WS_BASE:
        e("s_add_u32 s%d, s40, 0x%x" % (SRD_WS, WS_BASE))
        e("s_addc_u32 s%d, s41, 0" % (SRD_WS + 1))
        e("s_mov_b32 s%d, 0x%x" % (SRD_WS + 2, WS_USED))
        e("s_mov_b32 s%d, 0x00020000" % (SRD_WS + 3))
    else:
        mk_srd(SRD_WS, "s40", "s41", WS_USED)

BUF = 64
WREG = 96
def B(i): return BUF + 4 * i
def W(i): return WREG + 4 * i

LOG2E = "0x3fb8aa3b"
SCALE = "0x3db504f3"
MFMA = "v_mfma_f32_16x16x32_bf16"
TAGX = "0x9e3779b9"

def sel_pv(dst, t):
    a, b, c = t, t + 1, t + 2
    e("v_mov_b32 v%d, 0x100" % a)
    e("v_mov_b32 v%d, 0x302" % b)
    e("v_and_b32 v%d, 8, v0" % c)
    e("v_cmp_ne_u32 vcc, 0, v%d" % c)
    e("s_nop 1")
    e("v_cndmask_b32 v%d, v%d, v%d, vcc" % (a, a, b))
    e("v_or_b32 v%d, 0x0c0c0000, v%d" % (b, a))
    e("v_lshlrev_b32 v%d, 16, v%d" % (a, a))
    e("v_or_b32 v%d, 0x0c0c, v%d" % (a, a))
    e("v_and_b32 v%d, 1, v0" % c)
    e("v_cmp_ne_u32 vcc, 0, v%d" % c)
    e("s_nop 1")
    e("v_cndmask_b32 v%d, v%d, v%d, vcc" % (a, b, a))
    e("v_mov_b32 v%d, 0x0c0c0c0c" % b)
    e("v_bfe_u32 v%d, v0, 1, 2" % c)
    for i in range(4):
        e("v_cmp_eq_u32 vcc, %d, v%d" % (i, c))
        e("s_nop 1")
        e("v_cndmask_b32 v%d, v%d, v%d, vcc" % (dst + i, b, a))

def allreduce64(op, v, t):
    for r in (8, 4, 2, 1):
        e("s_nop 1")
        e("v_%s_f32_dpp v%d, v%d, v%d row_ror:%d row_mask:0xf bank_mask:0xf" % (op, v, v, v, r))
    for sw in ("16", "32"):
        e("v_mov_b32 v%d, v%d" % (t, v))
        e("s_nop 1")
        e("v_permlane%s_swap_b32 v%d, v%d" % (sw, v, t))
        e("s_nop 1")
        e("v_%s_f32 v%d, v%d, v%d" % (op, v, v, t))

def allreduce4(op, v):
    for m in ("quad_perm:[1,0,3,2]", "quad_perm:[2,3,0,1]"):
        e("s_nop 1")
        e("v_%s_f32_dpp v%d, v%d, v%d %s row_mask:0xf bank_mask:0xf" % (op, v, v, v, m))

def bf16r(v):
    e("v_cvt_pk_bf16_f32 v%d, v%d, v%d" % (v, v, v))
    e("v_lshlrev_b32 v%d, 16, v%d" % (v, v))

def hilo_pack(a, b, t):
    e("v_cvt_pk_bf16_f32 v%d, v%d, v%d" % (t, a, b))
    e("v_lshlrev_b32 v%d, 16, v%d" % (t + 1, t))
    e("v_and_b32 v%d, 0xffff0000, v%d" % (t + 2, t))
    e("v_sub_f32 v%d, v%d, v%d" % (t + 1, a, t + 1))
    e("v_sub_f32 v%d, v%d, v%d" % (t + 2, b, t + 2))
    e("v_cvt_pk_bf16_f32 v%d, v%d, v%d" % (t + 1, t + 1, t + 2))
    e("v_perm_b32 v%d, v%d, v%d, %s" % (a, t + 1, t, S_T0))
    e("v_perm_b32 v%d, v%d, v%d, %s" % (b, t + 1, t, S_T1))

def stream_load(t):
    e("buffer_load_dwordx4 %s, v1, %s, %s offen nt" % (vr(B(t)), srd(SRD_S), S_OFF))
    e("s_add_u32 %s, %s, 0x1000" % (S_OFF, S_OFF))

NSTAMP = 10
def stamp(i):
    if not TS: return
    e("s_memrealtime s[%d:%d]" % (76 + 2 * i, 77 + 2 * i))
    e("s_waitcnt lgkmcnt(0)")

def stamps_out(w8off):
    if not TS: return
    e("s_mov_b64 exec, 1")
    mk_srd(SRD_WS, "s40", "s41", 64 << 20)
    e("s_lshl_b32 s12, s2, 3")
    e("s_add_u32 s12, s12, %s" % S_W)
    e("s_add_u32 s12, s12, %d" % w8off)
    e("s_lshl_b32 s12, s12, 6")
    e("s_add_u32 s12, s12, 0x%x" % DBG_WS)
    for i in range(NSTAMP):
        e("v_mov_b32 v5, s%d" % (76 + 2 * i))
        e("buffer_store_dword v5, off, %s, s12 offset:%d" % (srd(SRD_WS), 4 * i))
    e("s_getreg_b32 s13, hwreg(HW_REG_XCC_ID)")
    e("v_mov_b32 v5, s13")
    e("buffer_store_dword v5, off, %s, s12 offset:56" % srd(SRD_WS))
    e("s_getreg_b32 s13, hwreg(HW_REG_HW_ID)")
    e("v_mov_b32 v5, s13")
    e("buffer_store_dword v5, off, %s, s12 offset:60" % srd(SRD_WS))

SPIN_MAX = 400000
def spin_guard(exit_lbl):
    e("s_add_u32 s72, s72, 1")
    e("s_cmp_gt_u32 s72, %d" % SPIN_MAX)
    e("s_cbranch_scc1 %s" % exit_lbl)

NLAB = [0]
def newlab(p):
    NLAB[0] += 1
    return "L_%s%d" % (p, NLAB[0])

def lds_wait(off, target, vt, va, sleep=1):
    l0, l1 = newlab("lw"), newlab("lw")
    lab(l0)
    e("ds_read_b32 v%d, v%d offset:%d" % (vt, va, L_CNT + off))
    e("s_waitcnt lgkmcnt(0)")
    e("v_readfirstlane_b32 %s, v%d" % (S_T0, vt))
    e("s_cmp_ge_u32 %s, %s" % (S_T0, target))
    e("s_cbranch_scc1 %s" % l1)
    spin_guard(l1)
    e("s_sleep %d" % sleep)
    e("s_branch %s" % l0)
    lab(l1)

def lds_signal(off, vt, va):
    e("v_mov_b32 v%d, 1" % vt)
    e("s_mov_b64 exec, 1")
    e("ds_add_u32 v%d, v%d offset:%d" % (va, vt, L_CNT + off))
    e("s_mov_b64 exec, -1")

def fc_end(dl):
    e("s_memrealtime s[70:71]")
    e("s_mov_b64 exec, 1")
    e("ds_add_u32 v30, v%d offset:%d" % (V_ONE, L_CNT + 12))
    e("s_mov_b64 exec, -1")
    e("s_waitcnt lgkmcnt(0)")
    e("v_readfirstlane_b32 s71, v%d" % V_FLAG)
    e("s_sub_u32 s70, s68, s70")
    e("s_add_u32 s70, s70, s71")
    e("s_add_u32 s68, s68, %s" % dl)
    e("s_cmp_gt_i32 s70, %d" % TH1)
    e("s_cselect_b32 %s, 1, 0" % S_FLAG)
    e("s_cmp_gt_i32 s70, %d" % TH2)
    e("s_cselect_b32 %s, 2, %s" % (S_FLAG, S_FLAG))
    e("s_cmp_eq_u32 s71, 0")
    e("s_cselect_b32 %s, 0, %s" % (S_FLAG, S_FLAG))

def k_body(b0, waits, loads, pre=None, steady=False):
    P = [8, 9, 10, 11]; Y0, Y1, Z, T, S, TMP = 12, 13, 14, 15, 16, 17
    for G in range(4):
        ld = list(loads[G])
        def nxt():
            if ld: stream_load(ld.pop(0))
        e("s_waitcnt vmcnt(%d)" % waits[G])
        for k in range(4):
            for u in range(4):
                c = "0" if k == 0 else "v%d" % P[u]
                e("v_dot2_f32_bf16 v%d, v%d, v%d, %s" % (P[u], B(b0 + 4 * G + u) + k, 4 + k, c))
        if pre and pre.get(G): pre[G]()
        e("v_add_f32_dpp v%d, v%d, v%d row_ror:8 row_mask:0xf bank_mask:0x3" % (Y0, P[0], P[0]))
        e("v_add_f32_dpp v%d, v%d, v%d row_ror:8 row_mask:0xf bank_mask:0xc" % (Y0, P[1], P[1]))
        e("v_add_f32_dpp v%d, v%d, v%d row_ror:8 row_mask:0xf bank_mask:0x3" % (Y1, P[2], P[2]))
        e("v_add_f32_dpp v%d, v%d, v%d row_ror:8 row_mask:0xf bank_mask:0xc" % (Y1, P[3], P[3]))
        nxt()
        if len(loads[G]) < 1: e("s_nop 1")
        e("v_add_f32_dpp v%d, v%d, v%d row_half_mirror row_mask:0xf bank_mask:0x5" % (Z, Y0, Y0))
        e("v_add_f32_dpp v%d, v%d, v%d row_half_mirror row_mask:0xf bank_mask:0xa" % (Z, Y1, Y1))
        nxt()
        if len(loads[G]) < 2: e("s_nop 1")
        e("v_add_f32_dpp v%d, v%d, v%d quad_perm:[1,0,3,2] row_mask:0xf bank_mask:0xf" % (Z, Z, Z))
        nxt()
        if len(loads[G]) < 3: e("s_nop 1")
        d = S if G == 0 else T
        e("v_add_f32_dpp v%d, v%d, v%d quad_perm:[2,3,0,1] row_mask:0xf bank_mask:0xf" % (d, Z, Z))
        nxt()
        assert not ld
        if G:
            e("v_cndmask_b32 v%d, v%d, v%d, s[%d:%d]" % (S, S, T, 60 + 2 * G, 61 + 2 * G))
    e("v_cvt_pk_bf16_f32 v%d, v%d, v%d" % (TMP, S, S))
    e("v_lshlrev_b32 v%d, 16, v%d" % (TMP, TMP))
    e("v_mul_f32 v%d, %s, v%d" % (TMP, SCALE, TMP))
    bf16r(TMP)
    e("s_add_u32 %s, %s, 1" % (S_IT, S_IT))
    e("v_max_f32 v3, v3, v%d" % TMP)
    if FC and steady: e("ds_read_b32 v%d, v30 offset:%d" % (V_FLAG, L_CNT + 20))
    e("ds_write_b32 v2, v%d" % TMP)
    e("v_add_u32 v2, 64, v2")
    if FC and steady:
        fc_end(str(KDL))

def v_body(x=0):
    A, ACC = 8, 20
    PB = [12, 16]
    for G in range(4):
        e("s_waitcnt lgkmcnt(0)")
        e("ds_read_b128 %s, v2 offset:%d" % (vr(PB[(G + 1) & 1]), (G + 1) * 16))
        if FC and G == 3: e("ds_read_b32 v%d, v30 offset:%d" % (V_FLAG, L_CNT + 20))
        for u in range(4):
            t = 4 * G + u
            p = PB[G & 1] + u
            for i in range(4):
                e("v_perm_b32 v%d, v%d, v%d, v%d" % (A + i, p, p, 4 + i))
            e("s_waitcnt vmcnt(%d)" % (D - 1 - x))
            e("s_nop 0")
            e("%s %s, %s, %s, %s" % (MFMA, vr(ACC), vr(A), vr(B(t)), vr(ACC)))
            stream_load((t + D) % 16)
    e("s_add_u32 %s, %s, 1" % (S_IT, S_IT))
    if FC and "nolast" not in XP:
        e("s_cmp_eq_u32 %s, %d" % (S_IT, NB))
        e("s_cbranch_scc1 L_vd")
    e("v_add_u32 v2, 64, v2")
    if FC: fc_end(str(DLT))

def streamer():
    cmt("---- streaming waves")
    e("s_lshl_b32 %s, %s, 20" % (S_T0, S_BH))
    e("s_lshl_b32 %s, %s, 19" % (S_T1, S_HALF))
    e("s_add_u32 %s, %s, %s" % (S_T0, S_T0, S_T1))
    e("s_lshl_b32 %s, %s, 10" % (S_T1, S_W))
    e("v_lshlrev_b32 v1, 4, v0")
    e("v_add_u32 v1, %s, v1" % S_T1)
    e("s_mov_b32 s%d, 0x%x" % (SRD_S + 2, NB << 16))
    e("s_mov_b32 s%d, 0x00020000" % (SRD_S + 3))
    e("s_mov_b32 %s, 0" % S_OFF)
    e("s_waitcnt lgkmcnt(0)")
    stamp(0)
    e("s_add_u32 s%d, s18, %s" % (SRD_S, S_T0))
    e("s_addc_u32 s%d, s19, 0" % (SRD_S + 1))
    e("s_add_u32 s42, s20, %s" % S_T0)
    e("s_addc_u32 s43, s21, 0")
    PRE = min(xpv("pre", 4), C0)
    for t in range(PRE):
        stream_load(t)
    e("s_barrier")
    for t in range(PRE, C0):
        stream_load(t)
    for i, m in enumerate((0x22222222, 0x44444444, 0x88888888)):
        e("s_mov_b32 s%d, 0x%x" % (62 + 2 * i, m)); e("s_mov_b32 s%d, 0x%x" % (63 + 2 * i, m))
    e("v_lshrrev_b32 v24, 4, v0")
    e("v_and_b32 v25, 15, v0")
    e("v_lshlrev_b32 v25, 4, v25")
    e("v_mul_u32_u24 v2, %d, v24" % P_ROW)
    e("s_mul_i32 %s, %s, %d" % (S_T0, S_W, P_WAVE))
    e("v_add_u32 v28, %s, v2" % S_T0)
    e("v_and_b32 v26, 3, v0")
    e("v_lshlrev_b32 v26, 4, v26")
    e("v_bfe_u32 v27, v0, 2, 1")
    e("v_lshl_add_u32 v26, v27, 3, v26")
    e("v_bfe_u32 v27, v0, 3, 1")
    e("v_lshl_add_u32 v26, v27, 2, v26")
    e("v_add_u32 v2, v28, v26")
    e("v_mov_b32 v29, v2")
    e("v_mov_b32 v3, 0xff800000")
    e("v_mov_b32 v30, 0")
    e("v_mov_b32 v%d, 1" % V_ONE)
    e("s_mov_b32 %s, 0" % S_FLAG)
    e("s_mov_b32 s68, 0")
    e("s_mov_b32 %s, 0" % S_IT)
    for t in range(C0, 48):
        e("s_waitcnt vmcnt(%d)" % (C0 - 1))
        if "t1" in XP and t in (C0, C0 + 6, C0 + 12, C0 + 24): stamp({C0: 6, C0 + 6: 7, C0 + 12: 8, C0 + 24: 9}[t])
        stream_load(t)
    stamp(1)
    lds_wait(4, "1", 31, 30)
    e("ds_read_b128 v[4:7], v25 offset:%d" % L_QB)
    e("s_waitcnt lgkmcnt(0)")
    stamp(2)
    iss = 0
    for th in range(3):
        waits, loads = [], []
        for G in range(4):
            g = 4 * th + G
            waits.append(44 - 4 * g + iss)
            n = (g + 1) * D // 12 - g * D // 12
            loads.append(list(range(iss, iss + n))); iss += n
        k_body(16 * th, waits, loads)
    assert iss == D
    def switch():
        e("s_cmp_eq_u32 %s, %d" % (S_IT, NB - 1))
        e("s_cselect_b32 s%d, s42, s%d" % (SRD_S, SRD_S))
        e("s_cselect_b32 s%d, s43, s%d" % (SRD_S + 1, SRD_S + 1))
        e("s_cselect_b32 %s, 0, %s" % (S_OFF, S_OFF))
    def loops(pfx, body):
        if not FC:
            lab(pfx + "0")
            body(0)
            e("s_cmp_lg_u32 %s, %d" % (S_IT, NB))
            e("s_cbranch_scc1 %s0" % pfx)
            return
        e("s_branch %sn" % pfx)
        for lv in (2, 1, 0):
            lab(pfx + str(lv))
            body(lv)
            if lv: e("s_branch %sc" % pfx)
        lab(pfx + "c")
        e("s_cmp_eq_u32 %s, %d" % (S_IT, NB))
        e("s_cbranch_scc1 %sd" % pfx)
        lab(pfx + "n")
        e("s_cmp_eq_u32 %s, 0" % S_FLAG)
        e("s_cbranch_scc1 %s0" % pfx)
        e("s_cmp_eq_u32 %s, 1" % S_FLAG)
        e("s_cbranch_scc1 %s1" % pfx)
        e("s_branch %s2" % pfx)
        lab(pfx + "d")
    loops("L_k", lambda lv: k_body(0, [D - 4 - XK[lv]] * 4, [[(4 * G + u + D) % 16 for u in range(4)] for G in range(4)], {(16 - D) // 4: switch}, True))
    stamp(3)
    for k in range(NB):
        e("ds_read_b32 v%d, v29 offset:%d" % (32 + k, 64 * k))
    allreduce64("max", 3, 16)
    e("s_mov_b32 %s, 0x05040100" % S_T0)
    e("s_mov_b32 %s, 0x07060302" % S_T1)
    e("s_waitcnt lgkmcnt(0)")
    for k in range(NB):
        e("v_sub_f32 v%d, v%d, v3" % (32 + k, 32 + k))
    for k in range(NB):
        e("v_mul_f32 v%d, %s, v%d" % (32 + k, LOG2E, 32 + k))
    for k in range(NB):
        e("v_exp_f32 v%d, v%d" % (32 + k, 32 + k))
    e("s_nop 0")
    e("v_add_f32 v24, v32, v33")
    for k in range(2, NB):
        e("v_add_f32 v24, v24, v%d" % (32 + k))
    for k in range(NB // 2):
        hilo_pack(32 + 2 * k, 33 + 2 * k, 16)
    for k in range(NB):
        e("ds_write_b32 v29, v%d offset:%d" % (32 + k, 64 * k))
    e("v_mov_b32 v2, v28")
    e("ds_read_b128 %s, v2" % vr(12))
    allreduce64("add", 24, 20)
    sel_pv(4, 8)
    e("v_mov_b32 v25, v24")
    e("v_mov_b32 v24, v3")
    e("s_lshl_b32 %s, %s, 3" % (S_T0, S_W))
    e("v_mov_b32 v26, %s" % S_T0)
    e("s_mov_b64 exec, 1")
    e("ds_write_b64 v26, v[24:25] offset:%d" % L_ML)
    e("s_mov_b64 exec, -1")
    lds_signal(0, 27, 30)
    for i in range(4):
        e("v_mov_b32 v%d, 0" % (20 + i))
    e("s_mov_b32 %s, 0" % S_IT)
    e("v_bfe_u32 v26, v0, 2, 2")
    e("v_lshlrev_b32 v27, 6, v26")
    e("v_and_b32 v26, 1, v0")
    e("v_lshl_add_u32 v27, v26, 5, v27")
    e("v_bfe_u32 v26, v0, 4, 1")
    e("v_lshl_add_u32 v27, v26, 4, v27")
    e("v_bfe_u32 v26, v0, 1, 1")
    e("v_lshl_add_u32 v27, v26, 3, v27")
    e("v_lshrrev_b32 v26, 5, v0")
    e("s_mul_i32 %s, %s, %d" % (S_T0, S_W, 2 * OA_ROW))
    e("s_add_u32 %s, %s, %d" % (S_T0, S_T0, L_OP))
    e("v_lshl_add_u32 v28, v26, 2, v27")
    e("v_add_u32 v28, %s, v28" % S_T0)
    stamp(4)
    if FC: e("s_mov_b32 s68, %d" % sched(6))
    loops("L_v", lambda lv: v_body(XV[lv]))
    stamp(5)
    ACC = 20
    lab("L_send")
    e("s_nop 4")
    e("v_permlane32_swap_b32 v%d, v%d" % (ACC, ACC + 2))
    e("v_permlane32_swap_b32 v%d, v%d" % (ACC + 1, ACC + 3))
    e("s_nop 0")
    e("v_add_f32 v%d, v%d, v%d" % (ACC, ACC, ACC + 2))
    e("v_add_f32 v%d, v%d, v%d" % (ACC + 1, ACC + 1, ACC + 3))
    e("v_cvt_pk_bf16_f32 v12, v%d, v%d" % (ACC, ACC + 1))
    e("ds_write_b32 v28, v12")
    e("v_lshlrev_b32 v13, 16, v12")
    e("v_and_b32 v14, 0xffff0000, v12")
    e("v_sub_f32 v13, v%d, v13" % ACC)
    e("v_sub_f32 v14, v%d, v14" % (ACC + 1))
    e("v_cvt_pk_bf16_f32 v13, v13, v14")
    e("ds_write_b32 v28, v13 offset:%d" % OA_ROW)
    e("s_waitcnt lgkmcnt(0)")
    if DRY: e("s_cbranch_scc0 L_tail")
    e("s_barrier")
    stamps_out(0)
    e("s_endpgm")

VZ = 95
V_G, V_FB, V_M10 = 91, 92, 93

def tpoll(loads, grans, sleep, ex="-1"):
    l0, l1 = newlab("tp"), newlab("tp")
    lab(l0)
    for x in loads: e(x)
    e("s_waitcnt vmcnt(0)")
    for g, t0, t1 in grans:
        e("v_xor_b32 v%d, v%d, v%d" % (g + 2, g + 2, t0))
        e("v_xor_b32 v%d, v%d, v%d" % (g + 3, g + 3, t1))
    g0 = grans[0][0]
    e("v_or_b32 v%d, v%d, v%d" % (g0 + 2, g0 + 2, g0 + 3))
    for g, _, _ in grans[1:]:
        e("v_or3_b32 v%d, v%d, v%d, v%d" % (g0 + 2, g0 + 2, g + 2, g + 3))
    e("v_cmp_ne_u32 vcc, 0, v%d" % (g0 + 2))
    e("s_cbranch_vccz %s" % l1)
    spin_guard(l1)
    e("s_mov_b64 exec, vcc")
    if sleep: e("s_sleep %d" % sleep)
    e("s_branch %s" % l0)
    lab(l1)
    e("s_mov_b64 exec, %s" % ex)

def ypoll(loads, grans, t, sleep, ex="-1"):
    l0, l1 = newlab("yp"), newlab("yp")
    lab(l0)
    for x in loads: e(x)
    e("s_waitcnt vmcnt(0)")
    first = True
    for g, tg in grans:
        for i in range(0, 4, 2):
            if first:
                e("v_xor_b32 v%d, s%d, v%d" % (t, S_TG + i, g + i))
                e("v_xor_b32 v%d, s%d, v%d" % (t + 1, S_TG + i + 1, g + i + 1))
                e("v_or_b32 v%d, v%d, v%d" % (t, t, t + 1)); first = False
            else:
                e("v_xor_b32 v%d, s%d, v%d" % (t + 1, S_TG + i, g + i))
                e("v_xor_b32 v%d, s%d, v%d" % (t + 2, S_TG + i + 1, g + i + 1))
                e("v_or3_b32 v%d, v%d, v%d, v%d" % (t, t, t + 1, t + 2))
    e("v_and_b32 v%d, 0x3ff, v%d" % (t, t))
    e("v_cmp_ne_u32 vcc, 0, v%d" % t)
    e("s_cbranch_vccz %s" % l1)
    spin_guard(l1)
    e("s_mov_b64 exec, vcc")
    if sleep: e("s_sleep %d" % sleep)
    e("s_branch %s" % l0)
    lab(l1)
    e("s_mov_b64 exec, %s" % ex)

def nonce_fetch(regs_offs):
    l0, l1 = newlab("nf"), newlab("nf")
    lab(l0)
    for d, o in regs_offs:
        e("buffer_load_dword v%d, v%d, %s, 0 offen sc1" % (d, o, srd(SRD_DBG)))
    e("s_waitcnt vmcnt(0)")
    ds = [d for d, _ in regs_offs]
    e("v_min_u32 v94, v%d, v%d" % (ds[0], ds[-1]))
    for d in ds[1:-1]:
        e("v_min_u32 v94, v94, v%d" % d)
    e("v_cmp_eq_u32 vcc, 0, v94")
    e("s_cbranch_vccz %s" % l1)
    spin_guard(l1)
    e("s_sleep 16")
    e("s_branch %s" % l0)
    lab(l1)

def head_off(dst, h):
    e("v_and_b32 v%d, 15, v%d" % (dst, h))
    e("v_lshrrev_b32 v%d, 4, v%d" % (h, h))
    e("v_lshlrev_b32 v%d, 2, v%d" % (dst, dst))
    e("v_lshl_add_u32 v%d, v%d, 7, v%d" % (dst, h, dst))

def vtags(n):
    e("v_lshrrev_b32 v%d, 10, v%d" % (n + 1, n))
    e("v_lshrrev_b32 v%d, 20, v%d" % (n + 2, n))
    e("v_not_b32 v%d, v%d" % (n + 3, n))
    e("v_alignbit_b32 v%d, v%d, v%d, 30" % (n + 3, n + 3, n))

def stags():
    e("s_mov_b32 s%d, %s" % (S_TG, S_T0))
    e("s_lshr_b32 s%d, %s, 10" % (S_TG + 1, S_T0))
    e("s_lshr_b32 s%d, %s, 20" % (S_TG + 2, S_T0))
    e("s_not_b32 s%d, %s" % (S_TG + 3, S_T0))
    e("s_lshl_b32 s%d, s%d, 2" % (S_TG + 3, S_TG + 3))
    e("s_lshr_b32 %s, %s, 30" % (S_T0, S_T0))
    e("s_or_b32 s%d, s%d, %s" % (S_TG + 3, S_TG + 3, S_T0))

def ypack(r):
    for i in range(4):
        e("v_add_u32 v%d, 0x200, v%d" % (r + i, r + i))
    for i in range(4):
        e("v_bfi_b32 v%d, v%d, s%d, v%d" % (r + i, V_M10, S_TG + i, r + i))

def red8(a):
    e("s_nop 1")
    e("v_permlane32_swap_b32 v%d, v%d" % (a, a + 1))
    e("v_permlane32_swap_b32 v%d, v%d" % (a + 2, a + 3))
    e("s_nop 1")
    e("v_add_f32 v%d, v%d, v%d" % (a, a, a + 1))
    e("v_add_f32 v%d, v%d, v%d" % (a + 2, a + 2, a + 3))
    e("s_nop 1")
    e("v_permlane16_swap_b32 v%d, v%d" % (a, a + 2))
    e("s_nop 1")
    e("v_add_f32 v%d, v%d, v%d" % (a, a, a + 2))
    e("s_nop 1")
    e("v_add_f32_dpp v%d, v%d, v%d row_ror:8 row_mask:0xf bank_mask:0xf" % (a, a, a))

def census(area, stride_lg, body, sleep):
    e("v_lshrrev_b32 v48, 1, v0")
    e("v_mul_u32_u24 v49, 5, v48")
    e("s_lshr_b32 %s, s2, 3" % S_T1)
    e("s_add_u32 %s, %s, 3" % (S_T1, S_T1))
    e("v_add_u32 v49, %s, v49" % S_T1)
    e("v_and_b32 v49, 15, v49")
    e("v_lshl_add_u32 v48, v49, 3, v48")
    e("v_lshlrev_b32 v48, 7, v48")
    e("v_and_b32 v49, 1, v0")
    e("v_lshl_add_u32 v48, v49, 6, v48")
    e("s_mov_b32 %s, 0x%x" % (S_OFF, area))
    e("s_mov_b64 exec, 0xffff")
    tpoll(["buffer_load_dwordx4 v[40:43], v48, %s, %s offen sc1" % (srd(SRD_WS), S_OFF)], [(40, 62, 63)], sleep, "-1")
    e("v_subrev_u32 v40, s4, v40")
    e("v_cvt_f32_i32 v40, v40")
    for r in (8, 4, 2, 1):
        e("s_nop 1")
        e("v_add_f32_dpp v40, v40, v40 row_ror:%d row_mask:0xf bank_mask:0xf" % r)
    e("v_mul_f32 v40, 0.0625, v40")
    e("v_cvt_i32_f32 v40, v40")
    e("s_sub_u32 s4, s4, %d" % sched(body))
    e("v_add_u32 v40, s4, v40")
    e("v_or_b32 v40, 1, v40")
    e("s_mov_b64 exec, 1")
    e("ds_write_b32 v%d, v40 offset:%d" % (VZ, L_CNT + 20))
    e("s_mov_b64 exec, -1")

def sample(rnd, body):
    area = CT_OFF + rnd * 0x4000
    e("s_and_b32 %s, s2, 127" % S_OFF)
    e("s_lshl_b32 %s, %s, 1" % (S_OFF, S_OFF))
    e("s_add_u32 %s, %s, %s" % (S_OFF, S_OFF, S_HALF))
    e("s_lshl_b32 %s, %s, 6" % (S_OFF, S_OFF))
    e("s_add_u32 %s, %s, 0x%x" % (S_OFF, S_OFF, area))
    lds_wait(12, str(4 * body), 94, VZ, 4)
    e("s_memrealtime s[4:5]")
    e("s_waitcnt lgkmcnt(0)")
    e("v_mov_b32 v60, s4")
    e("v_mov_b32 v61, s4")
    e("s_mov_b64 exec, 1")
    e("buffer_store_dwordx4 v[60:63], off, %s, %s sc1" % (srd(SRD_WS), S_OFF))
    e("s_mov_b64 exec, -1")
    e("s_sleep %d" % xpv("tsl", 48))
    census(area, 6, body, xpv("tsl", 48))

def helper():
    lab("L_helper")
    e("s_setprio 3")
    e("s_memrealtime s[4:5]")
    e("s_sub_u32 %s, %s, 4" % (S_W, S_W))
    e("s_lshl_b32 %s, %s, 1" % (S_I, S_B))
    e("s_add_u32 %s, %s, %s" % (S_I, S_I, S_HALF))
    e("v_lshrrev_b32 v24, 4, v0")
    e("v_and_b32 v25, 15, v0")
    e("s_lshl_b32 %s, %s, 6" % (S_T0, S_W))
    e("v_add_u32 v1, %s, v0" % S_T0)
    e("v_lshlrev_b32 v2, 4, v0")
    e("v_mov_b32 v%d, 0" % VZ)
    e("v_mov_b32 v%d, 0x3ff" % V_M10)
    e("s_cmp_ge_u32 %s, 2" % S_W)
    e("s_cbranch_scc1 L_h23")
    S_STR, S_COL, S_PUB, S_BS = "s68", "s69", "s70", "s71"
    e("s_and_b32 s73, s2, 7")
    e("s_lshr_b32 s75, s2, 3")
    e("s_mul_i32 %s, s73, 7" % S_T0)
    e("s_lshr_b32 %s, s75, 2" % S_T1)
    e("s_add_u32 %s, %s, %s" % (S_T0, S_T0, S_T1))
    e("s_cmp_lt_u32 s75, 28")
    e("s_cselect_b32 %s, %s, 99" % (S_C, S_T0))
    if "noffn" in XP or "noh1" in XP: e("s_mov_b32 %s, 99" % S_C)
    e("s_cmp_ge_u32 %s, 27" % S_T0)
    e("s_cselect_b32 %s, 27, 0" % S_T1)
    e("s_cselect_b32 %s, 1, 0" % S_A)
    e("s_sub_u32 %s, %s, %s" % (S_T0, S_T0, S_T1))
    e("s_lshl_b32 %s, %s, 1" % (S_T0, S_T0))
    e("s_and_b32 %s, s75, 1" % S_T1)
    e("s_add_u32 %s, %s, %s" % (S_T0, S_T0, S_T1))
    e("s_bfe_u32 %s, s75, 0x10001" % S_IT)
    e("s_lshl_b32 %s, %s, 6" % (S_COL, S_T0))
    e("s_lshl_b32 %s, %s, 9" % (S_T0, S_T0))
    e("s_mul_i32 %s, %s, 55296" % (S_PUB, S_A))
    e("s_add_u32 %s, %s, %s" % (S_PUB, S_PUB, S_T0))
    e("s_mul_i32 %s, %s, 27648" % (S_T0, S_IT))
    e("s_add_u32 %s, %s, %s" % (S_PUB, S_PUB, S_T0))
    e("s_add_u32 %s, %s, 0x%x" % (S_PUB, S_PUB, GX_OFF))
    e("s_lshl_b32 %s, %s, 2" % (S_T0, S_H))
    e("s_and_b32 %s, %s, 3" % (S_T1, S_I))
    e("s_add_u32 %s, %s, %s" % (S_T0, S_T0, S_T1))
    e("s_lshl_b32 %s, %s, 6" % (S_T1, S_T0))
    e("s_lshl_b32 s73, %s, 12" % S_H)
    e("s_lshl_b32 s75, %s, 9" % S_I)
    e("s_add_u32 s73, s73, s75")
    e("s_add_u32 s73, s73, 0x%x" % QX_OFF)
    e("s_lshr_b32 s75, %s, 2" % S_I)
    e("s_cmp_eq_u32 %s, 0" % S_W)
    e("s_cselect_b32 %s, %s, %s" % (S_COL, S_T1, S_COL))
    e("s_cselect_b32 %s, s73, %s" % (S_PUB, S_PUB))
    e("s_cselect_b32 %s, 0, %s" % (S_C, S_C))
    e("s_cselect_b32 %s, s75, %s" % (S_IT, S_IT))
    e("s_mul_i32 %s, %s, %d" % (S_STR, S_W, 8192 - 3456))
    e("s_sub_u32 %s, 8192, %s" % (S_STR, S_STR))
    e("s_mul_i32 s73, %s, %d" % (S_W, L_WF - L_WQ))
    e("s_add_u32 s75, s73, %d" % L_X0)
    e("s_add_u32 s73, s73, %d" % L_WQ)
    assert L_WF - L_WQ == L_X1 - L_X0
    e("s_mul_i32 %s, %s, 320" % (S_T0, S_IT))
    e("s_mul_i32 %s, %s, %s" % (S_T0, S_T0, S_STR))
    e("s_add_u32 %s, %s, %s" % (S_COL, S_COL, S_T0))
    e("v_lshrrev_b32 v26, 2, v0")
    e("v_mul_u32_u24 v26, %s, v26" % S_STR)
    e("v_and_b32 v27, 3, v0")
    e("v_lshl_add_u32 v26, v27, 4, v26")
    e("v_add_u32 v26, %s, v26" % S_COL)
    e("s_mul_i32 s%d, %s, 640" % (SRD_W + 2, S_STR))
    e("s_mov_b32 s%d, 0x00020000" % (SRD_W + 3))
    e("s_lshl_b32 %s, %s, 4" % (S_STR, S_STR))
    e("s_cmp_ge_u32 %s, 54" % S_C)
    e("s_cbranch_scc1 L_hb1")
    e("s_waitcnt lgkmcnt(0)")
    stamp(0)
    mk_srd(SRD_X, "s16", "s17", 5120)
    mk_srd(SRD_DBG, "s38", "s39", 256)
    e("s_cmp_lg_u32 %s, 0" % S_A)
    e("s_cselect_b32 s%d, s30, s28" % SRD_W)
    e("s_cselect_b32 s%d, s31, s29" % (SRD_W + 1))
    e("s_cmp_lg_u32 %s, 0" % S_W)
    e("s_cbranch_scc1 L_h1a")
    e("s_mov_b32 s%d, s22" % SRD_W)
    e("s_mov_b32 s%d, s23" % (SRD_W + 1))
    e("s_or_b32 s4, s4, 1")
    e("s_cmp_lg_u32 s2, 0")
    e("s_cbranch_scc1 L_h1a")
    e("v_mov_b32 v60, s4")
    e("v_lshlrev_b32 v61, 7, v0")
    e("s_mov_b64 exec, 3")
    e("buffer_store_dword v60, v61, %s, 0 offen sc1" % srd(SRD_DBG))
    e("s_mov_b64 exec, -1")
    lab("L_h1a")
    e("s_mov_b32 m0, s75")
    e("s_mov_b32 %s, 0" % S_OFF)
    for k in range(4):
        e("buffer_load_dwordx4 v2, %s, 0 offen offset:%d lds" % (srd(SRD_X), 1024 * k))
    e("s_add_u32 m0, s75, 0x1000")
    e("s_mov_b32 %s, 0x1000" % S_T1)
    e("buffer_load_dwordx4 v2, %s, %s offen lds" % (srd(SRD_X), S_T1))
    e("s_mov_b32 m0, s73")
    e("s_nop 0")
    for t in range(20):
        e("buffer_load_dwordx4 v26, %s, %s offen nt lds" % (srd(SRD_W), S_OFF))
        if t < 19:
            e("s_add_u32 m0, m0, 0x400")
            e("s_add_u32 %s, %s, %s" % (S_OFF, S_OFF, S_STR))
    e("s_barrier")
    mk_ws()
    e("v_lshrrev_b32 v28, 2, v25")
    e("v_lshlrev_b32 v28, 6, v28")
    e("v_lshl_add_u32 v28, v24, 9, v28")
    e("v_lshl_add_u32 v28, v27, 3, v28")
    e("v_add_u32 v28, s73, v28")
    e("v_mul_u32_u24 v29, 1280, v27")
    e("v_lshl_add_u32 v29, v24, 4, v29")
    e("s_mul_i32 %s, %s, 640" % (S_T0, S_IT))
    e("s_add_u32 %s, %s, s75" % (S_T0, S_T0))
    e("v_add_u32 v29, %s, v29" % S_T0)
    e("v_lshlrev_b32 v30, 7, v27")
    e("v_lshl_add_u32 v30, v24, 4, v30")
    e("v_bfe_u32 v31, v0, 2, 1")
    e("v_lshl_add_u32 v30, v31, 6, v30")
    XF, WFR, ACC = 96, [176, 192], 32
    e("s_waitcnt vmcnt(20)")
    NK = xpv("nk", 1)
    for s in range(10):
        e("ds_read_b128 %s, v29 offset:%d" % (vr(XF + 4 * s), 64 * s))
    def mm(k):
        for s2 in range(2):
            s = 2 * k + s2
            for ct in range(2):
                e("%s %s, %s, %s, %s" % (MFMA, vr(ACC + 4 * ct), vr(WFR[k & 1] + 8 * s2 + 4 * ct), vr(XF + 4 * s), "0" if s == 0 else vr(ACC + 4 * ct)))
    for k in range(5):
        e("s_waitcnt vmcnt(%d)" % (16 - 4 * k + (1 if k > NK else 0)))
        if k == NK:
            e("s_lshl_b32 s5, %s, 7" % S_W)
            e("buffer_load_dword v60, off, %s, s5 sc1" % srd(SRD_DBG))
        for s2 in range(2):
            s = 2 * k + s2
            for ct in range(2):
                r = WFR[k & 1] + 8 * s2 + 4 * ct
                e("ds_read_b64_tr_b16 %s, v28 offset:%d" % (vr(r, 2), 2048 * s + 32 * ct))
                e("ds_read_b64_tr_b16 %s, v28 offset:%d" % (vr(r + 2, 2), 2048 * s + 32 * ct + 256))
        if k:
            e("s_waitcnt lgkmcnt(8)")
            mm(k - 1)
    e("s_waitcnt lgkmcnt(0)")
    mm(4)
    lab("L_nw")
    e("s_waitcnt vmcnt(0)")
    e("v_readfirstlane_b32 %s, v60" % S_T0)
    e("s_cmp_lg_u32 %s, 0" % S_T0)
    e("s_cbranch_scc1 L_ng")
    spin_guard("L_ng")
    e("s_sleep 4")
    e("buffer_load_dword v60, off, %s, 0 sc1" % srd(SRD_DBG))
    e("s_branch L_nw")
    lab("L_ng")
    e("ds_write_b32 v%d, v60 offset:%d" % (VZ, L_CNT + 8))
    stags()
    e("s_nop 1")
    for i in range(4):
        e("v_mov_b32_dpp v%d, v%d quad_perm:[0,1,2,3] row_mask:0xf bank_mask:0x2" % (ACC + i, ACC + 4 + i))
    ypack(ACC)
    e("s_mov_b32 exec_lo, 0x00ff00ff")
    e("s_mov_b32 exec_hi, 0x00ff00ff")
    if "noqx" in XP:
        e("s_cmp_eq_u32 %s, 0" % S_W)
        e("s_cbranch_scc1 L_noqx")
    if "noh1pub" in XP:
        e("s_cmp_eq_u32 %s, 1" % S_W)
        e("s_cbranch_scc1 L_noqx")
    e("buffer_store_dwordx4 v[32:35], v30, %s, %s offen sc1" % (srd(SRD_WS), S_PUB))
    if "noqx" in XP or "noh1pub" in XP: lab("L_noqx")
    e("s_mov_b64 exec, -1")
    stamp(1)
    e("s_cmp_lg_u32 %s, 0" % S_W)
    e("s_cbranch_scc1 L_wo")
    e("s_lshl_b32 %s, %s, 5" % (S_OFF, S_H))
    e("s_add_u32 %s, %s, %s" % (S_OFF, S_OFF, S_B))
    e("s_lshl_b32 %s, %s, 7" % (S_OFF, S_OFF))
    e("s_add_u32 %s, %s, 0x%x" % (S_OFF, S_OFF, QX_OFF))
    e("v_lshrrev_b32 v48, 3, v0")
    e("v_lshlrev_b32 v48, 9, v48")
    e("v_and_b32 v3, 7, v0")
    e("v_lshl_add_u32 v48, v3, 4, v48")
    e("v_and_b32 v3, 31, v0")
    e("v_lshlrev_b32 v3, 3, v3")
    e("v_lshrrev_b32 v47, 5, v0")
    e("v_lshl_add_u32 v3, v47, 1, v3")
    if "noqx" not in XP: ypoll(["buffer_load_dwordx4 v[40:43], v48, %s, %s offen sc1" % (srd(SRD_WS), S_OFF)], [(40, 36)], 44, xpv("qsl", 0))
    else:
        for i in range(4): e("v_mov_b32 v%d, 0" % (40 + i))
    for i in range(4):
        e("v_and_b32 v%d, 0xfffffc00, v%d" % (40 + i, 40 + i))
    e("s_nop 0")
    e("v_permlane32_swap_b32 v40, v41")
    e("v_permlane32_swap_b32 v42, v43")
    e("s_nop 1")
    e("v_add_f32 v40, v40, v41")
    e("v_add_f32 v42, v42, v43")
    e("v_cvt_pk_bf16_f32 v40, v40, v42")
    e("ds_write_b16 v3, v40 offset:%d" % L_QB)
    e("ds_write_b16_d16_hi v3, v40 offset:%d" % (L_QB + 4))
    e("v_mov_b32 v40, 1")
    e("s_waitcnt lgkmcnt(0)")
    e("ds_write_b32 v%d, v40 offset:%d" % (VZ, L_CNT + 4))
    stamp(2)
    e("s_branch L_wo")

    lab("L_h23")
    e("s_cmp_eq_u32 %s, 2" % S_W)
    e("s_cbranch_scc1 L_hb1")
    for i in range(4):
        e("v_mov_b32 v%d, 0" % (44 + i))
    e("ds_write_b128 v%d, v[44:47] offset:%d" % (VZ, L_CNT))
    e("ds_write_b128 v%d, v[44:47] offset:%d" % (VZ, L_CNT + 16))
    lab("L_hb1")
    e("s_waitcnt lgkmcnt(0)")
    stamp(0)
    e("s_barrier")
    mk_ws()
    mk_srd(SRD_DBG, "s38", "s39", 256)
    e("s_cmp_eq_u32 %s, 2" % S_W)
    e("s_cbranch_scc1 L_h2")
    e("s_cmp_lg_u32 %s, 3" % S_W)
    e("s_cbranch_scc1 L_wo")
    if xpv("ypre", 0) & 12:
        if xpv("ypre", 0) & 8: lds_wait(4, "1", 94, VZ, 4)
        e("s_lshl_b32 %s, %s, 1" % (S_T0, S_BH))
        e("s_add_u32 %s, %s, %s" % (S_T0, S_T0, S_HALF))
        e("s_mul_i32 %s, %s, 2560" % (S_T0, S_T0))
        e("buffer_load_dwordx4 v[64:67], v2, %s, %s offen sc1" % (srd(SRD_WS), S_T0))
        e("buffer_load_dwordx4 v[68:71], v2, %s, %s offen offset:1024 sc1" % (srd(SRD_WS), S_T0))
        e("s_mov_b32 exec_hi, 0")
        e("buffer_load_dwordx4 v[72:75], v2, %s, %s offen offset:2048 sc1" % (srd(SRD_WS), S_T0))
        e("s_mov_b64 exec, -1")
        e("s_waitcnt vmcnt(0)")
    lds_wait(4, "1", 94, VZ, 4)
    if "vtouch" in XP:
        e("s_lshl_b32 %s, %s, 20" % (S_T0, S_BH))
        e("s_lshl_b32 %s, %s, 19" % (S_T1, S_HALF))
        e("s_add_u32 %s, %s, %s" % (S_T0, S_T0, S_T1))
        e("s_add_u32 s%d, s20, %s" % (SRD_X, S_T0))
        e("s_addc_u32 s%d, s21, 0" % (SRD_X + 1))
        e("s_mov_b32 s%d, 0x%x" % (SRD_X + 2, NB << 16))
        e("s_mov_b32 s%d, 0x00020000" % (SRD_X + 3))
        e("v_lshlrev_b32 v28, %d, v0" % xpv("vts", 13))
        e("s_mov_b64 exec, 0x%x" % ((1 << xpv("vtn", 1)) - 1))
        e("buffer_load_dword v88, v28, %s, 0 offen nt" % srd(SRD_X))
        e("s_mov_b64 exec, -1")
    if "nowarm" not in XP:
        e("s_getpc_b64 s[4:5]")
        lab("L_pc")
        e("s_sub_u32 s4, s4, L_pc-%s" % KNAME)
        e("s_subb_u32 s5, s5, 0")
        e("v_lshlrev_b32 v28, 7, v0")
        for i in range(NWARM):
            e("v_min_u32 v27, L_code_end-%s-4, v28" % KNAME)
            e("global_load_dword v89, v27, s[4:5]")
            e("v_add_u32 v28, 0x2000, v28")
    e("s_cmp_ge_u32 s2, %d" % NCONS)
    e("s_cbranch_scc1 L_h3c")
    e("s_and_b32 s5, s2, 3")
    mk_srd(SRD_X, "s16", "s17", 5120)
    mk_srd(SRD_W, "s34", "s35", 1280)
    e("v_lshlrev_b32 v3, 2, v0")
    e("s_mul_i32 %s, s5, 1280" % S_T0)
    for k in range(5):
        e("buffer_load_dword v%d, v3, %s, %s offen offset:%d" % (64 + k, srd(SRD_X), S_T0, 256 * k))
        e("buffer_load_dword v%d, v3, %s, 0 offen offset:%d" % (72 + k, srd(SRD_W), 256 * k))
    e("s_waitcnt vmcnt(0)")
    G = V_G
    e("v_mov_b32 v%d, 0" % G)
    for k in range(5):
        e("v_lshlrev_b32 v80, 16, v%d" % (64 + k))
        e("v_and_b32 v81, 0xffff0000, v%d" % (64 + k))
        e("v_lshlrev_b32 v82, 16, v%d" % (72 + k))
        e("v_and_b32 v83, 0xffff0000, v%d" % (72 + k))
        e("v_mul_f32 v80, v80, v82")
        e("v_mul_f32 v81, v81, v83")
        e("v_cvt_pk_bf16_f32 v80, v80, v81")
        e("v_lshlrev_b32 v81, 16, v80")
        e("v_and_b32 v80, 0xffff0000, v80")
        e("v_add_f32 v%d, v%d, v81" % (G, G))
        e("v_add_f32 v%d, v%d, v80" % (G, G))
    allreduce64("add", G, 80)
    bf16r(G)
    e("v_mul_f32 v%d, 0xbfb8aa3b, v%d" % (G, G))
    e("v_exp_f32 v%d, v%d" % (G, G))
    e("s_nop 0")
    e("v_add_f32 v%d, 1.0, v%d" % (G, G))
    e("v_rcp_f32 v%d, v%d" % (G, G))
    e("s_nop 0")
    bf16r(G)
    lab("L_h3c")
    if FC and CA:
        e("ds_read_b32 v62, v%d offset:%d" % (VZ, L_CNT + 8))
        e("s_waitcnt lgkmcnt(0)")
        e("v_xor_b32 v63, %s, v62" % TAGX)
        sample(0, CA)
    e("s_branch L_wo")

    lab("L_h2")
    e("s_cmp_lt_u32 s2, %d" % (NWG - NF2 if "noffn" not in XP and "noh2" not in XP else 1000))
    e("s_cbranch_scc1 L_wo")
    S_RG, S_CB = "s68", "s69"
    e("s_sub_u32 %s, 255, s2" % S_T0)
    e("s_mul_i32 %s, %s, 205" % (S_RG, S_T0))
    e("s_lshr_b32 %s, %s, 11" % (S_RG, S_RG))
    e("s_mul_i32 %s, %s, 10" % (S_T1, S_RG))
    e("s_sub_u32 %s, %s, %s" % (S_CB, S_T0, S_T1))
    e("v_lshrrev_b32 v26, 3, v0")
    e("v_mul_u32_u24 v26, 1280, v26")
    e("v_and_b32 v27, 7, v0")
    e("v_lshl_add_u32 v26, v27, 4, v26")
    e("s_mul_i32 %s, %s, %d" % (S_OFF, S_RG, 96 * 1280))
    e("s_lshl_b32 %s, %s, 7" % (S_T0, S_CB))
    e("s_add_u32 %s, %s, %s" % (S_OFF, S_OFF, S_T0))
    mk_srd(SRD_W, "s32", "s33", 1728 * 1280)
    e("v_cmp_le_u32 vcc, 24, v0")
    e("v_mov_b32 v28, 24")
    e("v_mov_b32 v29, 128")
    e("v_cndmask_b32 v28, 0, v28, vcc")
    e("v_cndmask_b32 v29, 0, v29, vcc")
    e("v_sub_u32 v28, v0, v28")
    e("v_min_u32 v28, 23, v28")
    e("v_and_b32 v31, 7, v28")
    e("v_lshl_add_u32 v29, v31, 4, v29")
    e("v_lshrrev_b32 v31, 3, v28")
    e("v_lshl_add_u32 v29, v31, 9, v29")
    e("v_mov_b32 v30, 192")
    e("v_cndmask_b32 v30, 0, v30, vcc")
    e("v_lshl_add_u32 v30, v28, 3, v30")
    e("s_mul_i32 %s, %s, 1536" % (S_IT, S_RG))
    e("s_add_u32 %s, %s, 0x%x" % (S_IT, S_IT, GX_OFF))
    e("s_add_u32 s70, %s, 27648" % S_IT)
    e("s_add_u32 s71, %s, 55296" % S_IT)
    e("s_add_u32 s73, %s, %d" % (S_IT, 55296 + 27648))
    lds_wait(4, "1", 94, VZ, 4)
    e("s_mov_b32 m0, %d" % L_WQ)
    e("s_nop 0")
    for t in range(12):
        e("buffer_load_dwordx4 v26, %s, %s offen nt lds" % (srd(SRD_W), S_OFF))
        if t < 11:
            e("s_add_u32 m0, m0, 0x400")
            e("s_add_u32 %s, %s, %d" % (S_OFF, S_OFF, 8 * 1280))
    e("ds_read_b32 v94, v%d offset:%d" % (VZ, L_CNT + 8))
    e("s_waitcnt lgkmcnt(0)")
    e("v_readfirstlane_b32 %s, v94" % S_T0)
    stags()
    e("s_mov_b32 exec_hi, 0xffff")
    e("s_mov_b64 s[4:5], exec")
    SO = [S_IT, "s70", "s71", "s73"]
    if "noh2poll" not in XP: ypoll(["buffer_load_dwordx4 %s, v29, %s, %s offen offset:%d sc1" % (vr(40 + 16 * bb + 4 * k), srd(SRD_WS), SO[k], 256 * bb) for bb in range(2) for k in range(4)],
          [(40 + 16 * bb + 4 * k, 72 + 4 * k) for bb in range(2) for k in range(4)], 31, 16, "s[4:5]")
    for r in range(40, 72):
        e("v_and_b32 v%d, 0xfffffc00, v%d" % (r, r))
    for bb in range(2):
        g = 40 + 16 * bb
        for i in range(4):
            e("v_add_f32 v%d, v%d, v%d" % (g + i, g + i, g + 4 + i))
            e("v_add_f32 v%d, v%d, v%d" % (g + 8 + i, g + 8 + i, g + 12 + i))
        for k in range(2):
            e("v_cvt_pk_bf16_f32 v%d, v%d, v%d" % (g + 4 + k, g + 2 * k, g + 2 * k + 1))
            e("v_cvt_pk_bf16_f32 v%d, v%d, v%d" % (g + 12 + k, g + 8 + 2 * k, g + 8 + 2 * k + 1))
        for k in range(2):
            e("v_lshlrev_b32 v31, 16, v%d" % (g + 4 + k))
            e("v_and_b32 v32, 0xffff0000, v%d" % (g + 4 + k))
            e("v_lshlrev_b32 v33, 16, v%d" % (g + 12 + k))
            e("v_and_b32 v34, 0xffff0000, v%d" % (g + 12 + k))
            e("v_mul_f32 v31, v31, v33")
            e("v_mul_f32 v32, v32, v34")
            e("v_cvt_pk_bf16_f32 v%d, v31, v32" % (g + k))
        e("ds_write_b64 v30, %s offset:%d" % (vr(g, 2), L_HT + 384 * bb))
    e("s_mov_b64 exec, -1")
    stamp(3)
    e("v_lshlrev_b32 v28, 10, v24")
    e("v_lshrrev_b32 v29, 2, v25")
    e("v_lshl_add_u32 v28, v29, 7, v28")
    e("v_and_b32 v29, 3, v0")
    e("v_lshl_add_u32 v28, v29, 3, v28")
    e("v_mul_u32_u24 v29, 192, v29")
    e("v_lshl_add_u32 v29, v24, 4, v29")
    e("s_waitcnt lgkmcnt(0)")
    HF, WF, AC = 96, 112, 160
    for s in range(3):
        e("ds_read_b128 %s, v29 offset:%d" % (vr(HF + 4 * s), L_HT + 64 * s))
    for s in range(3):
        for nt in range(4):
            r = WF + 16 * s + 4 * nt
            e("ds_read_b64_tr_b16 %s, v28 offset:%d" % (vr(r, 2), L_WQ + 4096 * s + 32 * nt))
            e("ds_read_b64_tr_b16 %s, v28 offset:%d" % (vr(r + 2, 2), L_WQ + 4096 * s + 32 * nt + 512))
    e("v_bfe_u32 v30, v0, 3, 1")
    e("v_lshlrev_b32 v30, 2, v30")
    e("v_and_b32 v31, 3, v0")
    e("v_add_u32 v30, v30, v31")
    e("v_lshlrev_b32 v30, 7, v30")
    e("v_bfe_u32 v31, v0, 2, 1")
    e("v_lshl_add_u32 v30, v31, 6, v30")
    e("v_lshl_add_u32 v30, v24, 4, v30")
    e("s_sub_u32 %s, 255, s2" % S_OFF)
    e("s_lshl_b32 %s, %s, 10" % (S_OFF, S_OFF))
    e("s_add_u32 %s, %s, 0x%x" % (S_OFF, S_OFF, F_OFF))
    e("s_waitcnt lgkmcnt(0)")
    for s in range(3):
        for nt in range(4):
            e("%s %s, %s, %s, %s" % (MFMA, vr(AC + 4 * nt), vr(WF + 16 * s + 4 * nt), vr(HF + 4 * s), "0" if s == 0 else vr(AC + 4 * nt)))
    e("s_nop 7")
    e("s_nop 3")
    for nt in range(1, 4):
        for i in range(4):
            e("v_mov_b32_dpp v%d, v%d row_shr:%d row_mask:0xf bank_mask:0x%x" % (AC + i, AC + 4 * nt + i, 4 * nt, 1 << nt))
    ypack(AC)
    if "noh2st" not in XP: e("buffer_store_dwordx4 %s, v30, %s, %s offen sc1" % (vr(AC), srd(SRD_WS), S_OFF))
    e("s_waitcnt vmcnt(0)")
    stamp(4)

    lab("L_wo")
    e("s_mul_i32 %s, %s, %d" % (S_T0, S_H, 128 * 1280))
    e("s_mul_i32 %s, %s, 320" % (S_T1, S_W))
    e("s_add_u32 %s, %s, %s" % (S_T0, S_T0, S_T1))
    for t5 in range(5):
        e("v_add_u32 v26, %d, v0" % (64 * t5))
        e("v_mul_u32_u24 v27, 3277, v26")
        e("v_lshrrev_b32 v27, 16, v27")
        e("v_mul_u32_u24 v28, 20, v27")
        e("v_sub_u32 v26, v26, v28")
        e("v_mul_u32_u24 v27, 1280, v27")
        e("v_lshl_add_u32 v27, v26, 4, v27")
        e("v_add_u32 v%d, %s, v27" % (80 + t5, S_T0))
    e("s_mul_i32 s68, %s, 10240" % S_W)
    e("s_add_u32 s68, s68, %d" % L_WO)
    e("v_lshrrev_b32 v26, 2, v0")
    e("v_mul_u32_u24 v26, 320, v26")
    e("v_and_b32 v27, 3, v0")
    e("v_lshl_add_u32 v26, v27, 3, v26")
    e("v_add_u32 v26, s68, v26")
    mk_srd(SRD_W, "s24", "s25", 4096 * 1280)
    e("s_mov_b32 %s, 0" % S_T1)
    lds_wait(4, "1", 94, VZ, 4)
    def trread(hc):
        for t in range(10):
            e("ds_read_b64_tr_b16 %s, v26 offset:%d" % (vr(W(4 * t + (hc >> 1)) + 2 * (hc & 1), 2), (hc & 1) * 5120 + 32 * t))
        e("s_waitcnt lgkmcnt(0)")
    assert WO_WIN <= 6
    if "nowo" not in XP:
        done = 0
        for q in range(40):
            hc, t5 = divmod(q, 5)
            e("s_add_u32 m0, s68, %d" % ((hc & 1) * 5120 + t5 * 1024))
            if q >= WO_WIN: e("s_waitcnt vmcnt(%d)" % (WO_WIN - 1))
            else: e("s_nop 0")
            if 5 * done + 4 + WO_WIN == q:
                trread(done); done += 1
            e("buffer_load_dwordx4 v%d, %s, %s offen nt lds" % (80 + t5, srd(SRD_W), S_T1))
            if t5 == 4 and q < 39: e("s_add_u32 %s, %s, %d" % (S_T1, S_T1, 16 * 1280))
        while done < 8:
            e("s_waitcnt vmcnt(%d)" % (35 - 5 * done))
            trread(done); done += 1
    e("ds_read_b32 v94, v%d offset:%d" % (VZ, L_CNT + 8))
    e("v_and_b32 v26, 3, v0")
    e("v_bfe_u32 v27, v0, 2, 1")
    e("v_lshl_add_u32 v26, v26, 1, v27")
    e("v_mul_u32_u24 v9, %d, v26" % OA_ROW)
    e("v_lshl_add_u32 v9, v24, 4, v9")
    e("s_mul_i32 %s, %s, 640" % (S_T0, S_W))
    e("v_lshlrev_b32 v10, 2, v0")
    e("v_add_u32 v10, %s, v10" % S_T0)
    e("s_waitcnt lgkmcnt(0)")
    e("v_readfirstlane_b32 %s, v94" % S_T0)
    e("v_mov_b32 v62, v94")
    e("v_xor_b32 v63, %s, v94" % TAGX)
    stags()
    e("v_and_b32 v26, 3, v0")
    e("v_mov_b32 v11, s%d" % S_TG)
    for i in range(1, 4):
        e("v_mov_b32 v27, s%d" % (S_TG + i))
        e("v_cmp_eq_u32 vcc, %d, v26" % i)
        e("s_nop 1")
        e("v_cndmask_b32 v11, v11, v27, vcc")
    e("s_lshl_b32 %s, %s, 1" % (S_IT, S_BH))
    e("s_add_u32 %s, %s, %s" % (S_IT, S_IT, S_HALF))
    e("s_mul_i32 %s, %s, 2560" % (S_IT, S_IT))
    e("s_and_b32 %s, s2, 3" % S_C)
    e("s_lshl_b32 %s, %s, 2" % (S_C, S_C))
    e("s_add_u32 %s, %s, %s" % (S_C, S_C, S_W))
    e("s_mul_i32 %s, %s, %d" % (S_C, S_C, 16 * 2560))
    e("s_lshr_b32 %s, s2, 2" % S_T1)
    e("s_lshl_b32 %s, %s, 7" % (S_T1, S_T1))
    e("s_add_u32 %s, %s, %s" % (S_C, S_C, S_T1))
    e("s_add_u32 %s, %s, %d" % (S_A, S_C, 8 * 2560))
    e("v_and_b32 v86, 7, v0")
    e("v_lshlrev_b32 v86, 4, v86")
    e("v_bfe_u32 v87, v0, 4, 1")
    e("v_lshl_add_u32 v86, v87, 3, v86")
    e("v_lshrrev_b32 v87, 5, v0")
    e("v_lshl_add_u32 v86, v87, 2, v86")
    e("v_lshrrev_b32 v87, 3, v0")
    e("v_mul_u32_u24 v87, 2560, v87")
    e("v_and_b32 v28, 7, v0")
    e("v_lshl_add_u32 v87, v28, 4, v87")
    e("s_waitcnt vmcnt(0)")
    stamp(5)
    e("s_cmp_ge_u32 s2, %d" % NCONS)
    e("s_cbranch_scc1 L_nc")
    e("s_cmp_lg_u32 %s, 3" % S_W)
    e("s_cbranch_scc1 L_nc")
    e("s_lshr_b32 %s, s2, 3" % S_T1)
    e("v_lshrrev_b32 v30, 3, v0")
    e("v_and_b32 v29, 7, v0")
    e("v_lshlrev_b32 v29, 4, v29")
    for k in range(3):
        e("v_add_u32 v31, %d, v30" % (8 * k))
        if k == 2: e("v_min_u32 v31, 17, v31")
        e("v_mul_u32_u24 v31, 10240, v31")
        e("v_add_u32 v%d, v31, v29" % (36 + k))
    e("s_lshl_b32 %s, s2, 7" % S_OFF)
    e("s_add_u32 %s, %s, 0x%x" % (S_OFF, S_OFF, F_OFF))
    lds_wait(0, "1", 94, VZ, 16)
    if "noffn" not in XP and "noh3poll" not in XP: ypoll(["buffer_load_dwordx4 %s, v%d, %s, %s offen sc1" % (vr(40 + 4 * k), 36 + k, srd(SRD_WS), S_OFF) for k in range(3)],
          [(40, 64), (44, 68), (48, 72)], 52, 32)
    e("v_cmp_gt_u32 vcc, 16, v0")
    for i in range(4):
        e("v_add_f32 v%d, v%d, v%d" % (40 + i, 40 + i, 44 + i))
    for i in range(4):
        e("v_cndmask_b32 v%d, 0, v%d, vcc" % (48 + i, 48 + i))
    for i in range(4):
        e("v_add_f32 v%d, v%d, v%d" % (40 + i, 40 + i, 48 + i))
    red8(40)
    e("ds_write_b32 v86, v40 offset:%d" % (L_R + 512))
    e("v_lshlrev_b32 v30, 2, v0")
    e("v_and_b32 v30, 127, v30")
    e("v_sub_f32 v31, 1.0, v%d" % V_G)
    bf16r(31)
    e("s_waitcnt lgkmcnt(0)")
    e("ds_read_b32 v%d, v30 offset:%d" % (V_FB, L_R + 512))
    e("s_waitcnt lgkmcnt(0)")
    bf16r(V_FB)
    e("v_mul_f32 v%d, v31, v%d" % (V_FB, V_FB))
    bf16r(V_FB)
    lab("L_nc")
    if FC and CC:
        e("s_cmp_lg_u32 %s, 1" % S_W)
        e("s_cbranch_scc1 L_nctl")
        for i, c in enumerate(CC): sample(1 + i, c)
        lab("L_nctl")
    e("s_cmp_lg_u32 %s, 0" % S_W)
    e("s_cbranch_scc1 L_h9")
    e("v_and_b32 v12, 3, v0")
    e("v_lshlrev_b32 v13, 2, v12")
    e("v_lshlrev_b32 v12, 3, v12")
    e("s_and_b32 %s, s2, 127" % S_OFF)
    e("s_lshl_b32 %s, %s, 7" % (S_OFF, S_OFF))
    e("s_add_u32 %s, %s, 0x%x" % (S_OFF, S_OFF, RC_OFF))
    e("s_lshl_b32 %s, %s, 6" % (S_T1, S_HALF))
    e("s_add_u32 s68, %s, %s" % (S_OFF, S_T1))
    e("s_xor_b32 s69, s68, 64")
    lds_wait(0, "4", 94, VZ, 8 if not FC else 4)
    if FC: e("s_memrealtime s[4:5]")
    e("ds_read_b64 v[14:15], v12 offset:%d" % L_ML)
    e("s_waitcnt lgkmcnt(0)")
    e("v_mov_b32 v60, v14")
    allreduce4("max", 60)
    e("v_sub_f32 v16, v14, v60")
    e("v_mul_f32 v16, %s, v16" % LOG2E)
    e("v_exp_f32 v16, v16")
    e("s_nop 0")
    e("v_mul_f32 v61, v16, v15")
    allreduce4("add", 61)
    if FC:
        e("v_mov_b32 v44, v60")
        e("v_mov_b32 v45, v61")
        e("v_mov_b32 v46, v62")
        e("v_mov_b32 v47, v63")
        e("s_mov_b64 exec, 2")
        e("v_mov_b32 v44, s4")
        e("s_mov_b64 exec, 3")
        e("buffer_store_dwordx4 v[44:47], v2, %s, s68 offen sc1" % srd(SRD_WS))
    else:
        e("s_mov_b64 exec, 1")
        if "nopair" not in XP: e("buffer_store_dwordx4 v[60:63], off, %s, s68 sc1" % srd(SRD_WS))
    e("s_mov_b64 exec, -1")
    stamp(6)
    if "nopair" not in XP: tpoll(["buffer_load_dwordx4 v[40:43], off, %s, s69 sc1" % srd(SRD_WS)], [(40, 62, 63)], xpv("rsl", 32))
    e("v_max_f32 v17, v60, v40")
    e("v_sub_f32 v60, v60, v17")
    e("v_sub_f32 v40, v40, v17")
    e("v_sub_f32 v14, v14, v17")
    e("v_mul_f32 v60, %s, v60" % LOG2E)
    e("v_mul_f32 v40, %s, v40" % LOG2E)
    e("v_mul_f32 v14, %s, v14" % LOG2E)
    e("v_exp_f32 v60, v60")
    e("v_exp_f32 v40, v40")
    e("v_exp_f32 v14, v14")
    e("v_mul_f32 v61, v60, v61")
    e("v_fmac_f32 v61, v40, v41")
    e("v_rcp_f32 v61, v61")
    e("s_nop 0")
    e("v_mul_f32 v14, v14, v61")
    e("ds_write_b32 v13, v14 offset:%d" % L_SC)
    if FC: census(RC_OFF + 16, 6, 5, xpv("tsl", 48))
    e("s_waitcnt lgkmcnt(0)")
    lab("L_h9")
    stamp(7)
    e("s_lshl_b32 %s, %s, 7" % (S_T0, S_W))
    e("v_add_u32 v86, %s, v86" % S_T0)
    YPRE = xpv("ypre", 0)
    if YPRE & 1:
        e("s_cmp_ge_u32 s2, %d" % NCONS)
        e("s_cbranch_scc1 L_ypre")
        PP = {0: "sc1", 1: "", 2: "nt", 3: "sc0", 4: "sc1 nt"}[xpv("ypp", 0)]
        if xpv("ypm", 0) == 1:
            e("s_mov_b32 exec_lo, 0x01010101"); e("s_mov_b32 exec_hi, 0x01010101")
        if xpv("ypm", 0) == 2:
            e("s_mov_b32 exec_lo, 0xffff"); e("s_mov_b32 exec_hi, 0")
        e("buffer_load_dwordx4 v[32:35], v87, %s, %s offen %s" % (srd(SRD_WS), S_C, PP))
        e("buffer_load_dwordx4 v[36:39], v87, %s, %s offen %s" % (srd(SRD_WS), S_A, PP))
        e("s_mov_b64 exec, -1")
        e("s_waitcnt vmcnt(0)")
        lab("L_ypre")
    if YPRE & 2:
        e("v_xor_b32 v32, 0x3ff, v11")
        e("buffer_store_dword v32, v10, %s, %s offen sc1" % (srd(SRD_WS), S_IT))
        e("buffer_store_dword v32, v10, %s, %s offen offset:256 sc1" % (srd(SRD_WS), S_IT))
        e("s_mov_b32 exec_hi, 0")
        e("buffer_store_dword v32, v10, %s, %s offen offset:512 sc1" % (srd(SRD_WS), S_IT))
        e("s_mov_b64 exec, -1")
        e("s_waitcnt vmcnt(0)")
    if DRY:
        e("s_mul_i32 s68, %s, 10240" % S_W)
        e("s_add_u32 s68, s68, %d" % L_WO)
        e("v_lshlrev_b32 v28, 2, v0")
        e("v_add_u32 v28, s68, v28")
        e("s_mov_b32 s73, 1")
        e("s_mov_b32 s72, %d" % SPIN_MAX)
        e("s_cmp_eq_u32 s73, 0")
        e("s_branch L_send")
        lab("L_tail")
        e("s_cmp_lg_u32 s73, 0")
        e("s_cbranch_scc1 L_nb")
    e("s_barrier")
    if DRY: lab("L_nb")
    AF, DT, SC = 12, 32, 72
    POL = {0: "sc1", 1: "sc0 sc1", 2: "sc1 nt", 3: "sc0 sc1 nt"}
    YST, YLD = POL[xpv("yst", 0)], POL[xpv("yld", 0)]
    for s4 in range(4):
        e("ds_read_b128 %s, v9 offset:%d" % (vr(AF + 4 * s4), L_OP + 64 * s4))
    e("ds_read_b128 %s, v%d offset:%d" % (vr(SC), VZ, L_SC))
    YW = xpv("yw", -1000)
    if YW > -1000: e("ds_read_b32 v76, v%d offset:%d" % (VZ, L_CNT + 20))
    ops = []
    pos = [0]
    def em(x): e(x); pos[0] += 1
    def drain(n):
        k = 0
        while ops and k < n:
            x, rdy = ops[0]
            r = rdy() if callable(rdy) else rdy
            if r > pos[0]: break
            ops.pop(0); em(x); k += 1
            mark[x] = pos[0]
    mark = {}
    def after(x, d): return lambda: mark[x] + d
    def ystore(r, off, half):
        a = "v_add_u32 v%d, 0x200, v%d" % (r, r)
        return a
    last = {}
    for t in range(10):
        d = DT + 4 * t
        for s4 in range(4):
            if t == 0: e("s_waitcnt lgkmcnt(%d)" % (4 - s4 + (YW > -1000)))
            if t == 2 and s4 == 0: e("s_waitcnt lgkmcnt(0)")
            em("%s %s, %s, %s, %s" % (MFMA, vr(d), vr(AF + 4 * s4), vr(W(4 * t + s4)), "0" if s4 == 0 else vr(d)))
            rdy = pos[0] + 8
            drain(3)
        ops.append(("v_mul_f32 v%d, v%d, v%d" % (d, SC, d), rdy))
        for i in range(1, 4):
            x = "v_fmac_f32 v%d, v%d, v%d" % (d, SC + i, d + i)
            ops.append((x, rdy))
        last[t] = x
        if t & 1:
            a, b = d - 4, d
            x = "v_permlane16_swap_b32 v%d, v%d" % (a, b)
            ops.append((x, after(last[t], 2)))
            y = "v_add_f32 v%d, v%d, v%d" % (a, a, b)
            ops.append((y, after(x, 1)))
            last[t] = y
            fin = None
            if t & 3 == 3:
                x = "v_permlane32_swap_b32 v%d, v%d" % (d - 12, d - 4)
                ops.append((x, after(y, 2)))
                fin = (d - 12, x, 1)
            elif t == 9:
                fin = (a, y, 0)
            if fin:
                r, x, dd = fin
                y = "v_add_u32 v%d, 0x200, v%d" % (r, r)
                ops.append((y, after(x, dd)))
                z = "v_bfi_b32 v%d, v%d, v11, v%d" % (r, V_M10, r)
                ops.append((z, 0))
                if t == 9: ops.append(("s_mov_b32 exec_hi, 0", 0))
                if DRY: ops.append(("s_cbranch_scc1 L_ns%d" % t, 0))
                ops.append(("buffer_store_dword v%d, v10, %s, %s offen offset:%d %s%s" % (r, srd(SRD_WS), S_IT, 256 * (t >> 2), YST, "\nL_ns%d:" % t if DRY else ""), 0))
    while ops:
        n = len(ops)
        drain(100)
        if len(ops) == n:
            x, rdy = ops[0]
            r = rdy() if callable(rdy) else rdy
            e("s_nop %d" % (r - pos[0] - 1)); pos[0] = r
    e("s_mov_b64 exec, -1")
    stamp(8)
    e("s_cmp_ge_u32 s2, %d" % NCONS)
    e("s_cbranch_scc1 L_hend")
    NS = xpv("ns", 3)
    if YW > -1000:
        e("v_readfirstlane_b32 s70, v76")
        e("s_cmp_eq_u32 s70, 0")
        e("s_cbranch_scc1 L_ywd")
        e("s_add_u32 s70, s70, %d" % (sched(13) + YW))
        lab("L_yw")
        e("s_memrealtime s[4:5]")
        e("s_waitcnt lgkmcnt(0)")
        e("s_sub_u32 s4, s70, s4")
        e("s_cmp_le_i32 s4, 0")
        e("s_cbranch_scc1 L_ywd")
        spin_guard("L_ywd")
        e("s_sleep 1")
        e("s_branch L_yw")
        lab("L_ywd")
    if NS == 0:
        ypoll(["buffer_load_dwordx4 v[12:15], v87, %s, %s offen sc1" % (srd(SRD_WS), S_C),
               "buffer_load_dwordx4 v[16:19], v87, %s, %s offen sc1" % (srd(SRD_WS), S_A)], [(12, 76), (16, 80)], 20, xpv("ysl", 0))
        for i in range(4):
            e("v_add_f32 v%d, v%d, v%d" % (12 + i, 12 + i, 16 + i))
    else:
        def pl(k):
            e("buffer_load_dwordx4 %s, v87, %s, %s offen %s" % (vr(32 + 8 * k), srd(SRD_WS), S_C, YLD))
            e("buffer_load_dwordx4 %s, v87, %s, %s offen %s" % (vr(36 + 8 * k), srd(SRD_WS), S_A, YLD))
        if DRY:
            e("s_cmp_lg_u32 s73, 0")
            e("s_cselect_b64 exec, 1, -1")
        for k in range(NS):
            pl(k)
            if k < NS - 1: e("s_sleep %d" % xpv("yg", 6))
        lab("L_yp")
        for k in range(NS):
            g = 32 + 8 * k
            e("s_waitcnt vmcnt(%d)" % (2 * (NS - 1)))
            e("v_xor_b32 v20, s%d, v%d" % (S_TG, g))
            e("v_xor_b32 v21, s%d, v%d" % (S_TG + 1, g + 1))
            e("v_or_b32 v20, v20, v21")
            for i in range(2, 8, 2):
                e("v_xor_b32 v21, s%d, v%d" % (S_TG + (i & 3), g + i))
                e("v_xor_b32 v22, s%d, v%d" % (S_TG + (i & 3) + 1, g + i + 1))
                e("v_or3_b32 v20, v20, v21, v22")
            e("v_and_b32 v20, 0x3ff, v20")
            e("v_cmp_ne_u32 vcc, 0, v20")
            e("s_andn2_b64 exec, exec, vcc")
            for i in range(4):
                e("v_add_f32 v%d, v%d, v%d" % (12 + i, g + i, g + 4 + i))
            e("s_mov_b64 exec, vcc")
            e("s_cbranch_execz L_ypd")
            pl(k)
        spin_guard("L_ypd")
        e("s_branch L_yp")
        lab("L_ypd")
        e("s_mov_b64 exec, -1")
    red8(12)
    e("ds_write_b32 v86, v12 offset:%d" % L_R)
    e("v_lshlrev_b32 v12, 2, v0")
    e("s_waitcnt lgkmcnt(0)")
    if DRY:
        e("s_cmp_lg_u32 s73, 0")
        e("s_cbranch_scc1 L_nb2")
    e("s_barrier")
    if DRY: lab("L_nb2")
    e("s_cmp_lg_u32 %s, 3" % S_W)
    e("s_cbranch_scc1 L_hend")
    e("s_mov_b32 exec_hi, 0")
    for w in range(4):
        e("ds_read_b32 v%d, v12 offset:%d" % (24 + w, L_R + w * 128))
    mk_srd(SRD_X, "s36", "s37", 5120)
    e("s_and_b32 s5, s2, 3")
    e("s_mul_i32 %s, s5, 1280" % S_T0)
    e("s_lshr_b32 %s, s2, 2" % S_T1)
    e("s_lshl_b32 %s, %s, 6" % (S_T1, S_T1))
    e("s_add_u32 %s, %s, %s" % (S_T0, S_T0, S_T1))
    e("v_lshlrev_b32 v12, 1, v0")
    if DRY: e("s_cmp_lg_u32 s73, 0")
    e("s_waitcnt lgkmcnt(0)")
    e("v_add_f32 v24, v24, v25"); e("v_add_f32 v26, v26, v27")
    e("v_add_f32 v24, v24, v26")
    bf16r(24)
    e("v_mul_f32 v24, v%d, v24" % V_G)
    bf16r(24)
    e("v_add_f32 v24, v24, v%d" % V_FB)
    e("v_cvt_pk_bf16_f32 v24, v24, v24")
    if DRY: e("s_cbranch_scc1 L_hend")
    e("buffer_store_short v24, v12, %s, %s offen" % (srd(SRD_X), S_T0))
    lab("L_hend")
    if DRY:
        e("s_cmp_eq_u32 s73, 0")
        e("s_cbranch_scc1 L_hfin")
        e("s_mov_b32 s73, 0")
        e("s_mov_b32 s72, 0")
        e("s_mov_b64 exec, -1")
        e("s_branch L_tail")
        lab("L_hfin")
    stamp(9)
    stamps_out(4)


def main():
    ref = open("cdna_kernels/%s.s.ref" % NAME).read().split("\n")
    head = []
    for ln in ref:
        if ln.startswith("; @launch"):
            break
        head.append(ln)
    out = head + ["; @launch grid=(%d,1,1) block=(512,1,1) lds=%d" % (NWG, LDS_BYTES)]
    out += ['.amdgcn_target "amdgcn-amd-amdhsa--gfx950"', ".text", ".globl " + KNAME, ".p2align 8",
            ".type %s,@function" % KNAME, KNAME + ":"]
    e("s_cmp_ge_u32 s2, %d" % NWG)
    e("s_cbranch_scc1 L_end")
    if TS and "t00" in XP:
        e("s_memrealtime s[98:99]")
        e("s_waitcnt lgkmcnt(0)")
    e("s_load_dwordx16 s[16:31], s[0:1], 0")
    e("s_load_dwordx8 s[32:39], s[0:1], 64")
    e("s_load_dwordx2 s[40:41], s[0:1], 96")
    e("v_lshrrev_b32 v1, 6, v0")
    e("v_and_b32 v0, 63, v0")
    e("s_mov_b32 s72, 0")
    e("v_readfirstlane_b32 %s, v1" % S_W)
    e("s_and_b32 s4, s2, 7")
    e("s_lshr_b32 s5, s2, 3")
    e("s_and_b32 %s, s5, 3" % S_H)
    e("s_lshl_b32 %s, %s, 3" % (S_H, S_H))
    e("s_add_u32 %s, %s, s4" % (S_H, S_H))
    e("s_lshr_b32 %s, s5, 2" % S_B)
    e("s_and_b32 %s, %s, 3" % (S_B, S_B))
    e("s_lshr_b32 %s, s5, 4" % S_HALF)
    e("s_lshl_b32 %s, %s, 5" % (S_BH, S_B))
    e("s_add_u32 %s, %s, %s" % (S_BH, S_BH, S_H))
    if TS:
        for i in range(NSTAMP): e("s_mov_b32 s%d, 0" % (76 + 2 * i))
    e("s_cmp_ge_u32 %s, 4" % S_W)
    e("s_cbranch_scc1 L_helper")
    if TS and "t00" in XP: e("s_mov_b32 s88, s98")
    streamer()
    helper()
    lab("L_end")
    e("s_endpgm")
    lab("L_code_end")
    out += L
    out += ['.section .rodata,"a"', ".p2align 6", ".amdhsa_kernel " + KNAME,
            "  .amdhsa_next_free_vgpr 256", "  .amdhsa_next_free_sgpr %d" % (100 if TS else 80), "  .amdhsa_accum_offset 256",
            "  .amdhsa_group_segment_fixed_size 0", "  .amdhsa_kernarg_size 104",
            "  .amdhsa_user_sgpr_count 2", "  .amdhsa_user_sgpr_kernarg_segment_ptr 1",
            "  .amdhsa_system_sgpr_workgroup_id_x 1", "  .amdhsa_float_denorm_mode_32 3",
            ".end_amdhsa_kernel", ""]
    open(OUT, "w").write("\n".join(out))

main()
```

```python
import sys

NAME = "gated_mix__mha_block_cached__glu_gated_bilinear__decode"
KNAME = NAME + "_kernel"
TS = "--ts" in sys.argv
XP = [a[2:] for a in sys.argv if a.startswith("--")]
OUT = [a for a in sys.argv[1:] if not a.startswith("--")]
OUT = OUT[0] if OUT else "cdna_kernels/%s.s" % NAME
def xpv(name, default):
    for a in XP:
        if a.startswith(name + "="): return int(a.split("=")[1])
    return default

NWG, NCONS, NF2 = 256, 80, 180
NWARM = xpv("nwarm", 5)
Y_OFF = 0
F_OFF = 0xA0000
QX_OFF = 0xD0000
GX_OFF = 0xF0000
RC_OFF = 0x10C000
CT_OFF = 0x110000
WS_USED = 0x130000
WS_BASE = xpv("wsmb", 0) << 20
DBG_WS = 8 << 20
WS_REC = (WS_USED if not TS else (64 << 20))
D = xpv("d", 8)
C0 = xpv("c0", 12)
WO_WIN = xpv("wowin", 5)
NB = 8
FC = "nofc" not in XP
XK = [0, xpv("xk1", 1), xpv("xk2", 2)]
XV = [0, xpv("xv1", 2), xpv("xv2", 4)]
KDL, DLT = xpv("kdl", 235), xpv("dlt", 225)
TH1, TH2 = xpv("th1", 0), xpv("th2", 60)
CA = xpv("ca", 1)
CC = [7, 9]
for a in XP:
    if a.startswith("cc="): CC = [int(x) for x in a[3:].split(",") if int(x)]
def sched(n): return (min(n, 5) - 1) * KDL + max(n - 5, 0) * DLT
V_ONE, V_FLAG, S_FLAG = 40, 41, "s69"
DRY = "dry" in XP and FC
assert D % 4 == 0 and 4 <= D <= 16

P_ROW = 64 * NB + 16
P_WAVE = 4 * P_ROW
L_QB = 8448
L_OP = 8704
OA_ROW = 272
L_ML = 10880
L_CNT = 10912
L_SC = 10944
L_R = 11008
L_HT = 11904
L_WQ = 12800
L_X0 = 33280
L_WF = 38400
L_X1 = 58880
L_WO = 64000
NBUF = xpv("nbuf", 4)
L_SY = 11648
LDS_BYTES = L_WO + 20480 * NBUF
assert 4 * P_WAVE <= L_QB

L = []
def e(s): L.append("    " + s)
def lab(s): L.append(s + ":")
def cmt(s): L.append("    ; " + s)
def vr(a, n=4): return "v[%d:%d]" % (a, a + n - 1)

S_W, S_H, S_B, S_HALF, S_BH = "s3", "s6", "s7", "s8", "s9"
S_OFF, S_IT, S_T0, S_T1, S_A = "s10", "s11", "s12", "s13", "s14"
S_C, S_I = "s15", "s74"
SRD_S, SRD_W, SRD_WS, SRD_DBG, SRD_X = 44, 48, 52, 56, 60
S_TG = 64
S_P = 68
def srd(n): return "s[%d:%d]" % (n, n + 3)
def mk_srd(n, lo, hi, nrec):
    e("s_mov_b32 s%d, %s" % (n, lo))
    e("s_mov_b32 s%d, %s" % (n + 1, hi))
    e("s_mov_b32 s%d, 0x%x" % (n + 2, nrec))
    e("s_mov_b32 s%d, 0x00020000" % (n + 3))
def mk_ws():
    if WS_BASE:
        e("s_add_u32 s%d, s40, 0x%x" % (SRD_WS, WS_BASE))
        e("s_addc_u32 s%d, s41, 0" % (SRD_WS + 1))
        e("s_mov_b32 s%d, 0x%x" % (SRD_WS + 2, WS_USED))
        e("s_mov_b32 s%d, 0x00020000" % (SRD_WS + 3))
    else:
        mk_srd(SRD_WS, "s40", "s41", WS_USED)

BUF = 64
WREG = 96
def B(i): return BUF + 4 * i
def W(i): return WREG + 4 * i

LOG2E = "0x3fb8aa3b"
SCALE = "0x3db504f3"
MFMA = "v_mfma_f32_16x16x32_bf16"
TAGX = "0x9e3779b9"

def sel_pv(dst, t):
    a, b, c = t, t + 1, t + 2
    e("v_mov_b32 v%d, 0x100" % a)
    e("v_mov_b32 v%d, 0x302" % b)
    e("v_and_b32 v%d, 8, v0" % c)
    e("v_cmp_ne_u32 vcc, 0, v%d" % c)
    e("s_nop 1")
    e("v_cndmask_b32 v%d, v%d, v%d, vcc" % (a, a, b))
    e("v_or_b32 v%d, 0x0c0c0000, v%d" % (b, a))
    e("v_lshlrev_b32 v%d, 16, v%d" % (a, a))
    e("v_or_b32 v%d, 0x0c0c, v%d" % (a, a))
    e("v_and_b32 v%d, 1, v0" % c)
    e("v_cmp_ne_u32 vcc, 0, v%d" % c)
    e("s_nop 1")
    e("v_cndmask_b32 v%d, v%d, v%d, vcc" % (a, b, a))
    e("v_mov_b32 v%d, 0x0c0c0c0c" % b)
    e("v_bfe_u32 v%d, v0, 1, 2" % c)
    for i in range(4):
        e("v_cmp_eq_u32 vcc, %d, v%d" % (i, c))
        e("s_nop 1")
        e("v_cndmask_b32 v%d, v%d, v%d, vcc" % (dst + i, b, a))

def allreduce64(op, v, t):
    for r in (8, 4, 2, 1):
        e("s_nop 1")
        e("v_%s_f32_dpp v%d, v%d, v%d row_ror:%d row_mask:0xf bank_mask:0xf" % (op, v, v, v, r))
    for sw in ("16", "32"):
        e("v_mov_b32 v%d, v%d" % (t, v))
        e("s_nop 1")
        e("v_permlane%s_swap_b32 v%d, v%d" % (sw, v, t))
        e("s_nop 1")
        e("v_%s_f32 v%d, v%d, v%d" % (op, v, v, t))

def allreduce4(op, v):
    for m in ("quad_perm:[1,0,3,2]", "quad_perm:[2,3,0,1]"):
        e("s_nop 1")
        e("v_%s_f32_dpp v%d, v%d, v%d %s row_mask:0xf bank_mask:0xf" % (op, v, v, v, m))

def bf16r(v):
    e("v_cvt_pk_bf16_f32 v%d, v%d, v%d" % (v, v, v))
    e("v_lshlrev_b32 v%d, 16, v%d" % (v, v))

def hilo_pack(a, b, t):
    e("v_cvt_pk_bf16_f32 v%d, v%d, v%d" % (t, a, b))
    e("v_lshlrev_b32 v%d, 16, v%d" % (t + 1, t))
    e("v_and_b32 v%d, 0xffff0000, v%d" % (t + 2, t))
    e("v_sub_f32 v%d, v%d, v%d" % (t + 1, a, t + 1))
    e("v_sub_f32 v%d, v%d, v%d" % (t + 2, b, t + 2))
    e("v_cvt_pk_bf16_f32 v%d, v%d, v%d" % (t + 1, t + 1, t + 2))
    e("v_perm_b32 v%d, v%d, v%d, %s" % (a, t + 1, t, S_T0))
    e("v_perm_b32 v%d, v%d, v%d, %s" % (b, t + 1, t, S_T1))

def stream_load(t):
    e("buffer_load_dwordx4 %s, v1, %s, %s offen nt" % (vr(B(t)), srd(SRD_S), S_OFF))
    e("s_add_u32 %s, %s, 0x1000" % (S_OFF, S_OFF))

NSTAMP = 10
def stamp(i):
    if not TS: return
    e("s_memrealtime s[%d:%d]" % (76 + 2 * i, 77 + 2 * i))
    e("s_waitcnt lgkmcnt(0)")

def stamps_out(w8off):
    if not TS: return
    e("s_mov_b64 exec, 1")
    mk_srd(SRD_WS, "s40", "s41", 64 << 20)
    e("s_lshl_b32 s12, s2, 3")
    e("s_add_u32 s12, s12, %s" % S_W)
    e("s_add_u32 s12, s12, %d" % w8off)
    e("s_lshl_b32 s12, s12, 6")
    e("s_add_u32 s12, s12, 0x%x" % DBG_WS)
    for i in range(NSTAMP):
        e("v_mov_b32 v5, s%d" % (76 + 2 * i))
        e("buffer_store_dword v5, off, %s, s12 offset:%d" % (srd(SRD_WS), 4 * i))
    e("s_getreg_b32 s13, hwreg(HW_REG_XCC_ID)")
    e("v_mov_b32 v5, s13")
    e("buffer_store_dword v5, off, %s, s12 offset:56" % srd(SRD_WS))
    e("s_getreg_b32 s13, hwreg(HW_REG_HW_ID)")
    e("v_mov_b32 v5, s13")
    e("buffer_store_dword v5, off, %s, s12 offset:60" % srd(SRD_WS))

SPIN_MAX = 400000
def spin_guard(exit_lbl):
    e("s_add_u32 s72, s72, 1")
    e("s_cmp_gt_u32 s72, %d" % SPIN_MAX)
    e("s_cbranch_scc1 %s" % exit_lbl)

NLAB = [0]
def newlab(p):
    NLAB[0] += 1
    return "L_%s%d" % (p, NLAB[0])

def lds_wait(off, target, vt, va, sleep=1):
    l0, l1 = newlab("lw"), newlab("lw")
    lab(l0)
    e("ds_read_b32 v%d, v%d offset:%d" % (vt, va, L_CNT + off))
    e("s_waitcnt lgkmcnt(0)")
    e("v_readfirstlane_b32 %s, v%d" % (S_T0, vt))
    e("s_cmp_ge_u32 %s, %s" % (S_T0, target))
    e("s_cbranch_scc1 %s" % l1)
    spin_guard(l1)
    e("s_sleep %d" % sleep)
    e("s_branch %s" % l0)
    lab(l1)

def lds_signal(off, vt, va):
    e("v_mov_b32 v%d, 1" % vt)
    e("s_mov_b64 exec, 1")
    e("ds_add_u32 v%d, v%d offset:%d" % (va, vt, L_CNT + off))
    e("s_mov_b64 exec, -1")

def fc_end(dl):
    e("s_memrealtime s[70:71]")
    e("s_mov_b64 exec, 1")
    e("ds_add_u32 v30, v%d offset:%d" % (V_ONE, L_CNT + 12))
    e("s_mov_b64 exec, -1")
    e("s_waitcnt lgkmcnt(0)")
    e("v_readfirstlane_b32 s71, v%d" % V_FLAG)
    e("s_sub_u32 s70, s68, s70")
    e("s_add_u32 s70, s70, s71")
    e("s_add_u32 s68, s68, %s" % dl)
    e("s_cmp_gt_i32 s70, %d" % TH1)
    e("s_cselect_b32 %s, 1, 0" % S_FLAG)
    e("s_cmp_gt_i32 s70, %d" % TH2)
    e("s_cselect_b32 %s, 2, %s" % (S_FLAG, S_FLAG))
    e("s_cmp_eq_u32 s71, 0")
    e("s_cselect_b32 %s, 0, %s" % (S_FLAG, S_FLAG))

def k_body(b0, waits, loads, pre=None, steady=False):
    P = [8, 9, 10, 11]; Y0, Y1, Z, T, S, TMP = 12, 13, 14, 15, 16, 17
    for G in range(4):
        ld = list(loads[G])
        def nxt():
            if ld: stream_load(ld.pop(0))
        e("s_waitcnt vmcnt(%d)" % waits[G])
        for k in range(4):
            for u in range(4):
                c = "0" if k == 0 else "v%d" % P[u]
                e("v_dot2_f32_bf16 v%d, v%d, v%d, %s" % (P[u], B(b0 + 4 * G + u) + k, 4 + k, c))
        if pre and pre.get(G): pre[G]()
        e("v_add_f32_dpp v%d, v%d, v%d row_ror:8 row_mask:0xf bank_mask:0x3" % (Y0, P[0], P[0]))
        e("v_add_f32_dpp v%d, v%d, v%d row_ror:8 row_mask:0xf bank_mask:0xc" % (Y0, P[1], P[1]))
        e("v_add_f32_dpp v%d, v%d, v%d row_ror:8 row_mask:0xf bank_mask:0x3" % (Y1, P[2], P[2]))
        e("v_add_f32_dpp v%d, v%d, v%d row_ror:8 row_mask:0xf bank_mask:0xc" % (Y1, P[3], P[3]))
        nxt()
        if len(loads[G]) < 1: e("s_nop 1")
        e("v_add_f32_dpp v%d, v%d, v%d row_half_mirror row_mask:0xf bank_mask:0x5" % (Z, Y0, Y0))
        e("v_add_f32_dpp v%d, v%d, v%d row_half_mirror row_mask:0xf bank_mask:0xa" % (Z, Y1, Y1))
        nxt()
        if len(loads[G]) < 2: e("s_nop 1")
        e("v_add_f32_dpp v%d, v%d, v%d quad_perm:[1,0,3,2] row_mask:0xf bank_mask:0xf" % (Z, Z, Z))
        nxt()
        if len(loads[G]) < 3: e("s_nop 1")
        d = S if G == 0 else T
        e("v_add_f32_dpp v%d, v%d, v%d quad_perm:[2,3,0,1] row_mask:0xf bank_mask:0xf" % (d, Z, Z))
        nxt()
        assert not ld
        if G:
            e("v_cndmask_b32 v%d, v%d, v%d, s[%d:%d]" % (S, S, T, 60 + 2 * G, 61 + 2 * G))
    e("v_cvt_pk_bf16_f32 v%d, v%d, v%d" % (TMP, S, S))
    e("v_lshlrev_b32 v%d, 16, v%d" % (TMP, TMP))
    e("v_mul_f32 v%d, %s, v%d" % (TMP, SCALE, TMP))
    bf16r(TMP)
    e("s_add_u32 %s, %s, 1" % (S_IT, S_IT))
    e("v_max_f32 v3, v3, v%d" % TMP)
    if FC and steady: e("ds_read_b32 v%d, v30 offset:%d" % (V_FLAG, L_CNT + 20))
    e("ds_write_b32 v2, v%d" % TMP)
    e("v_add_u32 v2, 64, v2")
    if FC and steady:
        fc_end(str(KDL))

def v_body(x=0):
    A, ACC = 8, 20
    PB = [12, 16]
    for G in range(4):
        e("s_waitcnt lgkmcnt(0)")
        e("ds_read_b128 %s, v2 offset:%d" % (vr(PB[(G + 1) & 1]), (G + 1) * 16))
        if FC and G == 3: e("ds_read_b32 v%d, v30 offset:%d" % (V_FLAG, L_CNT + 20))
        for u in range(4):
            t = 4 * G + u
            p = PB[G & 1] + u
            for i in range(4):
                e("v_perm_b32 v%d, v%d, v%d, v%d" % (A + i, p, p, 4 + i))
            e("s_waitcnt vmcnt(%d)" % (D - 1 - x))
            e("s_nop 0")
            e("%s %s, %s, %s, %s" % (MFMA, vr(ACC), vr(A), vr(B(t)), vr(ACC)))
            stream_load((t + D) % 16)
    e("s_add_u32 %s, %s, 1" % (S_IT, S_IT))
    if FC and "nolast" not in XP:
        e("s_cmp_eq_u32 %s, %d" % (S_IT, NB))
        e("s_cbranch_scc1 L_vd")
    e("v_add_u32 v2, 64, v2")
    if FC: fc_end(str(DLT))

def streamer():
    cmt("---- streaming waves")
    e("s_lshl_b32 %s, %s, 20" % (S_T0, S_BH))
    e("s_lshl_b32 %s, %s, 19" % (S_T1, S_HALF))
    e("s_add_u32 %s, %s, %s" % (S_T0, S_T0, S_T1))
    e("s_lshl_b32 %s, %s, 10" % (S_T1, S_W))
    e("v_lshlrev_b32 v1, 4, v0")
    e("v_add_u32 v1, %s, v1" % S_T1)
    e("s_mov_b32 s%d, 0x%x" % (SRD_S + 2, NB << 16))
    e("s_mov_b32 s%d, 0x00020000" % (SRD_S + 3))
    e("s_mov_b32 %s, 0" % S_OFF)
    e("s_waitcnt lgkmcnt(0)")
    stamp(0)
    e("s_add_u32 s%d, s18, %s" % (SRD_S, S_T0))
    e("s_addc_u32 s%d, s19, 0" % (SRD_S + 1))
    e("s_add_u32 s42, s20, %s" % S_T0)
    e("s_addc_u32 s43, s21, 0")
    PRE = min(xpv("pre", 4), C0)
    for t in range(PRE):
        stream_load(t)
    e("s_barrier")
    for t in range(PRE, C0):
        stream_load(t)
    for i, m in enumerate((0x22222222, 0x44444444, 0x88888888)):
        e("s_mov_b32 s%d, 0x%x" % (62 + 2 * i, m)); e("s_mov_b32 s%d, 0x%x" % (63 + 2 * i, m))
    e("v_lshrrev_b32 v24, 4, v0")
    e("v_and_b32 v25, 15, v0")
    e("v_lshlrev_b32 v25, 4, v25")
    e("v_mul_u32_u24 v2, %d, v24" % P_ROW)
    e("s_mul_i32 %s, %s, %d" % (S_T0, S_W, P_WAVE))
    e("v_add_u32 v28, %s, v2" % S_T0)
    e("v_and_b32 v26, 3, v0")
    e("v_lshlrev_b32 v26, 4, v26")
    e("v_bfe_u32 v27, v0, 2, 1")
    e("v_lshl_add_u32 v26, v27, 3, v26")
    e("v_bfe_u32 v27, v0, 3, 1")
    e("v_lshl_add_u32 v26, v27, 2, v26")
    e("v_add_u32 v2, v28, v26")
    e("v_mov_b32 v29, v2")
    e("v_mov_b32 v3, 0xff800000")
    e("v_mov_b32 v30, 0")
    e("v_mov_b32 v%d, 1" % V_ONE)
    e("s_mov_b32 %s, 0" % S_FLAG)
    e("s_mov_b32 s68, 0")
    e("s_mov_b32 %s, 0" % S_IT)
    for t in range(C0, 48):
        e("s_waitcnt vmcnt(%d)" % (C0 - 1))
        if "t1" in XP and t in (C0, C0 + 6, C0 + 12, C0 + 24): stamp({C0: 6, C0 + 6: 7, C0 + 12: 8, C0 + 24: 9}[t])
        stream_load(t)
    stamp(1)
    lds_wait(4, "1", 31, 30)
    e("ds_read_b128 v[4:7], v25 offset:%d" % L_QB)
    e("s_waitcnt lgkmcnt(0)")
    stamp(2)
    iss = 0
    for th in range(3):
        waits, loads = [], []
        for G in range(4):
            g = 4 * th + G
            waits.append(44 - 4 * g + iss)
            n = (g + 1) * D // 12 - g * D // 12
            loads.append(list(range(iss, iss + n))); iss += n
        k_body(16 * th, waits, loads)
    assert iss == D
    def switch():
        e("s_cmp_eq_u32 %s, %d" % (S_IT, NB - 1))
        e("s_cselect_b32 s%d, s42, s%d" % (SRD_S, SRD_S))
        e("s_cselect_b32 s%d, s43, s%d" % (SRD_S + 1, SRD_S + 1))
        e("s_cselect_b32 %s, 0, %s" % (S_OFF, S_OFF))
    def loops(pfx, body):
        if not FC:
            lab(pfx + "0")
            body(0)
            e("s_cmp_lg_u32 %s, %d" % (S_IT, NB))
            e("s_cbranch_scc1 %s0" % pfx)
            return
        e("s_branch %sn" % pfx)
        for lv in (2, 1, 0):
            lab(pfx + str(lv))
            body(lv)
            if lv: e("s_branch %sc" % pfx)
        lab(pfx + "c")
        e("s_cmp_eq_u32 %s, %d" % (S_IT, NB))
        e("s_cbranch_scc1 %sd" % pfx)
        lab(pfx + "n")
        e("s_cmp_eq_u32 %s, 0" % S_FLAG)
        e("s_cbranch_scc1 %s0" % pfx)
        e("s_cmp_eq_u32 %s, 1" % S_FLAG)
        e("s_cbranch_scc1 %s1" % pfx)
        e("s_branch %s2" % pfx)
        lab(pfx + "d")
    loops("L_k", lambda lv: k_body(0, [D - 4 - XK[lv]] * 4, [[(4 * G + u + D) % 16 for u in range(4)] for G in range(4)], {(16 - D) // 4: switch}, True))
    stamp(3)
    for k in range(NB):
        e("ds_read_b32 v%d, v29 offset:%d" % (32 + k, 64 * k))
    allreduce64("max", 3, 16)
    e("s_mov_b32 %s, 0x05040100" % S_T0)
    e("s_mov_b32 %s, 0x07060302" % S_T1)
    e("s_waitcnt lgkmcnt(0)")
    for k in range(NB):
        e("v_sub_f32 v%d, v%d, v3" % (32 + k, 32 + k))
    for k in range(NB):
        e("v_mul_f32 v%d, %s, v%d" % (32 + k, LOG2E, 32 + k))
    for k in range(NB):
        e("v_exp_f32 v%d, v%d" % (32 + k, 32 + k))
    e("s_nop 0")
    e("v_add_f32 v24, v32, v33")
    for k in range(2, NB):
        e("v_add_f32 v24, v24, v%d" % (32 + k))
    for k in range(NB // 2):
        hilo_pack(32 + 2 * k, 33 + 2 * k, 16)
    for k in range(NB):
        e("ds_write_b32 v29, v%d offset:%d" % (32 + k, 64 * k))
    e("v_mov_b32 v2, v28")
    e("ds_read_b128 %s, v2" % vr(12))
    allreduce64("add", 24, 20)
    sel_pv(4, 8)
    e("v_mov_b32 v25, v24")
    e("v_mov_b32 v24, v3")
    e("s_lshl_b32 %s, %s, 3" % (S_T0, S_W))
    e("v_mov_b32 v26, %s" % S_T0)
    e("s_mov_b64 exec, 1")
    e("ds_write_b64 v26, v[24:25] offset:%d" % L_ML)
    e("s_mov_b64 exec, -1")
    lds_signal(0, 27, 30)
    for i in range(4):
        e("v_mov_b32 v%d, 0" % (20 + i))
    e("s_mov_b32 %s, 0" % S_IT)
    e("v_bfe_u32 v26, v0, 2, 2")
    e("v_lshlrev_b32 v27, 6, v26")
    e("v_and_b32 v26, 1, v0")
    e("v_lshl_add_u32 v27, v26, 5, v27")
    e("v_bfe_u32 v26, v0, 4, 1")
    e("v_lshl_add_u32 v27, v26, 4, v27")
    e("v_bfe_u32 v26, v0, 1, 1")
    e("v_lshl_add_u32 v27, v26, 3, v27")
    e("v_lshrrev_b32 v26, 5, v0")
    e("s_mul_i32 %s, %s, %d" % (S_T0, S_W, 2 * OA_ROW))
    e("s_add_u32 %s, %s, %d" % (S_T0, S_T0, L_OP))
    e("v_lshl_add_u32 v28, v26, 2, v27")
    e("v_add_u32 v28, %s, v28" % S_T0)
    stamp(4)
    if FC: e("s_mov_b32 s68, %d" % sched(6))
    loops("L_v", lambda lv: v_body(XV[lv]))
    stamp(5)
    ACC = 20
    lab("L_send")
    e("s_nop 4")
    e("v_permlane32_swap_b32 v%d, v%d" % (ACC, ACC + 2))
    e("v_permlane32_swap_b32 v%d, v%d" % (ACC + 1, ACC + 3))
    e("s_nop 0")
    e("v_add_f32 v%d, v%d, v%d" % (ACC, ACC, ACC + 2))
    e("v_add_f32 v%d, v%d, v%d" % (ACC + 1, ACC + 1, ACC + 3))
    e("v_cvt_pk_bf16_f32 v12, v%d, v%d" % (ACC, ACC + 1))
    e("ds_write_b32 v28, v12")
    e("v_lshlrev_b32 v13, 16, v12")
    e("v_and_b32 v14, 0xffff0000, v12")
    e("v_sub_f32 v13, v%d, v13" % ACC)
    e("v_sub_f32 v14, v%d, v14" % (ACC + 1))
    e("v_cvt_pk_bf16_f32 v13, v13, v14")
    e("ds_write_b32 v28, v13 offset:%d" % OA_ROW)
    e("s_waitcnt lgkmcnt(0)")
    if DRY: e("s_cbranch_scc0 L_tail")
    e("s_barrier")
    stamps_out(0)
    e("s_endpgm")

VZ = 95
V_G, V_FB, V_M10 = 91, 92, 93

def tpoll(loads, grans, sleep, ex="-1"):
    l0, l1 = newlab("tp"), newlab("tp")
    lab(l0)
    for x in loads: e(x)
    e("s_waitcnt vmcnt(0)")
    for g, t0, t1 in grans:
        e("v_xor_b32 v%d, v%d, v%d" % (g + 2, g + 2, t0))
        e("v_xor_b32 v%d, v%d, v%d" % (g + 3, g + 3, t1))
    g0 = grans[0][0]
    e("v_or_b32 v%d, v%d, v%d" % (g0 + 2, g0 + 2, g0 + 3))
    for g, _, _ in grans[1:]:
        e("v_or3_b32 v%d, v%d, v%d, v%d" % (g0 + 2, g0 + 2, g + 2, g + 3))
    e("v_cmp_ne_u32 vcc, 0, v%d" % (g0 + 2))
    e("s_cbranch_vccz %s" % l1)
    spin_guard(l1)
    e("s_mov_b64 exec, vcc")
    if sleep: e("s_sleep %d" % sleep)
    e("s_branch %s" % l0)
    lab(l1)
    e("s_mov_b64 exec, %s" % ex)

def ypoll(loads, grans, t, sleep, ex="-1"):
    l0, l1 = newlab("yp"), newlab("yp")
    lab(l0)
    for x in loads: e(x)
    e("s_waitcnt vmcnt(0)")
    first = True
    for g, tg in grans:
        for i in range(0, 4, 2):
            if first:
                e("v_xor_b32 v%d, s%d, v%d" % (t, S_TG + i, g + i))
                e("v_xor_b32 v%d, s%d, v%d" % (t + 1, S_TG + i + 1, g + i + 1))
                e("v_or_b32 v%d, v%d, v%d" % (t, t, t + 1)); first = False
            else:
                e("v_xor_b32 v%d, s%d, v%d" % (t + 1, S_TG + i, g + i))
                e("v_xor_b32 v%d, s%d, v%d" % (t + 2, S_TG + i + 1, g + i + 1))
                e("v_or3_b32 v%d, v%d, v%d, v%d" % (t, t, t + 1, t + 2))
    e("v_and_b32 v%d, 0x3ff, v%d" % (t, t))
    e("v_cmp_ne_u32 vcc, 0, v%d" % t)
    e("s_cbranch_vccz %s" % l1)
    spin_guard(l1)
    e("s_mov_b64 exec, vcc")
    if sleep: e("s_sleep %d" % sleep)
    e("s_branch %s" % l0)
    lab(l1)
    e("s_mov_b64 exec, %s" % ex)

def nonce_fetch(regs_offs):
    l0, l1 = newlab("nf"), newlab("nf")
    lab(l0)
    for d, o in regs_offs:
        e("buffer_load_dword v%d, v%d, %s, 0 offen sc1" % (d, o, srd(SRD_DBG)))
    e("s_waitcnt vmcnt(0)")
    ds = [d for d, _ in regs_offs]
    e("v_min_u32 v94, v%d, v%d" % (ds[0], ds[-1]))
    for d in ds[1:-1]:
        e("v_min_u32 v94, v94, v%d" % d)
    e("v_cmp_eq_u32 vcc, 0, v94")
    e("s_cbranch_vccz %s" % l1)
    spin_guard(l1)
    e("s_sleep 16")
    e("s_branch %s" % l0)
    lab(l1)

def head_off(dst, h):
    e("v_and_b32 v%d, 15, v%d" % (dst, h))
    e("v_lshrrev_b32 v%d, 4, v%d" % (h, h))
    e("v_lshlrev_b32 v%d, 2, v%d" % (dst, dst))
    e("v_lshl_add_u32 v%d, v%d, 7, v%d" % (dst, h, dst))

def vtags(n):
    e("v_lshrrev_b32 v%d, 10, v%d" % (n + 1, n))
    e("v_lshrrev_b32 v%d, 20, v%d" % (n + 2, n))
    e("v_not_b32 v%d, v%d" % (n + 3, n))
    e("v_alignbit_b32 v%d, v%d, v%d, 30" % (n + 3, n + 3, n))

def stags():
    e("s_mov_b32 s%d, %s" % (S_TG, S_T0))
    e("s_lshr_b32 s%d, %s, 10" % (S_TG + 1, S_T0))
    e("s_lshr_b32 s%d, %s, 20" % (S_TG + 2, S_T0))
    e("s_not_b32 s%d, %s" % (S_TG + 3, S_T0))
    e("s_lshl_b32 s%d, s%d, 2" % (S_TG + 3, S_TG + 3))
    e("s_lshr_b32 %s, %s, 30" % (S_T0, S_T0))
    e("s_or_b32 s%d, s%d, %s" % (S_TG + 3, S_TG + 3, S_T0))

def ypack(r):
    for i in range(4):
        e("v_add_u32 v%d, 0x200, v%d" % (r + i, r + i))
    for i in range(4):
        e("v_bfi_b32 v%d, v%d, s%d, v%d" % (r + i, V_M10, S_TG + i, r + i))

def red8(a):
    e("s_nop 1")
    e("v_permlane32_swap_b32 v%d, v%d" % (a, a + 1))
    e("v_permlane32_swap_b32 v%d, v%d" % (a + 2, a + 3))
    e("s_nop 1")
    e("v_add_f32 v%d, v%d, v%d" % (a, a, a + 1))
    e("v_add_f32 v%d, v%d, v%d" % (a + 2, a + 2, a + 3))
    e("s_nop 1")
    e("v_permlane16_swap_b32 v%d, v%d" % (a, a + 2))
    e("s_nop 1")
    e("v_add_f32 v%d, v%d, v%d" % (a, a, a + 2))
    e("s_nop 1")
    e("v_add_f32_dpp v%d, v%d, v%d row_ror:8 row_mask:0xf bank_mask:0xf" % (a, a, a))

def census(area, stride_lg, body, sleep):
    e("v_lshrrev_b32 v48, 1, v0")
    e("v_mul_u32_u24 v49, 5, v48")
    e("s_lshr_b32 %s, s2, 3" % S_T1)
    e("s_add_u32 %s, %s, 3" % (S_T1, S_T1))
    e("v_add_u32 v49, %s, v49" % S_T1)
    e("v_and_b32 v49, 15, v49")
    e("v_lshl_add_u32 v48, v49, 3, v48")
    e("v_lshlrev_b32 v48, 7, v48")
    e("v_and_b32 v49, 1, v0")
    e("v_lshl_add_u32 v48, v49, 6, v48")
    e("s_mov_b32 %s, 0x%x" % (S_OFF, area))
    e("s_mov_b64 exec, 0xffff")
    tpoll(["buffer_load_dwordx4 v[40:43], v48, %s, %s offen sc1" % (srd(SRD_WS), S_OFF)], [(40, 62, 63)], sleep, "-1")
    e("v_subrev_u32 v40, s4, v40")
    e("v_cvt_f32_i32 v40, v40")
    for r in (8, 4, 2, 1):
        e("s_nop 1")
        e("v_add_f32_dpp v40, v40, v40 row_ror:%d row_mask:0xf bank_mask:0xf" % r)
    e("v_mul_f32 v40, 0.0625, v40")
    e("v_cvt_i32_f32 v40, v40")
    e("s_sub_u32 s4, s4, %d" % sched(body))
    e("v_add_u32 v40, s4, v40")
    e("v_or_b32 v40, 1, v40")
    e("s_mov_b64 exec, 1")
    e("ds_write_b32 v%d, v40 offset:%d" % (VZ, L_CNT + 20))
    e("s_mov_b64 exec, -1")

def sample(rnd, body):
    area = CT_OFF + rnd * 0x4000
    e("s_and_b32 %s, s2, 127" % S_OFF)
    e("s_lshl_b32 %s, %s, 1" % (S_OFF, S_OFF))
    e("s_add_u32 %s, %s, %s" % (S_OFF, S_OFF, S_HALF))
    e("s_lshl_b32 %s, %s, 6" % (S_OFF, S_OFF))
    e("s_add_u32 %s, %s, 0x%x" % (S_OFF, S_OFF, area))
    lds_wait(12, str(4 * body), 94, VZ, 4)
    e("s_memrealtime s[4:5]")
    e("s_waitcnt lgkmcnt(0)")
    e("v_mov_b32 v60, s4")
    e("v_mov_b32 v61, s4")
    e("s_mov_b64 exec, 1")
    e("buffer_store_dwordx4 v[60:63], off, %s, %s sc1" % (srd(SRD_WS), S_OFF))
    e("s_mov_b64 exec, -1")
    e("s_sleep %d" % xpv("tsl", 48))
    census(area, 6, body, xpv("tsl", 48))

def helper():
    lab("L_helper")
    e("s_setprio 3")
    e("s_memrealtime s[4:5]")
    e("s_sub_u32 %s, %s, 4" % (S_W, S_W))
    e("s_lshl_b32 %s, %s, 1" % (S_I, S_B))
    e("s_add_u32 %s, %s, %s" % (S_I, S_I, S_HALF))
    e("v_lshrrev_b32 v24, 4, v0")
    e("v_and_b32 v25, 15, v0")
    e("s_lshl_b32 %s, %s, 6" % (S_T0, S_W))
    e("v_add_u32 v1, %s, v0" % S_T0)
    e("v_lshlrev_b32 v2, 4, v0")
    e("v_mov_b32 v%d, 0" % VZ)
    e("v_mov_b32 v%d, 0x3ff" % V_M10)
    e("s_cmp_ge_u32 %s, 2" % S_W)
    e("s_cbranch_scc1 L_h23")
    S_STR, S_COL, S_PUB, S_BS = "s68", "s69", "s70", "s71"
    e("s_and_b32 s73, s2, 7")
    e("s_lshr_b32 s75, s2, 3")
    e("s_mul_i32 %s, s73, 7" % S_T0)
    e("s_lshr_b32 %s, s75, 2" % S_T1)
    e("s_add_u32 %s, %s, %s" % (S_T0, S_T0, S_T1))
    e("s_cmp_lt_u32 s75, 28")
    e("s_cselect_b32 %s, %s, 99" % (S_C, S_T0))
    if "noffn" in XP or "noh1" in XP: e("s_mov_b32 %s, 99" % S_C)
    e("s_cmp_ge_u32 %s, 27" % S_T0)
    e("s_cselect_b32 %s, 27, 0" % S_T1)
    e("s_cselect_b32 %s, 1, 0" % S_A)
    e("s_sub_u32 %s, %s, %s" % (S_T0, S_T0, S_T1))
    e("s_lshl_b32 %s, %s, 1" % (S_T0, S_T0))
    e("s_and_b32 %s, s75, 1" % S_T1)
    e("s_add_u32 %s, %s, %s" % (S_T0, S_T0, S_T1))
    e("s_bfe_u32 %s, s75, 0x10001" % S_IT)
    e("s_lshl_b32 %s, %s, 6" % (S_COL, S_T0))
    e("s_lshl_b32 %s, %s, 9" % (S_T0, S_T0))
    e("s_mul_i32 %s, %s, 55296" % (S_PUB, S_A))
    e("s_add_u32 %s, %s, %s" % (S_PUB, S_PUB, S_T0))
    e("s_mul_i32 %s, %s, 27648" % (S_T0, S_IT))
    e("s_add_u32 %s, %s, %s" % (S_PUB, S_PUB, S_T0))
    e("s_add_u32 %s, %s, 0x%x" % (S_PUB, S_PUB, GX_OFF))
    e("s_lshl_b32 %s, %s, 2" % (S_T0, S_H))
    e("s_and_b32 %s, %s, 3" % (S_T1, S_I))
    e("s_add_u32 %s, %s, %s" % (S_T0, S_T0, S_T1))
    e("s_lshl_b32 %s, %s, 6" % (S_T1, S_T0))
    e("s_lshl_b32 s73, %s, 12" % S_H)
    e("s_lshl_b32 s75, %s, 9" % S_I)
    e("s_add_u32 s73, s73, s75")
    e("s_add_u32 s73, s73, 0x%x" % QX_OFF)
    e("s_lshr_b32 s75, %s, 2" % S_I)
    e("s_cmp_eq_u32 %s, 0" % S_W)
    e("s_cselect_b32 %s, %s, %s" % (S_COL, S_T1, S_COL))
    e("s_cselect_b32 %s, s73, %s" % (S_PUB, S_PUB))
    e("s_cselect_b32 %s, 0, %s" % (S_C, S_C))
    e("s_cselect_b32 %s, s75, %s" % (S_IT, S_IT))
    e("s_mul_i32 %s, %s, %d" % (S_STR, S_W, 8192 - 3456))
    e("s_sub_u32 %s, 8192, %s" % (S_STR, S_STR))
    e("s_mul_i32 s73, %s, %d" % (S_W, L_WF - L_WQ))
    e("s_add_u32 s75, s73, %d" % L_X0)
    e("s_add_u32 s73, s73, %d" % L_WQ)
    assert L_WF - L_WQ == L_X1 - L_X0
    e("s_mul_i32 %s, %s, 320" % (S_T0, S_IT))
    e("s_mul_i32 %s, %s, %s" % (S_T0, S_T0, S_STR))
    e("s_add_u32 %s, %s, %s" % (S_COL, S_COL, S_T0))
    e("v_lshrrev_b32 v26, 2, v0")
    e("v_mul_u32_u24 v26, %s, v26" % S_STR)
    e("v_and_b32 v27, 3, v0")
    e("v_lshl_add_u32 v26, v27, 4, v26")
    e("v_add_u32 v26, %s, v26" % S_COL)
    e("s_mul_i32 s%d, %s, 640" % (SRD_W + 2, S_STR))
    e("s_mov_b32 s%d, 0x00020000" % (SRD_W + 3))
    e("s_lshl_b32 %s, %s, 4" % (S_STR, S_STR))
    e("s_cmp_ge_u32 %s, 54" % S_C)
    e("s_cbranch_scc1 L_hb1")
    e("s_waitcnt lgkmcnt(0)")
    stamp(0)
    mk_srd(SRD_X, "s16", "s17", 5120)
    mk_srd(SRD_DBG, "s38", "s39", 256)
    e("s_cmp_lg_u32 %s, 0" % S_A)
    e("s_cselect_b32 s%d, s30, s28" % SRD_W)
    e("s_cselect_b32 s%d, s31, s29" % (SRD_W + 1))
    e("s_cmp_lg_u32 %s, 0" % S_W)
    e("s_cbranch_scc1 L_h1a")
    e("s_mov_b32 s%d, s22" % SRD_W)
    e("s_mov_b32 s%d, s23" % (SRD_W + 1))
    e("s_or_b32 s4, s4, 1")
    e("s_cmp_lg_u32 s2, 0")
    e("s_cbranch_scc1 L_h1a")
    e("v_mov_b32 v60, s4")
    e("v_lshlrev_b32 v61, 7, v0")
    e("s_mov_b64 exec, 3")
    e("buffer_store_dword v60, v61, %s, 0 offen sc1" % srd(SRD_DBG))
    e("s_mov_b64 exec, -1")
    lab("L_h1a")
    e("s_mov_b32 m0, s75")
    e("s_mov_b32 %s, 0" % S_OFF)
    for k in range(4):
        e("buffer_load_dwordx4 v2, %s, 0 offen offset:%d lds" % (srd(SRD_X), 1024 * k))
    e("s_add_u32 m0, s75, 0x1000")
    e("s_mov_b32 %s, 0x1000" % S_T1)
    e("buffer_load_dwordx4 v2, %s, %s offen lds" % (srd(SRD_X), S_T1))
    e("s_mov_b32 m0, s73")
    e("s_nop 0")
    for t in range(20):
        e("buffer_load_dwordx4 v26, %s, %s offen nt lds" % (srd(SRD_W), S_OFF))
        if t < 19:
            e("s_add_u32 m0, m0, 0x400")
            e("s_add_u32 %s, %s, %s" % (S_OFF, S_OFF, S_STR))
    e("s_barrier")
    mk_ws()
    e("v_lshrrev_b32 v28, 2, v25")
    e("v_lshlrev_b32 v28, 6, v28")
    e("v_lshl_add_u32 v28, v24, 9, v28")
    e("v_lshl_add_u32 v28, v27, 3, v28")
    e("v_add_u32 v28, s73, v28")
    e("v_mul_u32_u24 v29, 1280, v27")
    e("v_lshl_add_u32 v29, v24, 4, v29")
    e("s_mul_i32 %s, %s, 640" % (S_T0, S_IT))
    e("s_add_u32 %s, %s, s75" % (S_T0, S_T0))
    e("v_add_u32 v29, %s, v29" % S_T0)
    e("v_lshlrev_b32 v30, 7, v27")
    e("v_lshl_add_u32 v30, v24, 4, v30")
    e("v_bfe_u32 v31, v0, 2, 1")
    e("v_lshl_add_u32 v30, v31, 6, v30")
    XF, WFR, ACC = 96, [176, 192], 32
    e("s_waitcnt vmcnt(20)")
    NK = xpv("nk", 1)
    for s in range(10):
        e("ds_read_b128 %s, v29 offset:%d" % (vr(XF + 4 * s), 64 * s))
    def mm(k):
        for s2 in range(2):
            s = 2 * k + s2
            for ct in range(2):
                e("%s %s, %s, %s, %s" % (MFMA, vr(ACC + 4 * ct), vr(WFR[k & 1] + 8 * s2 + 4 * ct), vr(XF + 4 * s), "0" if s == 0 else vr(ACC + 4 * ct)))
    for k in range(5):
        e("s_waitcnt vmcnt(%d)" % (16 - 4 * k + (1 if k > NK else 0)))
        if k == NK:
            e("s_lshl_b32 s5, %s, 7" % S_W)
            e("buffer_load_dword v60, off, %s, s5 sc1" % srd(SRD_DBG))
        for s2 in range(2):
            s = 2 * k + s2
            for ct in range(2):
                r = WFR[k & 1] + 8 * s2 + 4 * ct
                e("ds_read_b64_tr_b16 %s, v28 offset:%d" % (vr(r, 2), 2048 * s + 32 * ct))
                e("ds_read_b64_tr_b16 %s, v28 offset:%d" % (vr(r + 2, 2), 2048 * s + 32 * ct + 256))
        if k:
            e("s_waitcnt lgkmcnt(8)")
            mm(k - 1)
    e("s_waitcnt lgkmcnt(0)")
    mm(4)
    lab("L_nw")
    e("s_waitcnt vmcnt(0)")
    e("v_readfirstlane_b32 %s, v60" % S_T0)
    e("s_cmp_lg_u32 %s, 0" % S_T0)
    e("s_cbranch_scc1 L_ng")
    spin_guard("L_ng")
    e("s_sleep 4")
    e("buffer_load_dword v60, off, %s, 0 sc1" % srd(SRD_DBG))
    e("s_branch L_nw")
    lab("L_ng")
    e("ds_write_b32 v%d, v60 offset:%d" % (VZ, L_CNT + 8))
    stags()
    e("s_nop 1")
    for i in range(4):
        e("v_mov_b32_dpp v%d, v%d quad_perm:[0,1,2,3] row_mask:0xf bank_mask:0x2" % (ACC + i, ACC + 4 + i))
    ypack(ACC)
    e("s_mov_b32 exec_lo, 0x00ff00ff")
    e("s_mov_b32 exec_hi, 0x00ff00ff")
    if "noqx" in XP:
        e("s_cmp_eq_u32 %s, 0" % S_W)
        e("s_cbranch_scc1 L_noqx")
    if "noh1pub" in XP:
        e("s_cmp_eq_u32 %s, 1" % S_W)
        e("s_cbranch_scc1 L_noqx")
    e("buffer_store_dwordx4 v[32:35], v30, %s, %s offen sc1" % (srd(SRD_WS), S_PUB))
    if "noqx" in XP or "noh1pub" in XP: lab("L_noqx")
    e("s_mov_b64 exec, -1")
    stamp(1)
    e("s_cmp_lg_u32 %s, 0" % S_W)
    e("s_cbranch_scc1 L_wo")
    e("s_lshl_b32 %s, %s, 5" % (S_OFF, S_H))
    e("s_add_u32 %s, %s, %s" % (S_OFF, S_OFF, S_B))
    e("s_lshl_b32 %s, %s, 7" % (S_OFF, S_OFF))
    e("s_add_u32 %s, %s, 0x%x" % (S_OFF, S_OFF, QX_OFF))
    e("v_lshrrev_b32 v48, 3, v0")
    e("v_lshlrev_b32 v48, 9, v48")
    e("v_and_b32 v3, 7, v0")
    e("v_lshl_add_u32 v48, v3, 4, v48")
    e("v_and_b32 v3, 31, v0")
    e("v_lshlrev_b32 v3, 3, v3")
    e("v_lshrrev_b32 v47, 5, v0")
    e("v_lshl_add_u32 v3, v47, 1, v3")
    if "noqx" not in XP: ypoll(["buffer_load_dwordx4 v[40:43], v48, %s, %s offen sc1" % (srd(SRD_WS), S_OFF)], [(40, 36)], 44, xpv("qsl", 0))
    else:
        for i in range(4): e("v_mov_b32 v%d, 0" % (40 + i))
    for i in range(4):
        e("v_and_b32 v%d, 0xfffffc00, v%d" % (40 + i, 40 + i))
    e("s_nop 0")
    e("v_permlane32_swap_b32 v40, v41")
    e("v_permlane32_swap_b32 v42, v43")
    e("s_nop 1")
    e("v_add_f32 v40, v40, v41")
    e("v_add_f32 v42, v42, v43")
    e("v_cvt_pk_bf16_f32 v40, v40, v42")
    e("ds_write_b16 v3, v40 offset:%d" % L_QB)
    e("ds_write_b16_d16_hi v3, v40 offset:%d" % (L_QB + 4))
    e("v_mov_b32 v40, 1")
    e("s_waitcnt lgkmcnt(0)")
    e("ds_write_b32 v%d, v40 offset:%d" % (VZ, L_CNT + 4))
    stamp(2)
    e("s_branch L_wo")

    lab("L_h23")
    e("s_cmp_eq_u32 %s, 2" % S_W)
    e("s_cbranch_scc1 L_hb1")
    for i in range(4):
        e("v_mov_b32 v%d, 0" % (44 + i))
    e("ds_write_b128 v%d, v[44:47] offset:%d" % (VZ, L_CNT))
    e("ds_write_b128 v%d, v[44:47] offset:%d" % (VZ, L_CNT + 16))
    e("ds_write_b128 v%d, v[44:47] offset:%d" % (VZ, L_SY))
    e("ds_write_b128 v%d, v[44:47] offset:%d" % (VZ, L_SY + 16))
    lab("L_hb1")
    e("s_waitcnt lgkmcnt(0)")
    stamp(0)
    e("s_barrier")
    mk_ws()
    mk_srd(SRD_DBG, "s38", "s39", 256)
    e("s_cmp_lg_u32 %s, 3" % S_W)
    e("s_cbranch_scc1 L_wo")
    if xpv("ypre", 0) & 12:
        if xpv("ypre", 0) & 8: lds_wait(4, "1", 94, VZ, 4)
        e("s_lshl_b32 %s, %s, 1" % (S_T0, S_BH))
        e("s_add_u32 %s, %s, %s" % (S_T0, S_T0, S_HALF))
        e("s_mul_i32 %s, %s, 2560" % (S_T0, S_T0))
        e("buffer_load_dwordx4 v[64:67], v2, %s, %s offen sc1" % (srd(SRD_WS), S_T0))
        e("buffer_load_dwordx4 v[68:71], v2, %s, %s offen offset:1024 sc1" % (srd(SRD_WS), S_T0))
        e("s_mov_b32 exec_hi, 0")
        e("buffer_load_dwordx4 v[72:75], v2, %s, %s offen offset:2048 sc1" % (srd(SRD_WS), S_T0))
        e("s_mov_b64 exec, -1")
        e("s_waitcnt vmcnt(0)")
    lds_wait(4, "1", 94, VZ, 4)
    if "vtouch" in XP:
        e("s_lshl_b32 %s, %s, 20" % (S_T0, S_BH))
        e("s_lshl_b32 %s, %s, 19" % (S_T1, S_HALF))
        e("s_add_u32 %s, %s, %s" % (S_T0, S_T0, S_T1))
        e("s_add_u32 s%d, s20, %s" % (SRD_X, S_T0))
        e("s_addc_u32 s%d, s21, 0" % (SRD_X + 1))
        e("s_mov_b32 s%d, 0x%x" % (SRD_X + 2, NB << 16))
        e("s_mov_b32 s%d, 0x00020000" % (SRD_X + 3))
        e("v_lshlrev_b32 v28, %d, v0" % xpv("vts", 13))
        e("s_mov_b64 exec, 0x%x" % ((1 << xpv("vtn", 1)) - 1))
        e("buffer_load_dword v88, v28, %s, 0 offen nt" % srd(SRD_X))
        e("s_mov_b64 exec, -1")
    if "nowarm" not in XP:
        e("s_getpc_b64 s[4:5]")
        lab("L_pc")
        e("s_sub_u32 s4, s4, L_pc-%s" % KNAME)
        e("s_subb_u32 s5, s5, 0")
        e("v_lshlrev_b32 v28, 7, v0")
        for i in range(NWARM):
            e("v_min_u32 v27, L_code_end-%s-4, v28" % KNAME)
            e("global_load_dword v89, v27, s[4:5]")
            e("v_add_u32 v28, 0x2000, v28")
    e("s_cmp_ge_u32 s2, %d" % NCONS)
    e("s_cbranch_scc1 L_h3c")
    e("s_and_b32 s5, s2, 3")
    mk_srd(SRD_X, "s16", "s17", 5120)
    mk_srd(SRD_W, "s34", "s35", 1280)
    e("v_lshlrev_b32 v3, 2, v0")
    e("s_mul_i32 %s, s5, 1280" % S_T0)
    for k in range(5):
        e("buffer_load_dword v%d, v3, %s, %s offen offset:%d" % (64 + k, srd(SRD_X), S_T0, 256 * k))
        e("buffer_load_dword v%d, v3, %s, 0 offen offset:%d" % (72 + k, srd(SRD_W), 256 * k))
    e("s_waitcnt vmcnt(0)")
    G = V_G
    e("v_mov_b32 v%d, 0" % G)
    for k in range(5):
        e("v_lshlrev_b32 v80, 16, v%d" % (64 + k))
        e("v_and_b32 v81, 0xffff0000, v%d" % (64 + k))
        e("v_lshlrev_b32 v82, 16, v%d" % (72 + k))
        e("v_and_b32 v83, 0xffff0000, v%d" % (72 + k))
        e("v_mul_f32 v80, v80, v82")
        e("v_mul_f32 v81, v81, v83")
        e("v_cvt_pk_bf16_f32 v80, v80, v81")
        e("v_lshlrev_b32 v81, 16, v80")
        e("v_and_b32 v80, 0xffff0000, v80")
        e("v_add_f32 v%d, v%d, v81" % (G, G))
        e("v_add_f32 v%d, v%d, v80" % (G, G))
    allreduce64("add", G, 80)
    bf16r(G)
    e("v_mul_f32 v%d, 0xbfb8aa3b, v%d" % (G, G))
    e("v_exp_f32 v%d, v%d" % (G, G))
    e("s_nop 0")
    e("v_add_f32 v%d, 1.0, v%d" % (G, G))
    e("v_rcp_f32 v%d, v%d" % (G, G))
    e("s_nop 0")
    bf16r(G)
    lab("L_h3c")
    if FC and CA:
        e("ds_read_b32 v62, v%d offset:%d" % (VZ, L_CNT + 8))
        e("s_waitcnt lgkmcnt(0)")
        e("v_xor_b32 v63, %s, v62" % TAGX)
        sample(0, CA)

    lab("L_wo")
    V_TB, V_FA = 84, 90
    e("s_mul_i32 %s, %s, %d" % (S_T1, S_H, 128 * 1280))
    e("s_mul_i32 %s, %s, 10240" % (S_T0, S_W))
    e("s_sub_u32 %s, %s, 10240" % (S_T0, S_T0))
    e("s_add_u32 %s, %s, %s" % (S_T1, S_T1, S_T0))
    e("s_add_u32 s68, %s, %d" % (S_T0, L_WO))
    e("v_lshrrev_b32 v26, 2, v0")
    e("v_mul_u32_u24 v26, 1280, v26")
    e("v_and_b32 v27, 3, v0")
    e("v_lshl_add_u32 v26, v27, 3, v26")
    e("s_mul_i32 %s, %s, 320" % (S_T0, S_W))
    e("s_add_u32 %s, %s, %d" % (S_T0, S_T0, L_WO))
    e("v_add_u32 v%d, %s, v26" % (V_TB, S_T0))
    e("v_add_u32 v%d, 40960, v%d" % (V_TB + 1, V_TB))
    e("s_lshl_b32 %s, %s, 2" % (S_T0, S_W))
    e("v_mov_b32 v%d, %s" % (V_FA, S_T0))
    mk_srd(SRD_W, "s24", "s25", 4096 * 1280)
    lds_wait(4, "1", 94, VZ, 4)
    def flagwait(off, n, target):
        l0, l1 = newlab("fw"), newlab("fw")
        lab(l0)
        e("ds_read_b%d %s, v%d offset:%d" % (32 * n, vr(80, n), VZ, L_SY + off))
        e("s_waitcnt lgkmcnt(0)")
        e("v_min_u32 v80, v80, v81")
        if n == 4: e("v_min3_u32 v80, v80, v82, v83")
        e("s_nop 0")
        e("v_readfirstlane_b32 %s, v80" % S_T0)
        e("s_cmp_ge_u32 %s, %d" % (S_T0, target))
        e("s_cbranch_scc1 %s" % l1)
        spin_guard(l1)
        e("s_sleep %d" % xpv("fsl", 8))
        e("s_branch %s" % l0)
        lab(l1)
    def flag(off, val):
        e("v_mov_b32 v80, %d" % val)
        e("ds_write_b32 v%d, v80 offset:%d" % (V_FA, L_SY + off))
    def consume(c):
        if "nowo" in XP: return
        flagwait(16, 2, c + 1)
        bf = c % NBUF
        for t in range(10):
            e("ds_read_b64_tr_b16 %s, v%d offset:%d" % (vr(W(4 * t + (c >> 1)) + 2 * (c & 1), 2), V_TB + (bf >> 1), (bf & 1) * 20480 + 32 * t))
        e("s_waitcnt lgkmcnt(0)")
        if c + NBUF < 8: flag(0, c + 1)
    assert WO_WIN <= 10 and NBUF == 4
    e("s_sub_u32 %s, %s, 1" % (S_T0, S_W))
    e("s_cmp_lt_u32 %s, 2" % S_T0)
    e("s_cbranch_scc1 L_ld")
    for c in range(4): consume(c)
    e("s_branch L_prep")
    lab("L_ld")
    WDE = "wdearly" in XP
    if WDE:
        e("s_cmp_lg_u32 %s, 2" % S_W)
        e("s_cbranch_scc1 L_ld1")
        e("s_cmp_lt_u32 s2, %d" % (NWG - NF2 if "noffn" not in XP and "noh2" not in XP else 1000))
        e("s_cbranch_scc1 L_ld1")
        e("s_sub_u32 %s, 255, s2" % S_T0)
        e("s_mul_i32 s70, %s, 205" % S_T0)
        e("s_lshr_b32 s70, s70, 11")
        e("s_mul_i32 s71, s70, 10")
        e("s_sub_u32 s71, %s, s71" % S_T0)
        e("v_lshrrev_b32 v26, 3, v0")
        e("v_mul_u32_u24 v26, 1280, v26")
        e("v_and_b32 v27, 7, v0")
        e("v_lshl_add_u32 v26, v27, 4, v26")
        e("s_mul_i32 %s, s70, %d" % (S_OFF, 96 * 1280))
        e("s_lshl_b32 %s, s71, 7" % S_T0)
        e("s_add_u32 %s, %s, %s" % (S_OFF, S_OFF, S_T0))
        mk_srd(SRD_X, "s32", "s33", 1728 * 1280)
        e("s_mov_b32 m0, %d" % L_WQ)
        e("s_nop 0")
        for t in range(12):
            e("buffer_load_dwordx4 v26, %s, %s offen nt lds" % (srd(SRD_X), S_OFF))
            if t < 11:
                e("s_add_u32 m0, m0, 0x400")
                e("s_add_u32 %s, %s, %d" % (S_OFF, S_OFF, 8 * 1280))
        lab("L_ld1")
    if "nowo" not in XP:
        for c in range(8):
            if c >= NBUF: flagwait(0, 4, c - NBUF + 1)
            for k in range(10):
                e("s_add_u32 m0, s68, %d" % ((c % NBUF) * 20480 + k * 1024))
                if 10 * c + k >= WO_WIN: e("s_waitcnt vmcnt(%d)" % (WO_WIN - 1))
                else: e("s_nop 0")
                if c and k == WO_WIN - 1: flag(12, c)
                e("buffer_load_dwordx4 v2, %s, %s offen nt lds" % (srd(SRD_W), S_T1))
                if (c, k) != (7, 9): e("s_add_u32 %s, %s, %d" % (S_T1, S_T1, 1024 if k < 9 else 20480 - 9 * 1024))
            if c == 7:
                e("s_waitcnt vmcnt(0)")
                flag(12, 8)
            if c: consume(c - 1)
        consume(7)
    e("s_cmp_lg_u32 %s, 2" % S_W)
    e("s_cbranch_scc1 L_prep")
    e("s_cmp_lt_u32 s2, %d" % (NWG - NF2 if "noffn" not in XP and "noh2" not in XP else 1000))
    e("s_cbranch_scc1 L_prep")
    S_RG, S_CB = "s68", "s69"
    e("s_sub_u32 %s, 255, s2" % S_T0)
    e("s_mul_i32 %s, %s, 205" % (S_RG, S_T0))
    e("s_lshr_b32 %s, %s, 11" % (S_RG, S_RG))
    e("s_mul_i32 %s, %s, 10" % (S_T1, S_RG))
    e("s_sub_u32 %s, %s, %s" % (S_CB, S_T0, S_T1))
    e("v_lshrrev_b32 v26, 3, v0")
    e("v_mul_u32_u24 v26, 1280, v26")
    e("v_and_b32 v27, 7, v0")
    e("v_lshl_add_u32 v26, v27, 4, v26")
    e("s_mul_i32 %s, %s, %d" % (S_OFF, S_RG, 96 * 1280))
    e("s_lshl_b32 %s, %s, 7" % (S_T0, S_CB))
    e("s_add_u32 %s, %s, %s" % (S_OFF, S_OFF, S_T0))
    mk_srd(SRD_W, "s32", "s33", 1728 * 1280)
    e("v_cmp_le_u32 vcc, 24, v0")
    e("v_mov_b32 v28, 24")
    e("v_mov_b32 v29, 128")
    e("v_cndmask_b32 v28, 0, v28, vcc")
    e("v_cndmask_b32 v29, 0, v29, vcc")
    e("v_sub_u32 v28, v0, v28")
    e("v_min_u32 v28, 23, v28")
    e("v_and_b32 v31, 7, v28")
    e("v_lshl_add_u32 v29, v31, 4, v29")
    e("v_lshrrev_b32 v31, 3, v28")
    e("v_lshl_add_u32 v29, v31, 9, v29")
    e("v_mov_b32 v30, 192")
    e("v_cndmask_b32 v30, 0, v30, vcc")
    e("v_lshl_add_u32 v30, v28, 3, v30")
    e("s_mul_i32 %s, %s, 1536" % (S_IT, S_RG))
    e("s_add_u32 %s, %s, 0x%x" % (S_IT, S_IT, GX_OFF))
    e("s_add_u32 s70, %s, 27648" % S_IT)
    e("s_add_u32 s71, %s, 55296" % S_IT)
    e("s_add_u32 s73, %s, %d" % (S_IT, 55296 + 27648))
    if not WDE:
        e("s_mov_b32 m0, %d" % L_WQ)
        e("s_nop 0")
        for t in range(12):
            e("buffer_load_dwordx4 v26, %s, %s offen nt lds" % (srd(SRD_W), S_OFF))
            if t < 11:
                e("s_add_u32 m0, m0, 0x400")
                e("s_add_u32 %s, %s, %d" % (S_OFF, S_OFF, 8 * 1280))
    e("ds_read_b32 v94, v%d offset:%d" % (VZ, L_CNT + 8))
    e("s_waitcnt lgkmcnt(0)")
    e("v_readfirstlane_b32 %s, v94" % S_T0)
    stags()
    e("s_mov_b32 exec_hi, 0xffff")
    e("s_mov_b64 s[4:5], exec")
    SO = [S_IT, "s70", "s71", "s73"]
    if "noh2poll" not in XP: ypoll(["buffer_load_dwordx4 %s, v29, %s, %s offen offset:%d sc1" % (vr(40 + 16 * bb + 4 * k), srd(SRD_WS), SO[k], 256 * bb) for bb in range(2) for k in range(4)],
          [(40 + 16 * bb + 4 * k, 72 + 4 * k) for bb in range(2) for k in range(4)], 31, 16, "s[4:5]")
    for r in range(40, 72):
        e("v_and_b32 v%d, 0xfffffc00, v%d" % (r, r))
    for bb in range(2):
        g = 40 + 16 * bb
        for i in range(4):
            e("v_add_f32 v%d, v%d, v%d" % (g + i, g + i, g + 4 + i))
            e("v_add_f32 v%d, v%d, v%d" % (g + 8 + i, g + 8 + i, g + 12 + i))
        for k in range(2):
            e("v_cvt_pk_bf16_f32 v%d, v%d, v%d" % (g + 4 + k, g + 2 * k, g + 2 * k + 1))
            e("v_cvt_pk_bf16_f32 v%d, v%d, v%d" % (g + 12 + k, g + 8 + 2 * k, g + 8 + 2 * k + 1))
        for k in range(2):
            e("v_lshlrev_b32 v31, 16, v%d" % (g + 4 + k))
            e("v_and_b32 v32, 0xffff0000, v%d" % (g + 4 + k))
            e("v_lshlrev_b32 v33, 16, v%d" % (g + 12 + k))
            e("v_and_b32 v34, 0xffff0000, v%d" % (g + 12 + k))
            e("v_mul_f32 v31, v31, v33")
            e("v_mul_f32 v32, v32, v34")
            e("v_cvt_pk_bf16_f32 v%d, v31, v32" % (g + k))
        e("ds_write_b64 v30, %s offset:%d" % (vr(g, 2), L_HT + 384 * bb))
    e("s_mov_b64 exec, -1")
    stamp(3)
    e("v_lshlrev_b32 v28, 10, v24")
    e("v_lshrrev_b32 v29, 2, v25")
    e("v_lshl_add_u32 v28, v29, 7, v28")
    e("v_and_b32 v29, 3, v0")
    e("v_lshl_add_u32 v28, v29, 3, v28")
    e("v_mul_u32_u24 v29, 192, v29")
    e("v_lshl_add_u32 v29, v24, 4, v29")
    e("s_waitcnt lgkmcnt(0)")
    HF, WF, AC = 64, 48, 32
    for s in range(3):
        e("ds_read_b128 %s, v29 offset:%d" % (vr(HF + 4 * s), L_HT + 64 * s))
    e("v_bfe_u32 v30, v0, 3, 1")
    e("v_lshlrev_b32 v30, 2, v30")
    e("v_and_b32 v31, 3, v0")
    e("v_add_u32 v30, v30, v31")
    e("v_lshlrev_b32 v30, 7, v30")
    e("v_bfe_u32 v31, v0, 2, 1")
    e("v_lshl_add_u32 v30, v31, 6, v30")
    e("v_lshl_add_u32 v30, v24, 4, v30")
    e("s_sub_u32 %s, 255, s2" % S_OFF)
    e("s_lshl_b32 %s, %s, 10" % (S_OFF, S_OFF))
    e("s_add_u32 %s, %s, 0x%x" % (S_OFF, S_OFF, F_OFF))
    for s in range(3):
        for nt in range(4):
            r = WF + 4 * nt
            e("ds_read_b64_tr_b16 %s, v28 offset:%d" % (vr(r, 2), L_WQ + 4096 * s + 32 * nt))
            e("ds_read_b64_tr_b16 %s, v28 offset:%d" % (vr(r + 2, 2), L_WQ + 4096 * s + 32 * nt + 512))
        e("s_waitcnt lgkmcnt(0)")
        for nt in range(4):
            e("%s %s, %s, %s, %s" % (MFMA, vr(AC + 4 * nt), vr(WF + 4 * nt), vr(HF + 4 * s), "0" if s == 0 else vr(AC + 4 * nt)))
        if s < 2: e("s_nop 7")
    e("s_nop 7")
    e("s_nop 3")
    for nt in range(1, 4):
        for i in range(4):
            e("v_mov_b32_dpp v%d, v%d row_shr:%d row_mask:0xf bank_mask:0x%x" % (AC + i, AC + 4 * nt + i, 4 * nt, 1 << nt))
    ypack(AC)
    if "noh2st" not in XP: e("buffer_store_dwordx4 %s, v30, %s, %s offen sc1" % (vr(AC), srd(SRD_WS), S_OFF))
    e("s_waitcnt vmcnt(0)")
    stamp(4)


    lab("L_prep")
    e("ds_read_b32 v94, v%d offset:%d" % (VZ, L_CNT + 8))
    e("v_and_b32 v26, 3, v0")
    e("v_bfe_u32 v27, v0, 2, 1")
    e("v_lshl_add_u32 v26, v26, 1, v27")
    e("v_mul_u32_u24 v9, %d, v26" % OA_ROW)
    e("v_lshl_add_u32 v9, v24, 4, v9")
    e("s_mul_i32 %s, %s, 640" % (S_T0, S_W))
    e("v_lshlrev_b32 v10, 2, v0")
    e("v_add_u32 v10, %s, v10" % S_T0)
    e("s_waitcnt lgkmcnt(0)")
    e("v_readfirstlane_b32 %s, v94" % S_T0)
    e("v_mov_b32 v62, v94")
    e("v_xor_b32 v63, %s, v94" % TAGX)
    stags()
    e("v_and_b32 v26, 3, v0")
    e("v_mov_b32 v11, s%d" % S_TG)
    for i in range(1, 4):
        e("v_mov_b32 v27, s%d" % (S_TG + i))
        e("v_cmp_eq_u32 vcc, %d, v26" % i)
        e("s_nop 1")
        e("v_cndmask_b32 v11, v11, v27, vcc")
    e("s_lshl_b32 %s, %s, 1" % (S_IT, S_BH))
    e("s_add_u32 %s, %s, %s" % (S_IT, S_IT, S_HALF))
    e("s_mul_i32 %s, %s, 2560" % (S_IT, S_IT))
    e("s_and_b32 %s, s2, 3" % S_C)
    e("s_lshl_b32 %s, %s, 2" % (S_C, S_C))
    e("s_add_u32 %s, %s, %s" % (S_C, S_C, S_W))
    e("s_mul_i32 %s, %s, %d" % (S_C, S_C, 16 * 2560))
    e("s_lshr_b32 %s, s2, 2" % S_T1)
    e("s_lshl_b32 %s, %s, 7" % (S_T1, S_T1))
    e("s_add_u32 %s, %s, %s" % (S_C, S_C, S_T1))
    e("s_add_u32 %s, %s, %d" % (S_A, S_C, 8 * 2560))
    e("v_and_b32 v86, 7, v0")
    e("v_lshlrev_b32 v86, 4, v86")
    e("v_bfe_u32 v87, v0, 4, 1")
    e("v_lshl_add_u32 v86, v87, 3, v86")
    e("v_lshrrev_b32 v87, 5, v0")
    e("v_lshl_add_u32 v86, v87, 2, v86")
    e("v_lshrrev_b32 v87, 3, v0")
    e("v_mul_u32_u24 v87, 2560, v87")
    e("v_and_b32 v28, 7, v0")
    e("v_lshl_add_u32 v87, v28, 4, v87")
    e("s_waitcnt vmcnt(0)")
    stamp(5)
    e("s_cmp_lg_u32 %s, 0" % S_W)
    e("s_cbranch_scc1 L_h8")
    e("v_and_b32 v12, 3, v0")
    e("v_lshlrev_b32 v13, 2, v12")
    e("v_lshlrev_b32 v12, 3, v12")
    e("s_and_b32 %s, s2, 127" % S_OFF)
    e("s_lshl_b32 %s, %s, 7" % (S_OFF, S_OFF))
    e("s_add_u32 %s, %s, 0x%x" % (S_OFF, S_OFF, RC_OFF))
    e("s_lshl_b32 %s, %s, 6" % (S_T1, S_HALF))
    e("s_add_u32 s68, %s, %s" % (S_OFF, S_T1))
    e("s_xor_b32 s69, s68, 64")
    lds_wait(0, "4", 94, VZ, 8 if not FC else 4)
    if FC: e("s_memrealtime s[4:5]")
    e("ds_read_b64 v[14:15], v12 offset:%d" % L_ML)
    e("s_waitcnt lgkmcnt(0)")
    e("v_mov_b32 v60, v14")
    allreduce4("max", 60)
    e("v_sub_f32 v16, v14, v60")
    e("v_mul_f32 v16, %s, v16" % LOG2E)
    e("v_exp_f32 v16, v16")
    e("s_nop 0")
    e("v_mul_f32 v61, v16, v15")
    allreduce4("add", 61)
    if FC:
        e("v_mov_b32 v44, v60")
        e("v_mov_b32 v45, v61")
        e("v_mov_b32 v46, v62")
        e("v_mov_b32 v47, v63")
        e("s_mov_b64 exec, 2")
        e("v_mov_b32 v44, s4")
        e("s_mov_b64 exec, 3")
        e("buffer_store_dwordx4 v[44:47], v2, %s, s68 offen sc1" % srd(SRD_WS))
    else:
        e("s_mov_b64 exec, 1")
        if "nopair" not in XP: e("buffer_store_dwordx4 v[60:63], off, %s, s68 sc1" % srd(SRD_WS))
    e("s_mov_b64 exec, -1")
    stamp(6)
    if "nopair" not in XP: tpoll(["buffer_load_dwordx4 v[40:43], off, %s, s69 sc1" % srd(SRD_WS)], [(40, 62, 63)], xpv("rsl", 32))
    e("v_max_f32 v17, v60, v40")
    e("v_sub_f32 v60, v60, v17")
    e("v_sub_f32 v40, v40, v17")
    e("v_sub_f32 v14, v14, v17")
    e("v_mul_f32 v60, %s, v60" % LOG2E)
    e("v_mul_f32 v40, %s, v40" % LOG2E)
    e("v_mul_f32 v14, %s, v14" % LOG2E)
    e("v_exp_f32 v60, v60")
    e("v_exp_f32 v40, v40")
    e("v_exp_f32 v14, v14")
    e("v_mul_f32 v61, v60, v61")
    e("v_fmac_f32 v61, v40, v41")
    e("v_rcp_f32 v61, v61")
    e("s_nop 0")
    e("v_mul_f32 v14, v14, v61")
    e("ds_write_b32 v13, v14 offset:%d" % L_SC)
    if FC: census(RC_OFF + 16, 6, 5, xpv("tsl", 48))
    e("s_waitcnt lgkmcnt(0)")
    lab("L_h8")
    e("s_sub_u32 %s, %s, 1" % (S_T0, S_W))
    e("s_cmp_lt_u32 %s, 2" % S_T0)
    e("s_cbranch_scc1 L_nc")
    for c in range(4, 8): consume(c)
    e("s_cmp_ge_u32 s2, %d" % NCONS)
    e("s_cbranch_scc1 L_nc")
    e("s_cmp_lg_u32 %s, 3" % S_W)
    e("s_cbranch_scc1 L_nc")
    e("s_lshr_b32 %s, s2, 3" % S_T1)
    e("v_lshrrev_b32 v30, 3, v0")
    e("v_and_b32 v29, 7, v0")
    e("v_lshlrev_b32 v29, 4, v29")
    for k in range(3):
        e("v_add_u32 v31, %d, v30" % (8 * k))
        if k == 2: e("v_min_u32 v31, 17, v31")
        e("v_mul_u32_u24 v31, 10240, v31")
        e("v_add_u32 v%d, v31, v29" % (36 + k))
    e("s_lshl_b32 %s, s2, 7" % S_OFF)
    e("s_add_u32 %s, %s, 0x%x" % (S_OFF, S_OFF, F_OFF))
    lds_wait(0, "1", 94, VZ, 16)
    if "noffn" not in XP and "noh3poll" not in XP: ypoll(["buffer_load_dwordx4 %s, v%d, %s, %s offen sc1" % (vr(40 + 4 * k), 36 + k, srd(SRD_WS), S_OFF) for k in range(3)],
          [(40, 64), (44, 68), (48, 72)], 52, 32)
    e("v_cmp_gt_u32 vcc, 16, v0")
    for i in range(4):
        e("v_add_f32 v%d, v%d, v%d" % (40 + i, 40 + i, 44 + i))
    for i in range(4):
        e("v_cndmask_b32 v%d, 0, v%d, vcc" % (48 + i, 48 + i))
    for i in range(4):
        e("v_add_f32 v%d, v%d, v%d" % (40 + i, 40 + i, 48 + i))
    red8(40)
    e("ds_write_b32 v86, v40 offset:%d" % (L_R + 512))
    e("v_lshlrev_b32 v30, 2, v0")
    e("v_and_b32 v30, 127, v30")
    e("v_sub_f32 v31, 1.0, v%d" % V_G)
    bf16r(31)
    e("s_waitcnt lgkmcnt(0)")
    e("ds_read_b32 v%d, v30 offset:%d" % (V_FB, L_R + 512))
    e("s_waitcnt lgkmcnt(0)")
    bf16r(V_FB)
    e("v_mul_f32 v%d, v31, v%d" % (V_FB, V_FB))
    bf16r(V_FB)
    lab("L_nc")
    if FC and CC:
        e("s_cmp_lg_u32 %s, 1" % S_W)
        e("s_cbranch_scc1 L_nctl")
        for i, c in enumerate(CC): sample(1 + i, c)
        lab("L_nctl")
    lab("L_h9")
    stamp(7)
    e("s_lshl_b32 %s, %s, 7" % (S_T0, S_W))
    e("v_add_u32 v86, %s, v86" % S_T0)
    YPRE = xpv("ypre", 0)
    if YPRE & 1:
        e("s_cmp_ge_u32 s2, %d" % NCONS)
        e("s_cbranch_scc1 L_ypre")
        PP = {0: "sc1", 1: "", 2: "nt", 3: "sc0", 4: "sc1 nt"}[xpv("ypp", 0)]
        if xpv("ypm", 0) == 1:
            e("s_mov_b32 exec_lo, 0x01010101"); e("s_mov_b32 exec_hi, 0x01010101")
        if xpv("ypm", 0) == 2:
            e("s_mov_b32 exec_lo, 0xffff"); e("s_mov_b32 exec_hi, 0")
        e("buffer_load_dwordx4 v[32:35], v87, %s, %s offen %s" % (srd(SRD_WS), S_C, PP))
        e("buffer_load_dwordx4 v[36:39], v87, %s, %s offen %s" % (srd(SRD_WS), S_A, PP))
        e("s_mov_b64 exec, -1")
        e("s_waitcnt vmcnt(0)")
        lab("L_ypre")
    if YPRE & 2:
        e("v_xor_b32 v32, 0x3ff, v11")
        e("buffer_store_dword v32, v10, %s, %s offen sc1" % (srd(SRD_WS), S_IT))
        e("buffer_store_dword v32, v10, %s, %s offen offset:256 sc1" % (srd(SRD_WS), S_IT))
        e("s_mov_b32 exec_hi, 0")
        e("buffer_store_dword v32, v10, %s, %s offen offset:512 sc1" % (srd(SRD_WS), S_IT))
        e("s_mov_b64 exec, -1")
        e("s_waitcnt vmcnt(0)")
    if DRY:
        e("s_mul_i32 s68, %s, 10240" % S_W)
        e("s_add_u32 s68, s68, %d" % L_WO)
        e("v_lshlrev_b32 v28, 2, v0")
        e("v_add_u32 v28, s68, v28")
        e("s_mov_b32 s73, 1")
        e("s_mov_b32 s72, %d" % SPIN_MAX)
        e("s_cmp_eq_u32 s73, 0")
        e("s_branch L_send")
        lab("L_tail")
        e("s_cmp_lg_u32 s73, 0")
        e("s_cbranch_scc1 L_nb")
    e("s_mul_i32 s68, %s, 10240" % S_W)
    e("s_add_u32 s68, s68, %d" % L_WO)
    e("v_lshlrev_b32 v77, 2, v0")
    e("v_add_u32 v77, s68, v77")
    e("v_add_u32 v78, s68, v2")
    e("s_mul_i32 s68, %s, 640" % S_W)
    e("v_add_u32 v79, s68, v2")
    e("s_mov_b32 s68, 0x11111111")
    e("s_mov_b32 s69, 0x11111111")
    e("s_mov_b32 s70, 0x11111111")
    e("s_mov_b32 s71, 0")
    e("s_barrier")
    if DRY: lab("L_nb")
    AF, DT, SC = 12, 32, 72
    POL = {0: "sc1", 1: "sc0 sc1", 2: "sc1 nt", 3: "sc0 sc1 nt"}
    YST, YLD = POL[xpv("yst", 0)], POL[xpv("yld", 0)]
    for s4 in range(4):
        e("ds_read_b128 %s, v9 offset:%d" % (vr(AF + 4 * s4), L_OP + 64 * s4))
    e("ds_read_b128 %s, v%d offset:%d" % (vr(SC), VZ, L_SC))
    YW = xpv("yw", -1000)
    if YW > -1000: e("ds_read_b32 v76, v%d offset:%d" % (VZ, L_CNT + 20))
    ops = []
    pos = [0]
    mark = {}
    def em(x): e(x); pos[0] += 3 if "\n" in x else 1
    def ready(o):
        r = 0
        for pr, d in o[1]:
            if pr is None: r = max(r, d)
            elif pr not in mark: return 1 << 30
            else: r = max(r, mark[pr] + d)
        return r
    def drain(n):
        k = 0
        while k < n:
            c = [o for o in ops if ready(o) <= pos[0]]
            if not c: break
            ops.remove(c[0]); em(c[0][0]); mark[c[0][0]] = pos[0]; k += 1
    last = {}
    for t in range(10):
        d = DT + 4 * t
        for s4 in range(4):
            if t == 0: e("s_waitcnt lgkmcnt(%d)" % (4 - s4 + (YW > -1000)))
            if t == 1 and s4 == 0: e("s_waitcnt lgkmcnt(0)")
            em("%s %s, %s, %s, %s" % (MFMA, vr(d), vr(AF + 4 * s4), vr(W(4 * t + s4)), "0" if s4 == 0 else vr(d)))
            rdy = pos[0] + 8
            if "nopad" in XP and t < xpv("padfrom", 6):
                drain(3)
            elif (t, s4) != (9, 3):
                p0 = pos[0]
                while pos[0] < p0 + 3:
                    q0 = pos[0]
                    drain(1)
                    if pos[0] == q0:
                        k = min([ready(o) for o in ops] + [p0 + 3]) - q0 if ops else p0 + 3 - q0
                        k = min(k, p0 + 3 - q0)
                        if t or s4 == 3: e("s_nop %d" % (k - 1))
                        pos[0] += k if (t or s4 == 3) else 0
                        if not (t or s4 == 3): break
        x = "v_pk_mul_f32 %s, %s, %s" % (vr(d, 2), vr(d, 2), vr(SC, 2))
        ops.append([x, [(None, max(rdy, 9))]])
        y = "v_pk_fma_f32 %s, %s, %s, %s" % (vr(d, 2), vr(d + 2, 2), vr(SC + 2, 2), vr(d, 2))
        ops.append([y, [(x, 0)]])
        x = "v_add_f32 v%d, v%d, v%d" % (d, d, d + 1)
        ops.append([x, [(y, 0)]])
        last[t] = x
        if t & 1:
            a, b = d - 4, d
            x = "v_permlane16_swap_b32 v%d, v%d" % (a, b)
            ops.append([x, [(last[t], 2), (last[t - 1], 2)]])
            y = "v_add_f32 v%d, v%d, v%d" % (a, a, b)
            ops.append([y, [(x, 1)]])
            last[t] = y
            fin = None
            if t & 3 == 3:
                x = "v_permlane32_swap_b32 v%d, v%d" % (d - 12, d - 4)
                ops.append([x, [(y, 2), (last[t - 2], 2)]])
                fin = (d - 12, x, 1)
            elif t == 9:
                fin = (a, y, 0)
            if fin:
                r, x, dd = fin
                y = "v_add_u32 v%d, 0x200, v%d" % (r, r)
                ops.append([y, [(x, dd)]])
                z = "v_bfi_b32 v%d, v%d, v11, v%d" % (r, V_M10, r)
                ops.append([z, [(y, 0)]])
                YT = xpv("yt", 0)
                if YT == 2 or (YT == 1 and t != 9):
                    w1 = "ds_write_b32 v77, v%d offset:%d" % (r, 256 * (t >> 2))
                    ops.append([w1, [(z, 0)]])
                    r1 = "ds_read_b128 %s, v78 offset:%d" % (vr(r), 256 * (t >> 2))
                    ops.append([r1, [(w1, 0)]])
                    st = "s_waitcnt lgkmcnt(0)\n    s_mov_b64 exec, %s\n" % ("0xff" if t == 9 else "0xffff")
                    st += "    buffer_store_dwordx4 %s, v79, %s, %s offen offset:%d %s\n" % (vr(r), srd(SRD_WS), S_IT, 256 * (t >> 2), YST)
                    st += "    s_mov_b64 exec, -1"
                    ops.append([st, [(r1, xpv("ytd", 20) if t != 9 else 0)]])
                    continue
                mv = []
                for i in range(1, 4):
                    mv.append("v_mov_b32_dpp v%d, v%d quad_perm:[%d,%d,%d,%d] row_mask:0xf bank_mask:0xf" % (r + i, r, i, i, i, i))
                    ops.append([mv[-1], [(z, 2)]])
                st = "s_mov_b64 exec, s[%d:%d]\n" % ((70, 71) if t == 9 else (68, 69))
                if DRY: st += "    s_cbranch_scc1 L_ns%d\n" % t
                st += "    buffer_store_dwordx4 %s, v10, %s, %s offen offset:%d %s\n" % (vr(r), srd(SRD_WS), S_IT, 256 * (t >> 2), YST)
                if DRY: st += "L_ns%d:\n" % t
                st += "    s_mov_b64 exec, -1"
                ops.append([st, [(m, 0) for m in mv]])
    crit = [o for o in ops if any(("v%d" % q) in o[0] or ("v[%d" % q) in o[0] for q in (DT + 32, DT + 33, DT + 34, DT + 35, DT + 36))]
    ops[:] = crit + [o for o in ops if o not in crit]
    while ops:
        n = len(ops)
        drain(1)
        if len(ops) == n:
            r = min(ready(o) for o in ops)
            e("s_nop %d" % (r - pos[0] - 1)); pos[0] = r
    stamp(8)
    e("s_cmp_ge_u32 s2, %d" % NCONS)
    e("s_cbranch_scc1 L_hend")
    NS = xpv("ns", 3)
    if YW > -1000:
        e("v_readfirstlane_b32 s70, v76")
        e("s_cmp_eq_u32 s70, 0")
        e("s_cbranch_scc1 L_ywd")
        e("s_add_u32 s70, s70, %d" % (sched(13) + YW))
        lab("L_yw")
        e("s_memrealtime s[4:5]")
        e("s_waitcnt lgkmcnt(0)")
        e("s_sub_u32 s4, s70, s4")
        e("s_cmp_le_i32 s4, 0")
        e("s_cbranch_scc1 L_ywd")
        spin_guard("L_ywd")
        e("s_sleep 1")
        e("s_branch L_yw")
        lab("L_ywd")
    if NS == 0:
        ypoll(["buffer_load_dwordx4 v[12:15], v87, %s, %s offen sc1" % (srd(SRD_WS), S_C),
               "buffer_load_dwordx4 v[16:19], v87, %s, %s offen sc1" % (srd(SRD_WS), S_A)], [(12, 76), (16, 80)], 20, xpv("ysl", 0))
        for i in range(4):
            e("v_add_f32 v%d, v%d, v%d" % (12 + i, 12 + i, 16 + i))
    else:
        def pl(k):
            e("buffer_load_dwordx4 %s, v87, %s, %s offen %s" % (vr(32 + 8 * k), srd(SRD_WS), S_C, YLD))
            e("buffer_load_dwordx4 %s, v87, %s, %s offen %s" % (vr(36 + 8 * k), srd(SRD_WS), S_A, YLD))
        if DRY:
            e("s_cmp_lg_u32 s73, 0")
            e("s_cselect_b64 exec, 1, -1")
        for k in range(NS):
            pl(k)
            if k < NS - 1: e("s_sleep %d" % xpv("yg", 6))
        lab("L_yp")
        for k in range(NS):
            g = 32 + 8 * k
            e("s_waitcnt vmcnt(%d)" % (2 * (NS - 1)))
            e("v_xor_b32 v20, s%d, v%d" % (S_TG, g))
            e("v_xor_b32 v21, s%d, v%d" % (S_TG + 1, g + 1))
            e("v_or_b32 v20, v20, v21")
            for i in range(2, 8, 2):
                e("v_xor_b32 v21, s%d, v%d" % (S_TG + (i & 3), g + i))
                e("v_xor_b32 v22, s%d, v%d" % (S_TG + (i & 3) + 1, g + i + 1))
                e("v_or3_b32 v20, v20, v21, v22")
            e("v_and_b32 v20, 0x3ff, v20")
            e("v_cmp_ne_u32 vcc, 0, v20")
            e("s_andn2_b64 exec, exec, vcc")
            for i in range(4):
                e("v_add_f32 v%d, v%d, v%d" % (12 + i, g + i, g + 4 + i))
            e("s_mov_b64 exec, vcc")
            e("s_cbranch_execz L_ypd")
            pl(k)
        spin_guard("L_ypd")
        e("s_branch L_yp")
        lab("L_ypd")
        e("s_mov_b64 exec, -1")
    red8(12)
    e("ds_write_b32 v86, v12 offset:%d" % L_R)
    e("v_lshlrev_b32 v12, 2, v0")
    e("s_waitcnt lgkmcnt(0)")
    if DRY:
        e("s_cmp_lg_u32 s73, 0")
        e("s_cbranch_scc1 L_nb2")
    e("s_barrier")
    if DRY: lab("L_nb2")
    e("s_cmp_lg_u32 %s, 3" % S_W)
    e("s_cbranch_scc1 L_hend")
    e("s_mov_b32 exec_hi, 0")
    for w in range(4):
        e("ds_read_b32 v%d, v12 offset:%d" % (24 + w, L_R + w * 128))
    mk_srd(SRD_X, "s36", "s37", 5120)
    e("s_and_b32 s5, s2, 3")
    e("s_mul_i32 %s, s5, 1280" % S_T0)
    e("s_lshr_b32 %s, s2, 2" % S_T1)
    e("s_lshl_b32 %s, %s, 6" % (S_T1, S_T1))
    e("s_add_u32 %s, %s, %s" % (S_T0, S_T0, S_T1))
    e("v_lshlrev_b32 v12, 1, v0")
    if DRY: e("s_cmp_lg_u32 s73, 0")
    e("s_waitcnt lgkmcnt(0)")
    e("v_add_f32 v24, v24, v25"); e("v_add_f32 v26, v26, v27")
    e("v_add_f32 v24, v24, v26")
    bf16r(24)
    e("v_mul_f32 v24, v%d, v24" % V_G)
    bf16r(24)
    e("v_add_f32 v24, v24, v%d" % V_FB)
    e("v_cvt_pk_bf16_f32 v24, v24, v24")
    if DRY: e("s_cbranch_scc1 L_hend")
    e("buffer_store_short v24, v12, %s, %s offen" % (srd(SRD_X), S_T0))
    lab("L_hend")
    if DRY:
        e("s_cmp_eq_u32 s73, 0")
        e("s_cbranch_scc1 L_hfin")
        e("s_mov_b32 s73, 0")
        e("s_mov_b32 s72, 0")
        e("s_mov_b64 exec, -1")
        e("s_branch L_tail")
        lab("L_hfin")
    stamp(9)
    stamps_out(4)


def main():
    ref = open("cdna_kernels/%s.s.ref" % NAME).read().split("\n")
    head = []
    for ln in ref:
        if ln.startswith("; @launch"):
            break
        head.append(ln)
    out = head + ["; @launch grid=(%d,1,1) block=(512,1,1) lds=%d" % (NWG, LDS_BYTES)]
    out += ['.amdgcn_target "amdgcn-amd-amdhsa--gfx950"', ".text", ".globl " + KNAME, ".p2align 8",
            ".type %s,@function" % KNAME, KNAME + ":"]
    e("s_cmp_ge_u32 s2, %d" % NWG)
    e("s_cbranch_scc1 L_end")
    if TS and "t00" in XP:
        e("s_memrealtime s[98:99]")
        e("s_waitcnt lgkmcnt(0)")
    e("s_load_dwordx16 s[16:31], s[0:1], 0")
    e("s_load_dwordx8 s[32:39], s[0:1], 64")
    e("s_load_dwordx2 s[40:41], s[0:1], 96")
    if "anti" in XP:
        e("s_and_b32 s4, s2, 7")
        e("s_lshl_b32 s4, s4, 5")
        e("s_lshr_b32 s2, s2, 3")
        e("s_or_b32 s2, s2, s4")
    e("v_lshrrev_b32 v1, 6, v0")
    e("v_and_b32 v0, 63, v0")
    e("s_mov_b32 s72, 0")
    e("v_readfirstlane_b32 %s, v1" % S_W)
    e("s_and_b32 s4, s2, 7")
    e("s_lshr_b32 s5, s2, 3")
    e("s_and_b32 %s, s5, 3" % S_H)
    e("s_lshl_b32 %s, %s, 3" % (S_H, S_H))
    e("s_add_u32 %s, %s, s4" % (S_H, S_H))
    e("s_lshr_b32 %s, s5, 2" % S_B)
    e("s_and_b32 %s, %s, 3" % (S_B, S_B))
    e("s_lshr_b32 %s, s5, 4" % S_HALF)
    e("s_lshl_b32 %s, %s, 5" % (S_BH, S_B))
    e("s_add_u32 %s, %s, %s" % (S_BH, S_BH, S_H))
    if TS:
        for i in range(NSTAMP): e("s_mov_b32 s%d, 0" % (76 + 2 * i))
    e("s_cmp_ge_u32 %s, 4" % S_W)
    e("s_cbranch_scc1 L_helper")
    if TS and "t00" in XP: e("s_mov_b32 s88, s98")
    streamer()
    helper()
    lab("L_end")
    e("s_endpgm")
    lab("L_code_end")
    out += L
    out += ['.section .rodata,"a"', ".p2align 6", ".amdhsa_kernel " + KNAME,
            "  .amdhsa_next_free_vgpr 256", "  .amdhsa_next_free_sgpr %d" % (100 if TS else 80), "  .amdhsa_accum_offset 256",
            "  .amdhsa_group_segment_fixed_size 0", "  .amdhsa_kernarg_size 104",
            "  .amdhsa_user_sgpr_count 2", "  .amdhsa_user_sgpr_kernarg_segment_ptr 1",
            "  .amdhsa_system_sgpr_workgroup_id_x 1", "  .amdhsa_float_denorm_mode_32 3",
            ".end_amdhsa_kernel", ""]
    open(OUT, "w").write("\n".join(out))

main()
```

```python
import sys

NAME = "gated_mix__mha_block_cached__glu_gated_bilinear__decode"
KNAME = NAME + "_kernel"
TS = "--ts" in sys.argv
XP = [a[2:] for a in sys.argv if a.startswith("--")]
OUT = [a for a in sys.argv[1:] if not a.startswith("--")]
OUT = OUT[0] if OUT else "cdna_kernels/%s.s" % NAME
def xpv(name, default):
    for a in XP:
        if a.startswith(name + "="): return int(a.split("=")[1])
    return default

FS = xpv("fs", 1)
NWG, NCONS, NF2 = 256, 80, 180 // FS
NWARM = xpv("nwarm", 5)
Y_OFF = 0
F_OFF = 0xA0000
QX_OFF = 0xD0000
GX_OFF = 0xF0000
RC_OFF = 0x10C000
CT_OFF = 0x110000
WS_USED = 0x130000
WS_BASE = xpv("wsmb", 0) << 20
DBG_WS = 8 << 20
WS_REC = (WS_USED if not TS else (64 << 20))
D = xpv("d", 8)
C0 = xpv("c0", 12)
WO_WIN = xpv("wowin", 5)
NB = 8
FC = "nofc" not in XP
XK = [0, xpv("xk1", 1), xpv("xk2", 2)]
XV = [0, xpv("xv1", 2), xpv("xv2", 4)]
KDL, DLT = xpv("kdl", 235), xpv("dlt", 225)
TH1, TH2 = xpv("th1", 0), xpv("th2", 60)
CA = xpv("ca", 1)
CC = [7, 9]
for a in XP:
    if a.startswith("cc="): CC = [int(x) for x in a[3:].split(",") if int(x)]
def sched(n): return (min(n, 5) - 1) * KDL + max(n - 5, 0) * DLT
V_ONE, V_FLAG, S_FLAG = 40, 41, "s69"
DRY = "dry" in XP and FC
assert D % 4 == 0 and 4 <= D <= 16

P_ROW = 64 * NB + 16
P_WAVE = 4 * P_ROW
L_QB = 8448
L_OP = 8704
OA_ROW = 272
L_ML = 10880
L_CNT = 10912
L_SC = 10944
L_R = 11008
L_HT = 11904
L_WQ = 12800
L_X0 = 33280
L_WF = 38400
L_X1 = 58880
L_WO = 64000
NBUF = xpv("nbuf", 4)
L_SY = 11648
LDS_BYTES = L_WO + 20480 * NBUF
assert 4 * P_WAVE <= L_QB

L = []
def e(s): L.append("    " + s)
def lab(s): L.append(s + ":")
def cmt(s): L.append("    ; " + s)
def vr(a, n=4): return "v[%d:%d]" % (a, a + n - 1)

S_W, S_H, S_B, S_HALF, S_BH = "s3", "s6", "s7", "s8", "s9"
S_OFF, S_IT, S_T0, S_T1, S_A = "s10", "s11", "s12", "s13", "s14"
S_C, S_I = "s15", "s74"
SRD_S, SRD_W, SRD_WS, SRD_DBG, SRD_X = 44, 48, 52, 56, 60
S_TG = 64
S_P = 68
def srd(n): return "s[%d:%d]" % (n, n + 3)
def mk_srd(n, lo, hi, nrec):
    e("s_mov_b32 s%d, %s" % (n, lo))
    e("s_mov_b32 s%d, %s" % (n + 1, hi))
    e("s_mov_b32 s%d, 0x%x" % (n + 2, nrec))
    e("s_mov_b32 s%d, 0x00020000" % (n + 3))
def mk_ws():
    if WS_BASE:
        e("s_add_u32 s%d, s40, 0x%x" % (SRD_WS, WS_BASE))
        e("s_addc_u32 s%d, s41, 0" % (SRD_WS + 1))
        e("s_mov_b32 s%d, 0x%x" % (SRD_WS + 2, WS_USED))
        e("s_mov_b32 s%d, 0x00020000" % (SRD_WS + 3))
    else:
        mk_srd(SRD_WS, "s40", "s41", WS_USED)

BUF = 64
WREG = 96
def B(i): return BUF + 4 * i
def W(i): return WREG + 4 * i

LOG2E = "0x3fb8aa3b"
SCALE = "0x3db504f3"
MFMA = "v_mfma_f32_16x16x32_bf16"
TAGX = "0x9e3779b9"

def sel_pv(dst, t):
    a, b, c = t, t + 1, t + 2
    e("v_mov_b32 v%d, 0x100" % a)
    e("v_mov_b32 v%d, 0x302" % b)
    e("v_and_b32 v%d, 8, v0" % c)
    e("v_cmp_ne_u32 vcc, 0, v%d" % c)
    e("s_nop 1")
    e("v_cndmask_b32 v%d, v%d, v%d, vcc" % (a, a, b))
    e("v_or_b32 v%d, 0x0c0c0000, v%d" % (b, a))
    e("v_lshlrev_b32 v%d, 16, v%d" % (a, a))
    e("v_or_b32 v%d, 0x0c0c, v%d" % (a, a))
    e("v_and_b32 v%d, 1, v0" % c)
    e("v_cmp_ne_u32 vcc, 0, v%d" % c)
    e("s_nop 1")
    e("v_cndmask_b32 v%d, v%d, v%d, vcc" % (a, b, a))
    e("v_mov_b32 v%d, 0x0c0c0c0c" % b)
    e("v_bfe_u32 v%d, v0, 1, 2" % c)
    for i in range(4):
        e("v_cmp_eq_u32 vcc, %d, v%d" % (i, c))
        e("s_nop 1")
        e("v_cndmask_b32 v%d, v%d, v%d, vcc" % (dst + i, b, a))

def allreduce64(op, v, t):
    for r in (8, 4, 2, 1):
        e("s_nop 1")
        e("v_%s_f32_dpp v%d, v%d, v%d row_ror:%d row_mask:0xf bank_mask:0xf" % (op, v, v, v, r))
    for sw in ("16", "32"):
        e("v_mov_b32 v%d, v%d" % (t, v))
        e("s_nop 1")
        e("v_permlane%s_swap_b32 v%d, v%d" % (sw, v, t))
        e("s_nop 1")
        e("v_%s_f32 v%d, v%d, v%d" % (op, v, v, t))

def allreduce4(op, v):
    for m in ("quad_perm:[1,0,3,2]", "quad_perm:[2,3,0,1]"):
        e("s_nop 1")
        e("v_%s_f32_dpp v%d, v%d, v%d %s row_mask:0xf bank_mask:0xf" % (op, v, v, v, m))

def bf16r(v):
    e("v_cvt_pk_bf16_f32 v%d, v%d, v%d" % (v, v, v))
    e("v_lshlrev_b32 v%d, 16, v%d" % (v, v))

def hilo_pack(a, b, t):
    e("v_cvt_pk_bf16_f32 v%d, v%d, v%d" % (t, a, b))
    e("v_lshlrev_b32 v%d, 16, v%d" % (t + 1, t))
    e("v_and_b32 v%d, 0xffff0000, v%d" % (t + 2, t))
    e("v_sub_f32 v%d, v%d, v%d" % (t + 1, a, t + 1))
    e("v_sub_f32 v%d, v%d, v%d" % (t + 2, b, t + 2))
    e("v_cvt_pk_bf16_f32 v%d, v%d, v%d" % (t + 1, t + 1, t + 2))
    e("v_perm_b32 v%d, v%d, v%d, %s" % (a, t + 1, t, S_T0))
    e("v_perm_b32 v%d, v%d, v%d, %s" % (b, t + 1, t, S_T1))

def stream_load(t):
    e("buffer_load_dwordx4 %s, v1, %s, %s offen nt" % (vr(B(t)), srd(SRD_S), S_OFF))
    e("s_add_u32 %s, %s, 0x1000" % (S_OFF, S_OFF))

NSTAMP = 10
def stamp(i):
    if not TS: return
    e("s_memrealtime s[%d:%d]" % (76 + 2 * i, 77 + 2 * i))
    e("s_waitcnt lgkmcnt(0)")

def stamps_out(w8off):
    if not TS: return
    e("s_mov_b64 exec, 1")
    mk_srd(SRD_WS, "s40", "s41", 64 << 20)
    e("s_lshl_b32 s12, s2, 3")
    e("s_add_u32 s12, s12, %s" % S_W)
    e("s_add_u32 s12, s12, %d" % w8off)
    e("s_lshl_b32 s12, s12, 6")
    e("s_add_u32 s12, s12, 0x%x" % DBG_WS)
    for i in range(NSTAMP):
        e("v_mov_b32 v5, s%d" % (76 + 2 * i))
        e("buffer_store_dword v5, off, %s, s12 offset:%d" % (srd(SRD_WS), 4 * i))
    e("s_getreg_b32 s13, hwreg(HW_REG_XCC_ID)")
    e("v_mov_b32 v5, s13")
    e("buffer_store_dword v5, off, %s, s12 offset:56" % srd(SRD_WS))
    e("s_getreg_b32 s13, hwreg(HW_REG_HW_ID)")
    e("v_mov_b32 v5, s13")
    e("buffer_store_dword v5, off, %s, s12 offset:60" % srd(SRD_WS))

SPIN_MAX = 400000
def spin_guard(exit_lbl):
    e("s_add_u32 s72, s72, 1")
    e("s_cmp_gt_u32 s72, %d" % SPIN_MAX)
    e("s_cbranch_scc1 %s" % exit_lbl)

NLAB = [0]
def newlab(p):
    NLAB[0] += 1
    return "L_%s%d" % (p, NLAB[0])

def lds_wait(off, target, vt, va, sleep=1):
    l0, l1 = newlab("lw"), newlab("lw")
    lab(l0)
    e("ds_read_b32 v%d, v%d offset:%d" % (vt, va, L_CNT + off))
    e("s_waitcnt lgkmcnt(0)")
    e("v_readfirstlane_b32 %s, v%d" % (S_T0, vt))
    e("s_cmp_ge_u32 %s, %s" % (S_T0, target))
    e("s_cbranch_scc1 %s" % l1)
    spin_guard(l1)
    e("s_sleep %d" % sleep)
    e("s_branch %s" % l0)
    lab(l1)

def lds_signal(off, vt, va):
    e("v_mov_b32 v%d, 1" % vt)
    e("s_mov_b64 exec, 1")
    e("ds_add_u32 v%d, v%d offset:%d" % (va, vt, L_CNT + off))
    e("s_mov_b64 exec, -1")

def fc_end(dl):
    e("s_memrealtime s[70:71]")
    e("s_mov_b64 exec, 1")
    e("ds_add_u32 v30, v%d offset:%d" % (V_ONE, L_CNT + 12))
    e("s_mov_b64 exec, -1")
    e("s_waitcnt lgkmcnt(0)")
    e("v_readfirstlane_b32 s71, v%d" % V_FLAG)
    e("s_sub_u32 s70, s68, s70")
    e("s_add_u32 s70, s70, s71")
    e("s_add_u32 s68, s68, %s" % dl)
    e("s_cmp_gt_i32 s70, %d" % TH1)
    e("s_cselect_b32 %s, 1, 0" % S_FLAG)
    e("s_cmp_gt_i32 s70, %d" % TH2)
    e("s_cselect_b32 %s, 2, %s" % (S_FLAG, S_FLAG))
    e("s_cmp_eq_u32 s71, 0")
    e("s_cselect_b32 %s, 0, %s" % (S_FLAG, S_FLAG))

def k_body(b0, waits, loads, pre=None, steady=False):
    P = [8, 9, 10, 11]; Y0, Y1, Z, T, S, TMP = 12, 13, 14, 15, 16, 17
    for G in range(4):
        ld = list(loads[G])
        def nxt():
            if ld: stream_load(ld.pop(0))
        e("s_waitcnt vmcnt(%d)" % waits[G])
        for k in range(4):
            for u in range(4):
                c = "0" if k == 0 else "v%d" % P[u]
                e("v_dot2_f32_bf16 v%d, v%d, v%d, %s" % (P[u], B(b0 + 4 * G + u) + k, 4 + k, c))
        if pre and pre.get(G): pre[G]()
        e("v_add_f32_dpp v%d, v%d, v%d row_ror:8 row_mask:0xf bank_mask:0x3" % (Y0, P[0], P[0]))
        e("v_add_f32_dpp v%d, v%d, v%d row_ror:8 row_mask:0xf bank_mask:0xc" % (Y0, P[1], P[1]))
        e("v_add_f32_dpp v%d, v%d, v%d row_ror:8 row_mask:0xf bank_mask:0x3" % (Y1, P[2], P[2]))
        e("v_add_f32_dpp v%d, v%d, v%d row_ror:8 row_mask:0xf bank_mask:0xc" % (Y1, P[3], P[3]))
        nxt()
        if len(loads[G]) < 1: e("s_nop 1")
        e("v_add_f32_dpp v%d, v%d, v%d row_half_mirror row_mask:0xf bank_mask:0x5" % (Z, Y0, Y0))
        e("v_add_f32_dpp v%d, v%d, v%d row_half_mirror row_mask:0xf bank_mask:0xa" % (Z, Y1, Y1))
        nxt()
        if len(loads[G]) < 2: e("s_nop 1")
        e("v_add_f32_dpp v%d, v%d, v%d quad_perm:[1,0,3,2] row_mask:0xf bank_mask:0xf" % (Z, Z, Z))
        nxt()
        if len(loads[G]) < 3: e("s_nop 1")
        d = S if G == 0 else T
        e("v_add_f32_dpp v%d, v%d, v%d quad_perm:[2,3,0,1] row_mask:0xf bank_mask:0xf" % (d, Z, Z))
        nxt()
        assert not ld
        if G:
            e("v_cndmask_b32 v%d, v%d, v%d, s[%d:%d]" % (S, S, T, 60 + 2 * G, 61 + 2 * G))
    e("v_cvt_pk_bf16_f32 v%d, v%d, v%d" % (TMP, S, S))
    e("v_lshlrev_b32 v%d, 16, v%d" % (TMP, TMP))
    e("v_mul_f32 v%d, %s, v%d" % (TMP, SCALE, TMP))
    bf16r(TMP)
    e("s_add_u32 %s, %s, 1" % (S_IT, S_IT))
    e("v_max_f32 v3, v3, v%d" % TMP)
    if FC and steady: e("ds_read_b32 v%d, v30 offset:%d" % (V_FLAG, L_CNT + 20))
    e("ds_write_b32 v2, v%d" % TMP)
    e("v_add_u32 v2, 64, v2")
    if FC and steady:
        fc_end(str(KDL))

def v_body(x=0):
    A, ACC = 8, 20
    PB = [12, 16]
    for G in range(4):
        e("s_waitcnt lgkmcnt(0)")
        e("ds_read_b128 %s, v2 offset:%d" % (vr(PB[(G + 1) & 1]), (G + 1) * 16))
        if FC and G == 3: e("ds_read_b32 v%d, v30 offset:%d" % (V_FLAG, L_CNT + 20))
        for u in range(4):
            t = 4 * G + u
            p = PB[G & 1] + u
            for i in range(4):
                e("v_perm_b32 v%d, v%d, v%d, v%d" % (A + i, p, p, 4 + i))
            e("s_waitcnt vmcnt(%d)" % (D - 1 - x))
            e("s_nop 0")
            e("%s %s, %s, %s, %s" % (MFMA, vr(ACC), vr(A), vr(B(t)), vr(ACC)))
            stream_load((t + D) % 16)
    e("s_add_u32 %s, %s, 1" % (S_IT, S_IT))
    if FC and "nolast" not in XP:
        e("s_cmp_eq_u32 %s, %d" % (S_IT, NB))
        e("s_cbranch_scc1 L_vd")
    e("v_add_u32 v2, 64, v2")
    if FC: fc_end(str(DLT))

def streamer():
    cmt("---- streaming waves")
    e("s_lshl_b32 %s, %s, 20" % (S_T0, S_BH))
    e("s_lshl_b32 %s, %s, 19" % (S_T1, S_HALF))
    e("s_add_u32 %s, %s, %s" % (S_T0, S_T0, S_T1))
    e("s_lshl_b32 %s, %s, 10" % (S_T1, S_W))
    e("v_lshlrev_b32 v1, 4, v0")
    e("v_add_u32 v1, %s, v1" % S_T1)
    e("s_mov_b32 s%d, 0x%x" % (SRD_S + 2, NB << 16))
    e("s_mov_b32 s%d, 0x00020000" % (SRD_S + 3))
    e("s_mov_b32 %s, 0" % S_OFF)
    e("s_waitcnt lgkmcnt(0)")
    stamp(0)
    e("s_add_u32 s%d, s18, %s" % (SRD_S, S_T0))
    e("s_addc_u32 s%d, s19, 0" % (SRD_S + 1))
    e("s_add_u32 s42, s20, %s" % S_T0)
    e("s_addc_u32 s43, s21, 0")
    PRE = min(xpv("pre", 4), C0)
    for t in range(PRE):
        stream_load(t)
    e("s_barrier")
    for t in range(PRE, C0):
        stream_load(t)
    for i, m in enumerate((0x22222222, 0x44444444, 0x88888888)):
        e("s_mov_b32 s%d, 0x%x" % (62 + 2 * i, m)); e("s_mov_b32 s%d, 0x%x" % (63 + 2 * i, m))
    e("v_lshrrev_b32 v24, 4, v0")
    e("v_and_b32 v25, 15, v0")
    e("v_lshlrev_b32 v25, 4, v25")
    e("v_mul_u32_u24 v2, %d, v24" % P_ROW)
    e("s_mul_i32 %s, %s, %d" % (S_T0, S_W, P_WAVE))
    e("v_add_u32 v28, %s, v2" % S_T0)
    e("v_and_b32 v26, 3, v0")
    e("v_lshlrev_b32 v26, 4, v26")
    e("v_bfe_u32 v27, v0, 2, 1")
    e("v_lshl_add_u32 v26, v27, 3, v26")
    e("v_bfe_u32 v27, v0, 3, 1")
    e("v_lshl_add_u32 v26, v27, 2, v26")
    e("v_add_u32 v2, v28, v26")
    e("v_mov_b32 v29, v2")
    e("v_mov_b32 v3, 0xff800000")
    e("v_mov_b32 v30, 0")
    e("v_mov_b32 v%d, 1" % V_ONE)
    e("s_mov_b32 %s, 0" % S_FLAG)
    e("s_mov_b32 s68, 0")
    e("s_mov_b32 %s, 0" % S_IT)
    for t in range(C0, 48):
        e("s_waitcnt vmcnt(%d)" % (C0 - 1))
        if "t1" in XP and t in (C0, C0 + 6, C0 + 12, C0 + 24): stamp({C0: 6, C0 + 6: 7, C0 + 12: 8, C0 + 24: 9}[t])
        stream_load(t)
    stamp(1)
    lds_wait(4, "1", 31, 30)
    e("ds_read_b128 v[4:7], v25 offset:%d" % L_QB)
    e("s_waitcnt lgkmcnt(0)")
    stamp(2)
    iss = 0
    for th in range(3):
        waits, loads = [], []
        for G in range(4):
            g = 4 * th + G
            waits.append(44 - 4 * g + iss)
            n = (g + 1) * D // 12 - g * D // 12
            loads.append(list(range(iss, iss + n))); iss += n
        k_body(16 * th, waits, loads)
    assert iss == D
    def switch():
        e("s_cmp_eq_u32 %s, %d" % (S_IT, NB - 1))
        e("s_cselect_b32 s%d, s42, s%d" % (SRD_S, SRD_S))
        e("s_cselect_b32 s%d, s43, s%d" % (SRD_S + 1, SRD_S + 1))
        e("s_cselect_b32 %s, 0, %s" % (S_OFF, S_OFF))
    def loops(pfx, body):
        if not FC:
            lab(pfx + "0")
            body(0)
            e("s_cmp_lg_u32 %s, %d" % (S_IT, NB))
            e("s_cbranch_scc1 %s0" % pfx)
            return
        e("s_branch %sn" % pfx)
        for lv in (2, 1, 0):
            lab(pfx + str(lv))
            body(lv)
            if lv: e("s_branch %sc" % pfx)
        lab(pfx + "c")
        e("s_cmp_eq_u32 %s, %d" % (S_IT, NB))
        e("s_cbranch_scc1 %sd" % pfx)
        lab(pfx + "n")
        e("s_cmp_eq_u32 %s, 0" % S_FLAG)
        e("s_cbranch_scc1 %s0" % pfx)
        e("s_cmp_eq_u32 %s, 1" % S_FLAG)
        e("s_cbranch_scc1 %s1" % pfx)
        e("s_branch %s2" % pfx)
        lab(pfx + "d")
    loops("L_k", lambda lv: k_body(0, [D - 4 - XK[lv]] * 4, [[(4 * G + u + D) % 16 for u in range(4)] for G in range(4)], {(16 - D) // 4: switch}, True))
    stamp(3)
    for k in range(NB):
        e("ds_read_b32 v%d, v29 offset:%d" % (32 + k, 64 * k))
    allreduce64("max", 3, 16)
    e("s_mov_b32 %s, 0x05040100" % S_T0)
    e("s_mov_b32 %s, 0x07060302" % S_T1)
    e("s_waitcnt lgkmcnt(0)")
    for k in range(NB):
        e("v_sub_f32 v%d, v%d, v3" % (32 + k, 32 + k))
    for k in range(NB):
        e("v_mul_f32 v%d, %s, v%d" % (32 + k, LOG2E, 32 + k))
    for k in range(NB):
        e("v_exp_f32 v%d, v%d" % (32 + k, 32 + k))
    e("s_nop 0")
    e("v_add_f32 v24, v32, v33")
    for k in range(2, NB):
        e("v_add_f32 v24, v24, v%d" % (32 + k))
    for k in range(NB // 2):
        hilo_pack(32 + 2 * k, 33 + 2 * k, 16)
    for k in range(NB):
        e("ds_write_b32 v29, v%d offset:%d" % (32 + k, 64 * k))
    e("v_mov_b32 v2, v28")
    e("ds_read_b128 %s, v2" % vr(12))
    allreduce64("add", 24, 20)
    sel_pv(4, 8)
    e("v_mov_b32 v25, v24")
    e("v_mov_b32 v24, v3")
    e("s_lshl_b32 %s, %s, 3" % (S_T0, S_W))
    e("v_mov_b32 v26, %s" % S_T0)
    e("s_mov_b64 exec, 1")
    e("ds_write_b64 v26, v[24:25] offset:%d" % L_ML)
    e("s_mov_b64 exec, -1")
    lds_signal(0, 27, 30)
    for i in range(4):
        e("v_mov_b32 v%d, 0" % (20 + i))
    e("s_mov_b32 %s, 0" % S_IT)
    e("v_bfe_u32 v26, v0, 2, 2")
    e("v_lshlrev_b32 v27, 6, v26")
    e("v_and_b32 v26, 1, v0")
    e("v_lshl_add_u32 v27, v26, 5, v27")
    e("v_bfe_u32 v26, v0, 4, 1")
    e("v_lshl_add_u32 v27, v26, 4, v27")
    e("v_bfe_u32 v26, v0, 1, 1")
    e("v_lshl_add_u32 v27, v26, 3, v27")
    e("v_lshrrev_b32 v26, 5, v0")
    e("s_mul_i32 %s, %s, %d" % (S_T0, S_W, 2 * OA_ROW))
    e("s_add_u32 %s, %s, %d" % (S_T0, S_T0, L_OP))
    e("v_lshl_add_u32 v28, v26, 2, v27")
    e("v_add_u32 v28, %s, v28" % S_T0)
    stamp(4)
    if FC: e("s_mov_b32 s68, %d" % sched(6))
    loops("L_v", lambda lv: v_body(XV[lv]))
    stamp(5)
    ACC = 20
    lab("L_send")
    e("s_nop 4")
    e("v_permlane32_swap_b32 v%d, v%d" % (ACC, ACC + 2))
    e("v_permlane32_swap_b32 v%d, v%d" % (ACC + 1, ACC + 3))
    e("s_nop 0")
    e("v_add_f32 v%d, v%d, v%d" % (ACC, ACC, ACC + 2))
    e("v_add_f32 v%d, v%d, v%d" % (ACC + 1, ACC + 1, ACC + 3))
    e("v_cvt_pk_bf16_f32 v12, v%d, v%d" % (ACC, ACC + 1))
    e("ds_write_b32 v28, v12")
    e("v_lshlrev_b32 v13, 16, v12")
    e("v_and_b32 v14, 0xffff0000, v12")
    e("v_sub_f32 v13, v%d, v13" % ACC)
    e("v_sub_f32 v14, v%d, v14" % (ACC + 1))
    e("v_cvt_pk_bf16_f32 v13, v13, v14")
    e("ds_write_b32 v28, v13 offset:%d" % OA_ROW)
    e("s_waitcnt lgkmcnt(0)")
    if DRY: e("s_cbranch_scc0 L_tail")
    e("s_barrier")
    stamps_out(0)
    e("s_endpgm")

VZ = 95
V_G, V_FB, V_M10 = 91, 92, 93

def tpoll(loads, grans, sleep, ex="-1"):
    l0, l1 = newlab("tp"), newlab("tp")
    lab(l0)
    for x in loads: e(x)
    e("s_waitcnt vmcnt(0)")
    for g, t0, t1 in grans:
        e("v_xor_b32 v%d, v%d, v%d" % (g + 2, g + 2, t0))
        e("v_xor_b32 v%d, v%d, v%d" % (g + 3, g + 3, t1))
    g0 = grans[0][0]
    e("v_or_b32 v%d, v%d, v%d" % (g0 + 2, g0 + 2, g0 + 3))
    for g, _, _ in grans[1:]:
        e("v_or3_b32 v%d, v%d, v%d, v%d" % (g0 + 2, g0 + 2, g + 2, g + 3))
    e("v_cmp_ne_u32 vcc, 0, v%d" % (g0 + 2))
    e("s_cbranch_vccz %s" % l1)
    spin_guard(l1)
    e("s_mov_b64 exec, vcc")
    if sleep: e("s_sleep %d" % sleep)
    e("s_branch %s" % l0)
    lab(l1)
    e("s_mov_b64 exec, %s" % ex)

def ypoll(loads, grans, t, sleep, ex="-1"):
    l0, l1 = newlab("yp"), newlab("yp")
    lab(l0)
    for x in loads: e(x)
    e("s_waitcnt vmcnt(0)")
    first = True
    for g, tg in grans:
        for i in range(0, 4, 2):
            if first:
                e("v_xor_b32 v%d, s%d, v%d" % (t, S_TG + i, g + i))
                e("v_xor_b32 v%d, s%d, v%d" % (t + 1, S_TG + i + 1, g + i + 1))
                e("v_or_b32 v%d, v%d, v%d" % (t, t, t + 1)); first = False
            else:
                e("v_xor_b32 v%d, s%d, v%d" % (t + 1, S_TG + i, g + i))
                e("v_xor_b32 v%d, s%d, v%d" % (t + 2, S_TG + i + 1, g + i + 1))
                e("v_or3_b32 v%d, v%d, v%d, v%d" % (t, t, t + 1, t + 2))
    e("v_and_b32 v%d, 0x3ff, v%d" % (t, t))
    e("v_cmp_ne_u32 vcc, 0, v%d" % t)
    e("s_cbranch_vccz %s" % l1)
    spin_guard(l1)
    e("s_mov_b64 exec, vcc")
    if sleep: e("s_sleep %d" % sleep)
    e("s_branch %s" % l0)
    lab(l1)
    e("s_mov_b64 exec, %s" % ex)

def nonce_fetch(regs_offs):
    l0, l1 = newlab("nf"), newlab("nf")
    lab(l0)
    for d, o in regs_offs:
        e("buffer_load_dword v%d, v%d, %s, 0 offen sc1" % (d, o, srd(SRD_DBG)))
    e("s_waitcnt vmcnt(0)")
    ds = [d for d, _ in regs_offs]
    e("v_min_u32 v94, v%d, v%d" % (ds[0], ds[-1]))
    for d in ds[1:-1]:
        e("v_min_u32 v94, v94, v%d" % d)
    e("v_cmp_eq_u32 vcc, 0, v94")
    e("s_cbranch_vccz %s" % l1)
    spin_guard(l1)
    e("s_sleep 16")
    e("s_branch %s" % l0)
    lab(l1)

def head_off(dst, h):
    e("v_and_b32 v%d, 15, v%d" % (dst, h))
    e("v_lshrrev_b32 v%d, 4, v%d" % (h, h))
    e("v_lshlrev_b32 v%d, 2, v%d" % (dst, dst))
    e("v_lshl_add_u32 v%d, v%d, 7, v%d" % (dst, h, dst))

def vtags(n):
    e("v_lshrrev_b32 v%d, 10, v%d" % (n + 1, n))
    e("v_lshrrev_b32 v%d, 20, v%d" % (n + 2, n))
    e("v_not_b32 v%d, v%d" % (n + 3, n))
    e("v_alignbit_b32 v%d, v%d, v%d, 30" % (n + 3, n + 3, n))

def stags():
    e("s_mov_b32 s%d, %s" % (S_TG, S_T0))
    e("s_lshr_b32 s%d, %s, 10" % (S_TG + 1, S_T0))
    e("s_lshr_b32 s%d, %s, 20" % (S_TG + 2, S_T0))
    e("s_not_b32 s%d, %s" % (S_TG + 3, S_T0))
    e("s_lshl_b32 s%d, s%d, 2" % (S_TG + 3, S_TG + 3))
    e("s_lshr_b32 %s, %s, 30" % (S_T0, S_T0))
    e("s_or_b32 s%d, s%d, %s" % (S_TG + 3, S_TG + 3, S_T0))

def ypack(r):
    for i in range(4):
        e("v_add_u32 v%d, 0x200, v%d" % (r + i, r + i))
    for i in range(4):
        e("v_bfi_b32 v%d, v%d, s%d, v%d" % (r + i, V_M10, S_TG + i, r + i))

def red8(a):
    e("s_nop 1")
    e("v_permlane32_swap_b32 v%d, v%d" % (a, a + 1))
    e("v_permlane32_swap_b32 v%d, v%d" % (a + 2, a + 3))
    e("s_nop 1")
    e("v_add_f32 v%d, v%d, v%d" % (a, a, a + 1))
    e("v_add_f32 v%d, v%d, v%d" % (a + 2, a + 2, a + 3))
    e("s_nop 1")
    e("v_permlane16_swap_b32 v%d, v%d" % (a, a + 2))
    e("s_nop 1")
    e("v_add_f32 v%d, v%d, v%d" % (a, a, a + 2))
    e("s_nop 1")
    e("v_add_f32_dpp v%d, v%d, v%d row_ror:8 row_mask:0xf bank_mask:0xf" % (a, a, a))

def census(area, stride_lg, body, sleep):
    e("v_lshrrev_b32 v48, 1, v0")
    e("v_mul_u32_u24 v49, 5, v48")
    e("s_lshr_b32 %s, s2, 3" % S_T1)
    e("s_add_u32 %s, %s, 3" % (S_T1, S_T1))
    e("v_add_u32 v49, %s, v49" % S_T1)
    e("v_and_b32 v49, 15, v49")
    e("v_lshl_add_u32 v48, v49, 3, v48")
    e("v_lshlrev_b32 v48, 7, v48")
    e("v_and_b32 v49, 1, v0")
    e("v_lshl_add_u32 v48, v49, 6, v48")
    e("s_mov_b32 %s, 0x%x" % (S_OFF, area))
    e("s_mov_b64 exec, 0xffff")
    tpoll(["buffer_load_dwordx4 v[40:43], v48, %s, %s offen sc1" % (srd(SRD_WS), S_OFF)], [(40, 62, 63)], sleep, "-1")
    e("v_subrev_u32 v40, s4, v40")
    e("v_cvt_f32_i32 v40, v40")
    for r in (8, 4, 2, 1):
        e("s_nop 1")
        e("v_add_f32_dpp v40, v40, v40 row_ror:%d row_mask:0xf bank_mask:0xf" % r)
    e("v_mul_f32 v40, 0.0625, v40")
    e("v_cvt_i32_f32 v40, v40")
    e("s_sub_u32 s4, s4, %d" % sched(body))
    e("v_add_u32 v40, s4, v40")
    e("v_or_b32 v40, 1, v40")
    e("s_mov_b64 exec, 1")
    e("ds_write_b32 v%d, v40 offset:%d" % (VZ, L_CNT + 20))
    e("s_mov_b64 exec, -1")

def sample(rnd, body):
    area = CT_OFF + rnd * 0x4000
    e("s_and_b32 %s, s2, 127" % S_OFF)
    e("s_lshl_b32 %s, %s, 1" % (S_OFF, S_OFF))
    e("s_add_u32 %s, %s, %s" % (S_OFF, S_OFF, S_HALF))
    e("s_lshl_b32 %s, %s, 6" % (S_OFF, S_OFF))
    e("s_add_u32 %s, %s, 0x%x" % (S_OFF, S_OFF, area))
    lds_wait(12, str(4 * body), 94, VZ, 4)
    e("s_memrealtime s[4:5]")
    e("s_waitcnt lgkmcnt(0)")
    e("v_mov_b32 v60, s4")
    e("v_mov_b32 v61, s4")
    e("s_mov_b64 exec, 1")
    e("buffer_store_dwordx4 v[60:63], off, %s, %s sc1" % (srd(SRD_WS), S_OFF))
    e("s_mov_b64 exec, -1")
    e("s_sleep %d" % xpv("tsl", 48))
    census(area, 6, body, xpv("tsl", 48))

def helper():
    lab("L_helper")
    e("s_setprio 3")
    e("s_memrealtime s[4:5]")
    e("s_sub_u32 %s, %s, 4" % (S_W, S_W))
    e("s_lshl_b32 %s, %s, 1" % (S_I, S_B))
    e("s_add_u32 %s, %s, %s" % (S_I, S_I, S_HALF))
    e("v_lshrrev_b32 v24, 4, v0")
    e("v_and_b32 v25, 15, v0")
    e("s_lshl_b32 %s, %s, 6" % (S_T0, S_W))
    e("v_add_u32 v1, %s, v0" % S_T0)
    e("v_lshlrev_b32 v2, 4, v0")
    e("v_mov_b32 v%d, 0" % VZ)
    e("v_mov_b32 v%d, 0x3ff" % V_M10)
    e("s_cmp_ge_u32 %s, 2" % S_W)
    e("s_cbranch_scc1 L_h23")
    S_STR, S_COL, S_PUB, S_BS = "s68", "s69", "s70", "s71"
    e("s_and_b32 s73, s2, 7")
    e("s_lshr_b32 s75, s2, 3")
    e("s_mul_i32 %s, s73, 7" % S_T0)
    e("s_lshr_b32 %s, s75, 2" % S_T1)
    e("s_add_u32 %s, %s, %s" % (S_T0, S_T0, S_T1))
    e("s_cmp_lt_u32 s75, 28")
    e("s_cselect_b32 %s, %s, 99" % (S_C, S_T0))
    if "noffn" in XP or "noh1" in XP: e("s_mov_b32 %s, 99" % S_C)
    e("s_cmp_ge_u32 %s, 27" % S_T0)
    e("s_cselect_b32 %s, 27, 0" % S_T1)
    e("s_cselect_b32 %s, 1, 0" % S_A)
    e("s_sub_u32 %s, %s, %s" % (S_T0, S_T0, S_T1))
    e("s_lshl_b32 %s, %s, 1" % (S_T0, S_T0))
    e("s_and_b32 %s, s75, 1" % S_T1)
    e("s_add_u32 %s, %s, %s" % (S_T0, S_T0, S_T1))
    e("s_bfe_u32 %s, s75, 0x10001" % S_IT)
    e("s_lshl_b32 %s, %s, 6" % (S_COL, S_T0))
    e("s_lshl_b32 %s, %s, 9" % (S_T0, S_T0))
    e("s_mul_i32 %s, %s, 55296" % (S_PUB, S_A))
    e("s_add_u32 %s, %s, %s" % (S_PUB, S_PUB, S_T0))
    e("s_mul_i32 %s, %s, 27648" % (S_T0, S_IT))
    e("s_add_u32 %s, %s, %s" % (S_PUB, S_PUB, S_T0))
    e("s_add_u32 %s, %s, 0x%x" % (S_PUB, S_PUB, GX_OFF))
    e("s_lshl_b32 %s, %s, 2" % (S_T0, S_H))
    e("s_and_b32 %s, %s, 3" % (S_T1, S_I))
    e("s_add_u32 %s, %s, %s" % (S_T0, S_T0, S_T1))
    e("s_lshl_b32 %s, %s, 6" % (S_T1, S_T0))
    e("s_lshl_b32 s73, %s, 12" % S_H)
    e("s_lshl_b32 s75, %s, 9" % S_I)
    e("s_add_u32 s73, s73, s75")
    e("s_add_u32 s73, s73, 0x%x" % QX_OFF)
    e("s_lshr_b32 s75, %s, 2" % S_I)
    e("s_cmp_eq_u32 %s, 0" % S_W)
    e("s_cselect_b32 %s, %s, %s" % (S_COL, S_T1, S_COL))
    e("s_cselect_b32 %s, s73, %s" % (S_PUB, S_PUB))
    e("s_cselect_b32 %s, 0, %s" % (S_C, S_C))
    e("s_cselect_b32 %s, s75, %s" % (S_IT, S_IT))
    e("s_mul_i32 %s, %s, %d" % (S_STR, S_W, 8192 - 3456))
    e("s_sub_u32 %s, 8192, %s" % (S_STR, S_STR))
    e("s_mul_i32 s73, %s, %d" % (S_W, L_WF - L_WQ))
    e("s_add_u32 s75, s73, %d" % L_X0)
    e("s_add_u32 s73, s73, %d" % L_WQ)
    assert L_WF - L_WQ == L_X1 - L_X0
    e("s_mul_i32 %s, %s, 320" % (S_T0, S_IT))
    e("s_mul_i32 %s, %s, %s" % (S_T0, S_T0, S_STR))
    e("s_add_u32 %s, %s, %s" % (S_COL, S_COL, S_T0))
    e("v_lshrrev_b32 v26, 2, v0")
    e("v_mul_u32_u24 v26, %s, v26" % S_STR)
    e("v_and_b32 v27, 3, v0")
    e("v_lshl_add_u32 v26, v27, 4, v26")
    e("v_add_u32 v26, %s, v26" % S_COL)
    e("s_mul_i32 s%d, %s, 640" % (SRD_W + 2, S_STR))
    e("s_mov_b32 s%d, 0x00020000" % (SRD_W + 3))
    e("s_lshl_b32 %s, %s, 4" % (S_STR, S_STR))
    e("s_cmp_ge_u32 %s, 54" % S_C)
    e("s_cbranch_scc1 L_hb1")
    e("s_waitcnt lgkmcnt(0)")
    stamp(0)
    mk_srd(SRD_X, "s16", "s17", 5120)
    mk_srd(SRD_DBG, "s38", "s39", 256)
    e("s_cmp_lg_u32 %s, 0" % S_A)
    e("s_cselect_b32 s%d, s30, s28" % SRD_W)
    e("s_cselect_b32 s%d, s31, s29" % (SRD_W + 1))
    e("s_cmp_lg_u32 %s, 0" % S_W)
    e("s_cbranch_scc1 L_h1a")
    e("s_mov_b32 s%d, s22" % SRD_W)
    e("s_mov_b32 s%d, s23" % (SRD_W + 1))
    e("s_or_b32 s4, s4, 1")
    e("s_cmp_lg_u32 s2, 0")
    e("s_cbranch_scc1 L_h1a")
    e("v_mov_b32 v60, s4")
    e("v_lshlrev_b32 v61, 7, v0")
    e("s_mov_b64 exec, 3")
    e("buffer_store_dword v60, v61, %s, 0 offen sc1" % srd(SRD_DBG))
    e("s_mov_b64 exec, -1")
    lab("L_h1a")
    e("s_mov_b32 m0, s75")
    e("s_mov_b32 %s, 0" % S_OFF)
    for k in range(4):
        e("buffer_load_dwordx4 v2, %s, 0 offen offset:%d lds" % (srd(SRD_X), 1024 * k))
    e("s_add_u32 m0, s75, 0x1000")
    e("s_mov_b32 %s, 0x1000" % S_T1)
    e("buffer_load_dwordx4 v2, %s, %s offen lds" % (srd(SRD_X), S_T1))
    e("s_mov_b32 m0, s73")
    e("s_nop 0")
    for t in range(20):
        e("buffer_load_dwordx4 v26, %s, %s offen nt lds" % (srd(SRD_W), S_OFF))
        if t < 19:
            e("s_add_u32 m0, m0, 0x400")
            e("s_add_u32 %s, %s, %s" % (S_OFF, S_OFF, S_STR))
    e("s_barrier")
    mk_ws()
    e("v_lshrrev_b32 v28, 2, v25")
    e("v_lshlrev_b32 v28, 6, v28")
    e("v_lshl_add_u32 v28, v24, 9, v28")
    e("v_lshl_add_u32 v28, v27, 3, v28")
    e("v_add_u32 v28, s73, v28")
    e("v_mul_u32_u24 v29, 1280, v27")
    e("v_lshl_add_u32 v29, v24, 4, v29")
    e("s_mul_i32 %s, %s, 640" % (S_T0, S_IT))
    e("s_add_u32 %s, %s, s75" % (S_T0, S_T0))
    e("v_add_u32 v29, %s, v29" % S_T0)
    e("v_lshlrev_b32 v30, 7, v27")
    e("v_lshl_add_u32 v30, v24, 4, v30")
    e("v_bfe_u32 v31, v0, 2, 1")
    e("v_lshl_add_u32 v30, v31, 6, v30")
    XF, WFR, ACC = 96, [176, 192], 32
    e("s_waitcnt vmcnt(20)")
    NK = xpv("nk", 1)
    for s in range(10):
        e("ds_read_b128 %s, v29 offset:%d" % (vr(XF + 4 * s), 64 * s))
    def mm(k):
        for s2 in range(2):
            s = 2 * k + s2
            for ct in range(2):
                e("%s %s, %s, %s, %s" % (MFMA, vr(ACC + 4 * ct), vr(WFR[k & 1] + 8 * s2 + 4 * ct), vr(XF + 4 * s), "0" if s == 0 else vr(ACC + 4 * ct)))
    for k in range(5):
        e("s_waitcnt vmcnt(%d)" % (16 - 4 * k + (1 if k > NK else 0)))
        if k == NK:
            e("s_lshl_b32 s5, %s, 7" % S_W)
            e("buffer_load_dword v60, off, %s, s5 sc1" % srd(SRD_DBG))
        for s2 in range(2):
            s = 2 * k + s2
            for ct in range(2):
                r = WFR[k & 1] + 8 * s2 + 4 * ct
                e("ds_read_b64_tr_b16 %s, v28 offset:%d" % (vr(r, 2), 2048 * s + 32 * ct))
                e("ds_read_b64_tr_b16 %s, v28 offset:%d" % (vr(r + 2, 2), 2048 * s + 32 * ct + 256))
        if k:
            e("s_waitcnt lgkmcnt(8)")
            mm(k - 1)
    e("s_waitcnt lgkmcnt(0)")
    mm(4)
    lab("L_nw")
    e("s_waitcnt vmcnt(0)")
    e("v_readfirstlane_b32 %s, v60" % S_T0)
    e("s_cmp_lg_u32 %s, 0" % S_T0)
    e("s_cbranch_scc1 L_ng")
    spin_guard("L_ng")
    e("s_sleep 4")
    e("buffer_load_dword v60, off, %s, 0 sc1" % srd(SRD_DBG))
    e("s_branch L_nw")
    lab("L_ng")
    e("ds_write_b32 v%d, v60 offset:%d" % (VZ, L_CNT + 8))
    stags()
    e("s_nop 1")
    for i in range(4):
        e("v_mov_b32_dpp v%d, v%d quad_perm:[0,1,2,3] row_mask:0xf bank_mask:0x2" % (ACC + i, ACC + 4 + i))
    ypack(ACC)
    e("s_mov_b32 exec_lo, 0x00ff00ff")
    e("s_mov_b32 exec_hi, 0x00ff00ff")
    if "noqx" in XP:
        e("s_cmp_eq_u32 %s, 0" % S_W)
        e("s_cbranch_scc1 L_noqx")
    if "noh1pub" in XP:
        e("s_cmp_eq_u32 %s, 1" % S_W)
        e("s_cbranch_scc1 L_noqx")
    e("buffer_store_dwordx4 v[32:35], v30, %s, %s offen sc1" % (srd(SRD_WS), S_PUB))
    if "noqx" in XP or "noh1pub" in XP: lab("L_noqx")
    e("s_mov_b64 exec, -1")
    stamp(1)
    e("s_cmp_lg_u32 %s, 0" % S_W)
    e("s_cbranch_scc1 L_wo")
    e("s_lshl_b32 %s, %s, 5" % (S_OFF, S_H))
    e("s_add_u32 %s, %s, %s" % (S_OFF, S_OFF, S_B))
    e("s_lshl_b32 %s, %s, 7" % (S_OFF, S_OFF))
    e("s_add_u32 %s, %s, 0x%x" % (S_OFF, S_OFF, QX_OFF))
    e("v_lshrrev_b32 v48, 3, v0")
    e("v_lshlrev_b32 v48, 9, v48")
    e("v_and_b32 v3, 7, v0")
    e("v_lshl_add_u32 v48, v3, 4, v48")
    e("v_and_b32 v3, 31, v0")
    e("v_lshlrev_b32 v3, 3, v3")
    e("v_lshrrev_b32 v47, 5, v0")
    e("v_lshl_add_u32 v3, v47, 1, v3")
    if xpv("qd", 0): e("s_sleep %d" % xpv("qd", 0))
    if xpv("qw", 1): e("s_waitcnt vmcnt(0)")
    if "noqx" not in XP: ypoll(["buffer_load_dwordx4 v[40:43], v48, %s, %s offen sc1" % (srd(SRD_WS), S_OFF)], [(40, 36)], 44, xpv("qsl", 24))
    else:
        for i in range(4): e("v_mov_b32 v%d, 0" % (40 + i))
    for i in range(4):
        e("v_and_b32 v%d, 0xfffffc00, v%d" % (40 + i, 40 + i))
    e("s_nop 0")
    e("v_permlane32_swap_b32 v40, v41")
    e("v_permlane32_swap_b32 v42, v43")
    e("s_nop 1")
    e("v_add_f32 v40, v40, v41")
    e("v_add_f32 v42, v42, v43")
    e("v_cvt_pk_bf16_f32 v40, v40, v42")
    e("ds_write_b16 v3, v40 offset:%d" % L_QB)
    e("ds_write_b16_d16_hi v3, v40 offset:%d" % (L_QB + 4))
    e("v_mov_b32 v40, 1")
    e("s_waitcnt lgkmcnt(0)")
    e("ds_write_b32 v%d, v40 offset:%d" % (VZ, L_CNT + 4))
    stamp(2)
    e("s_branch L_wo")

    lab("L_h23")
    e("s_cmp_eq_u32 %s, 2" % S_W)
    e("s_cbranch_scc1 L_hb1")
    for i in range(4):
        e("v_mov_b32 v%d, 0" % (44 + i))
    e("ds_write_b128 v%d, v[44:47] offset:%d" % (VZ, L_CNT))
    e("ds_write_b128 v%d, v[44:47] offset:%d" % (VZ, L_CNT + 16))
    e("ds_write_b128 v%d, v[44:47] offset:%d" % (VZ, L_SY))
    e("ds_write_b128 v%d, v[44:47] offset:%d" % (VZ, L_SY + 16))
    lab("L_hb1")
    e("s_waitcnt lgkmcnt(0)")
    stamp(0)
    e("s_barrier")
    mk_ws()
    mk_srd(SRD_DBG, "s38", "s39", 256)
    e("s_cmp_lg_u32 %s, 3" % S_W)
    e("s_cbranch_scc1 L_wo")
    if xpv("ypre", 0) & 12:
        if xpv("ypre", 0) & 8: lds_wait(4, "1", 94, VZ, 4)
        e("s_lshl_b32 %s, %s, 1" % (S_T0, S_BH))
        e("s_add_u32 %s, %s, %s" % (S_T0, S_T0, S_HALF))
        e("s_mul_i32 %s, %s, 2560" % (S_T0, S_T0))
        e("buffer_load_dwordx4 v[64:67], v2, %s, %s offen sc1" % (srd(SRD_WS), S_T0))
        e("buffer_load_dwordx4 v[68:71], v2, %s, %s offen offset:1024 sc1" % (srd(SRD_WS), S_T0))
        e("s_mov_b32 exec_hi, 0")
        e("buffer_load_dwordx4 v[72:75], v2, %s, %s offen offset:2048 sc1" % (srd(SRD_WS), S_T0))
        e("s_mov_b64 exec, -1")
        e("s_waitcnt vmcnt(0)")
    lds_wait(4, "1", 94, VZ, 4)
    if "vtouch" in XP:
        e("s_lshl_b32 %s, %s, 20" % (S_T0, S_BH))
        e("s_lshl_b32 %s, %s, 19" % (S_T1, S_HALF))
        e("s_add_u32 %s, %s, %s" % (S_T0, S_T0, S_T1))
        e("s_add_u32 s%d, s20, %s" % (SRD_X, S_T0))
        e("s_addc_u32 s%d, s21, 0" % (SRD_X + 1))
        e("s_mov_b32 s%d, 0x%x" % (SRD_X + 2, NB << 16))
        e("s_mov_b32 s%d, 0x00020000" % (SRD_X + 3))
        e("v_lshlrev_b32 v28, %d, v0" % xpv("vts", 13))
        e("s_mov_b64 exec, 0x%x" % ((1 << xpv("vtn", 1)) - 1))
        e("buffer_load_dword v88, v28, %s, 0 offen nt" % srd(SRD_X))
        e("s_mov_b64 exec, -1")
    if "nowarm" not in XP:
        e("s_getpc_b64 s[4:5]")
        lab("L_pc")
        e("s_sub_u32 s4, s4, L_pc-%s" % KNAME)
        e("s_subb_u32 s5, s5, 0")
        e("v_lshlrev_b32 v28, 7, v0")
        for i in range(NWARM):
            e("v_min_u32 v27, L_code_end-%s-4, v28" % KNAME)
            e("global_load_dword v89, v27, s[4:5]")
            e("v_add_u32 v28, 0x2000, v28")
    e("s_cmp_ge_u32 s2, %d" % NCONS)
    e("s_cbranch_scc1 L_h3c")
    e("s_and_b32 s5, s2, 3")
    mk_srd(SRD_X, "s16", "s17", 5120)
    mk_srd(SRD_W, "s34", "s35", 1280)
    e("v_lshlrev_b32 v3, 2, v0")
    e("s_mul_i32 %s, s5, 1280" % S_T0)
    for k in range(5):
        e("buffer_load_dword v%d, v3, %s, %s offen offset:%d" % (64 + k, srd(SRD_X), S_T0, 256 * k))
        e("buffer_load_dword v%d, v3, %s, 0 offen offset:%d" % (72 + k, srd(SRD_W), 256 * k))
    e("s_waitcnt vmcnt(0)")
    G = V_G
    e("v_mov_b32 v%d, 0" % G)
    for k in range(5):
        e("v_lshlrev_b32 v80, 16, v%d" % (64 + k))
        e("v_and_b32 v81, 0xffff0000, v%d" % (64 + k))
        e("v_lshlrev_b32 v82, 16, v%d" % (72 + k))
        e("v_and_b32 v83, 0xffff0000, v%d" % (72 + k))
        e("v_mul_f32 v80, v80, v82")
        e("v_mul_f32 v81, v81, v83")
        e("v_cvt_pk_bf16_f32 v80, v80, v81")
        e("v_lshlrev_b32 v81, 16, v80")
        e("v_and_b32 v80, 0xffff0000, v80")
        e("v_add_f32 v%d, v%d, v81" % (G, G))
        e("v_add_f32 v%d, v%d, v80" % (G, G))
    allreduce64("add", G, 80)
    bf16r(G)
    e("v_mul_f32 v%d, 0xbfb8aa3b, v%d" % (G, G))
    e("v_exp_f32 v%d, v%d" % (G, G))
    e("s_nop 0")
    e("v_add_f32 v%d, 1.0, v%d" % (G, G))
    e("v_rcp_f32 v%d, v%d" % (G, G))
    e("s_nop 0")
    bf16r(G)
    lab("L_h3c")
    if FC and CA:
        e("ds_read_b32 v62, v%d offset:%d" % (VZ, L_CNT + 8))
        e("s_waitcnt lgkmcnt(0)")
        e("v_xor_b32 v63, %s, v62" % TAGX)
        sample(0, CA)

    lab("L_wo")
    V_TB, V_FA = 84, 90
    e("s_mul_i32 %s, %s, %d" % (S_T1, S_H, 128 * 1280))
    e("s_mul_i32 %s, %s, 10240" % (S_T0, S_W))
    e("s_sub_u32 %s, %s, 10240" % (S_T0, S_T0))
    e("s_add_u32 %s, %s, %s" % (S_T1, S_T1, S_T0))
    e("s_add_u32 s68, %s, %d" % (S_T0, L_WO))
    e("v_lshrrev_b32 v26, 2, v0")
    e("v_mul_u32_u24 v26, 1280, v26")
    e("v_and_b32 v27, 3, v0")
    e("v_lshl_add_u32 v26, v27, 3, v26")
    e("s_mul_i32 %s, %s, 320" % (S_T0, S_W))
    e("s_add_u32 %s, %s, %d" % (S_T0, S_T0, L_WO))
    e("v_add_u32 v%d, %s, v26" % (V_TB, S_T0))
    e("v_add_u32 v%d, 40960, v%d" % (V_TB + 1, V_TB))
    e("s_lshl_b32 %s, %s, 2" % (S_T0, S_W))
    e("v_mov_b32 v%d, %s" % (V_FA, S_T0))
    mk_srd(SRD_W, "s24", "s25", 4096 * 1280)
    lds_wait(4, "1", 94, VZ, 4)
    def flagwait(off, n, target):
        l0, l1 = newlab("fw"), newlab("fw")
        lab(l0)
        e("ds_read_b%d %s, v%d offset:%d" % (32 * n, vr(80, n), VZ, L_SY + off))
        e("s_waitcnt lgkmcnt(0)")
        e("v_min_u32 v80, v80, v81")
        if n == 4: e("v_min3_u32 v80, v80, v82, v83")
        e("s_nop 0")
        e("v_readfirstlane_b32 %s, v80" % S_T0)
        e("s_cmp_ge_u32 %s, %d" % (S_T0, target))
        e("s_cbranch_scc1 %s" % l1)
        spin_guard(l1)
        e("s_sleep %d" % xpv("fsl", 8))
        e("s_branch %s" % l0)
        lab(l1)
    def flag(off, val):
        e("v_mov_b32 v80, %d" % val)
        e("ds_write_b32 v%d, v80 offset:%d" % (V_FA, L_SY + off))
    def consume(c):
        if "nowo" in XP: return
        flagwait(16, 2, c + 1)
        bf = c % NBUF
        for t in range(10):
            e("ds_read_b64_tr_b16 %s, v%d offset:%d" % (vr(W(4 * t + (c >> 1)) + 2 * (c & 1), 2), V_TB + (bf >> 1), (bf & 1) * 20480 + 32 * t))
        e("s_waitcnt lgkmcnt(0)")
        if c + NBUF < 8: flag(0, c + 1)
    assert WO_WIN <= 10 and NBUF == 4
    e("s_sub_u32 %s, %s, 1" % (S_T0, S_W))
    e("s_cmp_lt_u32 %s, 2" % S_T0)
    e("s_cbranch_scc1 L_ld")
    for c in range(4): consume(c)
    e("s_branch L_prep")
    lab("L_ld")
    WDE = "wdearly" in XP
    if WDE:
        e("s_cmp_lg_u32 %s, 2" % S_W)
        e("s_cbranch_scc1 L_ld1")
        e("s_cmp_lt_u32 s2, %d" % (NWG - NF2 if "noffn" not in XP and "noh2" not in XP else 1000))
        e("s_cbranch_scc1 L_ld1")
        e("s_sub_u32 %s, 255, s2" % S_T0)
        e("s_mul_i32 s70, %s, 205" % S_T0)
        e("s_lshr_b32 s70, s70, 11")
        e("s_mul_i32 s71, s70, 10")
        e("s_sub_u32 s71, %s, s71" % S_T0)
        e("v_lshrrev_b32 v26, 3, v0")
        e("v_mul_u32_u24 v26, 1280, v26")
        e("v_and_b32 v27, 7, v0")
        e("v_lshl_add_u32 v26, v27, 4, v26")
        e("s_mul_i32 %s, s70, %d" % (S_OFF, 96 * 1280))
        e("s_lshl_b32 %s, s71, 7" % S_T0)
        e("s_add_u32 %s, %s, %s" % (S_OFF, S_OFF, S_T0))
        mk_srd(SRD_X, "s32", "s33", 1728 * 1280)
        e("s_mov_b32 m0, %d" % L_WQ)
        e("s_nop 0")
        for t in range(12):
            e("buffer_load_dwordx4 v26, %s, %s offen nt lds" % (srd(SRD_X), S_OFF))
            if t < 11:
                e("s_add_u32 m0, m0, 0x400")
                e("s_add_u32 %s, %s, %d" % (S_OFF, S_OFF, 8 * 1280))
        lab("L_ld1")
    if "nowo" not in XP:
        for c in range(8):
            if c >= NBUF: flagwait(0, 4, c - NBUF + 1)
            for k in range(10):
                e("s_add_u32 m0, s68, %d" % ((c % NBUF) * 20480 + k * 1024))
                if 10 * c + k >= WO_WIN: e("s_waitcnt vmcnt(%d)" % (WO_WIN - 1))
                else: e("s_nop 0")
                if c and k == WO_WIN - 1: flag(12, c)
                e("buffer_load_dwordx4 v2, %s, %s offen nt lds" % (srd(SRD_W), S_T1))
                if (c, k) != (7, 9): e("s_add_u32 %s, %s, %d" % (S_T1, S_T1, 1024 if k < 9 else 20480 - 9 * 1024))
            if c == 7:
                e("s_waitcnt vmcnt(0)")
                flag(12, 8)
            if c: consume(c - 1)
        consume(7)
    e("s_cmp_lg_u32 %s, 2" % S_W)
    e("s_cbranch_scc1 L_prep")
    e("s_cmp_lt_u32 s2, %d" % (NWG - NF2 if "noffn" not in XP and "noh2" not in XP else 1000))
    e("s_cbranch_scc1 L_prep")
    S_RG, S_CB = "s68", "s69"
    e("s_sub_u32 %s, 255, s2" % S_T0)
    e("s_mul_i32 %s, %s, 205" % (S_RG, S_T0))
    e("s_lshr_b32 %s, %s, 11" % (S_RG, S_RG))
    e("s_mul_i32 %s, %s, 10" % (S_T1, S_RG))
    e("s_sub_u32 %s, %s, %s" % (S_CB, S_T0, S_T1))
    e("v_lshrrev_b32 v26, 3, v0")
    e("v_mul_u32_u24 v26, 1280, v26")
    e("v_and_b32 v27, 7, v0")
    e("v_lshl_add_u32 v26, v27, 4, v26")
    e("s_mul_i32 %s, %s, %d" % (S_OFF, S_RG, 96 * FS * 1280))
    e("s_lshl_b32 %s, %s, 7" % (S_T0, S_CB))
    e("s_add_u32 %s, %s, %s" % (S_OFF, S_OFF, S_T0))
    mk_srd(SRD_W, "s32", "s33", 1728 * 1280)
    e("s_mov_b32 m0, %d" % L_WQ)
    e("s_nop 0")
    assert L_WQ + 12288 * FS <= L_WO
    for t in range(12 * FS):
        if t >= xpv("wdw", 12): e("s_waitcnt vmcnt(%d)" % (xpv("wdw", 12) - 1))
        e("buffer_load_dwordx4 v26, %s, %s offen nt lds" % (srd(SRD_W), S_OFF))
        if t < 12 * FS - 1:
            e("s_add_u32 m0, m0, 0x400")
            e("s_add_u32 %s, %s, %d" % (S_OFF, S_OFF, 8 * 1280))
    e("v_cmp_le_u32 vcc, 24, v0")
    e("v_mov_b32 v28, 24")
    e("v_mov_b32 v29, 128")
    e("v_cndmask_b32 v28, 0, v28, vcc")
    e("v_cndmask_b32 v29, 0, v29, vcc")
    e("v_sub_u32 v28, v0, v28")
    e("v_min_u32 v28, 23, v28")
    e("v_and_b32 v31, 7, v28")
    e("v_lshl_add_u32 v29, v31, 4, v29")
    e("v_lshrrev_b32 v31, 3, v28")
    e("v_lshl_add_u32 v29, v31, 9, v29")
    e("v_mov_b32 v30, 192")
    e("v_cndmask_b32 v30, 0, v30, vcc")
    e("v_lshl_add_u32 v30, v28, 3, v30")
    e("s_mul_i32 %s, %s, %d" % (S_IT, S_RG, 1536 * FS))
    e("s_add_u32 %s, %s, 0x%x" % (S_IT, S_IT, GX_OFF))
    e("s_add_u32 s70, %s, 27648" % S_IT)
    e("s_add_u32 s71, %s, 55296" % S_IT)
    e("s_add_u32 s73, %s, %d" % (S_IT, 55296 + 27648))
    e("v_lshlrev_b32 v28, 10, v24")
    e("v_lshrrev_b32 v27, 2, v25")
    e("v_lshl_add_u32 v28, v27, 7, v28")
    e("v_and_b32 v27, 3, v0")
    e("v_lshl_add_u32 v28, v27, 3, v28")
    e("v_mul_u32_u24 v27, 192, v27")
    e("v_lshl_add_u32 v27, v24, 4, v27")
    e("ds_read_b32 v94, v%d offset:%d" % (VZ, L_CNT + 8))
    HF, WF, AC = 64, 48, 8
    for i in range(16): e("v_mov_b32 v%d, 0" % (AC + i))
    e("s_waitcnt lgkmcnt(0)")
    e("v_readfirstlane_b32 %s, v94" % S_T0)
    stags()
    e("s_mov_b32 s75, 0")
    lab("L_wd")
    e("s_mov_b32 exec_hi, 0xffff")
    e("s_mov_b64 s[4:5], exec")
    SO = [S_IT, "s70", "s71", "s73"]
    if "noh2poll" not in XP: ypoll(["buffer_load_dwordx4 %s, v29, %s, %s offen offset:%d sc1" % (vr(40 + 16 * bb + 4 * k), srd(SRD_WS), SO[k], 256 * bb) for bb in range(2) for k in range(4)],
          [(40 + 16 * bb + 4 * k, 72 + 4 * k) for bb in range(2) for k in range(4)], 31, 16, "s[4:5]")
    for r in range(40, 72):
        e("v_and_b32 v%d, 0xfffffc00, v%d" % (r, r))
    for bb in range(2):
        g = 40 + 16 * bb
        for i in range(4):
            e("v_add_f32 v%d, v%d, v%d" % (g + i, g + i, g + 4 + i))
            e("v_add_f32 v%d, v%d, v%d" % (g + 8 + i, g + 8 + i, g + 12 + i))
        for k in range(2):
            e("v_cvt_pk_bf16_f32 v%d, v%d, v%d" % (g + 4 + k, g + 2 * k, g + 2 * k + 1))
            e("v_cvt_pk_bf16_f32 v%d, v%d, v%d" % (g + 12 + k, g + 8 + 2 * k, g + 8 + 2 * k + 1))
        for k in range(2):
            e("v_lshlrev_b32 v31, 16, v%d" % (g + 4 + k))
            e("v_and_b32 v32, 0xffff0000, v%d" % (g + 4 + k))
            e("v_lshlrev_b32 v33, 16, v%d" % (g + 12 + k))
            e("v_and_b32 v34, 0xffff0000, v%d" % (g + 12 + k))
            e("v_mul_f32 v31, v31, v33")
            e("v_mul_f32 v32, v32, v34")
            e("v_cvt_pk_bf16_f32 v%d, v31, v32" % (g + k))
        e("ds_write_b64 v30, %s offset:%d" % (vr(g, 2), L_HT + 384 * bb))
    e("s_mov_b64 exec, -1")
    e("s_waitcnt lgkmcnt(0)")
    for s in range(3):
        e("ds_read_b128 %s, v27 offset:%d" % (vr(HF + 4 * s), L_HT + 64 * s))
    for s in range(3):
        for nt in range(4):
            r = WF + 4 * nt
            e("ds_read_b64_tr_b16 %s, v28 offset:%d" % (vr(r, 2), L_WQ + 4096 * s + 32 * nt))
            e("ds_read_b64_tr_b16 %s, v28 offset:%d" % (vr(r + 2, 2), L_WQ + 4096 * s + 32 * nt + 512))
        e("s_waitcnt lgkmcnt(0)")
        for nt in range(4):
            e("%s %s, %s, %s, %s" % (MFMA, vr(AC + 4 * nt), vr(WF + 4 * nt), vr(HF + 4 * s), vr(AC + 4 * nt)))
        e("s_nop 7")
    e("v_add_u32 v28, 12288, v28")
    e("v_add_u32 v29, 1536, v29")
    e("s_add_u32 s75, s75, 1")
    e("s_cmp_lt_u32 s75, %d" % FS)
    e("s_cbranch_scc1 L_wd")
    stamp(3)
    e("v_bfe_u32 v30, v0, 3, 1")
    e("v_lshlrev_b32 v30, 2, v30")
    e("v_and_b32 v31, 3, v0")
    e("v_add_u32 v30, v30, v31")
    e("v_lshlrev_b32 v30, 7, v30")
    e("v_bfe_u32 v31, v0, 2, 1")
    e("v_lshl_add_u32 v30, v31, 6, v30")
    e("v_lshl_add_u32 v30, v24, 4, v30")
    e("s_sub_u32 %s, 255, s2" % S_OFF)
    e("s_lshl_b32 %s, %s, 10" % (S_OFF, S_OFF))
    e("s_add_u32 %s, %s, 0x%x" % (S_OFF, S_OFF, F_OFF))
    e("s_nop 3")
    for nt in range(1, 4):
        for i in range(4):
            e("v_mov_b32_dpp v%d, v%d row_shr:%d row_mask:0xf bank_mask:0x%x" % (AC + i, AC + 4 * nt + i, 4 * nt, 1 << nt))
    ypack(AC)
    if "noh2st" not in XP: e("buffer_store_dwordx4 %s, v30, %s, %s offen sc1" % (vr(AC), srd(SRD_WS), S_OFF))
    e("s_waitcnt vmcnt(0)")
    stamp(4)

    lab("L_prep")
    e("ds_read_b32 v94, v%d offset:%d" % (VZ, L_CNT + 8))
    e("v_and_b32 v26, 3, v0")
    e("v_bfe_u32 v27, v0, 2, 1")
    e("v_lshl_add_u32 v26, v26, 1, v27")
    e("v_mul_u32_u24 v9, %d, v26" % OA_ROW)
    e("v_lshl_add_u32 v9, v24, 4, v9")
    e("s_mul_i32 %s, %s, 640" % (S_T0, S_W))
    e("v_lshlrev_b32 v10, 2, v0")
    e("v_add_u32 v10, %s, v10" % S_T0)
    e("s_waitcnt lgkmcnt(0)")
    e("v_readfirstlane_b32 %s, v94" % S_T0)
    e("v_mov_b32 v62, v94")
    e("v_xor_b32 v63, %s, v94" % TAGX)
    stags()
    e("v_and_b32 v26, 3, v0")
    e("v_mov_b32 v11, s%d" % S_TG)
    for i in range(1, 4):
        e("v_mov_b32 v27, s%d" % (S_TG + i))
        e("v_cmp_eq_u32 vcc, %d, v26" % i)
        e("s_nop 1")
        e("v_cndmask_b32 v11, v11, v27, vcc")
    e("s_lshl_b32 %s, %s, 1" % (S_IT, S_BH))
    e("s_add_u32 %s, %s, %s" % (S_IT, S_IT, S_HALF))
    e("s_mul_i32 %s, %s, 2560" % (S_IT, S_IT))
    e("s_and_b32 %s, s2, 3" % S_C)
    e("s_lshl_b32 %s, %s, 2" % (S_C, S_C))
    e("s_add_u32 %s, %s, %s" % (S_C, S_C, S_W))
    e("s_mul_i32 %s, %s, %d" % (S_C, S_C, 16 * 2560))
    e("s_lshr_b32 %s, s2, 2" % S_T1)
    e("s_lshl_b32 %s, %s, 7" % (S_T1, S_T1))
    e("s_add_u32 %s, %s, %s" % (S_C, S_C, S_T1))
    e("s_add_u32 %s, %s, %d" % (S_A, S_C, 8 * 2560))
    e("v_and_b32 v86, 7, v0")
    e("v_lshlrev_b32 v86, 4, v86")
    e("v_bfe_u32 v87, v0, 4, 1")
    e("v_lshl_add_u32 v86, v87, 3, v86")
    e("v_lshrrev_b32 v87, 5, v0")
    e("v_lshl_add_u32 v86, v87, 2, v86")
    e("v_lshrrev_b32 v87, 3, v0")
    e("v_mul_u32_u24 v87, 2560, v87")
    e("v_and_b32 v28, 7, v0")
    e("v_lshl_add_u32 v87, v28, 4, v87")
    e("s_waitcnt vmcnt(0)")
    stamp(5)
    e("s_cmp_lg_u32 %s, 0" % S_W)
    e("s_cbranch_scc1 L_h8")
    e("v_and_b32 v12, 3, v0")
    e("v_lshlrev_b32 v13, 2, v12")
    e("v_lshlrev_b32 v12, 3, v12")
    e("s_and_b32 %s, s2, 127" % S_OFF)
    e("s_lshl_b32 %s, %s, 7" % (S_OFF, S_OFF))
    e("s_add_u32 %s, %s, 0x%x" % (S_OFF, S_OFF, RC_OFF))
    e("s_lshl_b32 %s, %s, 6" % (S_T1, S_HALF))
    e("s_add_u32 s68, %s, %s" % (S_OFF, S_T1))
    e("s_xor_b32 s69, s68, 64")
    lds_wait(0, "4", 94, VZ, 8 if not FC else 4)
    if FC: e("s_memrealtime s[4:5]")
    e("ds_read_b64 v[14:15], v12 offset:%d" % L_ML)
    e("s_waitcnt lgkmcnt(0)")
    e("v_mov_b32 v60, v14")
    allreduce4("max", 60)
    e("v_sub_f32 v16, v14, v60")
    e("v_mul_f32 v16, %s, v16" % LOG2E)
    e("v_exp_f32 v16, v16")
    e("s_nop 0")
    e("v_mul_f32 v61, v16, v15")
    allreduce4("add", 61)
    if FC:
        e("v_mov_b32 v44, v60")
        e("v_mov_b32 v45, v61")
        e("v_mov_b32 v46, v62")
        e("v_mov_b32 v47, v63")
        e("s_mov_b64 exec, 2")
        e("v_mov_b32 v44, s4")
        e("s_mov_b64 exec, 3")
        e("buffer_store_dwordx4 v[44:47], v2, %s, s68 offen sc1" % srd(SRD_WS))
    else:
        e("s_mov_b64 exec, 1")
        if "nopair" not in XP: e("buffer_store_dwordx4 v[60:63], off, %s, s68 sc1" % srd(SRD_WS))
    e("s_mov_b64 exec, -1")
    stamp(6)
    if "nopair" not in XP: tpoll(["buffer_load_dwordx4 v[40:43], off, %s, s69 sc1" % srd(SRD_WS)], [(40, 62, 63)], xpv("rsl", 32))
    e("v_max_f32 v17, v60, v40")
    e("v_sub_f32 v60, v60, v17")
    e("v_sub_f32 v40, v40, v17")
    e("v_sub_f32 v14, v14, v17")
    e("v_mul_f32 v60, %s, v60" % LOG2E)
    e("v_mul_f32 v40, %s, v40" % LOG2E)
    e("v_mul_f32 v14, %s, v14" % LOG2E)
    e("v_exp_f32 v60, v60")
    e("v_exp_f32 v40, v40")
    e("v_exp_f32 v14, v14")
    e("v_mul_f32 v61, v60, v61")
    e("v_fmac_f32 v61, v40, v41")
    e("v_rcp_f32 v61, v61")
    e("s_nop 0")
    e("v_mul_f32 v14, v14, v61")
    e("ds_write_b32 v13, v14 offset:%d" % L_SC)
    if FC: census(RC_OFF + 16, 6, 5, xpv("tsl", 48))
    e("s_waitcnt lgkmcnt(0)")
    lab("L_h8")
    e("s_sub_u32 %s, %s, 1" % (S_T0, S_W))
    e("s_cmp_lt_u32 %s, 2" % S_T0)
    e("s_cbranch_scc1 L_nc")
    for c in range(4, 8): consume(c)
    e("s_cmp_ge_u32 s2, %d" % NCONS)
    e("s_cbranch_scc1 L_nc")
    e("s_cmp_lg_u32 %s, 3" % S_W)
    e("s_cbranch_scc1 L_nc")
    e("s_lshr_b32 %s, s2, 3" % S_T1)
    e("v_lshrrev_b32 v30, 3, v0")
    e("v_and_b32 v29, 7, v0")
    e("v_lshlrev_b32 v29, 4, v29")
    NSL = 18 // FS
    NL = (NSL + 7) // 8
    for k in range(NL):
        e("v_add_u32 v31, %d, v30" % (8 * k))
        if k == NL - 1: e("v_min_u32 v31, %d, v31" % (NSL - 1))
        e("v_mul_u32_u24 v31, 10240, v31")
        e("v_add_u32 v%d, v31, v29" % (36 + k))
    e("s_lshl_b32 %s, s2, 7" % S_OFF)
    e("s_add_u32 %s, %s, 0x%x" % (S_OFF, S_OFF, F_OFF))
    lds_wait(12, str(4 * xpv("fgb", 9)), 94, VZ, 16)
    if "noffn" not in XP and "noh3poll" not in XP: ypoll(["buffer_load_dwordx4 %s, v%d, %s, %s offen sc1" % (vr(40 + 4 * k), 36 + k, srd(SRD_WS), S_OFF) for k in range(NL)],
          [(40 + 4 * k, 64) for k in range(NL)], 52, 32)
    e("v_cmp_gt_u32 vcc, %d, v0" % (8 * (NSL - 8 * (NL - 1))))
    e("s_nop 1")
    for i in range(4):
        e("v_cndmask_b32 v%d, 0, v%d, vcc" % (40 + 4 * (NL - 1) + i, 40 + 4 * (NL - 1) + i))
    for k in range(1, NL):
        for i in range(4):
            e("v_add_f32 v%d, v%d, v%d" % (40 + i, 40 + i, 40 + 4 * k + i))
    red8(40)
    e("ds_write_b32 v86, v40 offset:%d" % (L_R + 512))
    e("v_lshlrev_b32 v30, 2, v0")
    e("v_and_b32 v30, 127, v30")
    e("v_sub_f32 v31, 1.0, v%d" % V_G)
    bf16r(31)
    e("s_waitcnt lgkmcnt(0)")
    e("ds_read_b32 v%d, v30 offset:%d" % (V_FB, L_R + 512))
    e("s_waitcnt lgkmcnt(0)")
    bf16r(V_FB)
    e("v_mul_f32 v%d, v31, v%d" % (V_FB, V_FB))
    bf16r(V_FB)
    lab("L_nc")
    if FC and CC:
        e("s_cmp_lg_u32 %s, 1" % S_W)
        e("s_cbranch_scc1 L_nctl")
        for i, c in enumerate(CC): sample(1 + i, c)
        lab("L_nctl")
    lab("L_h9")
    stamp(7)
    e("s_lshl_b32 %s, %s, 7" % (S_T0, S_W))
    e("v_add_u32 v86, %s, v86" % S_T0)
    YPRE = xpv("ypre", 0)
    if YPRE & 1:
        e("s_cmp_ge_u32 s2, %d" % NCONS)
        e("s_cbranch_scc1 L_ypre")
        PP = {0: "sc1", 1: "", 2: "nt", 3: "sc0", 4: "sc1 nt"}[xpv("ypp", 0)]
        if xpv("ypm", 0) == 1:
            e("s_mov_b32 exec_lo, 0x01010101"); e("s_mov_b32 exec_hi, 0x01010101")
        if xpv("ypm", 0) == 2:
            e("s_mov_b32 exec_lo, 0xffff"); e("s_mov_b32 exec_hi, 0")
        e("buffer_load_dwordx4 v[32:35], v87, %s, %s offen %s" % (srd(SRD_WS), S_C, PP))
        e("buffer_load_dwordx4 v[36:39], v87, %s, %s offen %s" % (srd(SRD_WS), S_A, PP))
        e("s_mov_b64 exec, -1")
        e("s_waitcnt vmcnt(0)")
        lab("L_ypre")
    if YPRE & 2:
        e("v_xor_b32 v32, 0x3ff, v11")
        e("buffer_store_dword v32, v10, %s, %s offen sc1" % (srd(SRD_WS), S_IT))
        e("buffer_store_dword v32, v10, %s, %s offen offset:256 sc1" % (srd(SRD_WS), S_IT))
        e("s_mov_b32 exec_hi, 0")
        e("buffer_store_dword v32, v10, %s, %s offen offset:512 sc1" % (srd(SRD_WS), S_IT))
        e("s_mov_b64 exec, -1")
        e("s_waitcnt vmcnt(0)")
    if DRY:
        e("s_mul_i32 s68, %s, 10240" % S_W)
        e("s_add_u32 s68, s68, %d" % L_WO)
        e("v_lshlrev_b32 v28, 2, v0")
        e("v_add_u32 v28, s68, v28")
        e("s_mov_b32 s73, 1")
        e("s_mov_b32 s72, %d" % SPIN_MAX)
        e("s_cmp_eq_u32 s73, 0")
        e("s_branch L_send")
        lab("L_tail")
        e("s_cmp_lg_u32 s73, 0")
        e("s_cbranch_scc1 L_nb")
    e("s_mul_i32 s68, %s, 10240" % S_W)
    e("s_add_u32 s68, s68, %d" % L_WO)
    e("v_lshlrev_b32 v77, 2, v0")
    e("v_add_u32 v77, s68, v77")
    e("v_add_u32 v78, s68, v2")
    e("s_mul_i32 s68, %s, 640" % S_W)
    e("v_add_u32 v79, s68, v2")
    e("s_mov_b32 s68, 0x11111111")
    e("s_mov_b32 s69, 0x11111111")
    e("s_mov_b32 s70, 0x11111111")
    e("s_mov_b32 s71, 0")
    e("s_barrier")
    if DRY: lab("L_nb")
    AF, DT, SC = 12, 32, 72
    POL = {0: "sc1", 1: "sc0 sc1", 2: "sc1 nt", 3: "sc0 sc1 nt"}
    YST, YLD = POL[xpv("yst", 0)], POL[xpv("yld", 0)]
    for s4 in range(4):
        e("ds_read_b128 %s, v9 offset:%d" % (vr(AF + 4 * s4), L_OP + 64 * s4))
    e("ds_read_b128 %s, v%d offset:%d" % (vr(SC), VZ, L_SC))
    YW = xpv("yw", -1000)
    if YW > -1000: e("ds_read_b32 v76, v%d offset:%d" % (VZ, L_CNT + 20))
    ops = []
    pos = [0]
    mark = {}
    def em(x): e(x); pos[0] += 3 if "\n" in x else 1
    def ready(o):
        r = 0
        for pr, d in o[1]:
            if pr is None: r = max(r, d)
            elif pr not in mark: return 1 << 30
            else: r = max(r, mark[pr] + d)
        return r
    def drain(n):
        k = 0
        while k < n:
            c = [o for o in ops if ready(o) <= pos[0]]
            if not c: break
            ops.remove(c[0]); em(c[0][0]); mark[c[0][0]] = pos[0]; k += 1
    last = {}
    for t in range(10):
        d = DT + 4 * t
        for s4 in range(4):
            if t == 0: e("s_waitcnt lgkmcnt(%d)" % (4 - s4 + (YW > -1000)))
            if t == 1 and s4 == 0: e("s_waitcnt lgkmcnt(0)")
            em("%s %s, %s, %s, %s" % (MFMA, vr(d), vr(AF + 4 * s4), vr(W(4 * t + s4)), "0" if s4 == 0 else vr(d)))
            rdy = pos[0] + 8
            if "nopad" in XP and t < xpv("padfrom", 6):
                drain(3)
            elif (t, s4) != (9, 3):
                p0 = pos[0]
                while pos[0] < p0 + 3:
                    q0 = pos[0]
                    drain(1)
                    if pos[0] == q0:
                        k = min([ready(o) for o in ops] + [p0 + 3]) - q0 if ops else p0 + 3 - q0
                        k = min(k, p0 + 3 - q0)
                        if t or s4 == 3: e("s_nop %d" % (k - 1))
                        pos[0] += k if (t or s4 == 3) else 0
                        if not (t or s4 == 3): break
        x = "v_pk_mul_f32 %s, %s, %s" % (vr(d, 2), vr(d, 2), vr(SC, 2))
        ops.append([x, [(None, max(rdy, 9))]])
        y = "v_pk_fma_f32 %s, %s, %s, %s" % (vr(d, 2), vr(d + 2, 2), vr(SC + 2, 2), vr(d, 2))
        ops.append([y, [(x, 0)]])
        x = "v_add_f32 v%d, v%d, v%d" % (d, d, d + 1)
        ops.append([x, [(y, 0)]])
        last[t] = x
        if t & 1:
            a, b = d - 4, d
            x = "v_permlane16_swap_b32 v%d, v%d" % (a, b)
            ops.append([x, [(last[t], 2), (last[t - 1], 2)]])
            y = "v_add_f32 v%d, v%d, v%d" % (a, a, b)
            ops.append([y, [(x, 1)]])
            last[t] = y
            fin = None
            if t & 3 == 3:
                x = "v_permlane32_swap_b32 v%d, v%d" % (d - 12, d - 4)
                ops.append([x, [(y, 2), (last[t - 2], 2)]])
                fin = (d - 12, x, 1)
            elif t == 9:
                fin = (a, y, 0)
            if fin:
                r, x, dd = fin
                y = "v_add_u32 v%d, 0x200, v%d" % (r, r)
                ops.append([y, [(x, dd)]])
                z = "v_bfi_b32 v%d, v%d, v11, v%d" % (r, V_M10, r)
                ops.append([z, [(y, 0)]])
                YT = xpv("yt", 0)
                if YT == 2 or (YT == 1 and t != 9):
                    w1 = "ds_write_b32 v77, v%d offset:%d" % (r, 256 * (t >> 2))
                    ops.append([w1, [(z, 0)]])
                    r1 = "ds_read_b128 %s, v78 offset:%d" % (vr(r), 256 * (t >> 2))
                    ops.append([r1, [(w1, 0)]])
                    st = "s_waitcnt lgkmcnt(0)\n    s_mov_b64 exec, %s\n" % ("0xff" if t == 9 else "0xffff")
                    st += "    buffer_store_dwordx4 %s, v79, %s, %s offen offset:%d %s\n" % (vr(r), srd(SRD_WS), S_IT, 256 * (t >> 2), YST)
                    st += "    s_mov_b64 exec, -1"
                    ops.append([st, [(r1, xpv("ytd", 20) if t != 9 else 0)]])
                    continue
                mv = []
                for i in range(1, 4):
                    mv.append("v_mov_b32_dpp v%d, v%d quad_perm:[%d,%d,%d,%d] row_mask:0xf bank_mask:0xf" % (r + i, r, i, i, i, i))
                    ops.append([mv[-1], [(z, 2)]])
                st = "s_mov_b64 exec, s[%d:%d]\n" % ((70, 71) if t == 9 else (68, 69))
                if DRY: st += "    s_cbranch_scc1 L_ns%d\n" % t
                st += "    buffer_store_dwordx4 %s, v10, %s, %s offen offset:%d %s\n" % (vr(r), srd(SRD_WS), S_IT, 256 * (t >> 2), YST)
                if DRY: st += "L_ns%d:\n" % t
                st += "    s_mov_b64 exec, -1"
                ops.append([st, [(m, 0) for m in mv]])
    crit = [o for o in ops if any(("v%d" % q) in o[0] or ("v[%d" % q) in o[0] for q in (DT + 32, DT + 33, DT + 34, DT + 35, DT + 36))]
    ops[:] = crit + [o for o in ops if o not in crit]
    while ops:
        n = len(ops)
        drain(1)
        if len(ops) == n:
            r = min(ready(o) for o in ops)
            e("s_nop %d" % (r - pos[0] - 1)); pos[0] = r
    stamp(8)
    e("s_cmp_ge_u32 s2, %d" % NCONS)
    e("s_cbranch_scc1 L_hend")
    NS = xpv("ns", 3)
    if YW > -1000:
        e("v_readfirstlane_b32 s70, v76")
        e("s_cmp_eq_u32 s70, 0")
        e("s_cbranch_scc1 L_ywd")
        e("s_add_u32 s70, s70, %d" % (sched(13) + YW))
        lab("L_yw")
        e("s_memrealtime s[4:5]")
        e("s_waitcnt lgkmcnt(0)")
        e("s_sub_u32 s4, s70, s4")
        e("s_cmp_le_i32 s4, 0")
        e("s_cbranch_scc1 L_ywd")
        spin_guard("L_ywd")
        e("s_sleep 1")
        e("s_branch L_yw")
        lab("L_ywd")
    if NS == 0:
        ypoll(["buffer_load_dwordx4 v[12:15], v87, %s, %s offen sc1" % (srd(SRD_WS), S_C),
               "buffer_load_dwordx4 v[16:19], v87, %s, %s offen sc1" % (srd(SRD_WS), S_A)], [(12, 76), (16, 80)], 20, xpv("ysl", 0))
        for i in range(4):
            e("v_add_f32 v%d, v%d, v%d" % (12 + i, 12 + i, 16 + i))
    else:
        def pl(k):
            e("buffer_load_dwordx4 %s, v87, %s, %s offen %s" % (vr(32 + 8 * k), srd(SRD_WS), S_C, YLD))
            e("buffer_load_dwordx4 %s, v87, %s, %s offen %s" % (vr(36 + 8 * k), srd(SRD_WS), S_A, YLD))
        if DRY:
            e("s_cmp_lg_u32 s73, 0")
            e("s_cselect_b64 exec, 1, -1")
        for k in range(NS):
            pl(k)
            if k < NS - 1: e("s_sleep %d" % xpv("yg", 6))
        lab("L_yp")
        for k in range(NS):
            g = 32 + 8 * k
            e("s_waitcnt vmcnt(%d)" % (2 * (NS - 1)))
            e("v_xor_b32 v20, s%d, v%d" % (S_TG, g))
            e("v_xor_b32 v21, s%d, v%d" % (S_TG + 1, g + 1))
            e("v_or_b32 v20, v20, v21")
            for i in range(2, 8, 2):
                e("v_xor_b32 v21, s%d, v%d" % (S_TG + (i & 3), g + i))
                e("v_xor_b32 v22, s%d, v%d" % (S_TG + (i & 3) + 1, g + i + 1))
                e("v_or3_b32 v20, v20, v21, v22")
            e("v_and_b32 v20, 0x3ff, v20")
            e("v_cmp_ne_u32 vcc, 0, v20")
            e("s_andn2_b64 exec, exec, vcc")
            for i in range(4):
                e("v_add_f32 v%d, v%d, v%d" % (12 + i, g + i, g + 4 + i))
            e("s_mov_b64 exec, vcc")
            e("s_cbranch_execz L_ypd")
            pl(k)
        spin_guard("L_ypd")
        e("s_branch L_yp")
        lab("L_ypd")
        e("s_mov_b64 exec, -1")
    red8(12)
    e("ds_write_b32 v86, v12 offset:%d" % L_R)
    e("v_lshlrev_b32 v12, 2, v0")
    e("s_waitcnt lgkmcnt(0)")
    if DRY:
        e("s_cmp_lg_u32 s73, 0")
        e("s_cbranch_scc1 L_nb2")
    e("s_barrier")
    if DRY: lab("L_nb2")
    e("s_cmp_lg_u32 %s, 3" % S_W)
    e("s_cbranch_scc1 L_hend")
    e("s_mov_b32 exec_hi, 0")
    for w in range(4):
        e("ds_read_b32 v%d, v12 offset:%d" % (24 + w, L_R + w * 128))
    mk_srd(SRD_X, "s36", "s37", 5120)
    e("s_and_b32 s5, s2, 3")
    e("s_mul_i32 %s, s5, 1280" % S_T0)
    e("s_lshr_b32 %s, s2, 2" % S_T1)
    e("s_lshl_b32 %s, %s, 6" % (S_T1, S_T1))
    e("s_add_u32 %s, %s, %s" % (S_T0, S_T0, S_T1))
    e("v_lshlrev_b32 v12, 1, v0")
    if DRY: e("s_cmp_lg_u32 s73, 0")
    e("s_waitcnt lgkmcnt(0)")
    e("v_add_f32 v24, v24, v25"); e("v_add_f32 v26, v26, v27")
    e("v_add_f32 v24, v24, v26")
    bf16r(24)
    e("v_mul_f32 v24, v%d, v24" % V_G)
    bf16r(24)
    e("v_add_f32 v24, v24, v%d" % V_FB)
    e("v_cvt_pk_bf16_f32 v24, v24, v24")
    if DRY: e("s_cbranch_scc1 L_hend")
    e("buffer_store_short v24, v12, %s, %s offen" % (srd(SRD_X), S_T0))
    lab("L_hend")
    if DRY:
        e("s_cmp_eq_u32 s73, 0")
        e("s_cbranch_scc1 L_hfin")
        e("s_mov_b32 s73, 0")
        e("s_mov_b32 s72, 0")
        e("s_mov_b64 exec, -1")
        e("s_branch L_tail")
        lab("L_hfin")
    stamp(9)
    stamps_out(4)


def main():
    ref = open("cdna_kernels/%s.s.ref" % NAME).read().split("\n")
    head = []
    for ln in ref:
        if ln.startswith("; @launch"):
            break
        head.append(ln)
    out = head + ["; @launch grid=(%d,1,1) block=(512,1,1) lds=%d" % (NWG, LDS_BYTES)]
    out += ['.amdgcn_target "amdgcn-amd-amdhsa--gfx950"', ".text", ".globl " + KNAME, ".p2align 8",
            ".type %s,@function" % KNAME, KNAME + ":"]
    e("s_cmp_ge_u32 s2, %d" % NWG)
    e("s_cbranch_scc1 L_end")
    if TS and "t00" in XP:
        e("s_memrealtime s[98:99]")
        e("s_waitcnt lgkmcnt(0)")
    e("s_load_dwordx16 s[16:31], s[0:1], 0")
    e("s_load_dwordx8 s[32:39], s[0:1], 64")
    e("s_load_dwordx2 s[40:41], s[0:1], 96")
    if "anti" in XP:
        e("s_and_b32 s4, s2, 7")
        e("s_lshl_b32 s4, s4, 5")
        e("s_lshr_b32 s2, s2, 3")
        e("s_or_b32 s2, s2, s4")
    e("v_lshrrev_b32 v1, 6, v0")
    e("v_and_b32 v0, 63, v0")
    e("s_mov_b32 s72, 0")
    e("v_readfirstlane_b32 %s, v1" % S_W)
    e("s_and_b32 s4, s2, 7")
    e("s_lshr_b32 s5, s2, 3")
    e("s_and_b32 %s, s5, 3" % S_H)
    e("s_lshl_b32 %s, %s, 3" % (S_H, S_H))
    e("s_add_u32 %s, %s, s4" % (S_H, S_H))
    e("s_lshr_b32 %s, s5, 2" % S_B)
    e("s_and_b32 %s, %s, 3" % (S_B, S_B))
    e("s_lshr_b32 %s, s5, 4" % S_HALF)
    e("s_lshl_b32 %s, %s, 5" % (S_BH, S_B))
    e("s_add_u32 %s, %s, %s" % (S_BH, S_BH, S_H))
    if TS:
        for i in range(NSTAMP): e("s_mov_b32 s%d, 0" % (76 + 2 * i))
    e("s_cmp_ge_u32 %s, 4" % S_W)
    e("s_cbranch_scc1 L_helper")
    if TS and "t00" in XP: e("s_mov_b32 s88, s98")
    streamer()
    helper()
    lab("L_end")
    e("s_endpgm")
    lab("L_code_end")
    out += L
    out += ['.section .rodata,"a"', ".p2align 6", ".amdhsa_kernel " + KNAME,
            "  .amdhsa_next_free_vgpr 256", "  .amdhsa_next_free_sgpr %d" % (100 if TS else 80), "  .amdhsa_accum_offset 256",
            "  .amdhsa_group_segment_fixed_size 0", "  .amdhsa_kernarg_size 104",
            "  .amdhsa_user_sgpr_count 2", "  .amdhsa_user_sgpr_kernarg_segment_ptr 1",
            "  .amdhsa_system_sgpr_workgroup_id_x 1", "  .amdhsa_float_denorm_mode_32 3",
            ".end_amdhsa_kernel", ""]
    open(OUT, "w").write("\n".join(out))

main()
```

```python
import sys

NAME = "gated_mix__mha_block_cached__glu_gated_bilinear__decode"
KNAME = NAME + "_kernel"
TS = "--ts" in sys.argv
XP = [a[2:] for a in sys.argv if a.startswith("--")]
OUT = [a for a in sys.argv[1:] if not a.startswith("--")]
OUT = OUT[0] if OUT else "cdna_kernels/%s.s" % NAME
def xpv(name, default):
    for a in XP:
        if a.startswith(name + "="): return int(a.split("=")[1])
    return default

FS = xpv("fs", 1)
NWG, NCONS, NF2 = 256, 80, 180 // FS
NWARM = xpv("nwarm", 5)
Y_OFF = 0
F_OFF = 0xA0000
QX_OFF = 0xD0000
GX_OFF = 0xF0000
RC_OFF = 0x10C000
CT_OFF = 0x110000
WS_USED = 0x130000
WS_BASE = xpv("wsmb", 0) << 20
DBG_WS = 8 << 20
WS_REC = (WS_USED if not TS else (64 << 20))
D = xpv("d", 8)
C0 = xpv("c0", 12)
WO_WIN = xpv("wowin", 5)
NB = 8
FC = "nofc" not in XP
XK = [0, xpv("xk1", 1), xpv("xk2", 2)]
XV = [0, xpv("xv1", 2), xpv("xv2", 4)]
KDL, DLT = xpv("kdl", 235), xpv("dlt", 225)
TH1, TH2 = xpv("th1", 0), xpv("th2", 60)
CA = xpv("ca", 1)
CC = [7, 9]
for a in XP:
    if a.startswith("cc="): CC = [int(x) for x in a[3:].split(",") if int(x)]
def sched(n): return (min(n, 5) - 1) * KDL + max(n - 5, 0) * DLT
V_ONE, V_FLAG, S_FLAG = 40, 41, "s69"
DRY = "dry" in XP and FC
assert D % 4 == 0 and 4 <= D <= 16

P_ROW = 64 * NB + 16
P_WAVE = 4 * P_ROW
L_QB = 8448
L_OP = 8704
OA_ROW = 272
L_ML = 10880
L_CNT = 10912
L_SC = 10944
L_R = 11008
L_HT = 11904
L_WQ = 12800
L_X0 = 33280
L_WF = 38400
L_X1 = 58880
L_WO = 64000
NBUF = xpv("nbuf", 4)
SM = xpv("sm", 1)
SP = xpv("sp", 0)
L_SY = 11648
LDS_BYTES = L_WO + 20480 * NBUF
assert 4 * P_WAVE <= L_QB

L = []
def e(s): L.append("    " + s)
def lab(s): L.append(s + ":")
def cmt(s): L.append("    ; " + s)
def vr(a, n=4): return "v[%d:%d]" % (a, a + n - 1)

S_W, S_H, S_B, S_HALF, S_BH = "s3", "s6", "s7", "s8", "s9"
S_OFF, S_IT, S_T0, S_T1, S_A = "s10", "s11", "s12", "s13", "s14"
S_C, S_I = "s15", "s74"
SRD_S, SRD_W, SRD_WS, SRD_DBG, SRD_X = 44, 48, 52, 56, 60
S_TG = 64
S_P = 68
def srd(n): return "s[%d:%d]" % (n, n + 3)
def mk_srd(n, lo, hi, nrec):
    e("s_mov_b32 s%d, %s" % (n, lo))
    e("s_mov_b32 s%d, %s" % (n + 1, hi))
    e("s_mov_b32 s%d, 0x%x" % (n + 2, nrec))
    e("s_mov_b32 s%d, 0x00020000" % (n + 3))
def mk_ws():
    if WS_BASE:
        e("s_add_u32 s%d, s40, 0x%x" % (SRD_WS, WS_BASE))
        e("s_addc_u32 s%d, s41, 0" % (SRD_WS + 1))
        e("s_mov_b32 s%d, 0x%x" % (SRD_WS + 2, WS_USED))
        e("s_mov_b32 s%d, 0x00020000" % (SRD_WS + 3))
    else:
        mk_srd(SRD_WS, "s40", "s41", WS_USED)

BUF = 64
WREG = 96
def B(i): return BUF + 4 * i
def W(i): return WREG + 4 * i

LOG2E = "0x3fb8aa3b"
SCALE = "0x3db504f3"
MFMA = "v_mfma_f32_16x16x32_bf16"
TAGX = "0x9e3779b9"

def sel_pv(dst, t):
    a, b, c = t, t + 1, t + 2
    e("v_mov_b32 v%d, 0x100" % a)
    e("v_mov_b32 v%d, 0x302" % b)
    e("v_and_b32 v%d, 8, v0" % c)
    e("v_cmp_ne_u32 vcc, 0, v%d" % c)
    e("s_nop 1")
    e("v_cndmask_b32 v%d, v%d, v%d, vcc" % (a, a, b))
    e("v_or_b32 v%d, 0x0c0c0000, v%d" % (b, a))
    e("v_lshlrev_b32 v%d, 16, v%d" % (a, a))
    e("v_or_b32 v%d, 0x0c0c, v%d" % (a, a))
    e("v_and_b32 v%d, 1, v0" % c)
    e("v_cmp_ne_u32 vcc, 0, v%d" % c)
    e("s_nop 1")
    e("v_cndmask_b32 v%d, v%d, v%d, vcc" % (a, b, a))
    e("v_mov_b32 v%d, 0x0c0c0c0c" % b)
    e("v_bfe_u32 v%d, v0, 1, 2" % c)
    for i in range(4):
        e("v_cmp_eq_u32 vcc, %d, v%d" % (i, c))
        e("s_nop 1")
        e("v_cndmask_b32 v%d, v%d, v%d, vcc" % (dst + i, b, a))

def allreduce64(op, v, t):
    for r in (8, 4, 2, 1):
        e("s_nop 1")
        e("v_%s_f32_dpp v%d, v%d, v%d row_ror:%d row_mask:0xf bank_mask:0xf" % (op, v, v, v, r))
    for sw in ("16", "32"):
        e("v_mov_b32 v%d, v%d" % (t, v))
        e("s_nop 1")
        e("v_permlane%s_swap_b32 v%d, v%d" % (sw, v, t))
        e("s_nop 1")
        e("v_%s_f32 v%d, v%d, v%d" % (op, v, v, t))

def allreduce4(op, v):
    for m in ("quad_perm:[1,0,3,2]", "quad_perm:[2,3,0,1]"):
        e("s_nop 1")
        e("v_%s_f32_dpp v%d, v%d, v%d %s row_mask:0xf bank_mask:0xf" % (op, v, v, v, m))

def bf16r(v):
    e("v_cvt_pk_bf16_f32 v%d, v%d, v%d" % (v, v, v))
    e("v_lshlrev_b32 v%d, 16, v%d" % (v, v))

def hilo_pack(a, b, t):
    e("v_cvt_pk_bf16_f32 v%d, v%d, v%d" % (t, a, b))
    e("v_lshlrev_b32 v%d, 16, v%d" % (t + 1, t))
    e("v_and_b32 v%d, 0xffff0000, v%d" % (t + 2, t))
    e("v_sub_f32 v%d, v%d, v%d" % (t + 1, a, t + 1))
    e("v_sub_f32 v%d, v%d, v%d" % (t + 2, b, t + 2))
    e("v_cvt_pk_bf16_f32 v%d, v%d, v%d" % (t + 1, t + 1, t + 2))
    e("v_perm_b32 v%d, v%d, v%d, %s" % (a, t + 1, t, S_T0))
    e("v_perm_b32 v%d, v%d, v%d, %s" % (b, t + 1, t, S_T1))

def stream_load(t):
    e("buffer_load_dwordx4 %s, v1, %s, %s offen nt" % (vr(B(t)), srd(SRD_S), S_OFF))
    e("s_add_u32 %s, %s, 0x1000" % (S_OFF, S_OFF))

NSTAMP = 10
def stamp(i):
    if not TS: return
    e("s_memrealtime s[%d:%d]" % (76 + 2 * i, 77 + 2 * i))
    e("s_waitcnt lgkmcnt(0)")

def stamps_out(w8off):
    if not TS: return
    e("s_mov_b64 exec, 1")
    mk_srd(SRD_WS, "s40", "s41", 64 << 20)
    e("s_lshl_b32 s12, s2, 3")
    e("s_add_u32 s12, s12, %s" % S_W)
    e("s_add_u32 s12, s12, %d" % w8off)
    e("s_lshl_b32 s12, s12, 6")
    e("s_add_u32 s12, s12, 0x%x" % DBG_WS)
    for i in range(NSTAMP):
        e("v_mov_b32 v5, s%d" % (76 + 2 * i))
        e("buffer_store_dword v5, off, %s, s12 offset:%d" % (srd(SRD_WS), 4 * i))
    e("s_getreg_b32 s13, hwreg(HW_REG_XCC_ID)")
    e("v_mov_b32 v5, s13")
    e("buffer_store_dword v5, off, %s, s12 offset:56" % srd(SRD_WS))
    e("s_getreg_b32 s13, hwreg(HW_REG_HW_ID)")
    e("v_mov_b32 v5, s13")
    e("buffer_store_dword v5, off, %s, s12 offset:60" % srd(SRD_WS))

SPIN_MAX = 400000
def spin_guard(exit_lbl):
    e("s_add_u32 s72, s72, 1")
    e("s_cmp_gt_u32 s72, %d" % SPIN_MAX)
    e("s_cbranch_scc1 %s" % exit_lbl)

NLAB = [0]
def newlab(p):
    NLAB[0] += 1
    return "L_%s%d" % (p, NLAB[0])

def lds_wait(off, target, vt, va, sleep=1):
    l0, l1 = newlab("lw"), newlab("lw")
    lab(l0)
    e("ds_read_b32 v%d, v%d offset:%d" % (vt, va, L_CNT + off))
    e("s_waitcnt lgkmcnt(0)")
    e("v_readfirstlane_b32 %s, v%d" % (S_T0, vt))
    e("s_cmp_ge_u32 %s, %s" % (S_T0, target))
    e("s_cbranch_scc1 %s" % l1)
    spin_guard(l1)
    e("s_sleep %d" % sleep)
    e("s_branch %s" % l0)
    lab(l1)

def lds_signal(off, vt, va):
    e("v_mov_b32 v%d, 1" % vt)
    e("s_mov_b64 exec, 1")
    e("ds_add_u32 v%d, v%d offset:%d" % (va, vt, L_CNT + off))
    e("s_mov_b64 exec, -1")

def fc_end(dl):
    e("s_memrealtime s[70:71]")
    e("s_mov_b64 exec, 1")
    e("ds_add_u32 v30, v%d offset:%d" % (V_ONE, L_CNT + 12))
    e("s_mov_b64 exec, -1")
    e("s_waitcnt lgkmcnt(0)")
    e("v_readfirstlane_b32 s71, v%d" % V_FLAG)
    e("s_sub_u32 s70, s68, s70")
    e("s_add_u32 s70, s70, s71")
    e("s_add_u32 s68, s68, %s" % dl)
    e("s_cmp_gt_i32 s70, %d" % TH1)
    e("s_cselect_b32 %s, 1, 0" % S_FLAG)
    e("s_cmp_gt_i32 s70, %d" % TH2)
    e("s_cselect_b32 %s, 2, %s" % (S_FLAG, S_FLAG))
    e("s_cmp_eq_u32 s71, 0")
    e("s_cselect_b32 %s, 0, %s" % (S_FLAG, S_FLAG))

def k_body(b0, waits, loads, pre=None, steady=False):
    P = [8, 9, 10, 11]; Y0, Y1, Z, T, S, TMP = 12, 13, 14, 15, 16, 17
    for G in range(4):
        ld = list(loads[G])
        def nxt():
            if ld: stream_load(ld.pop(0))
        e("s_waitcnt vmcnt(%d)" % waits[G])
        for k in range(4):
            for u in range(4):
                c = "0" if k == 0 else "v%d" % P[u]
                e("v_dot2_f32_bf16 v%d, v%d, v%d, %s" % (P[u], B(b0 + 4 * G + u) + k, 4 + k, c))
        if pre and pre.get(G): pre[G]()
        e("v_add_f32_dpp v%d, v%d, v%d row_ror:8 row_mask:0xf bank_mask:0x3" % (Y0, P[0], P[0]))
        e("v_add_f32_dpp v%d, v%d, v%d row_ror:8 row_mask:0xf bank_mask:0xc" % (Y0, P[1], P[1]))
        e("v_add_f32_dpp v%d, v%d, v%d row_ror:8 row_mask:0xf bank_mask:0x3" % (Y1, P[2], P[2]))
        e("v_add_f32_dpp v%d, v%d, v%d row_ror:8 row_mask:0xf bank_mask:0xc" % (Y1, P[3], P[3]))
        nxt()
        if len(loads[G]) < 1: e("s_nop 1")
        e("v_add_f32_dpp v%d, v%d, v%d row_half_mirror row_mask:0xf bank_mask:0x5" % (Z, Y0, Y0))
        e("v_add_f32_dpp v%d, v%d, v%d row_half_mirror row_mask:0xf bank_mask:0xa" % (Z, Y1, Y1))
        nxt()
        if len(loads[G]) < 2: e("s_nop 1")
        e("v_add_f32_dpp v%d, v%d, v%d quad_perm:[1,0,3,2] row_mask:0xf bank_mask:0xf" % (Z, Z, Z))
        nxt()
        if len(loads[G]) < 3: e("s_nop 1")
        d = S if G == 0 else T
        e("v_add_f32_dpp v%d, v%d, v%d quad_perm:[2,3,0,1] row_mask:0xf bank_mask:0xf" % (d, Z, Z))
        nxt()
        assert not ld
        if G:
            e("v_cndmask_b32 v%d, v%d, v%d, s[%d:%d]" % (S, S, T, 60 + 2 * G, 61 + 2 * G))
    e("v_cvt_pk_bf16_f32 v%d, v%d, v%d" % (TMP, S, S))
    e("v_lshlrev_b32 v%d, 16, v%d" % (TMP, TMP))
    e("v_mul_f32 v%d, %s, v%d" % (TMP, SCALE, TMP))
    bf16r(TMP)
    e("s_add_u32 %s, %s, 1" % (S_IT, S_IT))
    e("v_max_f32 v3, v3, v%d" % TMP)
    if FC and steady: e("ds_read_b32 v%d, v30 offset:%d" % (V_FLAG, L_CNT + 20))
    e("ds_write_b32 v2, v%d" % TMP)
    e("v_add_u32 v2, 64, v2")
    if FC and steady:
        fc_end(str(KDL))

def v_body(x=0):
    A, ACC = 8, 20
    PB = [12, 16]
    for G in range(4):
        e("s_waitcnt lgkmcnt(0)")
        e("ds_read_b128 %s, v2 offset:%d" % (vr(PB[(G + 1) & 1]), (G + 1) * 16))
        if FC and G == 3: e("ds_read_b32 v%d, v30 offset:%d" % (V_FLAG, L_CNT + 20))
        for u in range(4):
            t = 4 * G + u
            p = PB[G & 1] + u
            for i in range(4):
                e("v_perm_b32 v%d, v%d, v%d, v%d" % (A + i, p, p, 4 + i))
            e("s_waitcnt vmcnt(%d)" % (D - 1 - x))
            e("s_nop 0")
            e("%s %s, %s, %s, %s" % (MFMA, vr(ACC), vr(A), vr(B(t)), vr(ACC)))
            stream_load((t + D) % 16)
    e("s_add_u32 %s, %s, 1" % (S_IT, S_IT))
    if FC and "nolast" not in XP:
        e("s_cmp_eq_u32 %s, %d" % (S_IT, NB))
        e("s_cbranch_scc1 L_vd")
    e("v_add_u32 v2, 64, v2")
    if FC: fc_end(str(DLT))

def streamer():
    cmt("---- streaming waves")
    e("s_lshl_b32 %s, %s, 20" % (S_T0, S_BH))
    e("s_lshl_b32 %s, %s, 19" % (S_T1, S_HALF))
    e("s_add_u32 %s, %s, %s" % (S_T0, S_T0, S_T1))
    e("s_lshl_b32 %s, %s, 10" % (S_T1, S_W))
    e("v_lshlrev_b32 v1, 4, v0")
    e("v_add_u32 v1, %s, v1" % S_T1)
    e("s_mov_b32 s%d, 0x%x" % (SRD_S + 2, NB << 16))
    e("s_mov_b32 s%d, 0x00020000" % (SRD_S + 3))
    e("s_mov_b32 %s, 0" % S_OFF)
    e("s_waitcnt lgkmcnt(0)")
    stamp(0)
    e("s_add_u32 s%d, s18, %s" % (SRD_S, S_T0))
    e("s_addc_u32 s%d, s19, 0" % (SRD_S + 1))
    e("s_add_u32 s42, s20, %s" % S_T0)
    e("s_addc_u32 s43, s21, 0")
    PRE = min(xpv("pre", 4), C0)
    for t in range(PRE):
        stream_load(t)
    e("s_barrier")
    for t in range(PRE, C0):
        stream_load(t)
    for i, m in enumerate((0x22222222, 0x44444444, 0x88888888)):
        e("s_mov_b32 s%d, 0x%x" % (62 + 2 * i, m)); e("s_mov_b32 s%d, 0x%x" % (63 + 2 * i, m))
    e("v_lshrrev_b32 v24, 4, v0")
    e("v_and_b32 v25, 15, v0")
    e("v_lshlrev_b32 v25, 4, v25")
    e("v_mul_u32_u24 v2, %d, v24" % P_ROW)
    e("s_mul_i32 %s, %s, %d" % (S_T0, S_W, P_WAVE))
    e("v_add_u32 v28, %s, v2" % S_T0)
    e("v_and_b32 v26, 3, v0")
    e("v_lshlrev_b32 v26, 4, v26")
    e("v_bfe_u32 v27, v0, 2, 1")
    e("v_lshl_add_u32 v26, v27, 3, v26")
    e("v_bfe_u32 v27, v0, 3, 1")
    e("v_lshl_add_u32 v26, v27, 2, v26")
    e("v_add_u32 v2, v28, v26")
    e("v_mov_b32 v29, v2")
    e("v_mov_b32 v3, 0xff800000")
    e("v_mov_b32 v30, 0")
    e("v_mov_b32 v%d, 1" % V_ONE)
    e("s_mov_b32 %s, 0" % S_FLAG)
    e("s_mov_b32 s68, 0")
    e("s_mov_b32 %s, 0" % S_IT)
    for t in range(C0, 48):
        e("s_waitcnt vmcnt(%d)" % (C0 - 1))
        if "t1" in XP and t in (C0, C0 + 6, C0 + 12, C0 + 24): stamp({C0: 6, C0 + 6: 7, C0 + 12: 8, C0 + 24: 9}[t])
        stream_load(t)
    stamp(1)
    lds_wait(4, "1", 31, 30)
    e("ds_read_b128 v[4:7], v25 offset:%d" % L_QB)
    e("s_waitcnt lgkmcnt(0)")
    stamp(2)
    iss = 0
    for th in range(3):
        waits, loads = [], []
        for G in range(4):
            g = 4 * th + G
            waits.append(44 - 4 * g + iss)
            n = (g + 1) * D // 12 - g * D // 12
            loads.append(list(range(iss, iss + n))); iss += n
        k_body(16 * th, waits, loads)
    assert iss == D
    def switch():
        e("s_cmp_eq_u32 %s, %d" % (S_IT, NB - 1))
        e("s_cselect_b32 s%d, s42, s%d" % (SRD_S, SRD_S))
        e("s_cselect_b32 s%d, s43, s%d" % (SRD_S + 1, SRD_S + 1))
        e("s_cselect_b32 %s, 0, %s" % (S_OFF, S_OFF))
    def loops(pfx, body):
        if not FC:
            lab(pfx + "0")
            body(0)
            e("s_cmp_lg_u32 %s, %d" % (S_IT, NB))
            e("s_cbranch_scc1 %s0" % pfx)
            return
        e("s_branch %sn" % pfx)
        for lv in (2, 1, 0):
            lab(pfx + str(lv))
            body(lv)
            if lv: e("s_branch %sc" % pfx)
        lab(pfx + "c")
        e("s_cmp_eq_u32 %s, %d" % (S_IT, NB))
        e("s_cbranch_scc1 %sd" % pfx)
        lab(pfx + "n")
        e("s_cmp_eq_u32 %s, 0" % S_FLAG)
        e("s_cbranch_scc1 %s0" % pfx)
        e("s_cmp_eq_u32 %s, 1" % S_FLAG)
        e("s_cbranch_scc1 %s1" % pfx)
        e("s_branch %s2" % pfx)
        lab(pfx + "d")
    loops("L_k", lambda lv: k_body(0, [D - 4 - XK[lv]] * 4, [[(4 * G + u + D) % 16 for u in range(4)] for G in range(4)], {(16 - D) // 4: switch}, True))
    stamp(3)
    for k in range(NB):
        e("ds_read_b32 v%d, v29 offset:%d" % (32 + k, 64 * k))
    allreduce64("max", 3, 16)
    e("s_mov_b32 %s, 0x05040100" % S_T0)
    e("s_mov_b32 %s, 0x07060302" % S_T1)
    e("s_waitcnt lgkmcnt(0)")
    for k in range(NB):
        e("v_sub_f32 v%d, v%d, v3" % (32 + k, 32 + k))
    for k in range(NB):
        e("v_mul_f32 v%d, %s, v%d" % (32 + k, LOG2E, 32 + k))
    for k in range(NB):
        e("v_exp_f32 v%d, v%d" % (32 + k, 32 + k))
    e("s_nop 0")
    e("v_add_f32 v24, v32, v33")
    for k in range(2, NB):
        e("v_add_f32 v24, v24, v%d" % (32 + k))
    for k in range(NB // 2):
        hilo_pack(32 + 2 * k, 33 + 2 * k, 16)
    for k in range(NB):
        e("ds_write_b32 v29, v%d offset:%d" % (32 + k, 64 * k))
    e("v_mov_b32 v2, v28")
    e("ds_read_b128 %s, v2" % vr(12))
    allreduce64("add", 24, 20)
    sel_pv(4, 8)
    e("v_mov_b32 v25, v24")
    e("v_mov_b32 v24, v3")
    e("s_lshl_b32 %s, %s, 3" % (S_T0, S_W))
    e("v_mov_b32 v26, %s" % S_T0)
    e("s_mov_b64 exec, 1")
    e("ds_write_b64 v26, v[24:25] offset:%d" % L_ML)
    e("s_mov_b64 exec, -1")
    lds_signal(0, 27, 30)
    for i in range(4):
        e("v_mov_b32 v%d, 0" % (20 + i))
    e("s_mov_b32 %s, 0" % S_IT)
    e("v_bfe_u32 v26, v0, 2, 2")
    e("v_lshlrev_b32 v27, 6, v26")
    e("v_and_b32 v26, 1, v0")
    e("v_lshl_add_u32 v27, v26, %d, v27" % (4 if SM else 5))
    e("v_bfe_u32 v26, v0, 4, 1")
    e("v_lshl_add_u32 v27, v26, %d, v27" % (3 if SM else 4))
    e("v_bfe_u32 v26, v0, 1, 1")
    e("v_lshl_add_u32 v27, v26, %d, v27" % (5 if SM else 3))
    e("v_lshrrev_b32 v26, 5, v0")
    e("s_mul_i32 %s, %s, %d" % (S_T0, S_W, 2 * OA_ROW))
    e("s_add_u32 %s, %s, %d" % (S_T0, S_T0, L_OP))
    e("v_lshl_add_u32 v28, v26, 2, v27")
    e("v_add_u32 v28, %s, v28" % S_T0)
    if SP:
        mk_ws()
        e("s_cmp_ge_u32 s2, %d" % NCONS)
        e("s_cbranch_scc1 L_nsp")
        e("ds_read_b32 v26, v30 offset:%d" % (L_CNT + 8))
        cons_setup(186, 187, 27)
        e("s_lshl_b32 %s, %s, 7" % (S_T0, S_W))
        e("v_add_u32 v186, %s, v186" % S_T0)
        e("s_waitcnt lgkmcnt(0)")
        e("v_readfirstlane_b32 %s, v26" % S_T0)
        stags()
        lab("L_nsp")
    stamp(4)
    if FC: e("s_mov_b32 s68, %d" % sched(6))
    loops("L_v", lambda lv: v_body(XV[lv]))
    stamp(5)
    ACC = 20
    lab("L_send")
    e("s_nop 4")
    e("v_permlane32_swap_b32 v%d, v%d" % (ACC, ACC + 2))
    e("v_permlane32_swap_b32 v%d, v%d" % (ACC + 1, ACC + 3))
    e("s_nop 0")
    e("v_add_f32 v%d, v%d, v%d" % (ACC, ACC, ACC + 2))
    e("v_add_f32 v%d, v%d, v%d" % (ACC + 1, ACC + 1, ACC + 3))
    e("v_cvt_pk_bf16_f32 v12, v%d, v%d" % (ACC, ACC + 1))
    e("ds_write_b32 v28, v12")
    e("v_lshlrev_b32 v13, 16, v12")
    e("v_and_b32 v14, 0xffff0000, v12")
    e("v_sub_f32 v13, v%d, v13" % ACC)
    e("v_sub_f32 v14, v%d, v14" % (ACC + 1))
    e("v_cvt_pk_bf16_f32 v13, v13, v14")
    e("ds_write_b32 v28, v13 offset:%d" % OA_ROW)
    if SP:
        e("s_cmp_lt_u32 s2, %d" % NCONS)
        e("s_cbranch_scc1 L_scons")
    e("s_waitcnt lgkmcnt(0)")
    if DRY: e("s_cbranch_scc0 L_tail")
    e("s_barrier")
    stamps_out(0)
    e("s_endpgm")
    if SP:
        lab("L_scons")
        y_gather(186, 187, ["s_waitcnt lgkmcnt(0)", "s_barrier"], 6)
        e("s_waitcnt lgkmcnt(0)")
        e("s_barrier")
        stamps_out(0)
        e("s_endpgm")

def cons_setup(va, vg, t):
    e("s_and_b32 %s, s2, 3" % S_C)
    e("s_lshl_b32 %s, %s, 2" % (S_C, S_C))
    e("s_add_u32 %s, %s, %s" % (S_C, S_C, S_W))
    e("s_mul_i32 %s, %s, %d" % (S_C, S_C, 16 * 2560))
    e("s_lshr_b32 %s, s2, 2" % S_T1)
    e("s_lshl_b32 %s, %s, 7" % (S_T1, S_T1))
    e("s_add_u32 %s, %s, %s" % (S_C, S_C, S_T1))
    e("s_add_u32 %s, %s, %d" % (S_A, S_C, 8 * 2560))
    e("v_and_b32 v%d, 7, v0" % va)
    e("v_lshlrev_b32 v%d, 4, v%d" % (va, va))
    e("v_bfe_u32 v%d, v0, 4, 1" % vg)
    e("v_lshl_add_u32 v%d, v%d, 3, v%d" % (va, vg, va))
    e("v_lshrrev_b32 v%d, 5, v0" % vg)
    e("v_lshl_add_u32 v%d, v%d, 2, v%d" % (va, vg, va))
    e("v_lshrrev_b32 v%d, 3, v0" % vg)
    e("v_mul_u32_u24 v%d, 2560, v%d" % (vg, vg))
    e("v_and_b32 v%d, 7, v0" % t)
    e("v_lshl_add_u32 v%d, v%d, 4, v%d" % (vg, t, vg))

def y_gather(va, vg, after_first, st):
    NS = xpv("ns", 3)
    YLD = "sc1"
    def pl(k):
        e("buffer_load_dwordx4 %s, v%d, %s, %s offen %s" % (vr(32 + 8 * k), vg, srd(SRD_WS), S_C, YLD))
        e("buffer_load_dwordx4 %s, v%d, %s, %s offen %s" % (vr(36 + 8 * k), vg, srd(SRD_WS), S_A, YLD))
    for k in range(NS):
        pl(k)
        if k == 0:
            for x in after_first: e(x)
        if k < NS - 1 and (k or not after_first or xpv("yg0", 1)): e("s_sleep %d" % xpv("yg", 9))
    lab("L_yp")
    for k in range(NS):
        g = 32 + 8 * k
        e("s_waitcnt vmcnt(%d)" % (2 * (NS - 1)))
        e("v_xor_b32 v20, s%d, v%d" % (S_TG, g))
        e("v_xor_b32 v21, s%d, v%d" % (S_TG + 1, g + 1))
        e("v_or_b32 v20, v20, v21")
        for i in range(2, 8, 2):
            e("v_xor_b32 v21, s%d, v%d" % (S_TG + (i & 3), g + i))
            e("v_xor_b32 v22, s%d, v%d" % (S_TG + (i & 3) + 1, g + i + 1))
            e("v_or3_b32 v20, v20, v21, v22")
        e("v_and_b32 v20, 0x3ff, v20")
        e("v_cmp_ne_u32 vcc, 0, v20")
        e("s_andn2_b64 exec, exec, vcc")
        for i in range(4):
            e("v_add_f32 v%d, v%d, v%d" % (12 + i, g + i, g + 4 + i))
        e("s_mov_b64 exec, vcc")
        e("s_cbranch_execz L_ypd")
        pl(k)
    spin_guard("L_ypd")
    e("s_branch L_yp")
    lab("L_ypd")
    e("s_mov_b64 exec, -1")
    if st is not None: stamp(st)
    red8(12)
    e("ds_write_b32 v%d, v12 offset:%d" % (va, L_R))

VZ = 95
V_G, V_FB, V_M10 = 91, 92, 93

def tpoll(loads, grans, sleep, ex="-1"):
    l0, l1 = newlab("tp"), newlab("tp")
    lab(l0)
    for x in loads: e(x)
    e("s_waitcnt vmcnt(0)")
    for g, t0, t1 in grans:
        e("v_xor_b32 v%d, v%d, v%d" % (g + 2, g + 2, t0))
        e("v_xor_b32 v%d, v%d, v%d" % (g + 3, g + 3, t1))
    g0 = grans[0][0]
    e("v_or_b32 v%d, v%d, v%d" % (g0 + 2, g0 + 2, g0 + 3))
    for g, _, _ in grans[1:]:
        e("v_or3_b32 v%d, v%d, v%d, v%d" % (g0 + 2, g0 + 2, g + 2, g + 3))
    e("v_cmp_ne_u32 vcc, 0, v%d" % (g0 + 2))
    e("s_cbranch_vccz %s" % l1)
    spin_guard(l1)
    e("s_mov_b64 exec, vcc")
    if sleep: e("s_sleep %d" % sleep)
    e("s_branch %s" % l0)
    lab(l1)
    e("s_mov_b64 exec, %s" % ex)

def ypoll(loads, grans, t, sleep, ex="-1"):
    l0, l1 = newlab("yp"), newlab("yp")
    lab(l0)
    for x in loads: e(x)
    e("s_waitcnt vmcnt(0)")
    first = True
    for g, tg in grans:
        for i in range(0, 4, 2):
            if first:
                e("v_xor_b32 v%d, s%d, v%d" % (t, S_TG + i, g + i))
                e("v_xor_b32 v%d, s%d, v%d" % (t + 1, S_TG + i + 1, g + i + 1))
                e("v_or_b32 v%d, v%d, v%d" % (t, t, t + 1)); first = False
            else:
                e("v_xor_b32 v%d, s%d, v%d" % (t + 1, S_TG + i, g + i))
                e("v_xor_b32 v%d, s%d, v%d" % (t + 2, S_TG + i + 1, g + i + 1))
                e("v_or3_b32 v%d, v%d, v%d, v%d" % (t, t, t + 1, t + 2))
    e("v_and_b32 v%d, 0x3ff, v%d" % (t, t))
    e("v_cmp_ne_u32 vcc, 0, v%d" % t)
    e("s_cbranch_vccz %s" % l1)
    spin_guard(l1)
    e("s_mov_b64 exec, vcc")
    if sleep: e("s_sleep %d" % sleep)
    e("s_branch %s" % l0)
    lab(l1)
    e("s_mov_b64 exec, %s" % ex)

def nonce_fetch(regs_offs):
    l0, l1 = newlab("nf"), newlab("nf")
    lab(l0)
    for d, o in regs_offs:
        e("buffer_load_dword v%d, v%d, %s, 0 offen sc1" % (d, o, srd(SRD_DBG)))
    e("s_waitcnt vmcnt(0)")
    ds = [d for d, _ in regs_offs]
    e("v_min_u32 v94, v%d, v%d" % (ds[0], ds[-1]))
    for d in ds[1:-1]:
        e("v_min_u32 v94, v94, v%d" % d)
    e("v_cmp_eq_u32 vcc, 0, v94")
    e("s_cbranch_vccz %s" % l1)
    spin_guard(l1)
    e("s_sleep 16")
    e("s_branch %s" % l0)
    lab(l1)

def head_off(dst, h):
    e("v_and_b32 v%d, 15, v%d" % (dst, h))
    e("v_lshrrev_b32 v%d, 4, v%d" % (h, h))
    e("v_lshlrev_b32 v%d, 2, v%d" % (dst, dst))
    e("v_lshl_add_u32 v%d, v%d, 7, v%d" % (dst, h, dst))

def vtags(n):
    e("v_lshrrev_b32 v%d, 10, v%d" % (n + 1, n))
    e("v_lshrrev_b32 v%d, 20, v%d" % (n + 2, n))
    e("v_not_b32 v%d, v%d" % (n + 3, n))
    e("v_alignbit_b32 v%d, v%d, v%d, 30" % (n + 3, n + 3, n))

def stags():
    e("s_mov_b32 s%d, %s" % (S_TG, S_T0))
    e("s_lshr_b32 s%d, %s, 10" % (S_TG + 1, S_T0))
    e("s_lshr_b32 s%d, %s, 20" % (S_TG + 2, S_T0))
    e("s_not_b32 s%d, %s" % (S_TG + 3, S_T0))
    e("s_lshl_b32 s%d, s%d, 2" % (S_TG + 3, S_TG + 3))
    e("s_lshr_b32 %s, %s, 30" % (S_T0, S_T0))
    e("s_or_b32 s%d, s%d, %s" % (S_TG + 3, S_TG + 3, S_T0))

def ypack(r):
    for i in range(4):
        e("v_add_u32 v%d, 0x200, v%d" % (r + i, r + i))
    for i in range(4):
        e("v_bfi_b32 v%d, v%d, s%d, v%d" % (r + i, V_M10, S_TG + i, r + i))

def red8(a):
    e("s_nop 1")
    e("v_permlane32_swap_b32 v%d, v%d" % (a, a + 1))
    e("v_permlane32_swap_b32 v%d, v%d" % (a + 2, a + 3))
    e("s_nop 1")
    e("v_add_f32 v%d, v%d, v%d" % (a, a, a + 1))
    e("v_add_f32 v%d, v%d, v%d" % (a + 2, a + 2, a + 3))
    e("s_nop 1")
    e("v_permlane16_swap_b32 v%d, v%d" % (a, a + 2))
    e("s_nop 1")
    e("v_add_f32 v%d, v%d, v%d" % (a, a, a + 2))
    e("s_nop 1")
    e("v_add_f32_dpp v%d, v%d, v%d row_ror:8 row_mask:0xf bank_mask:0xf" % (a, a, a))

def census(area, stride_lg, body, sleep):
    e("v_lshrrev_b32 v48, 1, v0")
    e("v_mul_u32_u24 v49, 5, v48")
    e("s_lshr_b32 %s, s2, 3" % S_T1)
    e("s_add_u32 %s, %s, 3" % (S_T1, S_T1))
    e("v_add_u32 v49, %s, v49" % S_T1)
    e("v_and_b32 v49, 15, v49")
    e("v_lshl_add_u32 v48, v49, 3, v48")
    e("v_lshlrev_b32 v48, 7, v48")
    e("v_and_b32 v49, 1, v0")
    e("v_lshl_add_u32 v48, v49, 6, v48")
    e("s_mov_b32 %s, 0x%x" % (S_OFF, area))
    e("s_mov_b64 exec, 0xffff")
    tpoll(["buffer_load_dwordx4 v[40:43], v48, %s, %s offen sc1" % (srd(SRD_WS), S_OFF)], [(40, 62, 63)], sleep, "-1")
    e("v_subrev_u32 v40, s4, v40")
    e("v_cvt_f32_i32 v40, v40")
    for r in (8, 4, 2, 1):
        e("s_nop 1")
        e("v_add_f32_dpp v40, v40, v40 row_ror:%d row_mask:0xf bank_mask:0xf" % r)
    e("v_mul_f32 v40, 0.0625, v40")
    e("v_cvt_i32_f32 v40, v40")
    e("s_sub_u32 s4, s4, %d" % sched(body))
    e("v_add_u32 v40, s4, v40")
    e("v_or_b32 v40, 1, v40")
    e("s_mov_b64 exec, 1")
    e("ds_write_b32 v%d, v40 offset:%d" % (VZ, L_CNT + 20))
    e("s_mov_b64 exec, -1")

def sample(rnd, body):
    area = CT_OFF + rnd * 0x4000
    e("s_and_b32 %s, s2, 127" % S_OFF)
    e("s_lshl_b32 %s, %s, 1" % (S_OFF, S_OFF))
    e("s_add_u32 %s, %s, %s" % (S_OFF, S_OFF, S_HALF))
    e("s_lshl_b32 %s, %s, 6" % (S_OFF, S_OFF))
    e("s_add_u32 %s, %s, 0x%x" % (S_OFF, S_OFF, area))
    lds_wait(12, str(4 * body), 94, VZ, 4)
    e("s_memrealtime s[4:5]")
    e("s_waitcnt lgkmcnt(0)")
    e("v_mov_b32 v60, s4")
    e("v_mov_b32 v61, s4")
    e("s_mov_b64 exec, 1")
    e("buffer_store_dwordx4 v[60:63], off, %s, %s sc1" % (srd(SRD_WS), S_OFF))
    e("s_mov_b64 exec, -1")
    if xpv("tw", 1): e("s_waitcnt vmcnt(0)")
    else: e("s_sleep %d" % xpv("tsl", 32))
    census(area, 6, body, xpv("tsl", 32))

def helper():
    lab("L_helper")
    e("s_setprio 3")
    e("s_memrealtime s[4:5]")
    e("s_sub_u32 %s, %s, 4" % (S_W, S_W))
    e("s_lshl_b32 %s, %s, 1" % (S_I, S_B))
    e("s_add_u32 %s, %s, %s" % (S_I, S_I, S_HALF))
    e("v_lshrrev_b32 v24, 4, v0")
    e("v_and_b32 v25, 15, v0")
    e("s_lshl_b32 %s, %s, 6" % (S_T0, S_W))
    e("v_add_u32 v1, %s, v0" % S_T0)
    e("v_lshlrev_b32 v2, 4, v0")
    e("v_mov_b32 v%d, 0" % VZ)
    e("v_mov_b32 v%d, 0x3ff" % V_M10)
    e("s_cmp_ge_u32 %s, 2" % S_W)
    e("s_cbranch_scc1 L_h23")
    S_STR, S_COL, S_PUB, S_BS = "s68", "s69", "s70", "s71"
    e("s_and_b32 s73, s2, 7")
    e("s_lshr_b32 s75, s2, 3")
    e("s_mul_i32 %s, s73, 7" % S_T0)
    e("s_lshr_b32 %s, s75, 2" % S_T1)
    e("s_add_u32 %s, %s, %s" % (S_T0, S_T0, S_T1))
    e("s_cmp_lt_u32 s75, 28")
    e("s_cselect_b32 %s, %s, 99" % (S_C, S_T0))
    if "noffn" in XP or "noh1" in XP: e("s_mov_b32 %s, 99" % S_C)
    e("s_cmp_ge_u32 %s, 27" % S_T0)
    e("s_cselect_b32 %s, 27, 0" % S_T1)
    e("s_cselect_b32 %s, 1, 0" % S_A)
    e("s_sub_u32 %s, %s, %s" % (S_T0, S_T0, S_T1))
    e("s_lshl_b32 %s, %s, 1" % (S_T0, S_T0))
    e("s_and_b32 %s, s75, 1" % S_T1)
    e("s_add_u32 %s, %s, %s" % (S_T0, S_T0, S_T1))
    e("s_bfe_u32 %s, s75, 0x10001" % S_IT)
    e("s_lshl_b32 %s, %s, 6" % (S_COL, S_T0))
    e("s_lshl_b32 %s, %s, 9" % (S_T0, S_T0))
    e("s_mul_i32 %s, %s, 55296" % (S_PUB, S_A))
    e("s_add_u32 %s, %s, %s" % (S_PUB, S_PUB, S_T0))
    e("s_mul_i32 %s, %s, 27648" % (S_T0, S_IT))
    e("s_add_u32 %s, %s, %s" % (S_PUB, S_PUB, S_T0))
    e("s_add_u32 %s, %s, 0x%x" % (S_PUB, S_PUB, GX_OFF))
    e("s_lshl_b32 %s, %s, 2" % (S_T0, S_H))
    e("s_and_b32 %s, %s, 3" % (S_T1, S_I))
    e("s_add_u32 %s, %s, %s" % (S_T0, S_T0, S_T1))
    e("s_lshl_b32 %s, %s, 6" % (S_T1, S_T0))
    e("s_lshl_b32 s73, %s, 12" % S_H)
    e("s_lshl_b32 s75, %s, 9" % S_I)
    e("s_add_u32 s73, s73, s75")
    e("s_add_u32 s73, s73, 0x%x" % QX_OFF)
    e("s_lshr_b32 s75, %s, 2" % S_I)
    e("s_cmp_eq_u32 %s, 0" % S_W)
    e("s_cselect_b32 %s, %s, %s" % (S_COL, S_T1, S_COL))
    e("s_cselect_b32 %s, s73, %s" % (S_PUB, S_PUB))
    e("s_cselect_b32 %s, 0, %s" % (S_C, S_C))
    e("s_cselect_b32 %s, s75, %s" % (S_IT, S_IT))
    e("s_mul_i32 %s, %s, %d" % (S_STR, S_W, 8192 - 3456))
    e("s_sub_u32 %s, 8192, %s" % (S_STR, S_STR))
    e("s_mul_i32 s73, %s, %d" % (S_W, L_WF - L_WQ))
    e("s_add_u32 s75, s73, %d" % L_X0)
    e("s_add_u32 s73, s73, %d" % L_WQ)
    assert L_WF - L_WQ == L_X1 - L_X0
    e("s_mul_i32 %s, %s, 320" % (S_T0, S_IT))
    e("s_mul_i32 %s, %s, %s" % (S_T0, S_T0, S_STR))
    e("s_add_u32 %s, %s, %s" % (S_COL, S_COL, S_T0))
    e("v_lshrrev_b32 v26, 2, v0")
    e("v_mul_u32_u24 v26, %s, v26" % S_STR)
    e("v_and_b32 v27, 3, v0")
    e("v_lshl_add_u32 v26, v27, 4, v26")
    e("v_add_u32 v26, %s, v26" % S_COL)
    e("s_mul_i32 s%d, %s, 640" % (SRD_W + 2, S_STR))
    e("s_mov_b32 s%d, 0x00020000" % (SRD_W + 3))
    e("s_lshl_b32 %s, %s, 4" % (S_STR, S_STR))
    e("s_cmp_ge_u32 %s, 54" % S_C)
    e("s_cbranch_scc1 L_hb1")
    e("s_waitcnt lgkmcnt(0)")
    stamp(0)
    mk_srd(SRD_X, "s16", "s17", 5120)
    mk_srd(SRD_DBG, "s38", "s39", 256)
    e("s_cmp_lg_u32 %s, 0" % S_A)
    e("s_cselect_b32 s%d, s30, s28" % SRD_W)
    e("s_cselect_b32 s%d, s31, s29" % (SRD_W + 1))
    e("s_cmp_lg_u32 %s, 0" % S_W)
    e("s_cbranch_scc1 L_h1a")
    e("s_mov_b32 s%d, s22" % SRD_W)
    e("s_mov_b32 s%d, s23" % (SRD_W + 1))
    e("s_or_b32 s4, s4, 1")
    e("s_cmp_lg_u32 s2, 0")
    e("s_cbranch_scc1 L_h1a")
    e("v_mov_b32 v60, s4")
    e("v_lshlrev_b32 v61, 7, v0")
    e("s_mov_b64 exec, 3")
    e("buffer_store_dword v60, v61, %s, 0 offen sc1" % srd(SRD_DBG))
    e("s_mov_b64 exec, -1")
    lab("L_h1a")
    e("s_mov_b32 m0, s75")
    e("s_mov_b32 %s, 0" % S_OFF)
    for k in range(4):
        e("buffer_load_dwordx4 v2, %s, 0 offen offset:%d lds" % (srd(SRD_X), 1024 * k))
    e("s_add_u32 m0, s75, 0x1000")
    e("s_mov_b32 %s, 0x1000" % S_T1)
    e("buffer_load_dwordx4 v2, %s, %s offen lds" % (srd(SRD_X), S_T1))
    e("s_mov_b32 m0, s73")
    e("s_nop 0")
    for t in range(20):
        e("buffer_load_dwordx4 v26, %s, %s offen nt lds" % (srd(SRD_W), S_OFF))
        if t < 19:
            e("s_add_u32 m0, m0, 0x400")
            e("s_add_u32 %s, %s, %s" % (S_OFF, S_OFF, S_STR))
    e("s_barrier")
    mk_ws()
    e("v_lshrrev_b32 v28, 2, v25")
    e("v_lshlrev_b32 v28, 6, v28")
    e("v_lshl_add_u32 v28, v24, 9, v28")
    e("v_lshl_add_u32 v28, v27, 3, v28")
    e("v_add_u32 v28, s73, v28")
    e("v_mul_u32_u24 v29, 1280, v27")
    e("v_lshl_add_u32 v29, v24, 4, v29")
    e("s_mul_i32 %s, %s, 640" % (S_T0, S_IT))
    e("s_add_u32 %s, %s, s75" % (S_T0, S_T0))
    e("v_add_u32 v29, %s, v29" % S_T0)
    e("v_lshlrev_b32 v30, 7, v27")
    e("v_lshl_add_u32 v30, v24, 4, v30")
    e("v_bfe_u32 v31, v0, 2, 1")
    e("v_lshl_add_u32 v30, v31, 6, v30")
    XF, WFR, ACC = 96, [176, 192], 32
    e("s_waitcnt vmcnt(20)")
    NK = xpv("nk", 1)
    for s in range(10):
        e("ds_read_b128 %s, v29 offset:%d" % (vr(XF + 4 * s), 64 * s))
    def mm(k):
        for s2 in range(2):
            s = 2 * k + s2
            for ct in range(2):
                e("%s %s, %s, %s, %s" % (MFMA, vr(ACC + 4 * ct), vr(WFR[k & 1] + 8 * s2 + 4 * ct), vr(XF + 4 * s), "0" if s == 0 else vr(ACC + 4 * ct)))
    for k in range(5):
        e("s_waitcnt vmcnt(%d)" % (16 - 4 * k + (1 if k > NK else 0)))
        if k == NK:
            e("s_lshl_b32 s5, %s, 7" % S_W)
            e("buffer_load_dword v60, off, %s, s5 sc1" % srd(SRD_DBG))
        for s2 in range(2):
            s = 2 * k + s2
            for ct in range(2):
                r = WFR[k & 1] + 8 * s2 + 4 * ct
                e("ds_read_b64_tr_b16 %s, v28 offset:%d" % (vr(r, 2), 2048 * s + 32 * ct))
                e("ds_read_b64_tr_b16 %s, v28 offset:%d" % (vr(r + 2, 2), 2048 * s + 32 * ct + 256))
        if k:
            e("s_waitcnt lgkmcnt(8)")
            mm(k - 1)
    e("s_waitcnt lgkmcnt(0)")
    mm(4)
    lab("L_nw")
    e("s_waitcnt vmcnt(0)")
    e("v_readfirstlane_b32 %s, v60" % S_T0)
    e("s_cmp_lg_u32 %s, 0" % S_T0)
    e("s_cbranch_scc1 L_ng")
    spin_guard("L_ng")
    e("s_sleep 4")
    e("buffer_load_dword v60, off, %s, 0 sc1" % srd(SRD_DBG))
    e("s_branch L_nw")
    lab("L_ng")
    e("ds_write_b32 v%d, v60 offset:%d" % (VZ, L_CNT + 8))
    stags()
    e("s_nop 1")
    for i in range(4):
        e("v_mov_b32_dpp v%d, v%d quad_perm:[0,1,2,3] row_mask:0xf bank_mask:0x2" % (ACC + i, ACC + 4 + i))
    ypack(ACC)
    e("s_mov_b32 exec_lo, 0x00ff00ff")
    e("s_mov_b32 exec_hi, 0x00ff00ff")
    if "noqx" in XP:
        e("s_cmp_eq_u32 %s, 0" % S_W)
        e("s_cbranch_scc1 L_noqx")
    if "noh1pub" in XP:
        e("s_cmp_eq_u32 %s, 1" % S_W)
        e("s_cbranch_scc1 L_noqx")
    e("buffer_store_dwordx4 v[32:35], v30, %s, %s offen sc1" % (srd(SRD_WS), S_PUB))
    if "noqx" in XP or "noh1pub" in XP: lab("L_noqx")
    e("s_mov_b64 exec, -1")
    stamp(1)
    e("s_cmp_lg_u32 %s, 0" % S_W)
    e("s_cbranch_scc1 L_wo")
    e("s_lshl_b32 %s, %s, 5" % (S_OFF, S_H))
    e("s_add_u32 %s, %s, %s" % (S_OFF, S_OFF, S_B))
    e("s_lshl_b32 %s, %s, 7" % (S_OFF, S_OFF))
    e("s_add_u32 %s, %s, 0x%x" % (S_OFF, S_OFF, QX_OFF))
    e("v_lshrrev_b32 v48, 3, v0")
    e("v_lshlrev_b32 v48, 9, v48")
    e("v_and_b32 v3, 7, v0")
    e("v_lshl_add_u32 v48, v3, 4, v48")
    e("v_and_b32 v3, 31, v0")
    e("v_lshlrev_b32 v3, 3, v3")
    e("v_lshrrev_b32 v47, 5, v0")
    e("v_lshl_add_u32 v3, v47, 1, v3")
    if xpv("qd", 0): e("s_sleep %d" % xpv("qd", 0))
    if xpv("qw", 1): e("s_waitcnt vmcnt(0)")
    if "noqx" not in XP: ypoll(["buffer_load_dwordx4 v[40:43], v48, %s, %s offen sc1" % (srd(SRD_WS), S_OFF)], [(40, 36)], 44, xpv("qsl", 24))
    else:
        for i in range(4): e("v_mov_b32 v%d, 0" % (40 + i))
    for i in range(4):
        e("v_and_b32 v%d, 0xfffffc00, v%d" % (40 + i, 40 + i))
    e("s_nop 0")
    e("v_permlane32_swap_b32 v40, v41")
    e("v_permlane32_swap_b32 v42, v43")
    e("s_nop 1")
    e("v_add_f32 v40, v40, v41")
    e("v_add_f32 v42, v42, v43")
    e("v_cvt_pk_bf16_f32 v40, v40, v42")
    e("ds_write_b16 v3, v40 offset:%d" % L_QB)
    e("ds_write_b16_d16_hi v3, v40 offset:%d" % (L_QB + 4))
    e("v_mov_b32 v40, 1")
    e("s_waitcnt lgkmcnt(0)")
    e("ds_write_b32 v%d, v40 offset:%d" % (VZ, L_CNT + 4))
    stamp(2)
    e("s_branch L_wo")

    lab("L_h23")
    e("s_cmp_eq_u32 %s, 2" % S_W)
    e("s_cbranch_scc1 L_hb1")
    for i in range(4):
        e("v_mov_b32 v%d, 0" % (44 + i))
    e("ds_write_b128 v%d, v[44:47] offset:%d" % (VZ, L_CNT))
    e("ds_write_b128 v%d, v[44:47] offset:%d" % (VZ, L_CNT + 16))
    e("ds_write_b128 v%d, v[44:47] offset:%d" % (VZ, L_SY))
    e("ds_write_b128 v%d, v[44:47] offset:%d" % (VZ, L_SY + 16))
    lab("L_hb1")
    e("s_waitcnt lgkmcnt(0)")
    stamp(0)
    e("s_barrier")
    mk_ws()
    mk_srd(SRD_DBG, "s38", "s39", 256)
    e("s_cmp_lg_u32 %s, 3" % S_W)
    e("s_cbranch_scc1 L_wo")
    if xpv("ypre", 0) & 12:
        if xpv("ypre", 0) & 8: lds_wait(4, "1", 94, VZ, 4)
        e("s_lshl_b32 %s, %s, 1" % (S_T0, S_BH))
        e("s_add_u32 %s, %s, %s" % (S_T0, S_T0, S_HALF))
        e("s_mul_i32 %s, %s, 2560" % (S_T0, S_T0))
        e("buffer_load_dwordx4 v[64:67], v2, %s, %s offen sc1" % (srd(SRD_WS), S_T0))
        e("buffer_load_dwordx4 v[68:71], v2, %s, %s offen offset:1024 sc1" % (srd(SRD_WS), S_T0))
        e("s_mov_b32 exec_hi, 0")
        e("buffer_load_dwordx4 v[72:75], v2, %s, %s offen offset:2048 sc1" % (srd(SRD_WS), S_T0))
        e("s_mov_b64 exec, -1")
        e("s_waitcnt vmcnt(0)")
    lds_wait(4, "1", 94, VZ, 4)
    if "vtouch" in XP:
        e("s_lshl_b32 %s, %s, 20" % (S_T0, S_BH))
        e("s_lshl_b32 %s, %s, 19" % (S_T1, S_HALF))
        e("s_add_u32 %s, %s, %s" % (S_T0, S_T0, S_T1))
        e("s_add_u32 s%d, s20, %s" % (SRD_X, S_T0))
        e("s_addc_u32 s%d, s21, 0" % (SRD_X + 1))
        e("s_mov_b32 s%d, 0x%x" % (SRD_X + 2, NB << 16))
        e("s_mov_b32 s%d, 0x00020000" % (SRD_X + 3))
        e("v_lshlrev_b32 v28, %d, v0" % xpv("vts", 13))
        e("s_mov_b64 exec, 0x%x" % ((1 << xpv("vtn", 1)) - 1))
        e("buffer_load_dword v88, v28, %s, 0 offen nt" % srd(SRD_X))
        e("s_mov_b64 exec, -1")
    if "nowarm" not in XP:
        e("s_getpc_b64 s[4:5]")
        lab("L_pc")
        e("s_sub_u32 s4, s4, L_pc-%s" % KNAME)
        e("s_subb_u32 s5, s5, 0")
        e("v_lshlrev_b32 v28, 7, v0")
        for i in range(NWARM):
            e("v_min_u32 v27, L_code_end-%s-4, v28" % KNAME)
            e("global_load_dword v89, v27, s[4:5]")
            e("v_add_u32 v28, 0x2000, v28")
    e("s_cmp_ge_u32 s2, %d" % NCONS)
    e("s_cbranch_scc1 L_h3c")
    e("s_and_b32 s5, s2, 3")
    mk_srd(SRD_X, "s16", "s17", 5120)
    mk_srd(SRD_W, "s34", "s35", 1280)
    e("v_lshlrev_b32 v3, 2, v0")
    e("s_mul_i32 %s, s5, 1280" % S_T0)
    for k in range(5):
        e("buffer_load_dword v%d, v3, %s, %s offen offset:%d" % (64 + k, srd(SRD_X), S_T0, 256 * k))
        e("buffer_load_dword v%d, v3, %s, 0 offen offset:%d" % (72 + k, srd(SRD_W), 256 * k))
    e("s_waitcnt vmcnt(0)")
    G = V_G
    e("v_mov_b32 v%d, 0" % G)
    for k in range(5):
        e("v_lshlrev_b32 v80, 16, v%d" % (64 + k))
        e("v_and_b32 v81, 0xffff0000, v%d" % (64 + k))
        e("v_lshlrev_b32 v82, 16, v%d" % (72 + k))
        e("v_and_b32 v83, 0xffff0000, v%d" % (72 + k))
        e("v_mul_f32 v80, v80, v82")
        e("v_mul_f32 v81, v81, v83")
        e("v_cvt_pk_bf16_f32 v80, v80, v81")
        e("v_lshlrev_b32 v81, 16, v80")
        e("v_and_b32 v80, 0xffff0000, v80")
        e("v_add_f32 v%d, v%d, v81" % (G, G))
        e("v_add_f32 v%d, v%d, v80" % (G, G))
    allreduce64("add", G, 80)
    bf16r(G)
    e("v_mul_f32 v%d, 0xbfb8aa3b, v%d" % (G, G))
    e("v_exp_f32 v%d, v%d" % (G, G))
    e("s_nop 0")
    e("v_add_f32 v%d, 1.0, v%d" % (G, G))
    e("v_rcp_f32 v%d, v%d" % (G, G))
    e("s_nop 0")
    bf16r(G)
    lab("L_h3c")
    if FC and CA:
        e("ds_read_b32 v62, v%d offset:%d" % (VZ, L_CNT + 8))
        e("s_waitcnt lgkmcnt(0)")
        e("v_xor_b32 v63, %s, v62" % TAGX)
        sample(0, CA)

    lab("L_wo")
    V_TB, V_FA = 84, 90
    e("s_mul_i32 %s, %s, %d" % (S_T1, S_H, 128 * 1280))
    e("s_mul_i32 %s, %s, 10240" % (S_T0, S_W))
    e("s_sub_u32 %s, %s, 10240" % (S_T0, S_T0))
    e("s_add_u32 %s, %s, %s" % (S_T1, S_T1, S_T0))
    e("s_add_u32 s68, %s, %d" % (S_T0, L_WO))
    if SM:
        e("v_lshrrev_b32 v26, 4, v0")
        e("v_bfe_u32 v27, v0, 2, 1")
        e("v_lshl_add_u32 v26, v26, 2, v27")
        e("v_mul_u32_u24 v26, 1280, v26")
        e("v_bfe_u32 v79, v0, 3, 1")
        if SM == 2:
            e("v_mul_u32_u24 v27, 160, v79")
            e("v_add_u32 v26, v26, v27")
        else:
            e("v_lshl_add_u32 v26, v79, 6, v26")
            e("v_lshlrev_b32 v79, 5, v79")
    else:
        e("v_lshrrev_b32 v26, 2, v0")
        e("v_mul_u32_u24 v26, 1280, v26")
    e("v_and_b32 v27, 3, v0")
    e("v_lshl_add_u32 v26, v27, 3, v26")
    e("s_mul_i32 %s, %s, 320" % (S_T0, S_W))
    e("s_add_u32 %s, %s, %d" % (S_T0, S_T0, L_WO))
    e("v_add_u32 v%d, %s, v26" % (V_TB, S_T0))
    e("v_add_u32 v%d, 40960, v%d" % (V_TB + 1, V_TB))
    if SM == 1:
        e("v_sub_u32 v78, v%d, v79" % V_TB)
        e("v_add_u32 v79, 40960, v78")
    e("s_lshl_b32 %s, %s, 2" % (S_T0, S_W))
    e("v_mov_b32 v%d, %s" % (V_FA, S_T0))
    mk_srd(SRD_W, "s24", "s25", 4096 * 1280)
    lds_wait(4, "1", 94, VZ, 4)
    def flagwait(off, n, target):
        l0, l1 = newlab("fw"), newlab("fw")
        lab(l0)
        e("ds_read_b%d %s, v%d offset:%d" % (32 * n, vr(80, n), VZ, L_SY + off))
        e("s_waitcnt lgkmcnt(0)")
        e("v_min_u32 v80, v80, v81")
        if n == 4: e("v_min3_u32 v80, v80, v82, v83")
        e("s_nop 0")
        e("v_readfirstlane_b32 %s, v80" % S_T0)
        e("s_cmp_ge_u32 %s, %d" % (S_T0, target))
        e("s_cbranch_scc1 %s" % l1)
        spin_guard(l1)
        e("s_sleep %d" % xpv("fsl", 8))
        e("s_branch %s" % l0)
        lab(l1)
    def flag(off, val):
        e("v_mov_b32 v80, %d" % val)
        e("ds_write_b32 v%d, v80 offset:%d" % (V_FA, L_SY + off))
    def consume(c):
        if "nowo" in XP: return
        flagwait(16, 2, c + 1)
        bf = c % NBUF
        for t in range(10):
            if SM:
                P, u = t >> 1, t & 1
                co = 32 * P if SM == 2 else [0, 32, 128, 160, 256][P]
                e("ds_read_b64_tr_b16 %s, v%d offset:%d" % (vr(WREG + 32 * P + 8 * (c >> 1) + 4 * (c & 1) + 2 * u, 2), (78 if SM == 1 and P == 4 else V_TB) + (bf >> 1), (bf & 1) * 20480 + 2560 * u + co))
            else:
                e("ds_read_b64_tr_b16 %s, v%d offset:%d" % (vr(W(4 * t + (c >> 1)) + 2 * (c & 1), 2), V_TB + (bf >> 1), (bf & 1) * 20480 + 32 * t))
        e("s_waitcnt lgkmcnt(0)")
        if c + NBUF < 8: flag(0, c + 1)
    assert WO_WIN <= 10 and NBUF == 4
    e("s_sub_u32 %s, %s, 1" % (S_T0, S_W))
    e("s_cmp_lt_u32 %s, 2" % S_T0)
    e("s_cbranch_scc1 L_ld")
    for c in range(4): consume(c)
    e("s_branch L_prep")
    lab("L_ld")
    WDE = "wdearly" in XP
    if WDE:
        e("s_cmp_lg_u32 %s, 2" % S_W)
        e("s_cbranch_scc1 L_ld1")
        e("s_cmp_lt_u32 s2, %d" % (NWG - NF2 if "noffn" not in XP and "noh2" not in XP else 1000))
        e("s_cbranch_scc1 L_ld1")
        e("s_sub_u32 %s, 255, s2" % S_T0)
        e("s_mul_i32 s70, %s, 205" % S_T0)
        e("s_lshr_b32 s70, s70, 11")
        e("s_mul_i32 s71, s70, 10")
        e("s_sub_u32 s71, %s, s71" % S_T0)
        e("v_lshrrev_b32 v26, 3, v0")
        e("v_mul_u32_u24 v26, 1280, v26")
        e("v_and_b32 v27, 7, v0")
        e("v_lshl_add_u32 v26, v27, 4, v26")
        e("s_mul_i32 %s, s70, %d" % (S_OFF, 96 * 1280))
        e("s_lshl_b32 %s, s71, 7" % S_T0)
        e("s_add_u32 %s, %s, %s" % (S_OFF, S_OFF, S_T0))
        mk_srd(SRD_X, "s32", "s33", 1728 * 1280)
        e("s_mov_b32 m0, %d" % L_WQ)
        e("s_nop 0")
        for t in range(12):
            e("buffer_load_dwordx4 v26, %s, %s offen nt lds" % (srd(SRD_X), S_OFF))
            if t < 11:
                e("s_add_u32 m0, m0, 0x400")
                e("s_add_u32 %s, %s, %d" % (S_OFF, S_OFF, 8 * 1280))
        lab("L_ld1")
    if "nowo" not in XP:
        for c in range(8):
            if c >= NBUF: flagwait(0, 4, c - NBUF + 1)
            for k in range(10):
                e("s_add_u32 m0, s68, %d" % ((c % NBUF) * 20480 + k * 1024))
                if 10 * c + k >= WO_WIN: e("s_waitcnt vmcnt(%d)" % (WO_WIN - 1))
                else: e("s_nop 0")
                if c and k == WO_WIN - 1: flag(12, c)
                e("buffer_load_dwordx4 v2, %s, %s offen nt lds" % (srd(SRD_W), S_T1))
                if (c, k) != (7, 9): e("s_add_u32 %s, %s, %d" % (S_T1, S_T1, 1024 if k < 9 else 20480 - 9 * 1024))
            if c == 7:
                e("s_waitcnt vmcnt(0)")
                flag(12, 8)
            if c: consume(c - 1)
        consume(7)
    e("s_cmp_lg_u32 %s, 2" % S_W)
    e("s_cbranch_scc1 L_prep")
    e("s_cmp_lt_u32 s2, %d" % (NWG - NF2 if "noffn" not in XP and "noh2" not in XP else 1000))
    e("s_cbranch_scc1 L_prep")
    S_RG, S_CB = "s68", "s69"
    e("s_sub_u32 %s, 255, s2" % S_T0)
    e("s_mul_i32 %s, %s, 205" % (S_RG, S_T0))
    e("s_lshr_b32 %s, %s, 11" % (S_RG, S_RG))
    e("s_mul_i32 %s, %s, 10" % (S_T1, S_RG))
    e("s_sub_u32 %s, %s, %s" % (S_CB, S_T0, S_T1))
    e("v_lshrrev_b32 v26, 3, v0")
    e("v_mul_u32_u24 v26, 1280, v26")
    e("v_and_b32 v27, 7, v0")
    e("v_lshl_add_u32 v26, v27, 4, v26")
    e("s_mul_i32 %s, %s, %d" % (S_OFF, S_RG, 96 * FS * 1280))
    e("s_lshl_b32 %s, %s, 7" % (S_T0, S_CB))
    e("s_add_u32 %s, %s, %s" % (S_OFF, S_OFF, S_T0))
    mk_srd(SRD_W, "s32", "s33", 1728 * 1280)
    e("s_mov_b32 m0, %d" % L_WQ)
    e("s_nop 0")
    assert L_WQ + 12288 * FS <= L_WO
    for t in range(12 * FS):
        if t >= xpv("wdw", 12): e("s_waitcnt vmcnt(%d)" % (xpv("wdw", 12) - 1))
        e("buffer_load_dwordx4 v26, %s, %s offen nt lds" % (srd(SRD_W), S_OFF))
        if t < 12 * FS - 1:
            e("s_add_u32 m0, m0, 0x400")
            e("s_add_u32 %s, %s, %d" % (S_OFF, S_OFF, 8 * 1280))
    e("v_cmp_le_u32 vcc, 24, v0")
    e("v_mov_b32 v28, 24")
    e("v_mov_b32 v29, 128")
    e("v_cndmask_b32 v28, 0, v28, vcc")
    e("v_cndmask_b32 v29, 0, v29, vcc")
    e("v_sub_u32 v28, v0, v28")
    e("v_min_u32 v28, 23, v28")
    e("v_and_b32 v31, 7, v28")
    e("v_lshl_add_u32 v29, v31, 4, v29")
    e("v_lshrrev_b32 v31, 3, v28")
    e("v_lshl_add_u32 v29, v31, 9, v29")
    e("v_mov_b32 v30, 192")
    e("v_cndmask_b32 v30, 0, v30, vcc")
    e("v_lshl_add_u32 v30, v28, 3, v30")
    e("s_mul_i32 %s, %s, %d" % (S_IT, S_RG, 1536 * FS))
    e("s_add_u32 %s, %s, 0x%x" % (S_IT, S_IT, GX_OFF))
    e("s_add_u32 s70, %s, 27648" % S_IT)
    e("s_add_u32 s71, %s, 55296" % S_IT)
    e("s_add_u32 s73, %s, %d" % (S_IT, 55296 + 27648))
    e("v_lshlrev_b32 v28, 10, v24")
    e("v_lshrrev_b32 v27, 2, v25")
    e("v_lshl_add_u32 v28, v27, 7, v28")
    e("v_and_b32 v27, 3, v0")
    e("v_lshl_add_u32 v28, v27, 3, v28")
    e("v_mul_u32_u24 v27, 192, v27")
    e("v_lshl_add_u32 v27, v24, 4, v27")
    e("ds_read_b32 v94, v%d offset:%d" % (VZ, L_CNT + 8))
    HF, WF, AC = 64, 48, 8
    for i in range(16): e("v_mov_b32 v%d, 0" % (AC + i))
    e("s_waitcnt lgkmcnt(0)")
    e("v_readfirstlane_b32 %s, v94" % S_T0)
    stags()
    e("s_mov_b32 s75, 0")
    lab("L_wd")
    e("s_mov_b32 exec_hi, 0xffff")
    e("s_mov_b64 s[4:5], exec")
    SO = [S_IT, "s70", "s71", "s73"]
    if "noh2poll" not in XP: ypoll(["buffer_load_dwordx4 %s, v29, %s, %s offen offset:%d sc1" % (vr(40 + 16 * bb + 4 * k), srd(SRD_WS), SO[k], 256 * bb) for bb in range(2) for k in range(4)],
          [(40 + 16 * bb + 4 * k, 72 + 4 * k) for bb in range(2) for k in range(4)], 31, 16, "s[4:5]")
    for r in range(40, 72):
        e("v_and_b32 v%d, 0xfffffc00, v%d" % (r, r))
    for bb in range(2):
        g = 40 + 16 * bb
        for i in range(4):
            e("v_add_f32 v%d, v%d, v%d" % (g + i, g + i, g + 4 + i))
            e("v_add_f32 v%d, v%d, v%d" % (g + 8 + i, g + 8 + i, g + 12 + i))
        for k in range(2):
            e("v_cvt_pk_bf16_f32 v%d, v%d, v%d" % (g + 4 + k, g + 2 * k, g + 2 * k + 1))
            e("v_cvt_pk_bf16_f32 v%d, v%d, v%d" % (g + 12 + k, g + 8 + 2 * k, g + 8 + 2 * k + 1))
        for k in range(2):
            e("v_lshlrev_b32 v31, 16, v%d" % (g + 4 + k))
            e("v_and_b32 v32, 0xffff0000, v%d" % (g + 4 + k))
            e("v_lshlrev_b32 v33, 16, v%d" % (g + 12 + k))
            e("v_and_b32 v34, 0xffff0000, v%d" % (g + 12 + k))
            e("v_mul_f32 v31, v31, v33")
            e("v_mul_f32 v32, v32, v34")
            e("v_cvt_pk_bf16_f32 v%d, v31, v32" % (g + k))
        e("ds_write_b64 v30, %s offset:%d" % (vr(g, 2), L_HT + 384 * bb))
    e("s_mov_b64 exec, -1")
    e("s_waitcnt lgkmcnt(0)")
    for s in range(3):
        e("ds_read_b128 %s, v27 offset:%d" % (vr(HF + 4 * s), L_HT + 64 * s))
    for s in range(3):
        for nt in range(4):
            r = WF + 4 * nt
            e("ds_read_b64_tr_b16 %s, v28 offset:%d" % (vr(r, 2), L_WQ + 4096 * s + 32 * nt))
            e("ds_read_b64_tr_b16 %s, v28 offset:%d" % (vr(r + 2, 2), L_WQ + 4096 * s + 32 * nt + 512))
        e("s_waitcnt lgkmcnt(0)")
        for nt in range(4):
            e("%s %s, %s, %s, %s" % (MFMA, vr(AC + 4 * nt), vr(WF + 4 * nt), vr(HF + 4 * s), vr(AC + 4 * nt)))
        e("s_nop 7")
    e("v_add_u32 v28, 12288, v28")
    e("v_add_u32 v29, 1536, v29")
    e("s_add_u32 s75, s75, 1")
    e("s_cmp_lt_u32 s75, %d" % FS)
    e("s_cbranch_scc1 L_wd")
    stamp(3)
    e("v_bfe_u32 v30, v0, 3, 1")
    e("v_lshlrev_b32 v30, 2, v30")
    e("v_and_b32 v31, 3, v0")
    e("v_add_u32 v30, v30, v31")
    e("v_lshlrev_b32 v30, 7, v30")
    e("v_bfe_u32 v31, v0, 2, 1")
    e("v_lshl_add_u32 v30, v31, 6, v30")
    e("v_lshl_add_u32 v30, v24, 4, v30")
    e("s_sub_u32 %s, 255, s2" % S_OFF)
    e("s_lshl_b32 %s, %s, 10" % (S_OFF, S_OFF))
    e("s_add_u32 %s, %s, 0x%x" % (S_OFF, S_OFF, F_OFF))
    e("s_nop 3")
    for nt in range(1, 4):
        for i in range(4):
            e("v_mov_b32_dpp v%d, v%d row_shr:%d row_mask:0xf bank_mask:0x%x" % (AC + i, AC + 4 * nt + i, 4 * nt, 1 << nt))
    ypack(AC)
    if "noh2st" not in XP: e("buffer_store_dwordx4 %s, v30, %s, %s offen sc1" % (vr(AC), srd(SRD_WS), S_OFF))
    e("s_waitcnt vmcnt(0)")
    stamp(4)

    lab("L_prep")
    e("ds_read_b32 v94, v%d offset:%d" % (VZ, L_CNT + 8))
    e("v_and_b32 v26, 3, v0")
    e("v_bfe_u32 v27, v0, 2, 1")
    e("v_lshl_add_u32 v26, v26, 1, v27")
    e("v_mul_u32_u24 v9, %d, v26" % OA_ROW)
    e("v_lshl_add_u32 v9, v24, 4, v9")
    e("s_mul_i32 %s, %s, 640" % (S_T0, S_W))
    e("v_lshlrev_b32 v10, 2, v0")
    e("v_add_u32 v10, %s, v10" % S_T0)
    if SM == 2:
        e("v_lshrrev_b32 v26, 5, v0")
        e("v_mul_u32_u24 v26, 192, v26")
        e("v_add_u32 v10, v10, v26")
    e("s_waitcnt lgkmcnt(0)")
    e("v_readfirstlane_b32 %s, v94" % S_T0)
    e("v_mov_b32 v62, v94")
    e("v_xor_b32 v63, %s, v94" % TAGX)
    stags()
    e("v_and_b32 v26, 3, v0")
    e("v_mov_b32 v11, s%d" % S_TG)
    for i in range(1, 4):
        e("v_mov_b32 v27, s%d" % (S_TG + i))
        e("v_cmp_eq_u32 vcc, %d, v26" % i)
        e("s_nop 1")
        e("v_cndmask_b32 v11, v11, v27, vcc")
    e("s_lshl_b32 %s, %s, 1" % (S_IT, S_BH))
    e("s_add_u32 %s, %s, %s" % (S_IT, S_IT, S_HALF))
    e("s_mul_i32 %s, %s, 2560" % (S_IT, S_IT))
    e("s_and_b32 %s, s2, 3" % S_C)
    e("s_lshl_b32 %s, %s, 2" % (S_C, S_C))
    e("s_add_u32 %s, %s, %s" % (S_C, S_C, S_W))
    e("s_mul_i32 %s, %s, %d" % (S_C, S_C, 16 * 2560))
    e("s_lshr_b32 %s, s2, 2" % S_T1)
    e("s_lshl_b32 %s, %s, 7" % (S_T1, S_T1))
    e("s_add_u32 %s, %s, %s" % (S_C, S_C, S_T1))
    e("s_add_u32 %s, %s, %d" % (S_A, S_C, 8 * 2560))
    e("v_and_b32 v86, 7, v0")
    e("v_lshlrev_b32 v86, 4, v86")
    e("v_bfe_u32 v87, v0, 4, 1")
    e("v_lshl_add_u32 v86, v87, 3, v86")
    e("v_lshrrev_b32 v87, 5, v0")
    e("v_lshl_add_u32 v86, v87, 2, v86")
    e("v_lshrrev_b32 v87, 3, v0")
    e("v_mul_u32_u24 v87, 2560, v87")
    e("v_and_b32 v28, 7, v0")
    e("v_lshl_add_u32 v87, v28, 4, v87")
    e("s_waitcnt vmcnt(0)")
    stamp(5)
    e("s_cmp_lg_u32 %s, 0" % S_W)
    e("s_cbranch_scc1 L_h8")
    e("v_and_b32 v12, 3, v0")
    e("v_lshlrev_b32 v13, 2, v12")
    e("v_lshlrev_b32 v12, 3, v12")
    e("s_and_b32 %s, s2, 127" % S_OFF)
    e("s_lshl_b32 %s, %s, 7" % (S_OFF, S_OFF))
    e("s_add_u32 %s, %s, 0x%x" % (S_OFF, S_OFF, RC_OFF))
    e("s_lshl_b32 %s, %s, 6" % (S_T1, S_HALF))
    e("s_add_u32 s68, %s, %s" % (S_OFF, S_T1))
    e("s_xor_b32 s69, s68, 64")
    lds_wait(0, "4", 94, VZ, 8 if not FC else 4)
    if FC: e("s_memrealtime s[4:5]")
    e("ds_read_b64 v[14:15], v12 offset:%d" % L_ML)
    e("s_waitcnt lgkmcnt(0)")
    e("v_mov_b32 v60, v14")
    allreduce4("max", 60)
    e("v_sub_f32 v16, v14, v60")
    e("v_mul_f32 v16, %s, v16" % LOG2E)
    e("v_exp_f32 v16, v16")
    e("s_nop 0")
    e("v_mul_f32 v61, v16, v15")
    allreduce4("add", 61)
    if FC:
        e("v_mov_b32 v44, v60")
        e("v_mov_b32 v45, v61")
        e("v_mov_b32 v46, v62")
        e("v_mov_b32 v47, v63")
        e("s_mov_b64 exec, 2")
        e("v_mov_b32 v44, s4")
        e("s_mov_b64 exec, 3")
        e("buffer_store_dwordx4 v[44:47], v2, %s, s68 offen sc1" % srd(SRD_WS))
    else:
        e("s_mov_b64 exec, 1")
        if "nopair" not in XP: e("buffer_store_dwordx4 v[60:63], off, %s, s68 sc1" % srd(SRD_WS))
    e("s_mov_b64 exec, -1")
    stamp(6)
    if xpv("rw", 1): e("s_waitcnt vmcnt(0)")
    if "nopair" not in XP: tpoll(["buffer_load_dwordx4 v[40:43], off, %s, s69 sc1" % srd(SRD_WS)], [(40, 62, 63)], xpv("rsl", 32))
    e("v_max_f32 v17, v60, v40")
    e("v_sub_f32 v60, v60, v17")
    e("v_sub_f32 v40, v40, v17")
    e("v_sub_f32 v14, v14, v17")
    e("v_mul_f32 v60, %s, v60" % LOG2E)
    e("v_mul_f32 v40, %s, v40" % LOG2E)
    e("v_mul_f32 v14, %s, v14" % LOG2E)
    e("v_exp_f32 v60, v60")
    e("v_exp_f32 v40, v40")
    e("v_exp_f32 v14, v14")
    e("v_mul_f32 v61, v60, v61")
    e("v_fmac_f32 v61, v40, v41")
    e("v_rcp_f32 v61, v61")
    e("s_nop 0")
    e("v_mul_f32 v14, v14, v61")
    e("ds_write_b32 v13, v14 offset:%d" % L_SC)
    if FC: census(RC_OFF + 16, 6, 5, xpv("tsl", 32))
    e("s_waitcnt lgkmcnt(0)")
    lab("L_h8")
    e("s_sub_u32 %s, %s, 1" % (S_T0, S_W))
    e("s_cmp_lt_u32 %s, 2" % S_T0)
    e("s_cbranch_scc1 L_nc")
    for c in range(4, 8): consume(c)
    e("s_cmp_ge_u32 s2, %d" % NCONS)
    e("s_cbranch_scc1 L_nc")
    e("s_cmp_lg_u32 %s, 3" % S_W)
    e("s_cbranch_scc1 L_nc")
    e("s_lshr_b32 %s, s2, 3" % S_T1)
    e("v_lshrrev_b32 v30, 3, v0")
    e("v_and_b32 v29, 7, v0")
    e("v_lshlrev_b32 v29, 4, v29")
    NSL = 18 // FS
    NL = (NSL + 7) // 8
    for k in range(NL):
        e("v_add_u32 v31, %d, v30" % (8 * k))
        if k == NL - 1: e("v_min_u32 v31, %d, v31" % (NSL - 1))
        e("v_mul_u32_u24 v31, 10240, v31")
        e("v_add_u32 v%d, v31, v29" % (36 + k))
    e("s_lshl_b32 %s, s2, 7" % S_OFF)
    e("s_add_u32 %s, %s, 0x%x" % (S_OFF, S_OFF, F_OFF))
    lds_wait(12, str(4 * xpv("fgb", 9)), 94, VZ, 16)
    if "noffn" not in XP and "noh3poll" not in XP: ypoll(["buffer_load_dwordx4 %s, v%d, %s, %s offen sc1" % (vr(40 + 4 * k), 36 + k, srd(SRD_WS), S_OFF) for k in range(NL)],
          [(40 + 4 * k, 64) for k in range(NL)], 52, 32)
    e("v_cmp_gt_u32 vcc, %d, v0" % (8 * (NSL - 8 * (NL - 1))))
    e("s_nop 1")
    for i in range(4):
        e("v_cndmask_b32 v%d, 0, v%d, vcc" % (40 + 4 * (NL - 1) + i, 40 + 4 * (NL - 1) + i))
    for k in range(1, NL):
        for i in range(4):
            e("v_add_f32 v%d, v%d, v%d" % (40 + i, 40 + i, 40 + 4 * k + i))
    red8(40)
    e("ds_write_b32 v86, v40 offset:%d" % (L_R + 512))
    e("v_lshlrev_b32 v30, 2, v0")
    e("v_and_b32 v30, 127, v30")
    e("v_sub_f32 v31, 1.0, v%d" % V_G)
    bf16r(31)
    e("s_waitcnt lgkmcnt(0)")
    e("ds_read_b32 v%d, v30 offset:%d" % (V_FB, L_R + 512))
    e("s_waitcnt lgkmcnt(0)")
    bf16r(V_FB)
    e("v_mul_f32 v%d, v31, v%d" % (V_FB, V_FB))
    bf16r(V_FB)
    lab("L_nc")
    if FC and CC:
        e("s_cmp_lg_u32 %s, 1" % S_W)
        e("s_cbranch_scc1 L_nctl")
        for i, c in enumerate(CC): sample(1 + i, c)
        lab("L_nctl")
    lab("L_h9")
    stamp(7)
    e("s_lshl_b32 %s, %s, 7" % (S_T0, S_W))
    e("v_add_u32 v86, %s, v86" % S_T0)
    YPRE = xpv("ypre", 0)
    if YPRE & 1:
        e("s_cmp_ge_u32 s2, %d" % NCONS)
        e("s_cbranch_scc1 L_ypre")
        PP = {0: "sc1", 1: "", 2: "nt", 3: "sc0", 4: "sc1 nt"}[xpv("ypp", 0)]
        if xpv("ypm", 0) == 1:
            e("s_mov_b32 exec_lo, 0x01010101"); e("s_mov_b32 exec_hi, 0x01010101")
        if xpv("ypm", 0) == 2:
            e("s_mov_b32 exec_lo, 0xffff"); e("s_mov_b32 exec_hi, 0")
        e("buffer_load_dwordx4 v[32:35], v87, %s, %s offen %s" % (srd(SRD_WS), S_C, PP))
        e("buffer_load_dwordx4 v[36:39], v87, %s, %s offen %s" % (srd(SRD_WS), S_A, PP))
        e("s_mov_b64 exec, -1")
        e("s_waitcnt vmcnt(0)")
        lab("L_ypre")
    if YPRE & 2:
        e("v_xor_b32 v32, 0x3ff, v11")
        e("buffer_store_dword v32, v10, %s, %s offen sc1" % (srd(SRD_WS), S_IT))
        e("buffer_store_dword v32, v10, %s, %s offen offset:256 sc1" % (srd(SRD_WS), S_IT))
        e("s_mov_b32 exec_hi, 0")
        e("buffer_store_dword v32, v10, %s, %s offen offset:512 sc1" % (srd(SRD_WS), S_IT))
        e("s_mov_b64 exec, -1")
        e("s_waitcnt vmcnt(0)")
    if DRY:
        e("s_mul_i32 s68, %s, 10240" % S_W)
        e("s_add_u32 s68, s68, %d" % L_WO)
        e("v_lshlrev_b32 v28, 2, v0")
        e("v_add_u32 v28, s68, v28")
        e("s_mov_b32 s73, 1")
        e("s_mov_b32 s72, %d" % SPIN_MAX)
        e("s_cmp_eq_u32 s73, 0")
        e("s_branch L_send")
        lab("L_tail")
        e("s_cmp_lg_u32 s73, 0")
        e("s_cbranch_scc1 L_nb")
    e("s_mul_i32 s68, %s, 10240" % S_W)
    e("s_add_u32 s68, s68, %d" % L_WO)
    e("v_lshlrev_b32 v77, 2, v0")
    e("v_add_u32 v77, s68, v77")
    e("v_add_u32 v78, s68, v2")
    e("s_mul_i32 s68, %s, 640" % S_W)
    e("v_add_u32 v79, s68, v2")
    e("s_mov_b32 s68, 0x11111111")
    e("s_mov_b32 s69, 0x11111111")
    if SM:
        assert not DRY
        e("s_mov_b32 s70, 0x%x" % (0xffff if xpv("ydw", 0) else 0x1111))
        e("s_mov_b32 s71, 0x%x" % (0xffff if xpv("ydw", 0) else 0x1111))
        for i in range(20): e("v_mov_b32 v%d, 0" % (32 + i))
        e("v_mov_b32 v76, 0x44444444")
        e("v_mov_b32 v77, 0xeeeeeeee")
        e("v_and_b32 v78, 8, v0")
        e("v_cmp_ne_u32 vcc, 0, v78")
        e("s_nop 1")
        e("v_cndmask_b32 v76, v76, v77, vcc")
        e("v_lshrrev_b32 v77, 5, v0")
        e("v_lshlrev_b32 v77, 6, v77")
        e("v_sub_u32 v77, v10, v77")
    else:
        e("s_mov_b32 s70, 0x11111111")
        e("s_mov_b32 s71, 0")
    e("s_barrier")
    if DRY: lab("L_nb")
    AF, DT, SC = 12, 32, 72
    POL = {0: "sc1", 1: "sc0 sc1", 2: "sc1 nt", 3: "sc0 sc1 nt"}
    YST, YLD = POL[xpv("yst", 0)], POL[xpv("yld", 0)]
    for s4 in range(4):
        e("ds_read_b128 %s, v9 offset:%d" % (vr(AF + 4 * s4), L_OP + 64 * s4))
    e("ds_read_b128 %s, v%d offset:%d" % (vr(SC), VZ, L_SC))
    YW = xpv("yw", -1000)
    if YW > -1000: e("ds_read_b32 v76, v%d offset:%d" % (VZ, L_CNT + 20))
    ops = []
    pos = [0]
    mark = {}
    def em(x): e(x); pos[0] += 3 if "\n" in x else 1
    def ready(o):
        r = 0
        for pr, d in o[1]:
            if pr is None: r = max(r, d)
            elif pr not in mark: return 1 << 30
            else: r = max(r, mark[pr] + d)
        return r
    def drain(n):
        k = 0
        while k < n:
            c = [o for o in ops if ready(o) <= pos[0]]
            if not c: break
            ops.remove(c[0]); em(c[0][0]); mark[c[0][0]] = pos[0]; k += 1
    last = {}
    PORD = [4, 0, 1, 2, 3] if not xpv("p4l", 0) else [0, 1, 2, 3, 4]
    def pad3():
        p0 = pos[0]
        while pos[0] < p0 + 3:
            q0 = pos[0]
            drain(1)
            if pos[0] == q0:
                k = min([ready(o) for o in ops] + [p0 + 3]) - q0
                k = min(k, p0 + 3 - q0)
                e("s_nop %d" % (k - 1)); pos[0] += k
    for n, P in enumerate(PORD if SM else []):
        assert YW <= -1000
        d = DT + 4 * P
        for s4 in range(4):
            if n == 0: e("s_waitcnt lgkmcnt(%d)" % (4 - s4))
            if n == 1 and s4 == 0: e("s_waitcnt lgkmcnt(0)")
            em("v_smfmac_f32_16x16x64_bf16 %s, %s, %s, v76" % (vr(d), vr(AF + 4 * s4), vr(WREG + 32 * P + 8 * s4, 8)))
            rdy = pos[0] + 8
            if n == 0: pos[0] += 0
            elif (n, s4) != (4, 3): pad3()
        if n == 0: rdy = 1 << 20
        x = "v_pk_mul_f32 %s, %s, %s" % (vr(d, 2), vr(d, 2), vr(SC, 2))
        ops.append([x, [(None, rdy if n else pos[0] + 9)]])
        y = "v_pk_fma_f32 %s, %s, %s, %s" % (vr(d, 2), vr(d + 2, 2), vr(SC + 2, 2), vr(d, 2))
        ops.append([y, [(x, 0)]])
        if P == 4:
            x2 = "v_add_f32 v%d, v%d, v%d" % (d + 2, d, d + 1)
            ops.append([x2, [(y, 0)]])
        x = "v_add_f32 v%d, v%d, v%d" % (d, d, d + 1)
        ops.append([x, [(y, 0)] + ([(x2, 0)] if P == 4 else [])])
        last[P] = x
        if P == 4 or P & 1:
            a, b = (d, d + 2) if P == 4 else (d - 4, d)
            x = "v_permlane16_swap_b32 v%d, v%d" % (a, b)
            ops.append([x, [(last[P], 2), (x2 if P == 4 else last[P - 1], 2)]])
            y = "v_add_f32 v%d, v%d, v%d" % (a, a, b)
            ops.append([y, [(x, 1)]])
            r = a
            x = "v_add_u32 v%d, 0x200, v%d" % (r, r)
            ops.append([x, [(y, 0)]])
            z = "v_bfi_b32 v%d, v%d, v11, v%d" % (r, V_M10, r)
            ops.append([z, [(x, 0)]])
            if xpv("ydw", 0):
                assert SM == 1
                st = "buffer_store_dword v%d, v%d, %s, %s offen offset:%d %s" % (r, 77 if P == 4 else 10, srd(SRD_WS), S_IT, 256 * (P >> 1), YST)
                if P == 4: st = "s_mov_b64 exec, s[70:71]\n    " + st + "\n    s_mov_b64 exec, -1"
                ops.append([st, [(z, 0)]])
                continue
            mv = []
            for i in range(1, 4):
                mv.append("v_mov_b32_dpp v%d, v%d quad_perm:[%d,%d,%d,%d] row_mask:0xf bank_mask:0xf" % (r + i, r, i, i, i, i))
                ops.append([mv[-1], [(z, 2)]])
            st = "s_mov_b64 exec, s[%d:%d]\n" % ((70, 71) if P == 4 else (68, 69))
            st += "    buffer_store_dwordx4 %s, v%d, %s, %s offen offset:%d %s\n" % (vr(r), 77 if SM == 1 and P == 4 else 10, srd(SRD_WS), S_IT, (128 if SM == 2 else 256) * (P >> 1), YST)
            st += "    s_mov_b64 exec, -1"
            ops.append([st, [(m, 0) for m in mv]])
    for t in range(0 if SM else 10):
        d = DT + 4 * t
        for s4 in range(4):
            if t == 0: e("s_waitcnt lgkmcnt(%d)" % (4 - s4 + (YW > -1000)))
            if t == 1 and s4 == 0: e("s_waitcnt lgkmcnt(0)")
            em("%s %s, %s, %s, %s" % (MFMA, vr(d), vr(AF + 4 * s4), vr(W(4 * t + s4)), "0" if s4 == 0 else vr(d)))
            rdy = pos[0] + 8
            if "nopad" in XP and t < xpv("padfrom", 6):
                drain(3)
            elif (t, s4) != (9, 3):
                p0 = pos[0]
                while pos[0] < p0 + 3:
                    q0 = pos[0]
                    drain(1)
                    if pos[0] == q0:
                        k = min([ready(o) for o in ops] + [p0 + 3]) - q0 if ops else p0 + 3 - q0
                        k = min(k, p0 + 3 - q0)
                        if t or s4 == 3: e("s_nop %d" % (k - 1))
                        pos[0] += k if (t or s4 == 3) else 0
                        if not (t or s4 == 3): break
        x = "v_pk_mul_f32 %s, %s, %s" % (vr(d, 2), vr(d, 2), vr(SC, 2))
        ops.append([x, [(None, max(rdy, 9))]])
        y = "v_pk_fma_f32 %s, %s, %s, %s" % (vr(d, 2), vr(d + 2, 2), vr(SC + 2, 2), vr(d, 2))
        ops.append([y, [(x, 0)]])
        x = "v_add_f32 v%d, v%d, v%d" % (d, d, d + 1)
        ops.append([x, [(y, 0)]])
        last[t] = x
        if t & 1:
            a, b = d - 4, d
            x = "v_permlane16_swap_b32 v%d, v%d" % (a, b)
            ops.append([x, [(last[t], 2), (last[t - 1], 2)]])
            y = "v_add_f32 v%d, v%d, v%d" % (a, a, b)
            ops.append([y, [(x, 1)]])
            last[t] = y
            fin = None
            if t & 3 == 3:
                x = "v_permlane32_swap_b32 v%d, v%d" % (d - 12, d - 4)
                ops.append([x, [(y, 2), (last[t - 2], 2)]])
                fin = (d - 12, x, 1)
            elif t == 9:
                fin = (a, y, 0)
            if fin:
                r, x, dd = fin
                y = "v_add_u32 v%d, 0x200, v%d" % (r, r)
                ops.append([y, [(x, dd)]])
                z = "v_bfi_b32 v%d, v%d, v11, v%d" % (r, V_M10, r)
                ops.append([z, [(y, 0)]])
                YT = xpv("yt", 0)
                if YT == 2 or (YT == 1 and t != 9):
                    w1 = "ds_write_b32 v77, v%d offset:%d" % (r, 256 * (t >> 2))
                    ops.append([w1, [(z, 0)]])
                    r1 = "ds_read_b128 %s, v78 offset:%d" % (vr(r), 256 * (t >> 2))
                    ops.append([r1, [(w1, 0)]])
                    st = "s_waitcnt lgkmcnt(0)\n    s_mov_b64 exec, %s\n" % ("0xff" if t == 9 else "0xffff")
                    st += "    buffer_store_dwordx4 %s, v79, %s, %s offen offset:%d %s\n" % (vr(r), srd(SRD_WS), S_IT, 256 * (t >> 2), YST)
                    st += "    s_mov_b64 exec, -1"
                    ops.append([st, [(r1, xpv("ytd", 20) if t != 9 else 0)]])
                    continue
                mv = []
                for i in range(1, 4):
                    mv.append("v_mov_b32_dpp v%d, v%d quad_perm:[%d,%d,%d,%d] row_mask:0xf bank_mask:0xf" % (r + i, r, i, i, i, i))
                    ops.append([mv[-1], [(z, 2)]])
                st = "s_mov_b64 exec, s[%d:%d]\n" % ((70, 71) if t == 9 else (68, 69))
                if DRY: st += "    s_cbranch_scc1 L_ns%d\n" % t
                st += "    buffer_store_dwordx4 %s, v10, %s, %s offen offset:%d %s\n" % (vr(r), srd(SRD_WS), S_IT, 256 * (t >> 2), YST)
                if DRY: st += "L_ns%d:\n" % t
                st += "    s_mov_b64 exec, -1"
                ops.append([st, [(m, 0) for m in mv]])
    CR = (DT + 8, DT + 9, DT + 10, DT + 11, DT + 12) if SM else (DT + 32, DT + 33, DT + 34, DT + 35, DT + 36)
    if SM and PORD[-1] == 4: CR = (DT + 16, DT + 17, DT + 18, DT + 19)
    crit = [o for o in ops if any(("v%d" % q) in o[0] or ("v[%d" % q) in o[0] for q in CR)]
    ops[:] = crit + [o for o in ops if o not in crit]
    while ops:
        n = len(ops)
        drain(1)
        if len(ops) == n:
            r = min(ready(o) for o in ops)
            e("s_nop %d" % (r - pos[0] - 1)); pos[0] = r
    stamp(8)
    e("s_cmp_ge_u32 s2, %d" % NCONS)
    e("s_cbranch_scc1 L_hend")
    NS = xpv("ns", 3)
    if SP:
        e("s_cmp_lg_u32 %s, 3" % S_W)
        e("s_cbranch_scc1 L_hend")
        NS = -1
    if YW > -1000:
        e("v_readfirstlane_b32 s70, v76")
        e("s_cmp_eq_u32 s70, 0")
        e("s_cbranch_scc1 L_ywd")
        e("s_add_u32 s70, s70, %d" % (sched(13) + YW))
        lab("L_yw")
        e("s_memrealtime s[4:5]")
        e("s_waitcnt lgkmcnt(0)")
        e("s_sub_u32 s4, s70, s4")
        e("s_cmp_le_i32 s4, 0")
        e("s_cbranch_scc1 L_ywd")
        spin_guard("L_ywd")
        e("s_sleep 1")
        e("s_branch L_yw")
        lab("L_ywd")
    if NS == 0:
        ypoll(["buffer_load_dwordx4 v[12:15], v87, %s, %s offen sc1" % (srd(SRD_WS), S_C),
               "buffer_load_dwordx4 v[16:19], v87, %s, %s offen sc1" % (srd(SRD_WS), S_A)], [(12, 76), (16, 80)], 20, xpv("ysl", 0))
        for i in range(4):
            e("v_add_f32 v%d, v%d, v%d" % (12 + i, 12 + i, 16 + i))
    elif NS > 0:
        def pl(k):
            e("buffer_load_dwordx4 %s, v87, %s, %s offen %s" % (vr(32 + 8 * k), srd(SRD_WS), S_C, YLD))
            e("buffer_load_dwordx4 %s, v87, %s, %s offen %s" % (vr(36 + 8 * k), srd(SRD_WS), S_A, YLD))
        if DRY:
            e("s_cmp_lg_u32 s73, 0")
            e("s_cselect_b64 exec, 1, -1")
        for k in range(NS):
            pl(k)
            if k < NS - 1: e("s_sleep %d" % xpv("yg", 9))
        lab("L_yp")
        for k in range(NS):
            g = 32 + 8 * k
            e("s_waitcnt vmcnt(%d)" % (2 * (NS - 1)))
            e("v_xor_b32 v20, s%d, v%d" % (S_TG, g))
            e("v_xor_b32 v21, s%d, v%d" % (S_TG + 1, g + 1))
            e("v_or_b32 v20, v20, v21")
            for i in range(2, 8, 2):
                e("v_xor_b32 v21, s%d, v%d" % (S_TG + (i & 3), g + i))
                e("v_xor_b32 v22, s%d, v%d" % (S_TG + (i & 3) + 1, g + i + 1))
                e("v_or3_b32 v20, v20, v21, v22")
            e("v_and_b32 v20, 0x3ff, v20")
            e("v_cmp_ne_u32 vcc, 0, v20")
            e("s_andn2_b64 exec, exec, vcc")
            for i in range(4):
                e("v_add_f32 v%d, v%d, v%d" % (12 + i, g + i, g + 4 + i))
            e("s_mov_b64 exec, vcc")
            e("s_cbranch_execz L_ypd")
            pl(k)
        spin_guard("L_ypd")
        e("s_branch L_yp")
        lab("L_ypd")
        e("s_mov_b64 exec, -1")
        if "t3" in XP: stamp(3)
    if not SP:
        red8(12)
        e("ds_write_b32 v86, v12 offset:%d" % L_R)
    e("v_lshlrev_b32 v12, 2, v0")
    e("s_waitcnt lgkmcnt(0)")
    if SP:
        mk_srd(SRD_X, "s36", "s37", 5120)
        e("s_and_b32 s5, s2, 3")
        e("s_mul_i32 %s, s5, 1280" % S_T0)
        e("s_lshr_b32 %s, s2, 2" % S_T1)
        e("s_lshl_b32 %s, %s, 6" % (S_T1, S_T1))
        e("s_add_u32 %s, %s, %s" % (S_T0, S_T0, S_T1))
        e("v_lshlrev_b32 v13, 1, v0")
        e("s_mov_b32 exec_hi, 0")
        e("s_barrier")
        for w in range(4):
            e("ds_read_b32 v%d, v12 offset:%d" % (24 + w, L_R + w * 128))
        e("s_waitcnt lgkmcnt(2)")
        e("v_add_f32 v24, v24, v25")
        e("s_waitcnt lgkmcnt(0)")
        e("v_add_f32 v26, v26, v27")
        e("v_add_f32 v24, v24, v26")
        bf16r(24)
        e("v_mul_f32 v24, v%d, v24" % V_G)
        bf16r(24)
        e("v_add_f32 v24, v24, v%d" % V_FB)
        e("v_cvt_pk_bf16_f32 v24, v24, v24")
        e("buffer_store_short v24, v13, %s, %s offen" % (srd(SRD_X), S_T0))
        lab("L_hend")
        stamp(9)
        stamps_out(4)
        return
    if DRY:
        e("s_cmp_lg_u32 s73, 0")
        e("s_cbranch_scc1 L_nb2")
    e("s_barrier")
    if DRY: lab("L_nb2")
    e("s_cmp_lg_u32 %s, 3" % S_W)
    e("s_cbranch_scc1 L_hend")
    e("s_mov_b32 exec_hi, 0")
    for w in range(4):
        e("ds_read_b32 v%d, v12 offset:%d" % (24 + w, L_R + w * 128))
    mk_srd(SRD_X, "s36", "s37", 5120)
    e("s_and_b32 s5, s2, 3")
    e("s_mul_i32 %s, s5, 1280" % S_T0)
    e("s_lshr_b32 %s, s2, 2" % S_T1)
    e("s_lshl_b32 %s, %s, 6" % (S_T1, S_T1))
    e("s_add_u32 %s, %s, %s" % (S_T0, S_T0, S_T1))
    e("v_lshlrev_b32 v12, 1, v0")
    if DRY: e("s_cmp_lg_u32 s73, 0")
    e("s_waitcnt lgkmcnt(0)")
    e("v_add_f32 v24, v24, v25"); e("v_add_f32 v26, v26, v27")
    e("v_add_f32 v24, v24, v26")
    bf16r(24)
    e("v_mul_f32 v24, v%d, v24" % V_G)
    bf16r(24)
    e("v_add_f32 v24, v24, v%d" % V_FB)
    e("v_cvt_pk_bf16_f32 v24, v24, v24")
    if DRY: e("s_cbranch_scc1 L_hend")
    e("buffer_store_short v24, v12, %s, %s offen" % (srd(SRD_X), S_T0))
    lab("L_hend")
    if DRY:
        e("s_cmp_eq_u32 s73, 0")
        e("s_cbranch_scc1 L_hfin")
        e("s_mov_b32 s73, 0")
        e("s_mov_b32 s72, 0")
        e("s_mov_b64 exec, -1")
        e("s_branch L_tail")
        lab("L_hfin")
    stamp(9)
    stamps_out(4)


def main():
    ref = open("cdna_kernels/%s.s.ref" % NAME).read().split("\n")
    head = []
    for ln in ref:
        if ln.startswith("; @launch"):
            break
        head.append(ln)
    out = head + ["; @launch grid=(%d,1,1) block=(512,1,1) lds=%d" % (NWG, LDS_BYTES)]
    out += ['.amdgcn_target "amdgcn-amd-amdhsa--gfx950"', ".text", ".globl " + KNAME, ".p2align 8",
            ".type %s,@function" % KNAME, KNAME + ":"]
    e("s_cmp_ge_u32 s2, %d" % NWG)
    e("s_cbranch_scc1 L_end")
    if TS and "t00" in XP:
        e("s_memrealtime s[98:99]")
        e("s_waitcnt lgkmcnt(0)")
    e("s_load_dwordx16 s[16:31], s[0:1], 0")
    e("s_load_dwordx8 s[32:39], s[0:1], 64")
    e("s_load_dwordx2 s[40:41], s[0:1], 96")
    if "anti" in XP:
        e("s_and_b32 s4, s2, 7")
        e("s_lshl_b32 s4, s4, 5")
        e("s_lshr_b32 s2, s2, 3")
        e("s_or_b32 s2, s2, s4")
    e("v_lshrrev_b32 v1, 6, v0")
    e("v_and_b32 v0, 63, v0")
    e("s_mov_b32 s72, 0")
    e("v_readfirstlane_b32 %s, v1" % S_W)
    e("s_and_b32 s4, s2, 7")
    e("s_lshr_b32 s5, s2, 3")
    e("s_and_b32 %s, s5, 3" % S_H)
    e("s_lshl_b32 %s, %s, 3" % (S_H, S_H))
    e("s_add_u32 %s, %s, s4" % (S_H, S_H))
    e("s_lshr_b32 %s, s5, 2" % S_B)
    e("s_and_b32 %s, %s, 3" % (S_B, S_B))
    e("s_lshr_b32 %s, s5, 4" % S_HALF)
    e("s_lshl_b32 %s, %s, 5" % (S_BH, S_B))
    e("s_add_u32 %s, %s, %s" % (S_BH, S_BH, S_H))
    if TS:
        for i in range(NSTAMP): e("s_mov_b32 s%d, 0" % (76 + 2 * i))
    e("s_cmp_ge_u32 %s, 4" % S_W)
    e("s_cbranch_scc1 L_helper")
    if TS and "t00" in XP: e("s_mov_b32 s88, s98")
    streamer()
    helper()
    lab("L_end")
    e("s_endpgm")
    lab("L_code_end")
    out += L
    out += ['.section .rodata,"a"', ".p2align 6", ".amdhsa_kernel " + KNAME,
            "  .amdhsa_next_free_vgpr 256", "  .amdhsa_next_free_sgpr %d" % (100 if TS else 80), "  .amdhsa_accum_offset 256",
            "  .amdhsa_group_segment_fixed_size 0", "  .amdhsa_kernarg_size 104",
            "  .amdhsa_user_sgpr_count 2", "  .amdhsa_user_sgpr_kernarg_segment_ptr 1",
            "  .amdhsa_system_sgpr_workgroup_id_x 1", "  .amdhsa_float_denorm_mode_32 3",
            ".end_amdhsa_kernel", ""]
    open(OUT, "w").write("\n".join(out))

main()
```
